```python
import torch

def _softmax(x, axis=-1):
    return torch.softmax(x, dim=axis)
def _gelu(x):
    return torch.nn.functional.gelu(x, approximate="tanh")
def _silu(x):
    return torch.nn.functional.silu(x)
def _sigmoid(x):
    return torch.sigmoid(x)
def _layernorm(x, axis=-1, eps=1e-5):
    m = x.mean(dim=axis, keepdim=True)
    v = x.var(dim=axis, keepdim=True, unbiased=False)
    return (x - m) / torch.sqrt(v + eps)
def _scatter_add(tgt, idx, src, axis=0):
    return tgt.clone().index_add_(axis, idx, src)
def _segment_sum(src, seg, n):
    out = torch.zeros((n,) + src.shape[1:], dtype=src.dtype)
    return out.index_add_(0, seg, src)
def _pad(x, pw):
    flat = tuple(v for pair in reversed(pw) for v in pair)
    return torch.nn.functional.pad(x, flat)

kernel_name = 'concat_heads__grouped_kv_mqa__ssm_conv_s4__prompt'

def setup_inputs():

    _w = (lambda a: (lambda t: t.to(torch.bfloat16) if t.is_floating_point() else t)(torch.as_tensor(a)))
    def _A_setup():
        B, S, D, H = 1, 2048, 640, 32
        Dh = D // H
        return {
            "x": _w((lambda *s: torch.randn(*s, dtype=torch.bfloat16) * 0.05)(B, S, D)),
            "wq": _w((lambda *s: torch.randn(*s, dtype=torch.bfloat16) * 0.8)(D, H * Dh)),
            "wk": _w((lambda *s: torch.randn(*s, dtype=torch.bfloat16) * 0.8)(D, Dh)),
            "wv": _w((lambda *s: torch.randn(*s, dtype=torch.bfloat16) * 0.05)(D, Dh)),
            "wo": _w((lambda *s: torch.randn(*s, dtype=torch.bfloat16) * 0.05)(H * Dh, D)),
        }
    _A_in = _A_setup()

    def _B_setup():
        B, L, D, N = 1, 2048, 640, 128
        A_re = -(lambda _x: torch.exp(torch.as_tensor(_x)))((lambda *s: torch.randn(*s, dtype=torch.bfloat16) * 6.4)(D, N))
        A_im = torch.pi * (lambda *s: torch.randn(*s, dtype=torch.bfloat16) * 0.1)(D, N)
        B_re = (lambda *s: torch.randn(*s, dtype=torch.bfloat16) * 0.1)(D, N)
        B_im = (lambda *s: torch.randn(*s, dtype=torch.bfloat16) * 0.1)(D, N)
        C_re = (lambda *s: torch.randn(*s, dtype=torch.bfloat16) * 0.1)(D, N)
        C_im = (lambda *s: torch.randn(*s, dtype=torch.bfloat16) * 0.1)(D, N)
        log_dt = (lambda *s: torch.randn(*s, dtype=torch.bfloat16) * 0.1)(D) * 0.5 - 4.0
        Dskip = (lambda *s: torch.randn(*s, dtype=torch.bfloat16) * 0.05)(D)
        return {
            "u": _w((lambda *s: torch.randn(*s, dtype=torch.bfloat16) * 0.05)(B, L, D)),
            "A_re": _w(A_re),
            "A_im": _w(A_im),
            "B_re": _w(B_re),
            "B_im": _w(B_im),
            "C_re": _w(C_re),
            "C_im": _w(C_im),
            "log_dt": _w(log_dt),
            "Dskip": _w(Dskip),
        }
    _B_in = _B_setup()

    return {
        "A_x": _A_in["x"],
        "A_wq": _A_in["wq"],
        "A_wk": _A_in["wk"],
        "A_wv": _A_in["wv"],
        "A_wo": _A_in["wo"],
        "B_u": _B_in["u"],
        "B_A_re": _B_in["A_re"],
        "B_A_im": _B_in["A_im"],
        "B_B_re": _B_in["B_re"],
        "B_B_im": _B_in["B_im"],
        "B_C_re": _B_in["C_re"],
        "B_C_im": _B_in["C_im"],
        "B_log_dt": _B_in["log_dt"],
        "B_Dskip": _B_in["Dskip"],
    }

def reference(A_x, A_wq, A_wk, A_wv, A_wo, B_u, B_A_re, B_A_im, B_B_re, B_B_im, B_C_re, B_C_im, B_log_dt, B_Dskip):
    def _A_ref(x, wq, wk, wv, wo):
        B, S, D = x.shape
        H = 32
        Dh = D // H
        q = (lambda x, *d: x.permute(*d))((x @ wq).reshape(B, S, H, Dh), 0, 2, 1, 3)
        k = x @ wk
        v = x @ wv
        scores = torch.einsum("bhqd,bkd->bhqk", q, k) * (Dh ** -0.5)
        p = _softmax(scores, axis=-1)
        o = torch.einsum("bhqk,bkd->bhqd", p, v)
        return (lambda x, *d: x.permute(*d))(o, 0, 2, 1, 3).reshape(B, S, H * Dh) @ wo

    def _B_ref(u, A_re, A_im, B_re, B_im, C_re, C_im, log_dt, Dskip):
        Bsz, L, D = u.shape
        dt = torch.exp(log_dt)[:, None]
        A = A_re + 1j * A_im
        Bc = B_re + 1j * B_im
        Cc = C_re + 1j * C_im
        logdA = dt * A
        dB = dt * Bc
        l = (lambda x, dt: x.to(dt))(torch.arange(L), A_re.dtype)
        P = torch.exp(logdA[:, :, None] * l[None, None, :])
        K = torch.einsum("dn,dnl,dn->dl", Cc, P, dB).real
        L2 = 2 * L
        Kp = _pad(K, ((0, 0), (0, L)))
        up = (lambda x, *d: x.permute(*d))(u, 0, 2, 1)
        up = _pad(up, ((0, 0), (0, 0), (0, L)))
        Kf = (lambda x, axes=(-2,-1): torch.fft.rfft2(x.float(), dim=axes))(Kp[:, None, :], axes=(-2, -1))
        Uf = (lambda x, axes=(-2,-1): torch.fft.rfft2(x.float(), dim=axes))(up[:, :, None, :], axes=(-2, -1))
        Yf = Uf * Kf[None, :, :, :]
        y = (lambda x, s, axes=(-2,-1): torch.fft.irfft2(x, s=s, dim=axes).to(torch.bfloat16))(Yf, (1, L2), axes=(-2, -1))[:, :, 0, :L]
        y = (lambda x, *d: x.permute(*d))(y, 0, 2, 1) + u * Dskip[None, None, :]
        return y

    a = _A_ref(A_x, A_wq, A_wk, A_wv, A_wo)
    b = _B_ref(B_u, B_A_re, B_A_im, B_B_re, B_B_im, B_C_re, B_C_im, B_log_dt, B_Dskip)
    return torch.concatenate([a, b], axis=-1)
```

```python
import re


class Asm:
    def __init__(self):
        self.lines = []
        self._lab = 0

    def __call__(self, s):
        for ln in s.split("\n"):
            ln = ln.strip()
            if ln:
                self.lines.append(ln)

    def label(self, base="L"):
        self._lab += 1
        return f"{base}_{self._lab}"

    def put(self, name):
        self.lines.append(name + ":")

    def nop(self, n):
        while n > 0:
            k = min(n, 16)
            self.lines.append(f"s_nop {k-1}")
            n -= k

    def text(self):
        out = []
        for ln in self.lines:
            if ln.endswith(":") or ln.startswith("."):
                out.append(ln)
            else:
                out.append("    " + ln)
        return "\n".join(out) + "\n"


def v(i, n=1):
    return f"v{i}" if n == 1 else f"v[{i}:{i+n-1}]"


def s(i, n=1):
    return f"s{i}" if n == 1 else f"s[{i}:{i+n-1}]"


_reg_re = re.compile(r"\b([vs])(\d+)\b|\b([vs])\[(\d+):(\d+)\]")
TRANS = ("v_exp_f32", "v_log_f32", "v_rcp_f32", "v_rsq_f32", "v_sqrt_f32", "v_sin_f32", "v_cos_f32")


def _regs(tok):
    out = set()
    for m in _reg_re.finditer(tok):
        if m.group(1):
            out.add((m.group(1), int(m.group(2))))
        else:
            for i in range(int(m.group(4)), int(m.group(5)) + 1):
                out.add((m.group(3), i))
    if re.search(r"\bvcc\b", tok):
        out.add(("s", "vcc"))
    if re.search(r"\bm0\b", tok):
        out.add(("s", "m0"))
    if re.search(r"\bexec\b", tok):
        out.add(("s", "exec"))
    return out


def _passes(mn):
    if "32x32x4_2b" in mn:
        return 16
    if "32x32" in mn:
        return 8
    if "16x16" in mn:
        return 4
    raise ValueError(mn)


def parse(ln):
    ln = ln.split(";")[0].strip()
    if not ln or ln.endswith(":") or ln.startswith("."):
        return None
    parts = ln.split(None, 1)
    mn = parts[0]
    ops = [o.strip() for o in parts[1].split(",")] if len(parts) > 1 else []
    d = dict(mn=mn, w=set(), r=set(), kind="other", states=1, line=ln)
    if mn == "s_nop":
        d["states"] = int(ops[0]) + 1
        return d
    if mn.startswith("v_mfma") or mn.startswith("v_smfmac"):
        d["kind"] = "mfma"
        d["w"] = _regs(ops[0])
        d["ab"] = _regs(ops[1]) | _regs(ops[2])
        if mn.startswith("v_smfmac"):
            d["c"] = _regs(ops[0])
            d["ab"] |= _regs(ops[3].split()[0])
        else:
            d["c"] = _regs(ops[3].split()[0])
        d["r"] = d["ab"] | d["c"]
        d["passes"] = _passes(mn)
        return d
    if mn.startswith("v_"):
        d["kind"] = "valu"
        if mn.startswith("v_cmp"):
            d["w"] = _regs(ops[0])
            for o in ops[1:]:
                d["r"] |= _regs(o)
        elif mn.startswith("v_permlane"):
            d["w"] = _regs(ops[0]) | _regs(ops[1])
            d["r"] = set(d["w"])
        else:
            d["w"] = _regs(ops[0])
            for o in ops[1:]:
                d["r"] |= _regs(o)
            if mn.startswith("v_fmac") or "sdwa" in mn and "PRESERVE" in ln:
                d["r"] |= d["w"]
            if mn.startswith("v_add_co") or mn.startswith("v_addc_co"):
                d["w"] |= _regs(ops[1])
        return d
    if mn.startswith("ds_"):
        d["kind"] = "ds"
        if mn.startswith("ds_read") or "rtn" in mn or "permute" in mn:
            d["w"] = _regs(ops[0])
            for o in ops[1:]:
                d["r"] |= _regs(o)
        else:
            for o in ops:
                d["r"] |= _regs(o)
            if "addtid" in mn:
                d["dma"] = True
        return d
    if mn.startswith("buffer_") or mn.startswith("global_"):
        d["kind"] = "vmem"
        lds = ln.rstrip().endswith(" lds") or " lds " in ln
        if "load" in mn and not lds:
            d["w"] = _regs(ops[0])
            for o in ops[1:]:
                d["r"] |= _regs(o)
        else:
            for o in ops:
                d["r"] |= _regs(o)
            if lds:
                d["r"].add(("s", "m0"))
                d["dma"] = True
            if "store" in mn and ("x4" in mn or "x3" in mn):
                d["wide"] = _regs(ops[0]) if mn.startswith("buffer_") else _regs(ops[1])
        return d
    if mn.startswith("s_"):
        d["kind"] = "salu"
        if mn.startswith(("s_cmp", "s_cbranch", "s_branch", "s_waitcnt", "s_barrier", "s_setprio", "s_sleep", "s_endpgm", "s_bitcmp")):
            for o in ops:
                d["r"] |= _regs(o)
        else:
            if ops:
                d["w"] = _regs(ops[0])
            for o in ops[1:]:
                d["r"] |= _regs(o)
            if "saveexec" in mn:
                d["w"].add(("s", "exec"))
        return d
    return d


def check_hazards(lines, maxback=24, fixes=None):
    ins = []
    for i, ln in enumerate(lines):
        p = parse(ln)
        if p:
            p["idx"] = i
            ins.append(p)
    msgs = []
    for j, c in enumerate(ins):
        dist = 0
        for i in range(j - 1, max(-1, j - 1 - maxback), -1):
            p = ins[i]
            if p["mn"] in ("s_branch", "s_endpgm", "s_setpc_b64"):
                break
            need = 0
            vw = {x for x in p["w"] if x[0] == "v"}
            sw = {x for x in p["w"] if x[0] == "s"}
            if p["kind"] == "mfma":
                n = p["passes"]
                if c["kind"] == "mfma":
                    if vw & c["ab"]:
                        need = max(need, {4: 8, 8: 12, 16: 20}[n])
                    if vw & c["c"]:
                        if not (c["c"] == vw and c["passes"] == n):
                            need = max(need, {4: 6, 8: 10, 16: 18}[n])
                    elif vw & c["w"] and c["passes"] < n:
                        need = max(need, {4: 6, 8: 10, 16: 18}[n])
                elif c["kind"] in ("valu", "ds", "vmem"):
                    if vw & (c["r"] | c["w"]):
                        need = max(need, {4: 8, 8: 12, 16: 20}[n])
                    if c["kind"] == "valu" and p["c"] & c["w"]:
                        need = max(need, {4: 3, 8: 7, 16: 15}[n])
            elif p["kind"] == "valu":
                if c["kind"] == "mfma" and vw & c["r"]:
                    need = max(need, 2)
                if c["kind"] == "mfma" and ("s", "exec") in sw:
                    need = max(need, 4)
                if p["mn"].startswith(TRANS) and c["kind"] == "valu" and not c["mn"].startswith(TRANS) and vw & c["r"]:
                    need = max(need, 1)
                if c["mn"].startswith("v_permlane") and vw & c["r"]:
                    need = max(need, 2)
                if "dpp" in c["mn"] and vw & c["r"]:
                    need = max(need, 2)
                if c["mn"].startswith(("v_readfirstlane", "v_readlane")) and vw & c["r"]:
                    need = max(need, 1)
                if sw:
                    if c["kind"] == "vmem" and sw & c["r"]:
                        need = max(need, 5)
                    if c["kind"] == "valu" and sw & c["r"]:
                        need = max(need, 2)
                    if c["kind"] == "salu" and sw & c["r"]:
                        need = max(need, 1)
                if ("sdwa" in p["mn"] or "op_sel" in p["line"] and not p["mn"].startswith("v_pk")) and "dst_sel:DWORD" not in p["line"] and c["kind"] == "valu" and vw & c["r"]:
                    need = max(need, 1)
            elif p["kind"] == "salu":
                if ("s", "m0") in sw and c.get("dma"):
                    need = max(need, 1)
            elif p["kind"] == "vmem":
                if p.get("wide") and p["wide"] & c["w"]:
                    need = max(need, 2 if c["kind"] == "valu" else 1)
            if need > dist:
                msgs.append(f"hazard: line {p['idx']} '{p['line']}' -> line {c['idx']} '{c['line']}' dist {dist} need {need}")
                if fixes is not None:
                    fixes[c['idx']] = max(fixes.get(c['idx'], 0), need - dist)
            dist += p["states"]
    return msgs


def autofix(lines):
    fixes = {}
    msgs = check_hazards(lines, fixes=fixes)
    out = []
    for i, ln in enumerate(lines):
        if i in fixes:
            out.append(f"s_nop {fixes[i]-1}")
        out.append(ln)
    return out, msgs


def check_inflight(lines):
    msgs = []
    ds, vm = [], []
    for i, ln in enumerate(lines):
        p = parse(ln)
        if not p:
            continue
        if p["mn"] in ("s_branch", "s_endpgm"):
            ds, vm = [], []
            continue
        if p["mn"] == "s_waitcnt":
            m = re.search(r"lgkmcnt\((\d+)\)", ln)
            if m:
                n = int(m.group(1)); ds = ds[max(0, len(ds) - n):] if n else []
            m = re.search(r"vmcnt\((\d+)\)", ln)
            if m:
                n = int(m.group(1)); vm = vm[max(0, len(vm) - n):] if n else []
            continue
        touched = {x for x in (p["r"] | p["w"]) if x[0] == "v"}
        for q in ds + vm:
            if q[0] & touched:
                msgs.append(f"inflight: line {q[1]} '{lines[q[1]]}' -> line {i} '{ln}'")
        if p["kind"] == "ds":
            ds.append(({x for x in p["w"] if x[0] == "v"}, i))
        elif p["kind"] == "vmem":
            vm.append(({x for x in p["w"] if x[0] == "v"}, i))
    return msgs
```

```python
import sys, struct
from asmlib import Asm, v, s, check_hazards, autofix, check_inflight

NAME = "concat_heads__grouped_kv_mqa__ssm_conv_s4__prompt"

BLK = 5248
SLOT = 41984
WL = 81920
AUX = 122880
KGB = 122880
KGA = 143360
KVP = 148480
QP = 115712
KC = 125952
KCS = 8320
UT = 102400
UTS = 4672
USCR = 121088
CNT = 159232
LDS_BYTES = 163840

FLG_KV = 0x30000
FLG_O = 0x31000
OIMG = 0x40000
WS_SIZE = 0x300000
DBG = 0x400000
STAMP = 0x380000

sW, sT, sG, sD0 = 3, 4, 5, 50
SX, SWQ, SKV, SWS, SOUT, SWO, SU = 52, 56, 60, 64, 68, 72, 76
sN = 80
sST = 88

LOG2E = 1.4426950408889634


def f2u(x):
    return struct.unpack("<I", struct.pack("<f", x))[0]


class LG:
    def __init__(self, a, name, maxc):
        self.a, self.name, self.maxc, self.q = a, name, maxc, []

    def issue(self, tag=None):
        self.q.append(tag)

    def wait(self, tag):
        idx = max(i for i, t in enumerate(self.q) if t == tag)
        n = len(self.q) - 1 - idx
        self.a(f"s_waitcnt {self.name}({min(n, self.maxc)})")
        self.q = self.q[idx + 1:]

    def waitstr(self, tag):
        idx = max(i for i, t in enumerate(self.q) if t == tag)
        n = len(self.q) - 1 - idx
        self.q = self.q[idx + 1:]
        return f"{self.name}({min(n, self.maxc)})"

    def all(self):
        self.q = []


class Gen:
    def __init__(self, stop=None, stamps=False, force_slow=False, dump_regs=None):
        self.a = Asm()
        self.stop = stop
        self.stamps = stamps
        self.force_slow = force_slow
        self.debug = stop is not None or stamps
        self.dump_regs = dump_regs

    def srd(self, d, base, size):
        a = self.a
        a(f"s_mov_b32 s{d}, s{base}")
        a(f"s_mov_b32 s{d+1}, s{base+1}")
        a(f"s_mov_b32 s{d+2}, {size}")
        a(f"s_mov_b32 s{d+3}, 0x20000")

    def stamp(self, i):
        if self.stamps:
            self.a("s_memtime s[86:87]")
            self.a("s_waitcnt lgkmcnt(0)")
            self.a(f"s_mov_b32 s{sST+i}, s86")

    def stop_at(self, name):
        if self.stop == name:
            self.a("s_branch L_dump")

    def cmul(self, d, x, y, conj=False):
        a = self.a
        a(f"v_pk_mul_f32 {v(d,2)}, {v(x,2)}, {v(y,2)} op_sel:[0,0] op_sel_hi:[1,0]")
        neg = "neg_hi:[0,1,0]" if conj else "neg_lo:[0,1,0]"
        return f"v_pk_fma_f32 {v(d,2)}, {v(x,2)}, {v(y,2)}, {v(d,2)} op_sel:[1,1,0] op_sel_hi:[0,1,1] {neg}"

    def cmuls(self, lst, conj=False):
        tail = [self.cmul(d, x, y, conj) for d, x, y in lst]
        for t in tail:
            self.a(t)

    def get_nonce(self, vt, vz):
        a = self.a
        lp, dn = a.label("Lnon"), a.label("Lnond")
        a("s_mov_b32 s82, 0")
        a.put(lp)
        a(f"v_readfirstlane_b32 s{sN}, {v(vt)}")
        a(f"v_readfirstlane_b32 s{sN+1}, {v(vt+1)}")
        a("s_add_u32 s82, s82, 1")
        a(f"s_bitcmp1_b32 s{sN}, 0")
        a(f"s_cbranch_scc1 {dn}")
        a("s_cmp_gt_u32 s82, 20000")
        a(f"s_cbranch_scc1 {dn}")
        a("s_sleep 4")
        a(f"global_load_dwordx2 {v(vt,2)}, {v(vz)}, s[46:47] sc1")
        a("s_waitcnt vmcnt(0)")
        a(f"s_branch {lp}")
        a.put(dn)

    def prologue(self):
        a = self.a
        a("s_cmp_ge_u32 s2, 0x100")
        a("s_cbranch_scc1 L_end")
        a("s_load_dwordx16 s[16:31], s[0:1], 0")
        a("s_load_dwordx16 s[32:47], s[0:1], 64")
        a("s_load_dwordx2 s[48:49], s[0:1], 128")
        a("s_getpc_b64 s[6:7]")
        a.put("L_pc")
        a("v_lshlrev_b32 v1, 7, v0")
        a("v_min_u32 v1, L_codeend-L_pc-4, v1")
        a("global_load_dword v255, v1, s[6:7]")
        if self.stamps:
            a("s_memtime s[86:87]")
        a("v_lshrrev_b32 v1, 6, v0")
        a("v_and_b32 v0, 63, v0")
        a("s_and_b32 s8, s2, 7")
        a(f"v_readfirstlane_b32 s{sW}, v1")
        a("s_lshr_b32 s9, s2, 3")
        a(f"s_and_b32 s{sT}, s9, 3")
        a(f"s_lshl2_add_u32 s{sT}, s8, s{sT}")
        a(f"s_lshr_b32 s{sG}, s9, 2")
        a(f"s_mul_i32 s{sD0}, s8, 80")
        a(f"s_lshl2_add_u32 s{sD0}, s9, s{sD0}")
        a(f"s_sub_u32 s{sD0}, s{sD0}, 48")
        a("v_lshrrev_b32 v2, 4, v0")
        a(f"s_and_b32 s10, s{sW}, 3")
        a("s_lshl_b32 s11, s10, 2")
        a("v_add_u32 v3, s11, v2")
        a("v_and_b32 v4, 15, v0")
        a("v_xor_b32 v3, v3, v4")
        a("v_lshlrev_b32 v3, 4, v3")
        a("s_movk_i32 s12, 1280")
        a("v_mad_u32_u24 v7, v2, s12, v3")
        a("v_lshlrev_b32 v8, 4, v0")
        a(f"s_lshr_b32 s11, s{sW}, 2")
        a(f"s_mul_i32 s13, s{sT}, 81920")
        a("s_mul_i32 s12, s10, 5120")
        a("s_add_u32 s13, s13, s12")
        a("s_mul_i32 s12, s11, 40960")
        a("s_add_u32 s13, s13, s12")
        a("s_lshl_b32 s14, s10, 10")
        a("s_lshl_b32 s12, s11, 13")
        a("s_add_u32 s14, s14, s12")
        a(f"s_cmp_ge_u32 s{sG}, 5")
        a("s_cselect_b32 s12, 5, 0")
        a(f"s_sub_u32 s15, s{sG}, s12")
        a(f"s_add_u32 s12, s{sD0}, s10")
        a("s_lshl_b32 s82, s12, 8")
        a("s_lshl_b32 s83, s11, 7")
        a("s_add_u32 s82, s82, s83")
        a("v_lshl_add_u32 v9, v0, 1, s82")
        a("s_lshl_b32 s12, s12, 1")
        a("v_mov_b32 v17, s12")
        for r in range(10, 17):
            a(f"v_mov_b32 v{r}, 0")
        a("s_waitcnt lgkmcnt(0)")
        if self.stamps:
            a(f"s_mov_b32 s{sST}, s86")
        self.srd(SX, 16, 2621440)
        a(f"s_cmp_lt_u32 s{sG}, 3")
        a("s_cbranch_scc1 L_pro_P")
        for i, p in enumerate((40, 28, 30, 32, 34, 36, 38)):
            dst = 16 if i == 0 else 9 + i
            a(f"global_load_short_d16_hi v{dst}, {'v17' if i == 0 else 'v9'}, s[{p}:{p+1}]")
        a("s_branch L_pro_X")
        a.put("L_pro_P")
        a(f"s_or_b32 s12, s2, s{sW}")
        a("s_cmp_eq_u32 s12, 0")
        a("s_cbranch_scc0 L_pro_nn")
        a("s_memrealtime s[84:85]")
        a("s_waitcnt lgkmcnt(0)")
        a("s_or_b32 s84, s84, 1")
        a("v_mov_b32 v12, s84")
        a("v_mov_b32 v13, s85")
        a("s_mov_b64 exec, 1")
        a("global_store_dwordx2 v10, v[12:13], s[46:47] sc1")
        a("s_mov_b64 exec, -1")
        a.put("L_pro_nn")
        a(f"s_cmp_eq_u32 s{sG}, 2")
        a("s_cbranch_scc1 L_pro_X")
        a(f"s_cmp_eq_u32 s{sG}, 0")
        a(f"s_cselect_b32 s{SKV}, s20, s22")
        a(f"s_cselect_b32 s{SKV+1}, s21, s23")
        a(f"s_mov_b32 s{SKV+2}, 25600")
        a(f"s_mov_b32 s{SKV+3}, 0x20000")
        a(f"s_lshl_b32 s12, s{sW}, 10")
        a(f"s_cmp_eq_u32 s{sW}, 0")
        a("s_cbranch_scc0 L_pro_kv")
        a(f"s_mov_b32 m0, {AUX + 24576}")
        a("s_movk_i32 s82, 24576")
        a(f"buffer_load_dwordx4 v8, s[{SKV}:{SKV+3}], s82 offen lds")
        a.put("L_pro_kv")
        for i in range(3):
            a(f"s_add_u32 m0, s12, {AUX}")
            a("s_nop 0")
            a(f"buffer_load_dwordx4 v8, s[{SKV}:{SKV+3}], s12 offen lds")
            if i < 2:
                a("s_add_u32 s12, s12, 8192")
        a.put("L_pro_X")
        for i in range(5):
            a("s_lshl_b32 s82, s15, 8")
            a("s_add_u32 s82, s82, s13")
            a("s_lshl_b32 s83, s15, 14")
            a("s_add_u32 m0, s83, s14")
            a("s_add_u32 s15, s15, 1")
            a(f"buffer_load_dwordx4 v7, s[{SX}:{SX+3}], s82 offen lds")
            a("s_add_u32 m0, m0, 4096")
            a("s_add_u32 s82, s82, 20480")
            a(f"buffer_load_dwordx4 v7, s[{SX}:{SX+3}], s82 offen lds")
            if i < 4:
                a("s_cmp_eq_u32 s15, 5")
                a("s_cselect_b32 s15, 0, s15")
        self.srd(SWQ, 18, 819200)
        self.wvoff(2, True)
        a(f"s_mul_i32 s13, s{sG}, 160")
        a(f"s_mul_i32 s12, s{sW}, 40960")
        a("s_add_u32 s12, s12, s13")
        a(f"s_mul_i32 s14, s{sW}, 5120")
        a(f"s_add_u32 m0, s14, {WL}")
        for i in range(5):
            a("s_nop 0")
            a(f"buffer_load_dwordx4 v{2+i}, s[{SWQ}:{SWQ+3}], s12 offen lds")
            if i < 4:
                a("s_add_u32 m0, m0, 1024")
        self.srd(SWS, 48, 0x10000000 if self.debug else WS_SIZE)
        self.srd(SOUT, 44, 5242880)
        self.srd(SWO, 24, 819200)
        self.srd(SU, 26, 2621440)

    def wvoff(self, base, perm, t0=20):
        a = self.a
        p, q, c, k = t0, t0 + 1, t0 + 2, t0 + 3
        a("s_mov_b32 s82, 0xcccd")
        a("s_movk_i32 s83, 1280")
        for i in range(5):
            a(f"v_add_u32 v{p}, {64*i}, v0")
            a(f"v_mul_u32_u24 v{q}, s82, v{p}")
            a(f"v_lshrrev_b32 v{q}, 19, v{q}")
            a(f"v_mul_u32_u24 v{c}, 10, v{q}")
            a(f"v_sub_u32 v{c}, v{p}, v{c}")
            a(f"v_lshlrev_b32 v{c}, 4, v{c}")
            if perm:
                a(f"v_and_b32 v{k}, 1, v{q}")
                a(f"v_bfe_u32 v{p}, v{q}, 1, 2")
                a(f"v_lshl_add_u32 v{k}, v{k}, 2, v{p}")
                a(f"v_and_b32 v{q}, 24, v{q}")
                a(f"v_add_u32 v{q}, v{q}, v{k}")
            a(f"v_mad_u32_u24 v{base+i}, v{q}, s83, v{c}")

    def kgen(self):
        a = self.a
        R0, R1, H, H1, PA, PB = 32, 64, 192, 224, 96, 236
        FL0, FL1, FH0, FH1, D = 112, 128, 144, 160, 176
        Z1, Z8, Z256, B16 = 18, R0 + 2, 22, 20
        WW = H1 + 8
        a(f"s_and_b32 s10, s{sW}, 3")
        a("s_mul_i32 s10, s10, 4608")
        a(f"s_cmp_lt_u32 s{sW}, 4")
        a(f"s_cselect_b32 s11, {KGA-KGB}, 0")
        a("s_add_u32 s10, s10, s11")
        a(f"s_add_u32 s10, s10, {KGB}")
        a("v_add_u32 v26, s10, v8")
        a("v_lshrrev_b32 v27, 2, v0")
        a("v_lshlrev_b32 v27, 4, v27")
        a("v_and_b32 v28, 1, v0")
        a("v_lshl_add_u32 v27, v28, 3, v27")
        a("v_bfe_u32 v28, v0, 1, 1")
        a("s_movk_i32 s11, 1152")
        a("v_mad_u32_u24 v27, v28, s11, v27")
        a("v_add_u32 v27, s10, v27")
        l2e_hi = f2u(LOG2E)
        l2e_lo = f2u(LOG2E - struct.unpack("<f", struct.pack("<I", l2e_hi))[0])
        a(f"s_mov_b32 s12, {l2e_hi:#x}")
        a(f"s_mov_b32 s13, {l2e_lo:#x}")
        a(f"v_mov_b32 v{R0}, 1.0")
        a(f"v_mov_b32 v{R0+1}, 0")
        a("s_waitcnt vmcnt(15)")
        a("v_mul_f32 v28, s12, v16")
        a("v_fma_f32 v29, v16, s12, -v28")
        a("v_fmac_f32 v29, s13, v16")
        a("v_exp_f32 v28, v28")
        a(f"v_mul_f32 v29, {f2u(0.6931471805599453):#x}, v29")
        a("v_fma_f32 v28, v28, v29, v28")
        a("v_cvt_pk_bf16_f32 v28, v28, v28")
        a("v_lshlrev_b32 v28, 16, v28")
        a("v_mul_f32 v10, v28, v10")
        a("v_mul_f32 v11, v28, v11")
        a("v_mul_f32 v12, v28, v12")
        a("v_mul_f32 v13, v28, v13")
        a("v_mul_f32 v10, s12, v10")
        a("v_mul_f32 v11, 0.15915494, v11")
        self.cmuls([(WW, 14, 12)])
        for p, Z, t in ((8, Z8, 96), (1, Z1, 100), (256, Z256, 104)):
            if p == 1:
                a(f"v_exp_f32 v{t}, v10")
                a(f"v_fract_f32 v{t+1}, v11")
            else:
                a(f"v_mul_f32 v{t}, {f2u(float(p)):#x}, v10")
                a(f"v_mul_f32 v{t+1}, {f2u(float(p)):#x}, v11")
                a(f"v_exp_f32 v{t}, v{t}")
                a(f"v_fract_f32 v{t+1}, v{t+1}")
            a(f"v_cos_f32 v{t+2}, v{t+1}")
            a(f"v_sin_f32 v{t+3}, v{t+1}")
            a("s_nop 0")
            a(f"v_pk_mul_f32 {v(Z,2)}, {v(t+2,2)}, {v(t,2)} op_sel:[0,0] op_sel_hi:[1,0]")
        a(f"v_xor_b32 v{WW+1}, 0x80000000, v{WW+1}")
        r = lambda j: R0 + 2 * j
        h = lambda j: H + 2 * j
        h1 = lambda j: H1 + 2 * j

        def pack(src, P, nd=8):
            for q in range(nd):
                a(f"v_cvt_pk_bf16_f32 v{P+q}, v{src+4*q}, v{src+4*q+2}")
                a(f"v_cvt_pk_bf16_f32 v{P+8+q}, v{src+4*q+1}, v{src+4*q+3}")

        def wr_tr(P, F, planes=(0, 1, 2, 3)):
            for pl in planes:
                a(f"ds_write_b128 v26, {v(P+4*pl,4)} offset:{1152*pl}")
            for sidx in range(4):
                a(f"ds_read_b64_tr_b16 {v(F+4*sidx,2)}, v27 offset:{256*sidx}")
                a(f"ds_read_b64_tr_b16 {v(F+4*sidx+2,2)}, v27 offset:{2304+256*sidx}")
        chain = [(h(0), WW, Z1)] + [(h(j), h(j - 1), Z1) for j in range(1, 8)]
        levels = [[(r(2), r(1), r(1))], [(r(3), r(2), r(1)), (r(4), r(2), r(2))],
                  [(r(5), r(4), r(1)), (r(6), r(4), r(2)), (r(7), r(4), r(3)), (r(8), r(4), r(4))],
                  [(r(8 + i), r(8), r(i)) for i in range(1, 5)],
                  [(r(8 + i), r(8), r(i)) for i in range(5, 8)] + [(B16, r(8), r(8))]]
        for lv in levels:
            t = self.cmul(*chain.pop(0), conj=True)
            self.cmuls(lv)
            a(t)
        pack(R0, PA)
        wr_tr(PA, FL0)
        a(f"v_mov_b32 v{R1}, v{B16}")
        a(f"v_mov_b32 v{R1+1}, v{B16+1}")
        rest = [(R1 + 2 * j, r(j), B16) for j in range(1, 16)]
        for grp in (rest[:5], rest[5:10], rest[10:]):
            t = self.cmul(*chain.pop(0), conj=True)
            self.cmuls(grp)
            a(t)
        self.cmuls([(h(8), h(1), Z256), (h(9), h(3), Z256), (h(10), h(5), Z256), (h(11), h(7), Z256)], conj=True)
        pack(R1, PB)
        wr_tr(PB, FL1)
        self.cmuls([(h(12), h(9), Z256), (h(13), h(11), Z256)], conj=True)
        self.cmuls([(h(14), h(12), Z256), (h(15), h(13), Z256)], conj=True)
        self.cmuls([(h1(0), h(15), Z256)], conj=True)
        a("s_waitcnt lgkmcnt(12)")
        t = self.cmul(h1(1), h1(0), Z256, conj=True)
        a(t)
        pack(H, PA)
        t = self.cmul(h1(2), h1(1), Z256, conj=True)
        a(t)
        wr_tr(PA, FH0)
        t = self.cmul(h1(3), h1(2), Z256, conj=True)
        a(t)
        a("s_waitcnt lgkmcnt(12)")
        for q in range(3):
            x, y = (h1(2 * q), h1(2 * q + 1)) if q < 2 else (WW, WW)
            a(f"v_cvt_pk_bf16_f32 v{PB+q}, v{x}, v{y}")
            a(f"v_cvt_pk_bf16_f32 v{PB+8+q}, v{x+1}, v{y+1}")
        wr_tr(PB, FH1, planes=(0, 2))
        a("s_waitcnt lgkmcnt(10)")
        for sidx in range(4):
            c0 = "0" if sidx == 0 else v(D, 4)
            c1 = "0" if sidx == 0 else v(D + 4, 4)
            a(f"v_mfma_f32_16x16x32_bf16 {v(D,4)}, {v(FH0+4*sidx,4)}, {v(FL0+4*sidx,4)}, {c0}")
            a(f"v_mfma_f32_16x16x32_bf16 {v(D+4,4)}, {v(FH0+4*sidx,4)}, {v(FL1+4*sidx,4)}, {c1}")
        a("s_waitcnt lgkmcnt(0)")
        for sidx in range(4):
            c0 = "0" if sidx == 0 else v(D + 8, 4)
            c1 = "0" if sidx == 0 else v(D + 12, 4)
            a(f"v_mfma_f32_16x16x32_bf16 {v(D+8,4)}, {v(FL0+4*sidx,4)}, {v(FH1+4*sidx,4)}, {c0}")
            a(f"v_mfma_f32_16x16x32_bf16 {v(D+12,4)}, {v(FL1+4*sidx,4)}, {v(FH1+4*sidx,4)}, {c1}")
        a(f"s_cmp_lt_u32 s{sW}, 4")
        a("s_cbranch_scc0 L_b1")
        a.nop(8)
        for i in range(4):
            a(f"ds_write_b128 v26, {v(D+4*i,4)} offset:{1024*i}")
        a("s_branch L_b1")

    def kvjob(self):
        a = self.a
        a(f"s_cmp_eq_u32 s{sG}, 2")
        a("s_cbranch_scc1 L_b1")
        a("v_and_b32 v20, 31, v0")
        a("v_lshrrev_b32 v21, 5, v0")
        a("v_and_b32 v22, 0x13, v20")
        a("v_bfe_u32 v23, v20, 2, 1")
        a("v_lshl_or_b32 v22, v23, 3, v22")
        a("v_bfe_u32 v23, v20, 3, 1")
        a("v_lshl_or_b32 v22, v23, 2, v22")
        a(f"s_cmp_eq_u32 s{sG}, 1")
        a("s_cselect_b64 vcc, -1, 0")
        a("v_cndmask_b32 v20, v20, v22, vcc")
        a(f"s_and_b32 s10, s{sW}, 1")
        a(f"s_bfe_u32 s11, s{sW}, 0x10001")
        a("v_and_b32 v22, 15, v20")
        a("v_xor_b32 v22, v22, v21")
        a("v_lshlrev_b32 v22, 4, v22")
        a("v_lshl_or_b32 v22, v20, 8, v22")
        a("s_lshl_b32 s12, s10, 13")
        a("s_lshl_b32 s13, s11, 7")
        a("s_or_b32 s12, s12, s13")
        a("v_xor_b32 v10, s12, v22")
        for k in range(1, 4):
            a(f"v_xor_b32 v{10+k}, {32*k}, v10")
        a("v_bfe_u32 v22, v0, 2, 2")
        a("v_lshl_add_u32 v22, v21, 3, v22")
        a("v_mul_u32_u24 v22, 40, v22")
        a("v_bfe_u32 v23, v0, 4, 1")
        a("v_and_b32 v24, 3, v0")
        a("v_lshl_add_u32 v23, v23, 2, v24")
        a("v_min_u32 v23, 4, v23")
        a("v_lshl_add_u32 v22, v23, 3, v22")
        a("s_mul_i32 s12, s11, 2560")
        a(f"s_add_u32 s12, s12, {AUX}")
        a("v_add_u32 v14, s12, v22")
        a("s_waitcnt vmcnt(5)")
        a("s_barrier")
        self.stamp(1)
        a(f"s_cmp_lt_u32 s{sW}, 4")
        a("s_cbranch_scc1 L_b1")
        a(f"s_cmp_eq_u32 s{sG}, 1")
        a("s_cbranch_scc1 L_kv_V")
        ACC = 80
        for isV in (0, 1):
            if isV:
                a.put("L_kv_V")
            lg = LG(a, "lgkmcnt", 15)

            def issue(n):
                b, ks = divmod(n, 4)
                F = 16 + 8 * (n % 6)
                if n == 16:
                    for k in range(4):
                        a(f"v_add_u32 v{10+k}, 0x10000, v{10+k}")
                a(f"ds_read_b128 {v(F,4)}, v{10+ks} offset:{16384*(b%4)}")
                a(f"ds_read_b64_tr_b16 {v(F+4,2)}, v14 offset:{5120*b+640*ks}")
                a(f"ds_read_b64_tr_b16 {v(F+6,2)}, v14 offset:{5120*b+640*ks+160}")
                for _ in range(3):
                    lg.issue(n)
            for n in range(5):
                issue(n)
            for n in range(20):
                lg.wait(n)
                F = 16 + 8 * (n % 6)
                A, B = (F, F + 4) if isV else (F + 4, F)
                a(f"v_mfma_f32_32x32x16_bf16 {v(ACC,16)}, {v(A,4)}, {v(B,4)}, {'0' if n == 0 else v(ACC,16)}")
                if n + 5 < 20:
                    issue(n + 5)
            if not isV:
                a("s_branch L_kv_d")
        a.put("L_kv_d")
        a("s_lshl_b32 s12, s10, 12")
        a(f"s_add_u32 s12, s12, {KVP}")
        a("v_add_u32 v15, s12, v8")
        a(f"s_cmp_lt_u32 s{sW}, 6")
        a("s_cbranch_scc1 L_b1")
        a.nop(10)
        for i in range(4):
            a(f"ds_write_b128 v15, {v(ACC+4*i,4)} offset:{1024*i}")

    def qgemm(self):
        a = self.a
        XA, WA = 64, 72
        a("v_mov_b32 v1, 0")
        a("global_load_dwordx2 v[2:3], v1, s[46:47] sc1")
        a("v_and_b32 v20, 31, v0")
        a("v_lshrrev_b32 v21, 5, v0")
        a("v_and_b32 v22, 15, v20")
        a("v_xor_b32 v22, v22, v21")
        a("v_lshlrev_b32 v22, 4, v22")
        a(f"v_lshl_or_b32 v{XA}, v20, 8, v22")
        for k in range(1, 8):
            a(f"v_xor_b32 v{XA+k}, {32*k}, v{XA}")
        a("v_bfe_u32 v22, v0, 2, 2")
        a("v_lshlrev_b32 v22, 1, v22")
        a("v_lshl_add_u32 v22, v21, 3, v22")
        a("v_mul_u32_u24 v22, 0xa0, v22")
        a("v_bfe_u32 v23, v0, 4, 1")
        a("v_and_b32 v24, 3, v0")
        a("v_lshl_add_u32 v23, v23, 2, v24")
        a("v_min_u32 v23, 4, v23")
        a("v_lshl_add_u32 v22, v23, 3, v22")
        a(f"s_mul_i32 s12, s{sW}, 40")
        a(f"s_add_u32 s12, s12, {WL}")
        a(f"v_add_u32 v{WA}, s12, v22")
        a(f"v_add_u32 v{WA+1}, 61440, v{WA}")
        for c in range(5):
            lg = LG(a, "lgkmcnt", 15)
            wreg = WA + 1 if c == 3 else WA
            woff = {0: 0, 1: 20480, 2: 40960, 3: 0, 4: 0}[c]
            if c == 4:
                for k in range(8):
                    a(f"v_add_u32 v{XA+k}, 0x10000, v{XA+k}")

            def issue(ks):
                F = 16 + 12 * (ks % 4)
                a(f"ds_read_b64_tr_b16 {v(F,2)}, v{wreg} offset:{woff+2560*ks}")
                a(f"ds_read_b64_tr_b16 {v(F+2,2)}, v{wreg} offset:{woff+2560*ks+160}")
                a(f"ds_read_b128 {v(F+4,4)}, v{XA+ks} offset:{16384*(c%4)}")
                a(f"ds_read_b128 {v(F+8,4)}, v{XA+ks} offset:{16384*(c%4)+8192}")
                for _ in range(4):
                    lg.issue(ks)
            for ks in range(3):
                issue(ks)
            for ks in range(8):
                lg.wait(ks)
                F = 16 + 12 * (ks % 4)
                first = c == 0 and ks == 0
                a(f"v_mfma_f32_32x32x16_bf16 v[80:95], {v(F,4)}, {v(F+4,4)}, {'0' if first else 'v[80:95]'}")
                a(f"v_mfma_f32_32x32x16_bf16 v[96:111], {v(F,4)}, {v(F+8,4)}, {'0' if first else 'v[96:111]'}")
                if ks + 3 < 8:
                    issue(ks + 3)
            if c < 4:
                a("s_barrier")
                self.stamp(3 + c)
        a("s_waitcnt vmcnt(0)")
        self.get_nonce(2, 1)
        a(f"s_mov_b32 s12, {f2u(LOG2E / 20 ** 0.5):#x}")
        a(f"s_mul_i32 s13, s{sW}, 2560")
        a(f"s_add_u32 s13, s13, {QP}")
        a("v_add_u32 v9, s13, v8")
        a("v_lshl_add_u32 v10, v0, 3, s13")
        a.nop(4)
        for T, O in ((0, 80), (1, 96)):
            for r in range(12):
                a(f"v_mul_f32 v{O+r}, s12, v{O+r}")
        for T, O in ((0, 80), (1, 96)):
            for q in range(4):
                a(f"v_cvt_pk_bf16_f32 v{112+4*T+q}, v{O+2*q}, v{O+2*q+1}")
            for q in range(2):
                a(f"v_cvt_pk_bf16_f32 v{120+2*T+q}, v{O+8+2*q}, v{O+9+2*q}")
        a("ds_write_b128 v9, v[112:115]")
        a("ds_write_b128 v9, v[116:119] offset:1024")
        a("v_permlane32_swap_b32 v120, v122")
        a("v_permlane32_swap_b32 v121, v123")
        a("s_nop 1")
        a("ds_write_b64 v10, v[120:121] offset:2048")
        a("s_waitcnt lgkmcnt(0)")
        a("s_barrier")
        self.stamp(7)

    def wload(self, groups):
        a = self.a
        for g0 in groups:
            lds = WL + 5120 * (g0 % 16)
            a(f"s_add_u32 s12, s14, {40960*g0}")
            a(f"s_add_u32 m0, s15, {lds}")
            for e in range(2):
                for i in range(5):
                    a("s_nop 0")
                    a(f"buffer_load_dwordx4 v{2+i}, s[{SWQ}:{SWQ+3}], s12 offen lds")
                    if not (e == 1 and i == 4):
                        a("s_add_u32 m0, m0, 1024")
                if e == 0:
                    a("s_add_u32 s12, s12, 40960")

    def bphase1(self):
        a = self.a
        D = 176
        a(f"s_cmp_lt_u32 s{sW}, 6")
        a("s_cbranch_scc1 L_b_nl1")
        a(f"s_and_b32 s10, s{sW}, 1")
        a("s_mul_i32 s14, s10, 81920")
        a(f"s_mul_i32 s13, s{sG}, 160")
        a("s_add_u32 s14, s14, s13")
        a("s_mul_i32 s15, s10, 10240")
        self.wload([8])
        a("s_branch L_b_nl1d")
        a.put("L_b_nl1")
        a("v_mov_b32 v1, 0")
        a("global_load_dwordx2 v[2:3], v1, s[46:47] sc1")
        a.put("L_b_nl1d")
        a(f"s_cmp_lt_u32 s{sG}, 3")
        a("s_cbranch_scc1 L_b_P1")
        a(f"v_add_u32 v15, {KGA-KGB}, v26")
        for i in range(4):
            a(f"ds_read_b128 {v(16+4*i,4)}, v15 offset:{1024*i}")
        a(f"s_and_b32 s10, s{sW}, 3")
        a("s_mul_i32 s11, s10, 2304")
        a("s_add_u32 s11, s11, 16")
        a("v_and_b32 v45, 15, v0")
        a("v_lshrrev_b32 v46, 4, v0")
        a("v_max_u32 v47, 1, v46")
        a("v_add_u32 v47, -1, v47")
        a("v_lshrrev_b32 v47, v47, 16")
        a("v_cmp_gt_u32 vcc, 2, v46")
        a("v_cndmask_b32 v48, 8, 3, vcc")
        a("v_lshlrev_b32 v48, v48, v46")
        a("v_mad_u32_u24 v40, v45, v47, v48")
        a("v_add_u32 v40, s11, v40")
        a("v_cmp_eq_u32 vcc, 3, v46")
        a("v_cndmask_b32 v48, 2, 64, vcc")
        a("v_lshl_add_u32 v41, v48, 1, v40")
        a("v_lshl_add_u32 v42, v47, 4, v40")
        a("v_lshl_add_u32 v43, v47, 4, v41")
        a("v_lshlrev_b32 v44, 6, v45")
        a("v_lshl_add_u32 v44, v46, 3, v44")
        a("v_add_u32 v44, s11, v44")
        a("s_waitcnt lgkmcnt(0)")
        for i in range(8):
            a(f"v_pk_add_f32 {v(D+2*i,2)}, {v(D+2*i,2)}, {v(16+2*i,2)}")
        for i in range(8):
            a(f"v_cvt_pk_bf16_f32 v{32+i}, v{D+2*i}, v{D+2*i+1}")
        a(f"v_cvt_pk_bf16_f32 v49, 0, v{D+8}")
        a("s_sub_u32 s12, s11, 4")
        a("v_mov_b32 v50, s12")
        a("s_branch L_b_2")
        a.put("L_b_P1")
        a(f"s_cmp_lt_u32 s{sG}, 2")
        a("s_cbranch_scc0 L_b_2")
        a(f"s_cmp_lt_u32 s{sW}, 6")
        a("s_cbranch_scc0 L_b_2")
        for i in range(4):
            a(f"ds_read_b128 {v(16+4*i,4)}, v15 offset:{1024*i}")
        a(f"s_mul_i32 s12, s{sT}, {BLK}")
        a(f"s_and_b32 s10, s{sW}, 1")
        a("v_and_b32 v40, 31, v0")
        a("v_lshrrev_b32 v41, 5, v0")
        a("v_bfrev_b32 v44, 1")
        a("s_waitcnt lgkmcnt(0)")
        for i in range(8):
            a(f"v_pk_add_f32 {v(80+2*i,2)}, {v(80+2*i,2)}, {v(16+2*i,2)}")
        for i in range(8):
            a(f"v_cvt_pk_bf16_f32 v{32+i}, v{80+2*i}, v{80+2*i+1}")
        a(f"s_cmp_eq_u32 s{sG}, 1")
        a("s_cbranch_scc1 L_b_PV")
        a("s_lshl_b32 s13, s10, 10")
        a("s_add_u32 s13, s13, s12")
        a(f"buffer_store_dwordx4 v[32:35], v8, s[{SWS}:{SWS+3}], s13 offen sc1")
        a("v_lshlrev_b32 v42, 3, v0")
        a("v_cmp_gt_u32 vcc, 32, v0")
        a("s_lshl_b32 s13, s10, 8")
        a("v_cndmask_b32 v42, v44, v42, vcc")
        a("s_add_u32 s13, s13, s12")
        a(f"buffer_store_dwordx2 v[36:37], v42, s[{SWS}:{SWS+3}], s13 offen offset:2048 sc1")
        a("s_branch L_b_2")
        a.put("L_b_PV")
        a("v_mov_b32 v43, 0x3f803f80")
        a("v_cmp_eq_u32 vcc, 20, v40")
        a("s_mul_i32 s13, s10, 1344")
        a("s_add_u32 s13, s13, s12")
        for i in range(8):
            a(f"v_cndmask_b32 v{32+i}, v{32+i}, v43, vcc")
        a("v_mul_u32_u24 v42, 0x150, v41")
        a("v_lshl_add_u32 v42, v40, 4, v42")
        a("v_cmp_gt_u32 vcc, 21, v40")
        a("s_nop 1")
        a("v_cndmask_b32 v42, v44, v42, vcc")
        a(f"buffer_store_dwordx4 v[32:35], v42, s[{SWS}:{SWS+3}], s13 offen offset:2560 sc1")
        a(f"buffer_store_dwordx4 v[36:39], v42, s[{SWS}:{SWS+3}], s13 offen offset:3232 sc1")
        a.put("L_b_2")
        a("s_barrier")
        self.stamp(3)
        a(f"s_cmp_lt_u32 s{sW}, 6")
        a("s_cbranch_scc1 L_b_nl2")
        self.wload([12, 16])
        a.put("L_b_nl2")
        a(f"s_cmp_lt_u32 s{sG}, 3")
        a("s_cbranch_scc1 L_b_3")
        a("ds_write_b32 v40, v32")
        a("ds_write_b32 v41, v33")
        a("ds_write_b32 v42, v34")
        a("ds_write_b32 v43, v35")
        a("ds_write_b64 v44, v[36:37] offset:1024")
        a("ds_write_b64 v44, v[38:39] offset:1056")
        a("s_mov_b64 exec, 16")
        a("ds_write_b32 v50, v49")
        a("s_mov_b64 exec, -1")
        a("s_add_u32 s12, s11, 508")
        a("v_lshl_add_u32 v51, v0, 2, s12")
        a("v_lshl_add_u32 v52, v0, 3, v50")
        a("ds_read2_b32 v[54:55], v51 offset0:128 offset1:129")
        a("ds_read2_b32 v[56:57], v51 offset0:64 offset1:65")
        a("ds_read2_b32 v[58:59], v51 offset0:0 offset1:1")
        a("ds_read2_b32 v[60:61], v52 offset0:0 offset1:1")
        a("ds_read_b32 v62, v52 offset:8")
        sel = dict(cc=0x07060706, bb=0x05040504, aa=0x03020302, ba=0x03020504, cb=0x05040706)
        sreg = {}
        for i, (k, x) in enumerate(sel.items()):
            sreg[k] = 8 + i if i < 2 else 82 + i - 2
            a(f"s_mov_b32 s{sreg[k]}, {x:#x}")
        a("v_mov_b32 v63, 0x03020302")
        a("v_mov_b32 v53, 0x01000302")
        a("v_cmp_eq_u32 vcc, 0, v0")
        a("s_nop 1")
        a("v_cndmask_b32 v63, v63, v53, vcc")
        a("s_waitcnt lgkmcnt(0)")

        def perms(dst, pat, d0):
            for i, k in enumerate(pat):
                a(f"v_perm_b32 v{dst+i}, v{d0+1}, v{d0}, s{sreg[k]}")
        perms(16, ["cc", "cc", "bb", "bb", "bb", "ba", "aa", "aa"], 54)
        perms(24, ["cc", "cb", "bb", "bb", "bb", "aa", "aa", "aa"], 54)
        perms(32, ["cc", "bb", "ba", "aa"], 56)
        perms(36, ["cb", "bb", "aa", "aa"], 56)
        perms(40, ["cb", "aa"], 58)
        perms(42, ["ba"], 58)
        a("v_perm_b32 v43, v59, v58, v63")
        a(f"v_perm_b32 v44, v62, v61, s{sreg['ba']}")
        a(f"v_perm_b32 v45, v61, v60, s{sreg['ba']}")
        a("v_alignbit_b32 v46, v61, v61, 16")
        a("v_alignbit_b32 v47, v60, v60, 16")
        a(f"s_mul_i32 s11, s10, {KCS}")
        a(f"s_add_u32 s11, s11, {KC}")
        a("v_lshlrev_b32 v48, 5, v0")
        a("s_add_u32 s12, s11, 2016")
        a("v_sub_u32 v48, s12, v48")
        a("s_add_u32 s12, s11, 3056")
        a("v_sub_u32 v49, s12, v8")
        a("v_lshlrev_b32 v50, 3, v0")
        a("s_add_u32 s12, s11, 3576")
        a("v_sub_u32 v50, s12, v50")
        a("v_bfe_u32 v51, v0, 4, 1")
        a("v_mul_u32_u24 v51, 0x1040, v51")
        a("v_and_b32 v52, 15, v0")
        a("v_lshl_add_u32 v51, v52, 2, v51")
        a("v_add_u32 v51, s11, v51")
        a.put("L_b_3")
        a("s_waitcnt vmcnt(20)")
        a("s_barrier")
        self.stamp(4)
        a(f"s_cmp_lt_u32 s{sW}, 6")
        a("s_cbranch_scc0 L_b_4")
        a("s_waitcnt vmcnt(0)")
        self.get_nonce(2, 1)
        a(f"s_cmp_lt_u32 s{sG}, 2")
        a("s_cbranch_scc0 L_b_4")
        a(f"s_lshl_b32 s12, s{sT}, 7")
        a(f"s_lshl_b32 s13, s{sG}, 4")
        a("s_add_u32 s12, s12, s13")
        a("s_lshl_b32 s13, s10, 3")
        a("s_add_u32 s12, s12, s13")
        a(f"s_add_u32 s12, s12, {FLG_KV}")
        a("s_mov_b64 exec, 1")
        a(f"buffer_store_dwordx2 v[2:3], v1, s[{SWS}:{SWS+3}], s12 offen sc1")
        a("s_mov_b64 exec, -1")
        self.stamp(8)
        a.put("L_b_4")
        a("s_waitcnt vmcnt(10)")
        a("s_barrier")
        self.stamp(5)
        a(f"s_cmp_lt_u32 s{sW}, 6")
        a("s_cbranch_scc1 L_b_5")
        a("s_waitcnt vmcnt(0)")
        a.put("L_b_5")
        a("s_barrier")
        self.stamp(6)
        a("v_mov_b32 v52, 0")
        a(f"v_mov_b32 v53, {CNT}")
        a("ds_write_b32 v53, v52")
        a(f"s_cmp_lt_u32 s{sG}, 3")
        a("s_cbranch_scc1 L_b_6")
        a("ds_write_b128 v48, v[16:19]")
        a("ds_write_b128 v48, v[20:23] offset:16")
        a("ds_write_b128 v48, v[24:27] offset:4160")
        a("ds_write_b128 v48, v[28:31] offset:4176")
        a("ds_write_b128 v49, v[32:35]")
        a("ds_write_b128 v49, v[36:39] offset:4160")
        a("ds_write_b64 v50, v[40:41]")
        a("ds_write_b64 v50, v[42:43] offset:4160")
        a("ds_write_b64 v50, v[44:45] offset:512")
        a("ds_write_b64 v50, v[46:47] offset:4672")
        a("ds_write_b32 v51, v52 offset:4096")
        a.put("L_b_6")
        a(f"s_cmp_eq_u32 s{sW}, 4")
        a("s_cbranch_scc0 L_b_7")
        a("v_lshrrev_b32 v4, 1, v0")
        a("v_lshlrev_b32 v4, 7, v4")
        a("v_and_b32 v5, 1, v0")
        a("v_lshl_add_u32 v4, v5, 4, v4")
        a(f"s_mov_b32 s12, {FLG_KV}")
        a("s_mov_b32 s82, 0")
        a.put("L_pkv")
        a(f"buffer_load_dwordx4 v[56:59], v4, s[{SWS}:{SWS+3}], s12 offen sc1")
        a("s_add_u32 s82, s82, 1")
        a("s_waitcnt vmcnt(0)")
        a(f"v_cmp_eq_u64 vcc, s[{sN}:{sN+1}], v[56:57]")
        a(f"v_cmp_eq_u64 s[84:85], s[{sN}:{sN+1}], v[58:59]")
        a("s_nop 0")
        a("s_and_b64 vcc, vcc, s[84:85]")
        a("s_cmp_eq_u64 vcc, -1")
        a("s_cbranch_scc1 L_b_7")
        a("s_cmp_gt_u32 s82, 20000")
        a("s_cbranch_scc1 L_b_7")
        a("s_sleep 2")
        a("s_branch L_pkv")
        a.put("L_b_7")
        a(f"s_and_b32 s10, s{sW}, 3")
        a("s_mul_i32 s13, s10, 2560")
        a(f"s_add_u32 s13, s13, {QP}")
        a("v_add_u32 v9, s13, v8")
        a("v_lshl_add_u32 v10, v0, 3, s13")
        a("s_waitcnt lgkmcnt(0)")
        a("s_barrier")
        self.stamp(7)
        a("ds_read_b128 v[112:115], v9")
        a("ds_read_b128 v[116:119], v9 offset:1024")
        a("ds_read_b64 v[120:121], v10 offset:2048")

    def kvdma(self, c, i):
        if i < 0:
            lab = self.a.label("Lx")
            return [f"s_cmp_eq_u32 s{sW}, 0", f"s_cbranch_scc0 {lab}",
                    f"s_mov_b32 m0, {SLOT*(c%3)+40960}", f"s_mov_b32 s12, {SLOT*c+40960}",
                    f"buffer_load_dwordx4 v8, s[{SWS}:{SWS+3}], s12 offen sc1 lds", lab + ":"]
        return [f"s_add_u32 m0, s51, {SLOT*(c%3)+8192*i}", f"s_add_u32 s12, s51, {SLOT*c+8192*i}",
                f"buffer_load_dwordx4 v8, s[{SWS}:{SWS+3}], s12 offen sc1 lds"]

    def attention(self, isB):
        a = self.a
        S = (16, 48)
        O0, O1, QA, QB, Q4, K4, K16 = 80, 96, 112, 116, 120, 122, 124
        V = (128, 136)
        IDX, AK16, AK4, AV = 144, 145, 148, 151
        URAW, UTR = 160, 176
        UOFF, USW, USR, UTW, UTZ = 155, 156, 157, 158, 159
        a(f"s_lshl_b32 s51, s{sW}, 10")
        for c, i in [(0, -1), (1, -1)] + [(0, i) for i in range(5)] + [(1, i) for i in range(5)]:
            for ln in self.kvdma(c, i):
                a(ln)
        kh = BLK if isB else 0
        a(f"v_add_u32 v{AK16}, {kh}, v8" if kh else f"v_mov_b32 v{AK16}, v8")
        a(f"v_lshlrev_b32 v{AK4}, 3, v0")
        a(f"v_add_u32 v{AK4}, {kh+2048}, v{AK4}")
        a("v_and_b32 v1, 31, v0")
        a("v_min_u32 v2, 20, v1")
        a("v_cmp_lt_u32 vcc, 27, v1")
        a("v_lshrrev_b32 v3, 5, v0")
        a("v_cndmask_b32 v2, v2, 4, vcc")
        a("v_mul_u32_u24 v3, 0x150, v3")
        a("v_lshl_add_u32 v2, v2, 4, v3")
        a(f"v_add_u32 v{AV}, {kh+2560}, v2")
        for r in (AK16, AK4, AV):
            a(f"v_add_u32 v{r+1}, {SLOT}, v{r}")
            a(f"v_add_u32 v{r+2}, {2*SLOT}, v{r}")
        a(f"v_mov_b32 v{IDX}, 0xdddddddd")
        for r in range(32):
            a(f"v_mov_b32 v{O0+r}, 0")
        if isB:
            a(f"s_and_b32 s10, s{sW}, 3")
            a("s_mul_i32 s11, s10, 655360")
            a(f"s_lshl_b32 s12, s{sD0}, 1")
            a("s_add_u32 s11, s11, s12")
            a(f"s_cmp_lt_u32 s{sG}, 3")
            a("s_cselect_b32 s11, 0x80000000, s11")
            a("s_movk_i32 s12, 1280")
            a("v_mov_b32 v1, s11")
            a(f"v_mad_u32_u24 v{UOFF}, v0, s12, v1")
            a("s_lshl_b32 s11, s10, 9")
            a(f"s_add_u32 s11, s11, {USCR}")
            a(f"v_lshl_add_u32 v{USW}, v0, 3, s11")
            a("v_and_b32 v1, 48, v0")
            a("v_and_b32 v2, 3, v0")
            a("v_lshl_add_u32 v1, v2, 2, v1")
            a("v_bfe_u32 v3, v0, 2, 2")
            a("v_add_u32 v1, v1, v3")
            a(f"v_lshl_add_u32 v{USR}, v1, 3, s11")
            a("s_lshl_b32 s11, s10, 10")
            a(f"s_add_u32 s11, s11, {UT+480}")
            a("v_lshrrev_b32 v1, 2, v0")
            a("v_lshl_add_u32 v1, v1, 3, s11")
            a(f"s_movk_i32 s12, {UTS}")
            a(f"v_mad_u32_u24 v{UTW}, v2, s12, v1")
            a(f"s_mul_i32 s11, s10, {UTS}")
            a(f"s_add_u32 s11, s11, {UT}")
            a("v_min_u32 v1, 59, v0")
            a(f"v_lshl_add_u32 v{UTZ}, v1, 3, s11")
            a("v_mov_b32 v4, 0")
            a("v_mov_b32 v5, 0")
        a("s_waitcnt vmcnt(5) lgkmcnt(0)")
        a("s_barrier")
        self.stamp(9)
        self.stop_at("e0")
        lg = LG(a, "lgkmcnt", 15)

        def loc(m):
            c = m >> 3
            return c % 3, 2 * BLK * ((m >> 1) & 3), m & 1

        def rdK16(m):
            sl, off, aa = loc(m)
            a(f"ds_read_b128 {v(K16,4)}, v{AK16+sl} offset:{off+1024*aa}")
            lg.issue(("K16", m))

        def rdK4(m):
            sl, off, aa = loc(m)
            a(f"ds_read_b64 {v(K4,2)}, v{AK4+sl} offset:{off}")
            lg.issue(("K4", m))

        def rdV(m, f):
            sl, off, aa = loc(m)
            a(f"ds_read_b128 {v(V[m&1]+4*f,4)}, v{AV+sl} offset:{off+672*(2*aa+f)}")
            lg.issue(("V", m, f))

        def pv(O, B, Vr):
            a(f"v_smfmac_f32_32x32x32_bf16 {v(O,16)}, {v(Vr,4)}, {v(B,8)}, v{IDX}")

        def qk4(m, dst):
            a(f"v_mfma_f32_32x32x4_2b_bf16 {v(dst,32)}, {v(K4,2)}, {v(Q4,2)}, 0 cbsz:1 abid:{m&1}")

        def qk16(dst, Q):
            a(f"v_mfma_f32_32x32x16_bf16 {v(dst,16)}, {v(K16,4)}, {v(Q,4)}, {v(dst,16)}")
        rdK4(0)
        rdK16(0)
        rdV(0, 0)
        rdV(0, 1)
        lg.wait(("K16", 0))
        qk4(0, S[0])
        a.nop(18)
        qk16(S[0], QA)
        qk16(S[0] + 16, QB)
        rdK16(1)
        lg.wait(("V", 0, 1))
        a.nop(10)
        hk = {}

        def hook(n, pos, lines):
            hk.setdefault((n, pos), []).extend(lines)
        hook(0, "a2", self.kvdma(2, -1))
        for i in range(5):
            hook(i, "a5", self.kvdma(2, i))
        hook(7, "a2", self.kvdma(3, -1))
        for i in range(5):
            hook(7 + i, "a5", self.kvdma(3, i))
        bars = {2: "vmcnt(3)", 6: "vmcnt(0)", 14: "vmcnt(0)", 22: None, 30: None}
        dsx = {}
        if isB:
            for i in range(8):
                hook(15 + i, "a2", [f"s_mov_b32 s12, {81920*i}",
                                    f"buffer_load_dwordx2 {v(URAW+2*i,2)}, v{UOFF}, s[{SU}:{SU+3}], s12 offen"])
            hook(25, "a1w", ["s_waitcnt vmcnt(0)"])
            dsx[(24, "a1")] = [f"ds_write_b64 v{UTZ}, v[4:5]"]
            for k in range(4):
                for e, pos in ((0, "a1"), (1, "a3")):
                    i = 2 * k + e
                    dsx.setdefault((25 + k, pos), []).extend(
                        [f"ds_write_b64 v{USW}, {v(URAW+2*i,2)}", f"ds_read_b64_tr_b16 {v(UTR+2*i,2)}, v{USR}"])
                    dsx.setdefault((26 + k, "a2" if e == 0 else "a5"), []).append(
                        f"ds_write_b64 v{UTW}, {v(UTR+2*i,2)} offset:{128*i}")
        prio = {}
        for st, en in ((0, 2), (3, 6), (7, 14), (15, 22), (23, 30)):
            ln = en - st + 1
            for n in range(st, en + 1):
                prio[n] = 3 - (n - st) * 4 // max(ln, 4) if ln >= 4 else 3 - (n - st)
        prio[31] = 3

        def run(n, pos):
            for ln in hk.get((n, pos), []):
                a(ln)
            for ln in dsx.get((n, pos), []):
                a(ln)
                lg.issue("x")
        a(f"s_setprio {prio[0]}")
        for n in range(32):
            cur, nxt = S[n & 1], S[(n + 1) & 1]
            Vc, Vp = V[n & 1], V[(n + 1) & 1]
            e = lambda lo, hi: [a(f"v_exp_f32 v{cur+i}, v{cur+i}") for i in range(lo, hi + 1)]
            e(0, 1)
            if n > 0:
                pv(O1, nxt + 24, Vp + 4)
            run(n, "a1w")
            if n < 31:
                rdV(n + 1, 0)
            run(n, "a1")
            e(2, 5)
            if n < 31:
                qk4(n + 1, nxt)
            run(n, "a2")
            e(6, 13)
            pv(O0, cur, Vc)
            if n < 31:
                rdV(n + 1, 1)
            run(n, "a3")
            e(14, 17)
            pv(O0, cur + 8, Vc + 4)
            if n < 31:
                lg.wait(("K16", n + 1))
            if n % 2 == 0 and n + 2 < 32:
                rdK4(n + 2)
            e(18, 21)
            if n < 31:
                qk16(nxt, QA)
            run(n, "a5")
            e(22, 25)
            if n < 31:
                qk16(nxt + 16, QB)
            last = len(lg.q)
            if n + 2 < 32:
                rdK16(n + 2)
            if n < 31 and prio[n + 1] != prio[n] and n not in bars:
                a(f"s_setprio {prio[n+1]}")
            e(26, 29)
            pv(O1, cur + 16, Vc)
            if n < 31:
                cnt = len(lg.q) - last
                w = f"lgkmcnt({cnt})"
                lg.q = lg.q[last:]
                if n in bars and bars[n]:
                    w = bars[n] + " " + w
                a(f"s_waitcnt {w}")
                if n in bars:
                    a("s_barrier")
                    a(f"s_setprio {prio[n+1]}")
            e(30, 31)
        a("s_nop 1")
        pv(O1, S[1] + 24, V[1] + 4)
        self.stamp(10)

    def tailB(self):
        a = self.a
        URAW, TS = 160, 192
        a(f"s_and_b32 s10, s{sW}, 3")
        a("s_mul_i32 s11, s10, 25600")
        a("v_add_u32 v9, s11, v8")
        a.nop(8)
        for i in range(3):
            a(f"ds_write_b128 v9, {v(80+4*i,4)} offset:{1024*i}")
        a.nop(2)
        for i in range(3):
            a(f"ds_write_b128 v9, {v(96+4*i,4)} offset:{3072+1024*i}")
        a("s_waitcnt lgkmcnt(0)")
        a("s_barrier")
        self.stop_at("t1")
        a(f"s_cmp_lt_u32 s{sG}, 3")
        a("s_cbranch_scc1 L_fin")
        a("s_setprio 0")
        a(f"s_lshl_b32 s12, s{sD0}, 1")
        a("s_load_dwordx2 s[14:15], s[42:43], s12")
        a(f"s_mul_i32 s11, s10, {KCS}")
        a(f"s_add_u32 s11, s11, {KC}")
        a("v_and_b32 v10, 15, v0")
        a("v_lshrrev_b32 v11, 4, v0")
        a("v_sub_u32 v12, 0x7ef, v10")
        a("v_lshrrev_b32 v12, 1, v12")
        a("v_lshl_add_u32 v12, v11, 2, v12")
        a("v_lshlrev_b32 v12, 2, v12")
        a("v_and_b32 v13, 1, v0")
        a("v_xor_b32 v13, 1, v13")
        a("v_mul_u32_u24 v13, 0x1040, v13")
        a("s_sub_u32 s12, s11, 960")
        a("v_add3_u32 v2, v12, v13, s12")
        for b in range(1, 4):
            a(f"v_subrev_u32 v{2+b}, {1024*b}, v2")
        a("v_lshlrev_b32 v12, 5, v10")
        a(f"s_mul_i32 s12, s10, {UTS}")
        a(f"s_add_u32 s12, s12, {UT}")
        a("v_lshl_add_u32 v13, v11, 4, v12")
        a("v_add_u32 v6, s12, v13")
        a("s_lshr_b32 s12, s10, 1")
        a("s_lshl_b32 s12, s12, 6")
        a("s_add_u32 s12, s12, s11")
        a("v_lshl_add_u32 v13, v11, 3, v12")
        a("v_add_u32 v7, s12, v13")
        ACC = 224
        lg = LG(a, "lgkmcnt", 15)

        def reads(r):
            base = 16 + 64 * (r & 1)
            out = []
            for k in range(8):
                sidx = 8 * k + r
                o = 16 * (15 - (sidx & 15))
                A = base + 4 * k
                out.append(f"ds_read2_b32 {v(A,2)}, v{2+(sidx>>4)} offset0:{o} offset1:{o+1}")
                out.append(f"ds_read2_b32 {v(A+2,2)}, v{2+(sidx>>4)} offset0:{o+2} offset1:{o+3}")
                e = 8 * k - r
                out.append(f"ds_read_b128 {v(base+32+4*k,4)}, v6 offset:{64*(e+7)}")
            return out
        a("s_waitcnt lgkmcnt(0)")
        a("s_lshl_b32 s8, s14, 16")
        a("s_and_b32 s9, s14, 0xffff0000")
        a("s_lshl_b32 s14, s15, 16")
        a("s_and_b32 s15, s15, 0xffff0000")
        a("s_mov_b32 s13, 0xffff0000")
        extra = []
        for i in range(8):
            for hh, sp in ((0, "s[8:9]"), (1, "s[14:15]")):
                t = TS + 4 * i + 2 * hh
                u = URAW + 2 * i + hh
                extra.append([f"v_lshlrev_b32 v{t}, 16, v{u}", f"v_and_b32 v{t+1}, s13, v{u}",
                              f"v_pk_mul_f32 {v(t,2)}, {v(t,2)}, {sp}",
                              f"v_cvt_pk_bf16_f32 v{t+1}, v{t}, v{t+1}",
                              f"v_lshlrev_b32 v{t}, 16, v{t+1}", f"v_and_b32 v{t+1}, s13, v{t+1}"])
        extra = [x for grp in extra for x in grp]
        for ln in reads(0):
            a(ln)
        a("s_waitcnt lgkmcnt(0)")
        for r in range(8):
            base = 16 + 64 * (r & 1)
            nxt = reads(r + 1) if r < 7 else []
            cnt = 0
            for sg in range(8):
                for i in range(sg, 8):
                    first = r == 0 and sg == 0
                    c = "0" if first else v(ACC + 4 * i, 4)
                    a(f"v_mfma_f32_16x16x32_bf16 {v(ACC+4*i,4)}, {v(base+4*sg,4)}, {v(base+32+4*(i-sg),4)}, {c}")
                    if nxt:
                        a(nxt.pop(0))
                    elif extra:
                        a(extra.pop(0))
                    cnt += 1
            if r < 7:
                a("s_waitcnt lgkmcnt(0)")
        while extra:
            a(extra.pop(0))
        a("v_bfe_u32 v12, v0, 2, 2")
        a(f"s_movk_i32 s12, {KCS}")
        a("v_lshrrev_b32 v13, 1, v12")
        a("v_lshlrev_b32 v13, 6, v13")
        a("v_mad_u32_u24 v13, v12, s12, v13")
        a("v_lshl_add_u32 v13, v11, 5, v13")
        a("v_and_b32 v12, 3, v0")
        a("v_lshl_add_u32 v13, v12, 3, v13")
        a("s_lshl_b32 s12, s10, 10")
        a(f"s_add_u32 s12, s12, {KC}")
        a("v_add_u32 v14, s12, v13")
        a("s_mul_i32 s11, s10, 1310720")
        a(f"s_lshl_b32 s12, s{sD0}, 1")
        a("s_add_u32 s11, s11, s12")
        a("s_add_u32 s11, s11, 1280")
        a("s_movk_i32 s12, 2560")
        a("v_mov_b32 v15, s11")
        a("v_mad_u32_u24 v15, v0, s12, v15")
        for i in range(8):
            a(f"v_cvt_pk_bf16_f32 v{16+2*i}, v{ACC+4*i}, v{ACC+4*i+1}")
            a(f"v_cvt_pk_bf16_f32 v{17+2*i}, v{ACC+4*i+2}, v{ACC+4*i+3}")
            a(f"ds_write_b64 v7, {v(16+2*i,2)} offset:{512*i}")
        a("s_waitcnt lgkmcnt(0)")
        self.stamp(11)
        a("s_barrier")
        for i in range(8):
            a(f"ds_read_b64_tr_b16 {v(32+2*i,2)}, v14 offset:{128*i}")
        for i in range(8):
            a(f"s_waitcnt lgkmcnt({7-i})")
            y = 48 + 4 * i
            for hh in range(2):
                a(f"v_lshlrev_b32 v{y+2*hh}, 16, v{32+2*i+hh}")
                a(f"v_and_b32 v{y+2*hh+1}, s13, v{32+2*i+hh}")
            for hh in range(2):
                a(f"v_pk_add_f32 {v(y+2*hh,2)}, {v(y+2*hh,2)}, {v(TS+4*i+2*hh,2)}")
            a(f"v_cvt_pk_bf16_f32 v{y}, v{y}, v{y+1}")
            a(f"v_cvt_pk_bf16_f32 v{y+1}, v{y+2}, v{y+3}")
            a(f"s_mov_b32 s12, {163840*i}")
            a(f"buffer_store_dwordx2 {v(y,2)}, v15, s[{SOUT}:{SOUT+3}], s12 offen")
        a("s_branch L_fin")

    def tailA(self):
        a = self.a
        O = (80, 96)
        a(f"s_mul_i32 s11, s{sW}, 25600")
        a("v_add_u32 v9, s11, v8")
        self.wvoff(2, False, t0=160)
        a("s_barrier")
        self.stop_at("t1")
        for i in range(6):
            a(f"ds_read_b128 {v(16+4*i,4)}, v9 offset:{1024*i}")
        a("v_and_b32 v12, 15, v0")
        a("v_lshlrev_b32 v12, 4, v12")
        a("s_movk_i32 s12, 20480")
        a("v_lshrrev_b32 v13, 4, v0")
        a("v_mad_u32_u24 v11, v13, s12, v12")
        a("v_and_b32 v13, 1, v13")
        a("v_mad_u32_u24 v10, v13, s12, v12")
        a("v_lshrrev_b32 v13, 5, v0")
        a("v_lshl_add_u32 v10, v13, 8, v10")
        a(f"s_mul_i32 s14, s{sT}, 81920")
        a(f"s_add_u32 s14, s14, {OIMG}")
        a(f"s_mul_i32 s15, s{sG}, 2560")
        a("s_add_u32 s15, s15, s14")
        a("s_waitcnt lgkmcnt(0)")
        for T in range(2):
            for i in range(6):
                a(f"v_pk_add_f32 {v(O[T]+2*i,2)}, {v(O[T]+2*i,2)}, {v(16+12*T+2*i,2)}")
        a("s_mov_b32 s13, 0")
        a.put("L_lext")
        for T in range(2):
            a(f"v_mov_b32 v{16+2*T}, v{O[T]+8}")
            a(f"v_mov_b32 v{17+2*T}, v{O[T]+8}")
        a("v_mov_b32 v20, 0")
        a("v_mov_b32 v21, 0")
        a("v_permlane32_swap_b32 v16, v17")
        a("v_permlane32_swap_b32 v18, v19")
        for T in range(2):
            for i in range(6):
                a(f"v_pk_fma_f32 v[20:21], {v(O[T]+2*i,2)}, 0, v[20:21] op_sel_hi:[1,0,1]")
        a("v_rcp_f32 v22, v17")
        a("v_rcp_f32 v24, v19")
        a("s_cmp_eq_u32 s13, 1")
        a("s_cbranch_scc1 L_norm")
        a("v_add_f32 v20, v20, v21")
        a("v_min_f32 v16, v17, v19")
        a("v_max_f32 v18, v17, v19")
        a("v_add_f32 v16, v16, v20")
        a(f"s_mov_b32 s12, {f2u(2.0**48):#x}")
        a(f"v_cmp_le_f32 vcc, {f2u(2.0**-24):#x}, v16")
        a("v_cmp_ge_f32 s[84:85], s12, v18")
        a("s_nop 0")
        a("s_and_b64 vcc, vcc, s[84:85]")
        a("s_cmp_eq_u64 vcc, -1")
        a("s_branch L_slow" if self.force_slow else "s_cbranch_scc0 L_slow")
        a.put("L_norm")
        a("s_nop 0")
        for T in range(2):
            for i in range(6):
                a(f"v_pk_mul_f32 {v(O[T]+2*i,2)}, {v(O[T]+2*i,2)}, {v(22+2*T,2)} op_sel_hi:[1,0]")
        for T in range(2):
            for q in range(4):
                a(f"v_cvt_pk_bf16_f32 v{28+4*T+q}, v{O[T]+2*q}, v{O[T]+2*q+1}")
            for q in range(2):
                a(f"v_cvt_pk_bf16_f32 v{36+2*T+q}, v{O[T]+8+2*q}, v{O[T]+9+2*q}")
        a(f"s_lshl_b32 s12, s{sW}, 9")
        a("s_add_u32 s12, s12, s15")
        a(f"buffer_store_dwordx4 v[28:31], v10, s[{SWS}:{SWS+3}], s12 offen sc1")
        a("s_add_u32 s12, s12, 40960")
        a("v_permlane32_swap_b32 v36, v38")
        a("v_permlane32_swap_b32 v37, v39")
        a(f"buffer_store_dwordx4 v[32:35], v10, s[{SWS}:{SWS+3}], s12 offen sc1")
        a(f"s_and_b32 s12, s{sW}, 1")
        a("s_lshl_b32 s12, s12, 8")
        a(f"s_lshr_b32 s13, s{sW}, 1")
        a("s_lshl3_add_u32 s12, s13, s12")
        a("s_add_u32 s12, s12, s15")
        a(f"buffer_store_dwordx2 v[36:37], v11, s[{SWS}:{SWS+3}], s12 offen offset:2048 sc1")
        a(f"s_mul_i32 s12, s{sW}, 204800")
        a(f"s_mul_i32 s13, s{sG}, 160")
        a("s_add_u32 s12, s12, s13")
        a("s_mov_b32 m0, s11")
        for gi in range(5):
            for i in range(5):
                a("s_nop 0")
                a(f"buffer_load_dwordx4 v{2+i}, s[{SWO}:{SWO+3}], s12 offen lds")
                a("s_add_u32 m0, m0, 1024")
                if gi == 1 and i == 4:
                    a(f"v_mov_b32 v12, {CNT}")
                    a("v_mov_b32 v13, 1")
                    a("s_waitcnt vmcnt(10)")
                    self.stamp(11)
                    a("s_mov_b64 exec, 1")
                    a("ds_add_rtn_u32 v14, v12, v13")
                    a("s_waitcnt lgkmcnt(0)")
                    a("v_readfirstlane_b32 s13, v14")
                    a(f"s_lshl_b32 s10, s{sT}, 7")
                    a(f"s_add_u32 s10, s10, {FLG_O}")
                    a("s_cmp_eq_u32 s13, 3")
                    a("s_cbranch_scc0 L_noflag")
                    a(f"v_mov_b32 v12, s{sN}")
                    a(f"v_mov_b32 v13, s{sN+1}")
                    a(f"s_lshl_b32 s13, s{sG}, 3")
                    a("v_mov_b32 v14, s13")
                    a(f"buffer_store_dwordx2 v[12:13], v14, s[{SWS}:{SWS+3}], s10 offen sc1")
                    a.put("L_noflag")
                    a("s_mov_b64 exec, -1")
            a("s_add_u32 s12, s12, 40960")
        AD = 240
        a("v_lshrrev_b32 v16, 4, v0")
        a("v_bfe_u32 v17, v0, 2, 2")
        a("v_and_b32 v18, 3, v0")
        a("v_lshlrev_b32 v18, 3, v18")
        a("s_movk_i32 s13, 0xa0")
        a("v_mad_u32_u24 v17, v17, s13, v18")
        for m in range(5):
            a(f"v_add_u32 v19, {4*m}, v16")
            a("v_cmp_lt_u32 vcc, 9, v19")
            a("v_add_u32 v20, -10, v19")
            a("s_nop 0")
            a("v_cndmask_b32 v19, v19, v20, vcc")
            a("v_cndmask_b32 v20, 0, 20, vcc")
            a("v_lshrrev_b32 v21, 1, v19")
            a("v_mul_u32_u24 v21, 5, v21")
            a("v_and_b32 v22, 1, v19")
            a("v_add_u32 v21, v21, v22")
            a("v_mul_u32_u24 v22, 5, v22")
            a("v_add_u32 v22, 4, v22")
            a("v_cmp_gt_u32 vcc, 8, v19")
            a("s_movk_i32 s13, 640")
            a("s_nop 0")
            a("v_cndmask_b32 v21, v22, v21, vcc")
            a("v_cndmask_b32 v22, 10, 2, vcc")
            a("v_add_u32 v21, v21, v20")
            a(f"v_mad_u32_u24 v{AD+2*m}, v21, s13, v17")
            a(f"v_mad_u32_u24 v{AD+2*m+1}, v22, s13, v{AD+2*m}")
        a("v_and_b32 v18, 15, v0")
        a("s_movk_i32 s13, 2560")
        a("v_lshlrev_b32 v16, 3, v16")
        a("v_mad_u32_u24 v7, v18, s13, v16")
        a("v_and_b32 v14, 7, v0")
        a("v_lshlrev_b32 v14, 3, v14")
        a("s_mov_b32 s82, 0")
        a.put("L_po")
        a(f"buffer_load_dwordx2 v[12:13], v14, s[{SWS}:{SWS+3}], s10 offen sc1")
        a("s_add_u32 s82, s82, 1")
        a("s_waitcnt vmcnt(0)")
        a(f"v_cmp_eq_u64 vcc, s[{sN}:{sN+1}], v[12:13]")
        a("s_nop 0")
        a("s_cmp_eq_u64 vcc, -1")
        a("s_cbranch_scc1 L_pod")
        a("s_cmp_gt_u32 s82, 20000")
        a("s_cbranch_scc1 L_pod")
        a("s_sleep 2")
        a("s_branch L_po")
        a.put("L_pod")
        self.stamp(8)
        OF = 16
        a(f"s_mul_i32 s12, s{sW}, 20480")
        a("s_add_u32 s12, s12, s14")
        for ks in range(20):
            a(f"buffer_load_dwordx4 {v(OF+4*ks,4)}, v8, s[{SWS}:{SWS+3}], s12 offen offset:{1024*(ks%4)} sc1")
            if ks % 4 == 3:
                a("s_add_u32 s12, s12, 4096")
        a("s_barrier")
        self.stamp(1)
        ACC, TR = 96, 120
        lg = LG(a, "lgkmcnt", 15)
        seq = [(ks, ct) for ks in range(20) for ct in range(5)]

        def issue(n):
            ks, ct = seq[n]
            if ks == 10 and ct == 0:
                for k in range(10):
                    a(f"v_add_u32 v{AD+k}, 51200, v{AD+k}")
            F = TR + 4 * (n % 8)
            off = 25600 * ((ks // 5) % 2) + 32 * ct
            m = ks % 5
            a(f"ds_read_b64_tr_b16 {v(F,2)}, v{AD+2*m} offset:{off}")
            a(f"ds_read_b64_tr_b16 {v(F+2,2)}, v{AD+2*m+1} offset:{off}")
            lg.issue(n)
            lg.issue(n)
        for n in range(7):
            issue(n)
        for n in range(100):
            ks, ct = seq[n]
            w = lg.waitstr(n)
            if ct == 0:
                w = f"vmcnt({19-ks}) " + w
            a(f"s_waitcnt {w}")
            F = TR + 4 * (n % 8)
            c = "0" if ks == 0 else v(ACC + 4 * ct, 4)
            a(f"v_mfma_f32_16x16x32_bf16 {v(ACC+4*ct,4)}, {v(F,4)}, {v(OF+4*ks,4)}, {c}")
            if n + 7 < 100:
                issue(n + 7)
        a(f"s_lshl_b32 s12, s{sT}, 6")
        a(f"s_lshl4_add_u32 s12, s{sW}, s12")
        a("s_mul_i32 s12, s12, 2560")
        a(f"s_mul_i32 s13, s{sG}, 160")
        a("s_add_u32 s12, s12, s13")
        a.nop(2)
        for ct in range(5):
            if ct == 4:
                a.nop(2)
            a(f"v_cvt_pk_bf16_f32 v{16+2*ct}, v{ACC+4*ct}, v{ACC+4*ct+1}")
            a(f"v_cvt_pk_bf16_f32 v{17+2*ct}, v{ACC+4*ct+2}, v{ACC+4*ct+3}")
            a(f"buffer_store_dwordx2 {v(16+2*ct,2)}, v7, s[{SOUT}:{SOUT+3}], s12 offen offset:{32*ct}")
        a("s_branch L_fin")

    def slow(self):
        a = self.a
        S0, O0, O1, QA, QB, Q4, K4, K16, V, IDX, AV = 16, 80, 96, 112, 116, 120, 122, 124, 128, 144, 151
        M0, M1 = 60, 61
        a.put("L_slow")
        a("v_and_b32 v62, 31, v0")
        a("v_lshlrev_b32 v62, 3, v62")
        a(f"v_mov_b32 v{M0}, 0xff800000")
        a(f"v_mov_b32 v{M1}, 0xff800000")
        for ps in range(2):
            if ps == 1:
                for M, t in ((M0, 63), (M1, 64)):
                    a(f"v_mov_b32 v{t}, v{M}")
                a("s_nop 1")
                a(f"v_permlane32_swap_b32 v{M0}, v63")
                a(f"v_permlane32_swap_b32 v{M1}, v64")
                a("s_nop 1")
                a(f"v_max_f32 v{M0}, v{M0}, v63")
                a(f"v_max_f32 v{M1}, v{M1}, v64")
                for r in range(32):
                    a(f"v_mov_b32 v{O0+r}, 0")
            a("s_mov_b32 s8, 0")
            a.put(f"L_sl{ps}")
            a("s_lshr_b32 s9, s8, 1")
            a(f"s_mul_i32 s9, s9, {BLK}")
            a("s_and_b32 s10, s8, 1")
            a("s_lshl_b32 s12, s10, 10")
            a("s_add_u32 s12, s12, s9")
            a(f"buffer_load_dwordx4 {v(K16,4)}, v8, s[{SWS}:{SWS+3}], s12 offen sc1")
            a("s_lshl_b32 s12, s10, 8")
            a("s_add_u32 s12, s12, s9")
            a(f"buffer_load_dwordx2 {v(K4,2)}, v62, s[{SWS}:{SWS+3}], s12 offen offset:2048 sc1")
            if ps == 1:
                a("s_mul_i32 s12, s10, 1344")
                a("s_add_u32 s12, s12, s9")
                a(f"buffer_load_dwordx4 {v(V,4)}, v{AV}, s[{SWS}:{SWS+3}], s12 offen sc1")
                a(f"buffer_load_dwordx4 {v(V+4,4)}, v{AV}, s[{SWS}:{SWS+3}], s12 offen offset:672 sc1")
            a("s_waitcnt vmcnt(0)")
            a(f"v_mfma_f32_32x32x4_2b_bf16 {v(S0,32)}, {v(K4,2)}, {v(Q4,2)}, 0 cbsz:1 abid:0")
            a.nop(18)
            a(f"v_mfma_f32_32x32x16_bf16 {v(S0,16)}, {v(K16,4)}, {v(QA,4)}, {v(S0,16)}")
            a(f"v_mfma_f32_32x32x16_bf16 {v(S0+16,16)}, {v(K16,4)}, {v(QB,4)}, {v(S0+16,16)}")
            a.nop(14)
            if ps == 0:
                for T, M in ((0, M0), (1, M1)):
                    for r in range(0, 16, 2):
                        a(f"v_max3_f32 v{M}, v{S0+16*T+r}, v{S0+16*T+r+1}, v{M}")
            else:
                for T, M in ((0, M0), (1, M1)):
                    for r in range(16):
                        a(f"v_sub_f32 v{S0+16*T+r}, v{S0+16*T+r}, v{M}")
                for r in range(32):
                    a(f"v_exp_f32 v{S0+r}, v{S0+r}")
                a("s_nop 1")
                for T, O in ((0, O0), (1, O1)):
                    for f in range(2):
                        a(f"v_smfmac_f32_32x32x32_bf16 {v(O,16)}, {v(V+4*f,4)}, {v(S0+16*T+8*f,8)}, v{IDX}")
                a.nop(14)
            a("s_add_u32 s8, s8, 1")
            a("s_cmp_lt_u32 s8, 64")
            a(f"s_cbranch_scc1 L_sl{ps}")
        a("s_mov_b32 s13, 1")
        a("s_branch L_lext")

    def dump(self):
        a = self.a
        a.put("L_dump")
        a("s_waitcnt vmcnt(0) lgkmcnt(0)")
        a("s_barrier")
        a(f"s_lshl_b32 s10, s{sW}, 10")
        a("v_lshl_add_u32 v250, v0, 4, s10")
        a(f"s_mul_i32 s11, s2, {LDS_BYTES}")
        a(f"s_add_u32 s11, s11, {DBG}")
        a("v_mov_b32 v251, v250")
        for i in range(20):
            a("ds_read_b128 v[252:255], v251")
            a("s_waitcnt lgkmcnt(0)")
            a(f"buffer_store_dwordx4 v[252:255], v250, s[{SWS}:{SWS+3}], s11 offen")
            a("s_waitcnt vmcnt(0)")
            a("v_add_u32 v251, 0x2000, v251")
            a("s_add_u32 s11, s11, 0x2000")
        if self.dump_regs:
            lo, n = self.dump_regs
            a(f"s_lshl_b32 s10, s2, 3")
            a(f"s_add_u32 s10, s10, s{sW}")
            a(f"s_mul_i32 s10, s10, {256*n}")
            a(f"s_add_u32 s10, s10, {DBG + 256*LDS_BYTES}")
            a("v_lshlrev_b32 v250, 2, v0")
            for i in range(n):
                a(f"buffer_store_dword v{lo+i}, v250, s[{SWS}:{SWS+3}], s10 offen")
                a("s_add_u32 s10, s10, 256")
            a("s_waitcnt vmcnt(0)")
        a("s_endpgm")

    def build(self):
        a = self.a
        self.prologue()
        a(f"s_cmp_lt_u32 s{sG}, 3")
        a("s_cbranch_scc1 L_P")
        self.kgen()
        a.put("L_P")
        self.kvjob()
        a.put("L_b1")
        a("s_waitcnt vmcnt(0) lgkmcnt(0)")
        a("s_barrier")
        self.stamp(2)
        self.stop_at("b1")
        a(f"s_cmp_lt_u32 s{sW}, 4")
        a("s_cbranch_scc0 L_B")
        self.qgemm()
        self.stop_at("b6")
        self.attention(False)
        self.tailA()
        a.put("L_B")
        self.bphase1()
        self.stop_at("b6")
        self.attention(True)
        self.tailB()
        self.slow()
        if self.stop:
            self.dump()
        a.put("L_fin")
        if self.stamps:
            a("s_waitcnt vmcnt(0)")
            a("s_memtime s[86:87]")
            a("s_lshl_b32 s10, s2, 3")
            a(f"s_add_u32 s10, s10, s{sW}")
            a("s_lshl_b32 s10, s10, 6")
            a(f"s_add_u32 s10, s10, {STAMP}")
            a("v_mov_b32 v1, 0")
            a("s_waitcnt lgkmcnt(0)")
            for i in range(12):
                a(f"v_mov_b32 v{4+i}, s{sST+i}")
            a("v_mov_b32 v16, s86")
            a("s_memrealtime s[86:87]")
            a("s_waitcnt lgkmcnt(0)")
            a("v_mov_b32 v17, s86")
            a("s_mov_b64 exec, 1")
            for i in range(4):
                a(f"buffer_store_dwordx4 {v(4+4*i,4)}, v1, s[{SWS}:{SWS+3}], s10 offen offset:{16*i}")
        a.put("L_end")
        a("s_endpgm")
        a.put("L_codeend")
        return a


HEAD = open("cdna_kernels/" + NAME + ".s.ref").read().split("; Override launch")[0]


def emit(path, **kw):
    g = Gen(**kw)
    a = g.build()
    a.lines, msgs = autofix(a.lines)
    if kw.get("verbose", path.endswith("prompt.s")):
        for m in msgs[:30]:
            print("fixed", m)
    assert not check_hazards(a.lines)
    if path.endswith('prompt.s'):
        for m in check_inflight(a.lines)[:30]:
            print(m)
    src = HEAD + f"""; @launch grid=(256,1,1) block=(512,1,1) lds={LDS_BYTES}
.amdgcn_target "amdgcn-amd-amdhsa--gfx950"
.text
.globl {NAME}_kernel
.p2align 8
.type {NAME}_kernel,@function
{NAME}_kernel:
{a.text()}.section .rodata,"a"
.p2align 6
.amdhsa_kernel {NAME}_kernel
  .amdhsa_next_free_vgpr 256
  .amdhsa_next_free_sgpr 102
  .amdhsa_accum_offset 256
  .amdhsa_group_segment_fixed_size 0
  .amdhsa_kernarg_size 136
  .amdhsa_user_sgpr_count 2
  .amdhsa_user_sgpr_kernarg_segment_ptr 1
  .amdhsa_system_sgpr_workgroup_id_x 1
.end_amdhsa_kernel
"""
    open(path, "w").write(src)
    return len(msgs)


if __name__ == "__main__":
    import os
    os.makedirs("out", exist_ok=True)
    n = emit("cdna_kernels/" + NAME + ".s")
    emit("b1.s", stop="b1", dump_regs=(176, 16))
    emit("b6.s", stop="b6")
    emit("t1.s", stop="t1", dump_regs=(80, 32))
    emit("full.s")
    emit("slow.s", force_slow=True)
    emit("stamp.s", stamps=True)
    print("hazards", n)
```

```python
import sys, struct
from asmlib import Asm, v, s, check_hazards, autofix, check_inflight

NAME = "concat_heads__grouped_kv_mqa__ssm_conv_s4__prompt"

BLK = 5248
SLOT = 41984
WL = 81920
AUX = 122880
KGB = 122880
KGA = 143360
KVP = 148480
QP = 115712
KC = 125952
KCS = 8320
UT = 102400
UTS = 4672
USCR = 121088
CNT = 159232
LDS_BYTES = 163840

FLG_KV = 0x30000
FLG_O = 0x31000
OIMG = 0x40000
WS_SIZE = 0x300000
DBG = 0x400000
STAMP = 0x380000

sW, sT, sG, sD0 = 3, 4, 5, 50
SX, SWQ, SKV, SWS, SOUT, SWO, SU = 52, 56, 60, 64, 68, 72, 76
sN = 80
sST = 88

LOG2E = 1.4426950408889634


def f2u(x):
    return struct.unpack("<I", struct.pack("<f", x))[0]


class LG:
    def __init__(self, a, name, maxc):
        self.a, self.name, self.maxc, self.q = a, name, maxc, []

    def issue(self, tag=None):
        self.q.append(tag)

    def wait(self, tag):
        idx = max(i for i, t in enumerate(self.q) if t == tag)
        n = len(self.q) - 1 - idx
        self.a(f"s_waitcnt {self.name}({min(n, self.maxc)})")
        self.q = self.q[idx + 1:]

    def waitstr(self, tag):
        idx = max(i for i, t in enumerate(self.q) if t == tag)
        n = len(self.q) - 1 - idx
        self.q = self.q[idx + 1:]
        return f"{self.name}({min(n, self.maxc)})"

    def all(self):
        self.q = []


class Gen:
    def __init__(self, stop=None, stamps=False, force_slow=False, dump_regs=None, rt=False):
        self.rt = rt
        self.a = Asm()
        self.stop = stop
        self.stamps = stamps
        self.force_slow = force_slow
        self.debug = stop is not None or stamps
        self.dump_regs = dump_regs

    def srd(self, d, base, size):
        a = self.a
        a(f"s_mov_b32 s{d}, s{base}")
        a(f"s_mov_b32 s{d+1}, s{base+1}")
        a(f"s_mov_b32 s{d+2}, {size}")
        a(f"s_mov_b32 s{d+3}, 0x20000")

    def stamp(self, i):
        if self.stamps:
            self.a("s_memtime s[86:87]")
            self.a("s_waitcnt lgkmcnt(0)")
            self.a(f"s_mov_b32 s{sST+i}, s86")

    def stop_at(self, name):
        if self.stop == name:
            self.a("s_branch L_dump")

    def cmul(self, d, x, y, conj=False):
        a = self.a
        a(f"v_pk_mul_f32 {v(d,2)}, {v(x,2)}, {v(y,2)} op_sel:[0,0] op_sel_hi:[1,0]")
        neg = "neg_hi:[0,1,0]" if conj else "neg_lo:[0,1,0]"
        return f"v_pk_fma_f32 {v(d,2)}, {v(x,2)}, {v(y,2)}, {v(d,2)} op_sel:[1,1,0] op_sel_hi:[0,1,1] {neg}"

    def cmuls(self, lst, conj=False):
        tail = [self.cmul(d, x, y, conj) for d, x, y in lst]
        for t in tail:
            self.a(t)

    def get_nonce(self, vt, vz):
        a = self.a
        lp, dn = a.label("Lnon"), a.label("Lnond")
        a("s_mov_b32 s82, 0")
        a.put(lp)
        a(f"v_readfirstlane_b32 s{sN}, {v(vt)}")
        a(f"v_readfirstlane_b32 s{sN+1}, {v(vt+1)}")
        a("s_add_u32 s82, s82, 1")
        a(f"s_bitcmp1_b32 s{sN}, 0")
        a(f"s_cbranch_scc1 {dn}")
        a("s_cmp_gt_u32 s82, 20000")
        a(f"s_cbranch_scc1 {dn}")
        a("s_sleep 4")
        a(f"global_load_dwordx2 {v(vt,2)}, {v(vz)}, s[46:47] sc1")
        a("s_waitcnt vmcnt(0)")
        a(f"s_branch {lp}")
        a.put(dn)

    def prologue(self):
        a = self.a
        a("s_cmp_ge_u32 s2, 0x100")
        a("s_cbranch_scc1 L_end")
        a("s_load_dwordx16 s[16:31], s[0:1], 0")
        a("s_load_dwordx16 s[32:47], s[0:1], 64")
        a("s_load_dwordx2 s[48:49], s[0:1], 128")
        if self.rt:
            a("s_memrealtime s[98:99]")
            a("s_memtime s[96:97]")
        a("s_getpc_b64 s[6:7]")
        a.put("L_pc")
        a("v_lshlrev_b32 v1, 7, v0")
        a("v_min_u32 v1, L_codeend-L_pc-4, v1")
        a("global_load_dword v255, v1, s[6:7]")
        if self.stamps:
            a("s_memtime s[86:87]")
        a("v_lshrrev_b32 v1, 6, v0")
        a("v_and_b32 v0, 63, v0")
        a("s_and_b32 s8, s2, 7")
        a(f"v_readfirstlane_b32 s{sW}, v1")
        a("s_lshr_b32 s9, s2, 3")
        a(f"s_and_b32 s{sT}, s9, 3")
        a(f"s_lshl2_add_u32 s{sT}, s8, s{sT}")
        a(f"s_lshr_b32 s{sG}, s9, 2")
        a(f"s_mul_i32 s{sD0}, s8, 80")
        a(f"s_lshl2_add_u32 s{sD0}, s9, s{sD0}")
        a(f"s_sub_u32 s{sD0}, s{sD0}, 48")
        a("v_lshrrev_b32 v2, 4, v0")
        a(f"s_and_b32 s10, s{sW}, 3")
        a("s_lshl_b32 s11, s10, 2")
        a("v_add_u32 v3, s11, v2")
        a("v_and_b32 v4, 15, v0")
        a("v_xor_b32 v3, v3, v4")
        a("v_lshlrev_b32 v3, 4, v3")
        a("s_movk_i32 s12, 1280")
        a("v_mad_u32_u24 v7, v2, s12, v3")
        a("v_lshlrev_b32 v8, 4, v0")
        a(f"s_lshr_b32 s11, s{sW}, 2")
        a(f"s_mul_i32 s13, s{sT}, 81920")
        a("s_mul_i32 s12, s10, 5120")
        a("s_add_u32 s13, s13, s12")
        a("s_mul_i32 s12, s11, 40960")
        a("s_add_u32 s13, s13, s12")
        a("s_lshl_b32 s14, s10, 10")
        a("s_lshl_b32 s12, s11, 13")
        a("s_add_u32 s14, s14, s12")
        a(f"s_cmp_ge_u32 s{sG}, 5")
        a("s_cselect_b32 s12, 5, 0")
        a(f"s_sub_u32 s15, s{sG}, s12")
        a(f"s_add_u32 s12, s{sD0}, s10")
        a("s_lshl_b32 s82, s12, 8")
        a("s_lshl_b32 s83, s11, 7")
        a("s_add_u32 s82, s82, s83")
        a("v_lshl_add_u32 v9, v0, 1, s82")
        a("s_lshl_b32 s12, s12, 1")
        a("v_mov_b32 v17, s12")
        for r in range(10, 17):
            a(f"v_mov_b32 v{r}, 0")
        a("s_waitcnt lgkmcnt(0)")
        if self.stamps:
            a(f"s_mov_b32 s{sST}, s86")
        self.srd(SX, 16, 2621440)
        a(f"s_cmp_lt_u32 s{sG}, 3")
        a("s_cbranch_scc1 L_pro_P")
        for i, p in enumerate((40, 28, 30, 32, 34, 36, 38)):
            dst = 16 if i == 0 else 9 + i
            a(f"global_load_short_d16_hi v{dst}, {'v17' if i == 0 else 'v9'}, s[{p}:{p+1}]")
        a("s_branch L_pro_X")
        a.put("L_pro_P")
        a(f"s_or_b32 s12, s2, s{sW}")
        a("s_cmp_eq_u32 s12, 0")
        a("s_cbranch_scc0 L_pro_nn")
        a("s_memrealtime s[84:85]")
        a("s_waitcnt lgkmcnt(0)")
        a("s_or_b32 s84, s84, 1")
        a("v_mov_b32 v12, s84")
        a("v_mov_b32 v13, s85")
        a("s_mov_b64 exec, 1")
        a("global_store_dwordx2 v10, v[12:13], s[46:47] sc1")
        a("s_mov_b64 exec, -1")
        a.put("L_pro_nn")
        a(f"s_cmp_eq_u32 s{sG}, 2")
        a("s_cbranch_scc1 L_pro_X")
        a(f"s_cmp_eq_u32 s{sG}, 0")
        a(f"s_cselect_b32 s{SKV}, s20, s22")
        a(f"s_cselect_b32 s{SKV+1}, s21, s23")
        a(f"s_mov_b32 s{SKV+2}, 25600")
        a(f"s_mov_b32 s{SKV+3}, 0x20000")
        a(f"s_lshl_b32 s12, s{sW}, 10")
        a(f"s_cmp_eq_u32 s{sW}, 0")
        a("s_cbranch_scc0 L_pro_kv")
        a(f"s_mov_b32 m0, {AUX + 24576}")
        a("s_movk_i32 s82, 24576")
        a(f"buffer_load_dwordx4 v8, s[{SKV}:{SKV+3}], s82 offen lds")
        a.put("L_pro_kv")
        for i in range(3):
            a(f"s_add_u32 m0, s12, {AUX}")
            a("s_nop 0")
            a(f"buffer_load_dwordx4 v8, s[{SKV}:{SKV+3}], s12 offen lds")
            if i < 2:
                a("s_add_u32 s12, s12, 8192")
        a.put("L_pro_X")
        for i in range(5):
            a("s_lshl_b32 s82, s15, 8")
            a("s_add_u32 s82, s82, s13")
            a("s_lshl_b32 s83, s15, 14")
            a("s_add_u32 m0, s83, s14")
            a("s_add_u32 s15, s15, 1")
            a(f"buffer_load_dwordx4 v7, s[{SX}:{SX+3}], s82 offen lds")
            a("s_add_u32 m0, m0, 4096")
            a("s_add_u32 s82, s82, 20480")
            a(f"buffer_load_dwordx4 v7, s[{SX}:{SX+3}], s82 offen lds")
            if i < 4:
                a("s_cmp_eq_u32 s15, 5")
                a("s_cselect_b32 s15, 0, s15")
        self.srd(SWQ, 18, 819200)
        self.wvoff(2, True)
        a(f"s_mul_i32 s13, s{sG}, 160")
        a(f"s_mul_i32 s12, s{sW}, 40960")
        a("s_add_u32 s12, s12, s13")
        a(f"s_mul_i32 s14, s{sW}, 5120")
        a(f"s_add_u32 m0, s14, {WL}")
        for i in range(5):
            a("s_nop 0")
            a(f"buffer_load_dwordx4 v{2+i}, s[{SWQ}:{SWQ+3}], s12 offen lds")
            if i < 4:
                a("s_add_u32 m0, m0, 1024")
        self.srd(SWS, 48, 0x10000000 if self.debug else WS_SIZE)
        self.srd(SOUT, 44, 5242880)
        self.srd(SWO, 24, 819200)
        self.srd(SU, 26, 2621440)

    def wvoff(self, base, perm, t0=20):
        a = self.a
        p, q, c, k = t0, t0 + 1, t0 + 2, t0 + 3
        a("s_mov_b32 s82, 0xcccd")
        a("s_movk_i32 s83, 1280")
        for i in range(5):
            a(f"v_add_u32 v{p}, {64*i}, v0")
            a(f"v_mul_u32_u24 v{q}, s82, v{p}")
            a(f"v_lshrrev_b32 v{q}, 19, v{q}")
            a(f"v_mul_u32_u24 v{c}, 10, v{q}")
            a(f"v_sub_u32 v{c}, v{p}, v{c}")
            a(f"v_lshlrev_b32 v{c}, 4, v{c}")
            if perm:
                a(f"v_and_b32 v{k}, 1, v{q}")
                a(f"v_bfe_u32 v{p}, v{q}, 1, 2")
                a(f"v_lshl_add_u32 v{k}, v{k}, 2, v{p}")
                a(f"v_and_b32 v{q}, 24, v{q}")
                a(f"v_add_u32 v{q}, v{q}, v{k}")
            a(f"v_mad_u32_u24 v{base+i}, v{q}, s83, v{c}")

    def kgen(self):
        a = self.a
        R0, R1, H, H1, PA, PB = 32, 64, 192, 224, 96, 236
        FL0, FL1, FH0, FH1, D = 112, 128, 144, 160, 176
        Z1, Z8, Z256, B16 = 18, R0 + 2, 22, 20
        WW = H1 + 8
        a(f"s_and_b32 s10, s{sW}, 3")
        a("s_mul_i32 s10, s10, 4608")
        a(f"s_cmp_lt_u32 s{sW}, 4")
        a(f"s_cselect_b32 s11, {KGA-KGB}, 0")
        a("s_add_u32 s10, s10, s11")
        a(f"s_add_u32 s10, s10, {KGB}")
        a("v_add_u32 v26, s10, v8")
        a("v_lshrrev_b32 v27, 2, v0")
        a("v_lshlrev_b32 v27, 4, v27")
        a("v_and_b32 v28, 1, v0")
        a("v_lshl_add_u32 v27, v28, 3, v27")
        a("v_bfe_u32 v28, v0, 1, 1")
        a("s_movk_i32 s11, 1152")
        a("v_mad_u32_u24 v27, v28, s11, v27")
        a("v_add_u32 v27, s10, v27")
        l2e_hi = f2u(LOG2E)
        l2e_lo = f2u(LOG2E - struct.unpack("<f", struct.pack("<I", l2e_hi))[0])
        a(f"s_mov_b32 s12, {l2e_hi:#x}")
        a(f"s_mov_b32 s13, {l2e_lo:#x}")
        a(f"v_mov_b32 v{R0}, 1.0")
        a(f"v_mov_b32 v{R0+1}, 0")
        a("s_waitcnt vmcnt(15)")
        a("v_mul_f32 v28, s12, v16")
        a("v_fma_f32 v29, v16, s12, -v28")
        a("v_fmac_f32 v29, s13, v16")
        a("v_exp_f32 v28, v28")
        a(f"v_mul_f32 v29, {f2u(0.6931471805599453):#x}, v29")
        a("v_fma_f32 v28, v28, v29, v28")
        a("v_cvt_pk_bf16_f32 v28, v28, v28")
        a("v_lshlrev_b32 v28, 16, v28")
        a("v_mul_f32 v10, v28, v10")
        a("v_mul_f32 v11, v28, v11")
        a("v_mul_f32 v12, v28, v12")
        a("v_mul_f32 v13, v28, v13")
        a("v_mul_f32 v10, s12, v10")
        a("v_mul_f32 v11, 0.15915494, v11")
        self.cmuls([(WW, 14, 12)])
        for p, Z, t in ((8, Z8, 96), (1, Z1, 100), (256, Z256, 104)):
            if p == 1:
                a(f"v_exp_f32 v{t}, v10")
                a(f"v_fract_f32 v{t+1}, v11")
            else:
                a(f"v_mul_f32 v{t}, {f2u(float(p)):#x}, v10")
                a(f"v_mul_f32 v{t+1}, {f2u(float(p)):#x}, v11")
                a(f"v_exp_f32 v{t}, v{t}")
                a(f"v_fract_f32 v{t+1}, v{t+1}")
            a(f"v_cos_f32 v{t+2}, v{t+1}")
            a(f"v_sin_f32 v{t+3}, v{t+1}")
            a("s_nop 0")
            a(f"v_pk_mul_f32 {v(Z,2)}, {v(t+2,2)}, {v(t,2)} op_sel:[0,0] op_sel_hi:[1,0]")
        a(f"v_xor_b32 v{WW+1}, 0x80000000, v{WW+1}")
        r = lambda j: R0 + 2 * j
        h = lambda j: H + 2 * j
        h1 = lambda j: H1 + 2 * j

        def pack(src, P, nd=8):
            for q in range(nd):
                a(f"v_cvt_pk_bf16_f32 v{P+q}, v{src+4*q}, v{src+4*q+2}")
                a(f"v_cvt_pk_bf16_f32 v{P+8+q}, v{src+4*q+1}, v{src+4*q+3}")

        def wr_tr(P, F, planes=(0, 1, 2, 3)):
            for pl in planes:
                a(f"ds_write_b128 v26, {v(P+4*pl,4)} offset:{1152*pl}")
            for sidx in range(4):
                a(f"ds_read_b64_tr_b16 {v(F+4*sidx,2)}, v27 offset:{256*sidx}")
                a(f"ds_read_b64_tr_b16 {v(F+4*sidx+2,2)}, v27 offset:{2304+256*sidx}")
        chain = [(h(0), WW, Z1)] + [(h(j), h(j - 1), Z1) for j in range(1, 8)]
        levels = [[(r(2), r(1), r(1))], [(r(3), r(2), r(1)), (r(4), r(2), r(2))],
                  [(r(5), r(4), r(1)), (r(6), r(4), r(2)), (r(7), r(4), r(3)), (r(8), r(4), r(4))],
                  [(r(8 + i), r(8), r(i)) for i in range(1, 5)],
                  [(r(8 + i), r(8), r(i)) for i in range(5, 8)] + [(B16, r(8), r(8))]]
        for lv in levels:
            t = self.cmul(*chain.pop(0), conj=True)
            self.cmuls(lv)
            a(t)
        pack(R0, PA)
        wr_tr(PA, FL0)
        a(f"v_mov_b32 v{R1}, v{B16}")
        a(f"v_mov_b32 v{R1+1}, v{B16+1}")
        rest = [(R1 + 2 * j, r(j), B16) for j in range(1, 16)]
        for grp in (rest[:5], rest[5:10], rest[10:]):
            t = self.cmul(*chain.pop(0), conj=True)
            self.cmuls(grp)
            a(t)
        self.cmuls([(h(8), h(1), Z256), (h(9), h(3), Z256), (h(10), h(5), Z256), (h(11), h(7), Z256)], conj=True)
        pack(R1, PB)
        wr_tr(PB, FL1)
        self.cmuls([(h(12), h(9), Z256), (h(13), h(11), Z256)], conj=True)
        self.cmuls([(h(14), h(12), Z256), (h(15), h(13), Z256)], conj=True)
        self.cmuls([(h1(0), h(15), Z256)], conj=True)
        a("s_waitcnt lgkmcnt(12)")
        t = self.cmul(h1(1), h1(0), Z256, conj=True)
        a(t)
        pack(H, PA)
        t = self.cmul(h1(2), h1(1), Z256, conj=True)
        a(t)
        wr_tr(PA, FH0)
        t = self.cmul(h1(3), h1(2), Z256, conj=True)
        a(t)
        a("s_waitcnt lgkmcnt(12)")
        for q in range(3):
            x, y = (h1(2 * q), h1(2 * q + 1)) if q < 2 else (WW, WW)
            a(f"v_cvt_pk_bf16_f32 v{PB+q}, v{x}, v{y}")
            a(f"v_cvt_pk_bf16_f32 v{PB+8+q}, v{x+1}, v{y+1}")
        wr_tr(PB, FH1, planes=(0, 2))
        a("s_waitcnt lgkmcnt(10)")
        for sidx in range(4):
            c0 = "0" if sidx == 0 else v(D, 4)
            c1 = "0" if sidx == 0 else v(D + 4, 4)
            a(f"v_mfma_f32_16x16x32_bf16 {v(D,4)}, {v(FH0+4*sidx,4)}, {v(FL0+4*sidx,4)}, {c0}")
            a(f"v_mfma_f32_16x16x32_bf16 {v(D+4,4)}, {v(FH0+4*sidx,4)}, {v(FL1+4*sidx,4)}, {c1}")
        a("s_waitcnt lgkmcnt(0)")
        for sidx in range(4):
            c0 = "0" if sidx == 0 else v(D + 8, 4)
            c1 = "0" if sidx == 0 else v(D + 12, 4)
            a(f"v_mfma_f32_16x16x32_bf16 {v(D+8,4)}, {v(FL0+4*sidx,4)}, {v(FH1+4*sidx,4)}, {c0}")
            a(f"v_mfma_f32_16x16x32_bf16 {v(D+12,4)}, {v(FL1+4*sidx,4)}, {v(FH1+4*sidx,4)}, {c1}")
        a(f"s_cmp_lt_u32 s{sW}, 4")
        a("s_cbranch_scc0 L_b1")
        a.nop(8)
        for i in range(4):
            a(f"ds_write_b128 v26, {v(D+4*i,4)} offset:{1024*i}")
        a("s_branch L_b1")

    def kvjob(self):
        a = self.a
        a(f"s_cmp_eq_u32 s{sG}, 2")
        a("s_cbranch_scc1 L_b1")
        a("v_and_b32 v20, 31, v0")
        a("v_lshrrev_b32 v21, 5, v0")
        a("v_and_b32 v22, 0x13, v20")
        a("v_bfe_u32 v23, v20, 2, 1")
        a("v_lshl_or_b32 v22, v23, 3, v22")
        a("v_bfe_u32 v23, v20, 3, 1")
        a("v_lshl_or_b32 v22, v23, 2, v22")
        a(f"s_cmp_eq_u32 s{sG}, 1")
        a("s_cselect_b64 vcc, -1, 0")
        a("v_cndmask_b32 v20, v20, v22, vcc")
        a(f"s_and_b32 s10, s{sW}, 1")
        a(f"s_bfe_u32 s11, s{sW}, 0x10001")
        a("v_and_b32 v22, 15, v20")
        a("v_xor_b32 v22, v22, v21")
        a("v_lshlrev_b32 v22, 4, v22")
        a("v_lshl_or_b32 v22, v20, 8, v22")
        a("s_lshl_b32 s12, s10, 13")
        a("s_lshl_b32 s13, s11, 7")
        a("s_or_b32 s12, s12, s13")
        a("v_xor_b32 v10, s12, v22")
        for k in range(1, 4):
            a(f"v_xor_b32 v{10+k}, {32*k}, v10")
        a("v_bfe_u32 v22, v0, 2, 2")
        a("v_lshl_add_u32 v22, v21, 3, v22")
        a("v_mul_u32_u24 v22, 40, v22")
        a("v_bfe_u32 v23, v0, 4, 1")
        a("v_and_b32 v24, 3, v0")
        a("v_lshl_add_u32 v23, v23, 2, v24")
        a("v_min_u32 v23, 4, v23")
        a("v_lshl_add_u32 v22, v23, 3, v22")
        a("s_mul_i32 s12, s11, 2560")
        a(f"s_add_u32 s12, s12, {AUX}")
        a("v_add_u32 v14, s12, v22")
        a("s_waitcnt vmcnt(5)")
        a("s_barrier")
        self.stamp(1)
        a(f"s_cmp_lt_u32 s{sW}, 4")
        a("s_cbranch_scc1 L_b1")
        a(f"s_cmp_eq_u32 s{sG}, 1")
        a("s_cbranch_scc1 L_kv_V")
        ACC = 80
        for isV in (0, 1):
            if isV:
                a.put("L_kv_V")
            lg = LG(a, "lgkmcnt", 15)

            def issue(n):
                b, ks = divmod(n, 4)
                F = 16 + 8 * (n % 6)
                if n == 16:
                    for k in range(4):
                        a(f"v_add_u32 v{10+k}, 0x10000, v{10+k}")
                a(f"ds_read_b128 {v(F,4)}, v{10+ks} offset:{16384*(b%4)}")
                a(f"ds_read_b64_tr_b16 {v(F+4,2)}, v14 offset:{5120*b+640*ks}")
                a(f"ds_read_b64_tr_b16 {v(F+6,2)}, v14 offset:{5120*b+640*ks+160}")
                for _ in range(3):
                    lg.issue(n)
            for n in range(5):
                issue(n)
            for n in range(20):
                lg.wait(n)
                F = 16 + 8 * (n % 6)
                A, B = (F, F + 4) if isV else (F + 4, F)
                a(f"v_mfma_f32_32x32x16_bf16 {v(ACC,16)}, {v(A,4)}, {v(B,4)}, {'0' if n == 0 else v(ACC,16)}")
                if n + 5 < 20:
                    issue(n + 5)
            if not isV:
                a("s_branch L_kv_d")
        a.put("L_kv_d")
        a("s_lshl_b32 s12, s10, 12")
        a(f"s_add_u32 s12, s12, {KVP}")
        a("v_add_u32 v15, s12, v8")
        a(f"s_cmp_lt_u32 s{sW}, 6")
        a("s_cbranch_scc1 L_b1")
        a.nop(10)
        for i in range(4):
            a(f"ds_write_b128 v15, {v(ACC+4*i,4)} offset:{1024*i}")

    def qgemm(self):
        a = self.a
        XA, WA = 64, 72
        a("v_mov_b32 v1, 0")
        a("global_load_dwordx2 v[2:3], v1, s[46:47] sc1")
        a("v_and_b32 v20, 31, v0")
        a("v_lshrrev_b32 v21, 5, v0")
        a("v_and_b32 v22, 15, v20")
        a("v_xor_b32 v22, v22, v21")
        a("v_lshlrev_b32 v22, 4, v22")
        a(f"v_lshl_or_b32 v{XA}, v20, 8, v22")
        for k in range(1, 8):
            a(f"v_xor_b32 v{XA+k}, {32*k}, v{XA}")
        a("v_bfe_u32 v22, v0, 2, 2")
        a("v_lshlrev_b32 v22, 1, v22")
        a("v_lshl_add_u32 v22, v21, 3, v22")
        a("v_mul_u32_u24 v22, 0xa0, v22")
        a("v_bfe_u32 v23, v0, 4, 1")
        a("v_and_b32 v24, 3, v0")
        a("v_lshl_add_u32 v23, v23, 2, v24")
        a("v_min_u32 v23, 4, v23")
        a("v_lshl_add_u32 v22, v23, 3, v22")
        a(f"s_mul_i32 s12, s{sW}, 40")
        a(f"s_add_u32 s12, s12, {WL}")
        a(f"v_add_u32 v{WA}, s12, v22")
        a(f"v_add_u32 v{WA+1}, 61440, v{WA}")
        for c in range(5):
            lg = LG(a, "lgkmcnt", 15)
            wreg = WA + 1 if c == 3 else WA
            woff = {0: 0, 1: 20480, 2: 40960, 3: 0, 4: 0}[c]
            if c == 4:
                for k in range(8):
                    a(f"v_add_u32 v{XA+k}, 0x10000, v{XA+k}")

            def issue(ks):
                F = 16 + 12 * (ks % 4)
                a(f"ds_read_b64_tr_b16 {v(F,2)}, v{wreg} offset:{woff+2560*ks}")
                a(f"ds_read_b64_tr_b16 {v(F+2,2)}, v{wreg} offset:{woff+2560*ks+160}")
                a(f"ds_read_b128 {v(F+4,4)}, v{XA+ks} offset:{16384*(c%4)}")
                a(f"ds_read_b128 {v(F+8,4)}, v{XA+ks} offset:{16384*(c%4)+8192}")
                for _ in range(4):
                    lg.issue(ks)
            for ks in range(3):
                issue(ks)
            for ks in range(8):
                lg.wait(ks)
                F = 16 + 12 * (ks % 4)
                first = c == 0 and ks == 0
                a(f"v_mfma_f32_32x32x16_bf16 v[80:95], {v(F,4)}, {v(F+4,4)}, {'0' if first else 'v[80:95]'}")
                a(f"v_mfma_f32_32x32x16_bf16 v[96:111], {v(F,4)}, {v(F+8,4)}, {'0' if first else 'v[96:111]'}")
                if ks + 3 < 8:
                    issue(ks + 3)
            if c < 4:
                a("s_barrier")
                self.stamp(3 + c)
        a("s_waitcnt vmcnt(0)")
        self.get_nonce(2, 1)
        a(f"s_mov_b32 s12, {f2u(LOG2E / 20 ** 0.5):#x}")
        a(f"s_mul_i32 s13, s{sW}, 2560")
        a(f"s_add_u32 s13, s13, {QP}")
        a("v_add_u32 v9, s13, v8")
        a("v_lshl_add_u32 v10, v0, 3, s13")
        a.nop(4)
        for T, O in ((0, 80), (1, 96)):
            for r in range(12):
                a(f"v_mul_f32 v{O+r}, s12, v{O+r}")
        for T, O in ((0, 80), (1, 96)):
            for q in range(4):
                a(f"v_cvt_pk_bf16_f32 v{112+4*T+q}, v{O+2*q}, v{O+2*q+1}")
            for q in range(2):
                a(f"v_cvt_pk_bf16_f32 v{120+2*T+q}, v{O+8+2*q}, v{O+9+2*q}")
        a("ds_write_b128 v9, v[112:115]")
        a("ds_write_b128 v9, v[116:119] offset:1024")
        a("v_permlane32_swap_b32 v120, v122")
        a("v_permlane32_swap_b32 v121, v123")
        a("s_nop 1")
        a("ds_write_b64 v10, v[120:121] offset:2048")
        a("s_waitcnt lgkmcnt(0)")
        a("s_barrier")
        self.stamp(7)

    def wload(self, groups):
        a = self.a
        for g0 in groups:
            lds = WL + 5120 * (g0 % 16)
            a(f"s_add_u32 s12, s14, {40960*g0}")
            a(f"s_add_u32 m0, s15, {lds}")
            for e in range(2):
                for i in range(5):
                    a("s_nop 0")
                    a(f"buffer_load_dwordx4 v{2+i}, s[{SWQ}:{SWQ+3}], s12 offen lds")
                    if not (e == 1 and i == 4):
                        a("s_add_u32 m0, m0, 1024")
                if e == 0:
                    a("s_add_u32 s12, s12, 40960")

    def bphase1(self):
        a = self.a
        D = 176
        a(f"s_cmp_lt_u32 s{sW}, 6")
        a("s_cbranch_scc1 L_b_nl1")
        a(f"s_and_b32 s10, s{sW}, 1")
        a("s_mul_i32 s14, s10, 81920")
        a(f"s_mul_i32 s13, s{sG}, 160")
        a("s_add_u32 s14, s14, s13")
        a("s_mul_i32 s15, s10, 10240")
        self.wload([8])
        a("s_branch L_b_nl1d")
        a.put("L_b_nl1")
        a("v_mov_b32 v1, 0")
        a("global_load_dwordx2 v[2:3], v1, s[46:47] sc1")
        a.put("L_b_nl1d")
        a(f"s_cmp_lt_u32 s{sG}, 3")
        a("s_cbranch_scc1 L_b_P1")
        a(f"v_add_u32 v15, {KGA-KGB}, v26")
        for i in range(4):
            a(f"ds_read_b128 {v(16+4*i,4)}, v15 offset:{1024*i}")
        a(f"s_and_b32 s10, s{sW}, 3")
        a("s_mul_i32 s11, s10, 2304")
        a("s_add_u32 s11, s11, 16")
        a("v_and_b32 v45, 15, v0")
        a("v_lshrrev_b32 v46, 4, v0")
        a("v_max_u32 v47, 1, v46")
        a("v_add_u32 v47, -1, v47")
        a("v_lshrrev_b32 v47, v47, 16")
        a("v_cmp_gt_u32 vcc, 2, v46")
        a("v_cndmask_b32 v48, 8, 3, vcc")
        a("v_lshlrev_b32 v48, v48, v46")
        a("v_mad_u32_u24 v40, v45, v47, v48")
        a("v_add_u32 v40, s11, v40")
        a("v_cmp_eq_u32 vcc, 3, v46")
        a("v_cndmask_b32 v48, 2, 64, vcc")
        a("v_lshl_add_u32 v41, v48, 1, v40")
        a("v_lshl_add_u32 v42, v47, 4, v40")
        a("v_lshl_add_u32 v43, v47, 4, v41")
        a("v_lshlrev_b32 v44, 6, v45")
        a("v_lshl_add_u32 v44, v46, 3, v44")
        a("v_add_u32 v44, s11, v44")
        a("s_waitcnt lgkmcnt(0)")
        for i in range(8):
            a(f"v_pk_add_f32 {v(D+2*i,2)}, {v(D+2*i,2)}, {v(16+2*i,2)}")
        for i in range(8):
            a(f"v_cvt_pk_bf16_f32 v{32+i}, v{D+2*i}, v{D+2*i+1}")
        a(f"v_cvt_pk_bf16_f32 v49, 0, v{D+8}")
        a("s_sub_u32 s12, s11, 4")
        a("v_mov_b32 v50, s12")
        a("s_branch L_b_2")
        a.put("L_b_P1")
        a(f"s_cmp_lt_u32 s{sG}, 2")
        a("s_cbranch_scc0 L_b_2")
        a(f"s_cmp_lt_u32 s{sW}, 6")
        a("s_cbranch_scc0 L_b_2")
        for i in range(4):
            a(f"ds_read_b128 {v(16+4*i,4)}, v15 offset:{1024*i}")
        a(f"s_mul_i32 s12, s{sT}, {BLK}")
        a(f"s_and_b32 s10, s{sW}, 1")
        a("v_and_b32 v40, 31, v0")
        a("v_lshrrev_b32 v41, 5, v0")
        a("v_bfrev_b32 v44, 1")
        a("s_waitcnt lgkmcnt(0)")
        for i in range(8):
            a(f"v_pk_add_f32 {v(80+2*i,2)}, {v(80+2*i,2)}, {v(16+2*i,2)}")
        for i in range(8):
            a(f"v_cvt_pk_bf16_f32 v{32+i}, v{80+2*i}, v{80+2*i+1}")
        a(f"s_cmp_eq_u32 s{sG}, 1")
        a("s_cbranch_scc1 L_b_PV")
        a("s_lshl_b32 s13, s10, 10")
        a("s_add_u32 s13, s13, s12")
        a(f"buffer_store_dwordx4 v[32:35], v8, s[{SWS}:{SWS+3}], s13 offen sc1")
        a("v_lshlrev_b32 v42, 3, v0")
        a("v_cmp_gt_u32 vcc, 32, v0")
        a("s_lshl_b32 s13, s10, 8")
        a("v_cndmask_b32 v42, v44, v42, vcc")
        a("s_add_u32 s13, s13, s12")
        a(f"buffer_store_dwordx2 v[36:37], v42, s[{SWS}:{SWS+3}], s13 offen offset:2048 sc1")
        a("s_branch L_b_2")
        a.put("L_b_PV")
        a("v_mov_b32 v43, 0x3f803f80")
        a("v_cmp_eq_u32 vcc, 20, v40")
        a("s_mul_i32 s13, s10, 1344")
        a("s_add_u32 s13, s13, s12")
        for i in range(8):
            a(f"v_cndmask_b32 v{32+i}, v{32+i}, v43, vcc")
        a("v_mul_u32_u24 v42, 0x150, v41")
        a("v_lshl_add_u32 v42, v40, 4, v42")
        a("v_cmp_gt_u32 vcc, 21, v40")
        a("s_nop 1")
        a("v_cndmask_b32 v42, v44, v42, vcc")
        a(f"buffer_store_dwordx4 v[32:35], v42, s[{SWS}:{SWS+3}], s13 offen offset:2560 sc1")
        a(f"buffer_store_dwordx4 v[36:39], v42, s[{SWS}:{SWS+3}], s13 offen offset:3232 sc1")
        a.put("L_b_2")
        a("s_barrier")
        self.stamp(3)
        a(f"s_cmp_lt_u32 s{sW}, 6")
        a("s_cbranch_scc1 L_b_nl2")
        self.wload([12, 16])
        a.put("L_b_nl2")
        a(f"s_cmp_lt_u32 s{sG}, 3")
        a("s_cbranch_scc1 L_b_3")
        a("ds_write_b32 v40, v32")
        a("ds_write_b32 v41, v33")
        a("ds_write_b32 v42, v34")
        a("ds_write_b32 v43, v35")
        a("ds_write_b64 v44, v[36:37] offset:1024")
        a("ds_write_b64 v44, v[38:39] offset:1056")
        a("s_mov_b64 exec, 16")
        a("ds_write_b32 v50, v49")
        a("s_mov_b64 exec, -1")
        a("s_add_u32 s12, s11, 508")
        a("v_lshl_add_u32 v51, v0, 2, s12")
        a("v_lshl_add_u32 v52, v0, 3, v50")
        a("ds_read2_b32 v[54:55], v51 offset0:128 offset1:129")
        a("ds_read2_b32 v[56:57], v51 offset0:64 offset1:65")
        a("ds_read2_b32 v[58:59], v51 offset0:0 offset1:1")
        a("ds_read2_b32 v[60:61], v52 offset0:0 offset1:1")
        a("ds_read_b32 v62, v52 offset:8")
        sel = dict(cc=0x07060706, bb=0x05040504, aa=0x03020302, ba=0x03020504, cb=0x05040706)
        sreg = {}
        for i, (k, x) in enumerate(sel.items()):
            sreg[k] = 8 + i if i < 2 else 82 + i - 2
            a(f"s_mov_b32 s{sreg[k]}, {x:#x}")
        a("v_mov_b32 v63, 0x03020302")
        a("v_mov_b32 v53, 0x01000302")
        a("v_cmp_eq_u32 vcc, 0, v0")
        a("s_nop 1")
        a("v_cndmask_b32 v63, v63, v53, vcc")
        a("s_waitcnt lgkmcnt(0)")

        def perms(dst, pat, d0):
            for i, k in enumerate(pat):
                a(f"v_perm_b32 v{dst+i}, v{d0+1}, v{d0}, s{sreg[k]}")
        perms(16, ["cc", "cc", "bb", "bb", "bb", "ba", "aa", "aa"], 54)
        perms(24, ["cc", "cb", "bb", "bb", "bb", "aa", "aa", "aa"], 54)
        perms(32, ["cc", "bb", "ba", "aa"], 56)
        perms(36, ["cb", "bb", "aa", "aa"], 56)
        perms(40, ["cb", "aa"], 58)
        perms(42, ["ba"], 58)
        a("v_perm_b32 v43, v59, v58, v63")
        a(f"v_perm_b32 v44, v62, v61, s{sreg['ba']}")
        a(f"v_perm_b32 v45, v61, v60, s{sreg['ba']}")
        a("v_alignbit_b32 v46, v61, v61, 16")
        a("v_alignbit_b32 v47, v60, v60, 16")
        a(f"s_mul_i32 s11, s10, {KCS}")
        a(f"s_add_u32 s11, s11, {KC}")
        a("v_lshlrev_b32 v48, 5, v0")
        a("s_add_u32 s12, s11, 2016")
        a("v_sub_u32 v48, s12, v48")
        a("s_add_u32 s12, s11, 3056")
        a("v_sub_u32 v49, s12, v8")
        a("v_lshlrev_b32 v50, 3, v0")
        a("s_add_u32 s12, s11, 3576")
        a("v_sub_u32 v50, s12, v50")
        a("v_bfe_u32 v51, v0, 4, 1")
        a("v_mul_u32_u24 v51, 0x1040, v51")
        a("v_and_b32 v52, 15, v0")
        a("v_lshl_add_u32 v51, v52, 2, v51")
        a("v_add_u32 v51, s11, v51")
        a.put("L_b_3")
        a("s_waitcnt vmcnt(20)")
        a("s_barrier")
        self.stamp(4)
        a(f"s_cmp_lt_u32 s{sW}, 6")
        a("s_cbranch_scc0 L_b_4")
        a("s_waitcnt vmcnt(0)")
        self.get_nonce(2, 1)
        a(f"s_cmp_lt_u32 s{sG}, 2")
        a("s_cbranch_scc0 L_b_4")
        a(f"s_lshl_b32 s12, s{sT}, 7")
        a(f"s_lshl_b32 s13, s{sG}, 4")
        a("s_add_u32 s12, s12, s13")
        a("s_lshl_b32 s13, s10, 3")
        a("s_add_u32 s12, s12, s13")
        a(f"s_add_u32 s12, s12, {FLG_KV}")
        a("s_mov_b64 exec, 1")
        a(f"buffer_store_dwordx2 v[2:3], v1, s[{SWS}:{SWS+3}], s12 offen sc1")
        a("s_mov_b64 exec, -1")
        self.stamp(8)
        a.put("L_b_4")
        a("s_waitcnt vmcnt(10)")
        a("s_barrier")
        self.stamp(5)
        a(f"s_cmp_lt_u32 s{sW}, 6")
        a("s_cbranch_scc1 L_b_5")
        a("s_waitcnt vmcnt(0)")
        a.put("L_b_5")
        a("s_barrier")
        self.stamp(6)
        a("v_mov_b32 v52, 0")
        a(f"v_mov_b32 v53, {CNT}")
        a("ds_write_b32 v53, v52")
        a(f"s_cmp_lt_u32 s{sG}, 3")
        a("s_cbranch_scc1 L_b_6")
        a("ds_write_b128 v48, v[16:19]")
        a("ds_write_b128 v48, v[20:23] offset:16")
        a("ds_write_b128 v48, v[24:27] offset:4160")
        a("ds_write_b128 v48, v[28:31] offset:4176")
        a("ds_write_b128 v49, v[32:35]")
        a("ds_write_b128 v49, v[36:39] offset:4160")
        a("ds_write_b64 v50, v[40:41]")
        a("ds_write_b64 v50, v[42:43] offset:4160")
        a("ds_write_b64 v50, v[44:45] offset:512")
        a("ds_write_b64 v50, v[46:47] offset:4672")
        a("ds_write_b32 v51, v52 offset:4096")
        a.put("L_b_6")
        a(f"s_cmp_eq_u32 s{sW}, 4")
        a("s_cbranch_scc0 L_b_7")
        a("v_lshrrev_b32 v4, 1, v0")
        a("v_lshlrev_b32 v4, 7, v4")
        a("v_and_b32 v5, 1, v0")
        a("v_lshl_add_u32 v4, v5, 4, v4")
        a(f"s_mov_b32 s12, {FLG_KV}")
        a("s_mov_b32 s82, 0")
        a.put("L_pkv")
        a(f"buffer_load_dwordx4 v[56:59], v4, s[{SWS}:{SWS+3}], s12 offen sc1")
        a("s_add_u32 s82, s82, 1")
        a("s_waitcnt vmcnt(0)")
        a(f"v_cmp_eq_u64 vcc, s[{sN}:{sN+1}], v[56:57]")
        a(f"v_cmp_eq_u64 s[84:85], s[{sN}:{sN+1}], v[58:59]")
        a("s_nop 0")
        a("s_and_b64 vcc, vcc, s[84:85]")
        a("s_cmp_eq_u64 vcc, -1")
        a("s_cbranch_scc1 L_b_7")
        a("s_cmp_gt_u32 s82, 20000")
        a("s_cbranch_scc1 L_b_7")
        a("s_sleep 2")
        a("s_branch L_pkv")
        a.put("L_b_7")
        a(f"s_and_b32 s10, s{sW}, 3")
        a("s_mul_i32 s13, s10, 2560")
        a(f"s_add_u32 s13, s13, {QP}")
        a("v_add_u32 v9, s13, v8")
        a("v_lshl_add_u32 v10, v0, 3, s13")
        a("s_waitcnt lgkmcnt(0)")
        a("s_barrier")
        self.stamp(7)
        a("ds_read_b128 v[112:115], v9")
        a("ds_read_b128 v[116:119], v9 offset:1024")
        a("ds_read_b64 v[120:121], v10 offset:2048")

    def kvdma(self, c, i):
        if i < 0:
            lab = self.a.label("Lx")
            return [f"s_cmp_eq_u32 s{sW}, 0", f"s_cbranch_scc0 {lab}",
                    f"s_mov_b32 m0, {SLOT*(c%3)+40960}", f"s_mov_b32 s12, {SLOT*c+40960}",
                    f"buffer_load_dwordx4 v8, s[{SWS}:{SWS+3}], s12 offen sc1 lds", lab + ":"]
        return [f"s_add_u32 m0, s51, {SLOT*(c%3)+8192*i}", f"s_add_u32 s12, s51, {SLOT*c+8192*i}",
                f"buffer_load_dwordx4 v8, s[{SWS}:{SWS+3}], s12 offen sc1 lds"]

    def attention(self, isB):
        a = self.a
        S = (16, 48)
        O0, O1, QA, QB, Q4, K4, K16 = 80, 96, 112, 116, 120, 122, 124
        V = (128, 136)
        IDX, AK16, AK4, AV = 144, 145, 148, 151
        URAW, UTR = 160, 176
        UOFF, USW, USR, UTW, UTZ = 155, 156, 157, 158, 159
        a(f"s_lshl_b32 s51, s{sW}, 10")
        for c, i in [(0, -1), (1, -1)] + [(0, i) for i in range(5)] + [(1, i) for i in range(5)]:
            for ln in self.kvdma(c, i):
                a(ln)
        kh = BLK if isB else 0
        a(f"v_add_u32 v{AK16}, {kh}, v8" if kh else f"v_mov_b32 v{AK16}, v8")
        a(f"v_lshlrev_b32 v{AK4}, 3, v0")
        a(f"v_add_u32 v{AK4}, {kh+2048}, v{AK4}")
        a("v_and_b32 v1, 31, v0")
        a("v_min_u32 v2, 20, v1")
        a("v_cmp_lt_u32 vcc, 27, v1")
        a("v_lshrrev_b32 v3, 5, v0")
        a("v_cndmask_b32 v2, v2, 4, vcc")
        a("v_mul_u32_u24 v3, 0x150, v3")
        a("v_lshl_add_u32 v2, v2, 4, v3")
        a(f"v_add_u32 v{AV}, {kh+2560}, v2")
        for r in (AK16, AK4, AV):
            a(f"v_add_u32 v{r+1}, {SLOT}, v{r}")
            a(f"v_add_u32 v{r+2}, {2*SLOT}, v{r}")
        a(f"v_mov_b32 v{IDX}, 0xdddddddd")
        for r in range(32):
            a(f"v_mov_b32 v{O0+r}, 0")
        if isB:
            a(f"s_and_b32 s10, s{sW}, 3")
            a("s_mul_i32 s11, s10, 655360")
            a(f"s_lshl_b32 s12, s{sD0}, 1")
            a("s_add_u32 s11, s11, s12")
            a(f"s_cmp_lt_u32 s{sG}, 3")
            a("s_cselect_b32 s11, 0x80000000, s11")
            a("s_movk_i32 s12, 1280")
            a("v_mov_b32 v1, s11")
            a(f"v_mad_u32_u24 v{UOFF}, v0, s12, v1")
            a("s_lshl_b32 s11, s10, 9")
            a(f"s_add_u32 s11, s11, {USCR}")
            a(f"v_lshl_add_u32 v{USW}, v0, 3, s11")
            a("v_and_b32 v1, 48, v0")
            a("v_and_b32 v2, 3, v0")
            a("v_lshl_add_u32 v1, v2, 2, v1")
            a("v_bfe_u32 v3, v0, 2, 2")
            a("v_add_u32 v1, v1, v3")
            a(f"v_lshl_add_u32 v{USR}, v1, 3, s11")
            a("s_lshl_b32 s11, s10, 10")
            a(f"s_add_u32 s11, s11, {UT+480}")
            a("v_lshrrev_b32 v1, 2, v0")
            a("v_lshl_add_u32 v1, v1, 3, s11")
            a(f"s_movk_i32 s12, {UTS}")
            a(f"v_mad_u32_u24 v{UTW}, v2, s12, v1")
            a(f"s_mul_i32 s11, s10, {UTS}")
            a(f"s_add_u32 s11, s11, {UT}")
            a("v_min_u32 v1, 59, v0")
            a(f"v_lshl_add_u32 v{UTZ}, v1, 3, s11")
            a("v_mov_b32 v4, 0")
            a("v_mov_b32 v5, 0")
        a("s_waitcnt vmcnt(5) lgkmcnt(0)")
        a("s_barrier")
        self.stamp(9)
        self.stop_at("e0")
        lg = LG(a, "lgkmcnt", 15)

        def loc(m):
            c = m >> 3
            return c % 3, 2 * BLK * ((m >> 1) & 3), m & 1

        def rdK16(m):
            sl, off, aa = loc(m)
            a(f"ds_read_b128 {v(K16,4)}, v{AK16+sl} offset:{off+1024*aa}")
            lg.issue(("K16", m))

        def rdK4(m):
            sl, off, aa = loc(m)
            a(f"ds_read_b64 {v(K4,2)}, v{AK4+sl} offset:{off}")
            lg.issue(("K4", m))

        def rdV(m, f):
            sl, off, aa = loc(m)
            a(f"ds_read_b128 {v(V[m&1]+4*f,4)}, v{AV+sl} offset:{off+672*(2*aa+f)}")
            lg.issue(("V", m, f))

        def pv(O, B, Vr):
            a(f"v_smfmac_f32_32x32x32_bf16 {v(O,16)}, {v(Vr,4)}, {v(B,8)}, v{IDX}")

        def qk4(m, dst):
            a(f"v_mfma_f32_32x32x4_2b_bf16 {v(dst,32)}, {v(K4,2)}, {v(Q4,2)}, 0 cbsz:1 abid:{m&1}")

        def qk16(dst, Q):
            a(f"v_mfma_f32_32x32x16_bf16 {v(dst,16)}, {v(K16,4)}, {v(Q,4)}, {v(dst,16)}")
        rdK4(0)
        rdK16(0)
        rdV(0, 0)
        rdV(0, 1)
        lg.wait(("K16", 0))
        qk4(0, S[0])
        a.nop(18)
        qk16(S[0], QA)
        qk16(S[0] + 16, QB)
        rdK16(1)
        lg.wait(("V", 0, 1))
        a.nop(10)
        hk = {}

        def hook(n, pos, lines):
            hk.setdefault((n, pos), []).extend(lines)
        hook(0, "a2", self.kvdma(2, -1))
        for i in range(5):
            hook(i, "a5", self.kvdma(2, i))
        hook(7, "a2", self.kvdma(3, -1))
        for i in range(5):
            hook(7 + i, "a5", self.kvdma(3, i))
        bars = {2: "vmcnt(3)", 6: "vmcnt(0)", 14: "vmcnt(0)", 22: None, 30: None}
        dsx = {}
        if isB:
            for i in range(8):
                hook(15 + i, "a2", [f"s_mov_b32 s12, {81920*i}",
                                    f"buffer_load_dwordx2 {v(URAW+2*i,2)}, v{UOFF}, s[{SU}:{SU+3}], s12 offen"])
            hook(25, "a1w", ["s_waitcnt vmcnt(0)"])
            dsx[(24, "a1")] = [f"ds_write_b64 v{UTZ}, v[4:5]"]
            for k in range(4):
                for e, pos in ((0, "a1"), (1, "a3")):
                    i = 2 * k + e
                    dsx.setdefault((25 + k, pos), []).extend(
                        [f"ds_write_b64 v{USW}, {v(URAW+2*i,2)}", f"ds_read_b64_tr_b16 {v(UTR+2*i,2)}, v{USR}"])
                    dsx.setdefault((26 + k, "a2" if e == 0 else "a5"), []).append(
                        f"ds_write_b64 v{UTW}, {v(UTR+2*i,2)} offset:{128*i}")
        prio = {}
        for st, en in ((0, 2), (3, 6), (7, 14), (15, 22), (23, 30)):
            ln = en - st + 1
            for n in range(st, en + 1):
                prio[n] = 3 - (n - st) * 4 // max(ln, 4) if ln >= 4 else 3 - (n - st)
        prio[31] = 3

        def run(n, pos):
            for ln in hk.get((n, pos), []):
                a(ln)
            for ln in dsx.get((n, pos), []):
                a(ln)
                lg.issue("x")
        a(f"s_setprio {prio[0]}")
        for n in range(32):
            cur, nxt = S[n & 1], S[(n + 1) & 1]
            Vc, Vp = V[n & 1], V[(n + 1) & 1]
            e = lambda lo, hi: [a(f"v_exp_f32 v{cur+i}, v{cur+i}") for i in range(lo, hi + 1)]
            e(0, 1)
            if n > 0:
                pv(O1, nxt + 24, Vp + 4)
            run(n, "a1w")
            if n < 31:
                rdV(n + 1, 0)
            run(n, "a1")
            e(2, 5)
            if n < 31:
                qk4(n + 1, nxt)
            run(n, "a2")
            e(6, 13)
            pv(O0, cur, Vc)
            if n < 31:
                rdV(n + 1, 1)
            run(n, "a3")
            e(14, 17)
            pv(O0, cur + 8, Vc + 4)
            if n < 31:
                lg.wait(("K16", n + 1))
            if n % 2 == 0 and n + 2 < 32:
                rdK4(n + 2)
            e(18, 21)
            if n < 31:
                qk16(nxt, QA)
            run(n, "a5")
            e(22, 25)
            if n < 31:
                qk16(nxt + 16, QB)
            last = len(lg.q)
            if n + 2 < 32:
                rdK16(n + 2)
            if n < 31 and prio[n + 1] != prio[n] and n not in bars:
                a(f"s_setprio {prio[n+1]}")
            e(26, 29)
            pv(O1, cur + 16, Vc)
            if n < 31:
                cnt = len(lg.q) - last
                w = f"lgkmcnt({cnt})"
                lg.q = lg.q[last:]
                if n in bars and bars[n]:
                    w = bars[n] + " " + w
                a(f"s_waitcnt {w}")
                if n in bars:
                    a("s_barrier")
                    a(f"s_setprio {prio[n+1]}")
            e(30, 31)
        a("s_nop 1")
        pv(O1, S[1] + 24, V[1] + 4)
        self.stamp(10)

    def tailB(self):
        a = self.a
        URAW, TS = 160, 192
        a(f"s_and_b32 s10, s{sW}, 3")
        a("s_mul_i32 s11, s10, 25600")
        a("v_add_u32 v9, s11, v8")
        a.nop(8)
        for i in range(3):
            a(f"ds_write_b128 v9, {v(80+4*i,4)} offset:{1024*i}")
        a.nop(2)
        for i in range(3):
            a(f"ds_write_b128 v9, {v(96+4*i,4)} offset:{3072+1024*i}")
        a("s_waitcnt lgkmcnt(0)")
        a("s_barrier")
        self.stop_at("t1")
        a(f"s_cmp_lt_u32 s{sG}, 3")
        a("s_cbranch_scc1 L_fin")
        a("s_setprio 0")
        a(f"s_lshl_b32 s12, s{sD0}, 1")
        a("s_load_dwordx2 s[14:15], s[42:43], s12")
        a(f"s_mul_i32 s11, s10, {KCS}")
        a(f"s_add_u32 s11, s11, {KC}")
        a("v_and_b32 v10, 15, v0")
        a("v_lshrrev_b32 v11, 4, v0")
        a("v_sub_u32 v12, 0x7ef, v10")
        a("v_lshrrev_b32 v12, 1, v12")
        a("v_lshl_add_u32 v12, v11, 2, v12")
        a("v_lshlrev_b32 v12, 2, v12")
        a("v_and_b32 v13, 1, v0")
        a("v_xor_b32 v13, 1, v13")
        a("v_mul_u32_u24 v13, 0x1040, v13")
        a("s_sub_u32 s12, s11, 960")
        a("v_add3_u32 v2, v12, v13, s12")
        for b in range(1, 4):
            a(f"v_subrev_u32 v{2+b}, {1024*b}, v2")
        a("v_lshlrev_b32 v12, 5, v10")
        a(f"s_mul_i32 s12, s10, {UTS}")
        a(f"s_add_u32 s12, s12, {UT}")
        a("v_lshl_add_u32 v13, v11, 4, v12")
        a("v_add_u32 v6, s12, v13")
        a("s_lshr_b32 s12, s10, 1")
        a("s_lshl_b32 s12, s12, 6")
        a("s_add_u32 s12, s12, s11")
        a("v_lshl_add_u32 v13, v11, 3, v12")
        a("v_add_u32 v7, s12, v13")
        ACC = 224
        lg = LG(a, "lgkmcnt", 15)

        def reads(r):
            base = 16 + 64 * (r & 1)
            out = []
            for k in range(8):
                sidx = 8 * k + r
                o = 16 * (15 - (sidx & 15))
                A = base + 4 * k
                out.append(f"ds_read2_b32 {v(A,2)}, v{2+(sidx>>4)} offset0:{o} offset1:{o+1}")
                out.append(f"ds_read2_b32 {v(A+2,2)}, v{2+(sidx>>4)} offset0:{o+2} offset1:{o+3}")
                e = 8 * k - r
                out.append(f"ds_read_b128 {v(base+32+4*k,4)}, v6 offset:{64*(e+7)}")
            return out
        a("s_waitcnt lgkmcnt(0)")
        a("s_lshl_b32 s8, s14, 16")
        a("s_and_b32 s9, s14, 0xffff0000")
        a("s_lshl_b32 s14, s15, 16")
        a("s_and_b32 s15, s15, 0xffff0000")
        a("s_mov_b32 s13, 0xffff0000")
        extra = []
        for i in range(8):
            for hh, sp in ((0, "s[8:9]"), (1, "s[14:15]")):
                t = TS + 4 * i + 2 * hh
                u = URAW + 2 * i + hh
                extra.append([f"v_lshlrev_b32 v{t}, 16, v{u}", f"v_and_b32 v{t+1}, s13, v{u}",
                              f"v_pk_mul_f32 {v(t,2)}, {v(t,2)}, {sp}",
                              f"v_cvt_pk_bf16_f32 v{t+1}, v{t}, v{t+1}",
                              f"v_lshlrev_b32 v{t}, 16, v{t+1}", f"v_and_b32 v{t+1}, s13, v{t+1}"])
        extra = [x for grp in extra for x in grp]
        for ln in reads(0):
            a(ln)
        a("s_waitcnt lgkmcnt(0)")
        for r in range(8):
            base = 16 + 64 * (r & 1)
            nxt = reads(r + 1) if r < 7 else []
            cnt = 0
            for sg in range(8):
                for i in range(sg, 8):
                    first = r == 0 and sg == 0
                    c = "0" if first else v(ACC + 4 * i, 4)
                    a(f"v_mfma_f32_16x16x32_bf16 {v(ACC+4*i,4)}, {v(base+4*sg,4)}, {v(base+32+4*(i-sg),4)}, {c}")
                    if nxt:
                        a(nxt.pop(0))
                    elif extra:
                        a(extra.pop(0))
                    cnt += 1
            if r < 7:
                a("s_waitcnt lgkmcnt(0)")
        while extra:
            a(extra.pop(0))
        a("v_bfe_u32 v12, v0, 2, 2")
        a(f"s_movk_i32 s12, {KCS}")
        a("v_lshrrev_b32 v13, 1, v12")
        a("v_lshlrev_b32 v13, 6, v13")
        a("v_mad_u32_u24 v13, v12, s12, v13")
        a("v_lshl_add_u32 v13, v11, 5, v13")
        a("v_and_b32 v12, 3, v0")
        a("v_lshl_add_u32 v13, v12, 3, v13")
        a("s_lshl_b32 s12, s10, 10")
        a(f"s_add_u32 s12, s12, {KC}")
        a("v_add_u32 v14, s12, v13")
        a("s_mul_i32 s11, s10, 1310720")
        a(f"s_lshl_b32 s12, s{sD0}, 1")
        a("s_add_u32 s11, s11, s12")
        a("s_add_u32 s11, s11, 1280")
        a("s_movk_i32 s12, 2560")
        a("v_mov_b32 v15, s11")
        a("v_mad_u32_u24 v15, v0, s12, v15")
        for i in range(8):
            a(f"v_cvt_pk_bf16_f32 v{16+2*i}, v{ACC+4*i}, v{ACC+4*i+1}")
            a(f"v_cvt_pk_bf16_f32 v{17+2*i}, v{ACC+4*i+2}, v{ACC+4*i+3}")
            a(f"ds_write_b64 v7, {v(16+2*i,2)} offset:{512*i}")
        a("s_waitcnt lgkmcnt(0)")
        self.stamp(11)
        a("s_barrier")
        for i in range(8):
            a(f"ds_read_b64_tr_b16 {v(32+2*i,2)}, v14 offset:{128*i}")
        for i in range(8):
            a(f"s_waitcnt lgkmcnt({7-i})")
            y = 48 + 4 * i
            for hh in range(2):
                a(f"v_lshlrev_b32 v{y+2*hh}, 16, v{32+2*i+hh}")
                a(f"v_and_b32 v{y+2*hh+1}, s13, v{32+2*i+hh}")
            for hh in range(2):
                a(f"v_pk_add_f32 {v(y+2*hh,2)}, {v(y+2*hh,2)}, {v(TS+4*i+2*hh,2)}")
            a(f"v_cvt_pk_bf16_f32 v{y}, v{y}, v{y+1}")
            a(f"v_cvt_pk_bf16_f32 v{y+1}, v{y+2}, v{y+3}")
            a(f"s_mov_b32 s12, {163840*i}")
            a(f"buffer_store_dwordx2 {v(y,2)}, v15, s[{SOUT}:{SOUT+3}], s12 offen")
        a("s_branch L_fin")

    def tailA(self):
        a = self.a
        O = (80, 96)
        a(f"s_mul_i32 s11, s{sW}, 25600")
        a("v_add_u32 v9, s11, v8")
        self.wvoff(2, False, t0=160)
        a("s_barrier")
        self.stop_at("t1")
        for i in range(6):
            a(f"ds_read_b128 {v(16+4*i,4)}, v9 offset:{1024*i}")
        a("v_and_b32 v12, 15, v0")
        a("v_lshlrev_b32 v12, 4, v12")
        a("s_movk_i32 s12, 20480")
        a("v_lshrrev_b32 v13, 4, v0")
        a("v_mad_u32_u24 v11, v13, s12, v12")
        a("v_and_b32 v13, 1, v13")
        a("v_mad_u32_u24 v10, v13, s12, v12")
        a("v_lshrrev_b32 v13, 5, v0")
        a("v_lshl_add_u32 v10, v13, 8, v10")
        a(f"s_mul_i32 s14, s{sT}, 81920")
        a(f"s_add_u32 s14, s14, {OIMG}")
        a(f"s_mul_i32 s15, s{sG}, 2560")
        a("s_add_u32 s15, s15, s14")
        a("s_waitcnt lgkmcnt(0)")
        for T in range(2):
            for i in range(6):
                a(f"v_pk_add_f32 {v(O[T]+2*i,2)}, {v(O[T]+2*i,2)}, {v(16+12*T+2*i,2)}")
        a("s_mov_b32 s13, 0")
        a.put("L_lext")
        for T in range(2):
            a(f"v_mov_b32 v{16+2*T}, v{O[T]+8}")
            a(f"v_mov_b32 v{17+2*T}, v{O[T]+8}")
        a("v_mov_b32 v20, 0")
        a("v_mov_b32 v21, 0")
        a("v_permlane32_swap_b32 v16, v17")
        a("v_permlane32_swap_b32 v18, v19")
        for T in range(2):
            for i in range(6):
                a(f"v_pk_fma_f32 v[20:21], {v(O[T]+2*i,2)}, 0, v[20:21] op_sel_hi:[1,0,1]")
        a("v_rcp_f32 v22, v17")
        a("v_rcp_f32 v24, v19")
        a("s_cmp_eq_u32 s13, 1")
        a("s_cbranch_scc1 L_norm")
        a("v_add_f32 v20, v20, v21")
        a("v_min_f32 v16, v17, v19")
        a("v_max_f32 v18, v17, v19")
        a("v_add_f32 v16, v16, v20")
        a(f"s_mov_b32 s12, {f2u(2.0**48):#x}")
        a(f"v_cmp_le_f32 vcc, {f2u(2.0**-24):#x}, v16")
        a("v_cmp_ge_f32 s[84:85], s12, v18")
        a("s_nop 0")
        a("s_and_b64 vcc, vcc, s[84:85]")
        a("s_cmp_eq_u64 vcc, -1")
        a("s_branch L_slow" if self.force_slow else "s_cbranch_scc0 L_slow")
        a.put("L_norm")
        a("s_nop 0")
        for T in range(2):
            for i in range(6):
                a(f"v_pk_mul_f32 {v(O[T]+2*i,2)}, {v(O[T]+2*i,2)}, {v(22+2*T,2)} op_sel_hi:[1,0]")
        for T in range(2):
            for q in range(4):
                a(f"v_cvt_pk_bf16_f32 v{28+4*T+q}, v{O[T]+2*q}, v{O[T]+2*q+1}")
            for q in range(2):
                a(f"v_cvt_pk_bf16_f32 v{36+2*T+q}, v{O[T]+8+2*q}, v{O[T]+9+2*q}")
        a(f"s_lshl_b32 s12, s{sW}, 9")
        a("s_add_u32 s12, s12, s15")
        a(f"buffer_store_dwordx4 v[28:31], v10, s[{SWS}:{SWS+3}], s12 offen sc1")
        a("s_add_u32 s12, s12, 40960")
        a("v_permlane32_swap_b32 v36, v38")
        a("v_permlane32_swap_b32 v37, v39")
        a(f"buffer_store_dwordx4 v[32:35], v10, s[{SWS}:{SWS+3}], s12 offen sc1")
        a(f"s_and_b32 s12, s{sW}, 1")
        a("s_lshl_b32 s12, s12, 8")
        a(f"s_lshr_b32 s13, s{sW}, 1")
        a("s_lshl3_add_u32 s12, s13, s12")
        a("s_add_u32 s12, s12, s15")
        a(f"buffer_store_dwordx2 v[36:37], v11, s[{SWS}:{SWS+3}], s12 offen offset:2048 sc1")
        a(f"s_mul_i32 s12, s{sW}, 204800")
        a(f"s_mul_i32 s13, s{sG}, 160")
        a("s_add_u32 s12, s12, s13")
        a("s_mov_b32 m0, s11")
        for gi in range(5):
            for i in range(5):
                a("s_nop 0")
                a(f"buffer_load_dwordx4 v{2+i}, s[{SWO}:{SWO+3}], s12 offen lds")
                a("s_add_u32 m0, m0, 1024")
                if gi == 1 and i == 4:
                    a(f"v_mov_b32 v12, {CNT}")
                    a("v_mov_b32 v13, 1")
                    a("s_waitcnt vmcnt(10)")
                    self.stamp(11)
                    a("s_mov_b64 exec, 1")
                    a("ds_add_rtn_u32 v14, v12, v13")
                    a("s_waitcnt lgkmcnt(0)")
                    a("v_readfirstlane_b32 s13, v14")
                    a(f"s_lshl_b32 s10, s{sT}, 7")
                    a(f"s_add_u32 s10, s10, {FLG_O}")
                    a("s_cmp_eq_u32 s13, 3")
                    a("s_cbranch_scc0 L_noflag")
                    a(f"v_mov_b32 v12, s{sN}")
                    a(f"v_mov_b32 v13, s{sN+1}")
                    a(f"s_lshl_b32 s13, s{sG}, 3")
                    a("v_mov_b32 v14, s13")
                    a(f"buffer_store_dwordx2 v[12:13], v14, s[{SWS}:{SWS+3}], s10 offen sc1")
                    a.put("L_noflag")
                    a("s_mov_b64 exec, -1")
            a("s_add_u32 s12, s12, 40960")
        AD = 240
        a("v_lshrrev_b32 v16, 4, v0")
        a("v_bfe_u32 v17, v0, 2, 2")
        a("v_and_b32 v18, 3, v0")
        a("v_lshlrev_b32 v18, 3, v18")
        a("s_movk_i32 s13, 0xa0")
        a("v_mad_u32_u24 v17, v17, s13, v18")
        for m in range(5):
            a(f"v_add_u32 v19, {4*m}, v16")
            a("v_cmp_lt_u32 vcc, 9, v19")
            a("v_add_u32 v20, -10, v19")
            a("s_nop 0")
            a("v_cndmask_b32 v19, v19, v20, vcc")
            a("v_cndmask_b32 v20, 0, 20, vcc")
            a("v_lshrrev_b32 v21, 1, v19")
            a("v_mul_u32_u24 v21, 5, v21")
            a("v_and_b32 v22, 1, v19")
            a("v_add_u32 v21, v21, v22")
            a("v_mul_u32_u24 v22, 5, v22")
            a("v_add_u32 v22, 4, v22")
            a("v_cmp_gt_u32 vcc, 8, v19")
            a("s_movk_i32 s13, 640")
            a("s_nop 0")
            a("v_cndmask_b32 v21, v22, v21, vcc")
            a("v_cndmask_b32 v22, 10, 2, vcc")
            a("v_add_u32 v21, v21, v20")
            a(f"v_mad_u32_u24 v{AD+2*m}, v21, s13, v17")
            a(f"v_mad_u32_u24 v{AD+2*m+1}, v22, s13, v{AD+2*m}")
        a("v_and_b32 v18, 15, v0")
        a("s_movk_i32 s13, 2560")
        a("v_lshlrev_b32 v16, 3, v16")
        a("v_mad_u32_u24 v7, v18, s13, v16")
        a("v_and_b32 v14, 7, v0")
        a("v_lshlrev_b32 v14, 3, v14")
        a("s_mov_b32 s82, 0")
        a.put("L_po")
        a(f"buffer_load_dwordx2 v[12:13], v14, s[{SWS}:{SWS+3}], s10 offen sc1")
        a("s_add_u32 s82, s82, 1")
        a("s_waitcnt vmcnt(0)")
        a(f"v_cmp_eq_u64 vcc, s[{sN}:{sN+1}], v[12:13]")
        a("s_nop 0")
        a("s_cmp_eq_u64 vcc, -1")
        a("s_cbranch_scc1 L_pod")
        a("s_cmp_gt_u32 s82, 20000")
        a("s_cbranch_scc1 L_pod")
        a("s_sleep 2")
        a("s_branch L_po")
        a.put("L_pod")
        self.stamp(8)
        OF = 16
        a(f"s_mul_i32 s12, s{sW}, 20480")
        a("s_add_u32 s12, s12, s14")
        for ks in range(20):
            a(f"buffer_load_dwordx4 {v(OF+4*ks,4)}, v8, s[{SWS}:{SWS+3}], s12 offen offset:{1024*(ks%4)} sc1")
            if ks % 4 == 3:
                a("s_add_u32 s12, s12, 4096")
        a("s_barrier")
        self.stamp(1)
        ACC, TR = 96, 120
        lg = LG(a, "lgkmcnt", 15)
        seq = [(ks, ct) for ks in range(20) for ct in range(5)]

        def issue(n):
            ks, ct = seq[n]
            if ks == 10 and ct == 0:
                for k in range(10):
                    a(f"v_add_u32 v{AD+k}, 51200, v{AD+k}")
            F = TR + 4 * (n % 8)
            off = 25600 * ((ks // 5) % 2) + 32 * ct
            m = ks % 5
            a(f"ds_read_b64_tr_b16 {v(F,2)}, v{AD+2*m} offset:{off}")
            a(f"ds_read_b64_tr_b16 {v(F+2,2)}, v{AD+2*m+1} offset:{off}")
            lg.issue(n)
            lg.issue(n)
        for n in range(7):
            issue(n)
        for n in range(100):
            ks, ct = seq[n]
            w = lg.waitstr(n)
            if ct == 0:
                w = f"vmcnt({19-ks}) " + w
            a(f"s_waitcnt {w}")
            F = TR + 4 * (n % 8)
            c = "0" if ks == 0 else v(ACC + 4 * ct, 4)
            a(f"v_mfma_f32_16x16x32_bf16 {v(ACC+4*ct,4)}, {v(F,4)}, {v(OF+4*ks,4)}, {c}")
            if n + 7 < 100:
                issue(n + 7)
        a(f"s_lshl_b32 s12, s{sT}, 6")
        a(f"s_lshl4_add_u32 s12, s{sW}, s12")
        a("s_mul_i32 s12, s12, 2560")
        a(f"s_mul_i32 s13, s{sG}, 160")
        a("s_add_u32 s12, s12, s13")
        a.nop(2)
        for ct in range(5):
            if ct == 4:
                a.nop(2)
            a(f"v_cvt_pk_bf16_f32 v{16+2*ct}, v{ACC+4*ct}, v{ACC+4*ct+1}")
            a(f"v_cvt_pk_bf16_f32 v{17+2*ct}, v{ACC+4*ct+2}, v{ACC+4*ct+3}")
            a(f"buffer_store_dwordx2 {v(16+2*ct,2)}, v7, s[{SOUT}:{SOUT+3}], s12 offen offset:{32*ct}")
        a("s_branch L_fin")

    def slow(self):
        a = self.a
        S0, O0, O1, QA, QB, Q4, K4, K16, V, IDX, AV = 16, 80, 96, 112, 116, 120, 122, 124, 128, 144, 151
        M0, M1 = 60, 61
        a.put("L_slow")
        a("v_and_b32 v62, 31, v0")
        a("v_lshlrev_b32 v62, 3, v62")
        a(f"v_mov_b32 v{M0}, 0xff800000")
        a(f"v_mov_b32 v{M1}, 0xff800000")
        for ps in range(2):
            if ps == 1:
                for M, t in ((M0, 63), (M1, 64)):
                    a(f"v_mov_b32 v{t}, v{M}")
                a("s_nop 1")
                a(f"v_permlane32_swap_b32 v{M0}, v63")
                a(f"v_permlane32_swap_b32 v{M1}, v64")
                a("s_nop 1")
                a(f"v_max_f32 v{M0}, v{M0}, v63")
                a(f"v_max_f32 v{M1}, v{M1}, v64")
                for r in range(32):
                    a(f"v_mov_b32 v{O0+r}, 0")
            a("s_mov_b32 s8, 0")
            a.put(f"L_sl{ps}")
            a("s_lshr_b32 s9, s8, 1")
            a(f"s_mul_i32 s9, s9, {BLK}")
            a("s_and_b32 s10, s8, 1")
            a("s_lshl_b32 s12, s10, 10")
            a("s_add_u32 s12, s12, s9")
            a(f"buffer_load_dwordx4 {v(K16,4)}, v8, s[{SWS}:{SWS+3}], s12 offen sc1")
            a("s_lshl_b32 s12, s10, 8")
            a("s_add_u32 s12, s12, s9")
            a(f"buffer_load_dwordx2 {v(K4,2)}, v62, s[{SWS}:{SWS+3}], s12 offen offset:2048 sc1")
            if ps == 1:
                a("s_mul_i32 s12, s10, 1344")
                a("s_add_u32 s12, s12, s9")
                a(f"buffer_load_dwordx4 {v(V,4)}, v{AV}, s[{SWS}:{SWS+3}], s12 offen sc1")
                a(f"buffer_load_dwordx4 {v(V+4,4)}, v{AV}, s[{SWS}:{SWS+3}], s12 offen offset:672 sc1")
            a("s_waitcnt vmcnt(0)")
            a(f"v_mfma_f32_32x32x4_2b_bf16 {v(S0,32)}, {v(K4,2)}, {v(Q4,2)}, 0 cbsz:1 abid:0")
            a.nop(18)
            a(f"v_mfma_f32_32x32x16_bf16 {v(S0,16)}, {v(K16,4)}, {v(QA,4)}, {v(S0,16)}")
            a(f"v_mfma_f32_32x32x16_bf16 {v(S0+16,16)}, {v(K16,4)}, {v(QB,4)}, {v(S0+16,16)}")
            a.nop(14)
            if ps == 0:
                for T, M in ((0, M0), (1, M1)):
                    for r in range(0, 16, 2):
                        a(f"v_max3_f32 v{M}, v{S0+16*T+r}, v{S0+16*T+r+1}, v{M}")
            else:
                for T, M in ((0, M0), (1, M1)):
                    for r in range(16):
                        a(f"v_sub_f32 v{S0+16*T+r}, v{S0+16*T+r}, v{M}")
                for r in range(32):
                    a(f"v_exp_f32 v{S0+r}, v{S0+r}")
                a("s_nop 1")
                for T, O in ((0, O0), (1, O1)):
                    for f in range(2):
                        a(f"v_smfmac_f32_32x32x32_bf16 {v(O,16)}, {v(V+4*f,4)}, {v(S0+16*T+8*f,8)}, v{IDX}")
                a.nop(14)
            a("s_add_u32 s8, s8, 1")
            a("s_cmp_lt_u32 s8, 64")
            a(f"s_cbranch_scc1 L_sl{ps}")
        a("s_mov_b32 s13, 1")
        a("s_branch L_lext")

    def dump(self):
        a = self.a
        a.put("L_dump")
        a("s_waitcnt vmcnt(0) lgkmcnt(0)")
        a("s_barrier")
        a(f"s_lshl_b32 s10, s{sW}, 10")
        a("v_lshl_add_u32 v250, v0, 4, s10")
        a(f"s_mul_i32 s11, s2, {LDS_BYTES}")
        a(f"s_add_u32 s11, s11, {DBG}")
        a("v_mov_b32 v251, v250")
        for i in range(20):
            a("ds_read_b128 v[252:255], v251")
            a("s_waitcnt lgkmcnt(0)")
            a(f"buffer_store_dwordx4 v[252:255], v250, s[{SWS}:{SWS+3}], s11 offen")
            a("s_waitcnt vmcnt(0)")
            a("v_add_u32 v251, 0x2000, v251")
            a("s_add_u32 s11, s11, 0x2000")
        if self.dump_regs:
            lo, n = self.dump_regs
            a(f"s_lshl_b32 s10, s2, 3")
            a(f"s_add_u32 s10, s10, s{sW}")
            a(f"s_mul_i32 s10, s10, {256*n}")
            a(f"s_add_u32 s10, s10, {DBG + 256*LDS_BYTES}")
            a("v_lshlrev_b32 v250, 2, v0")
            for i in range(n):
                a(f"buffer_store_dword v{lo+i}, v250, s[{SWS}:{SWS+3}], s10 offen")
                a("s_add_u32 s10, s10, 256")
            a("s_waitcnt vmcnt(0)")
        a("s_endpgm")

    def build(self):
        a = self.a
        self.prologue()
        a(f"s_cmp_lt_u32 s{sG}, 3")
        a("s_cbranch_scc1 L_P")
        self.kgen()
        a.put("L_P")
        self.kvjob()
        a.put("L_b1")
        a("s_waitcnt vmcnt(0) lgkmcnt(0)")
        a("s_barrier")
        self.stamp(2)
        self.stop_at("b1")
        a(f"s_cmp_lt_u32 s{sW}, 4")
        a("s_cbranch_scc0 L_B")
        self.qgemm()
        self.stop_at("b6")
        self.attention(False)
        self.tailA()
        a.put("L_B")
        self.bphase1()
        self.stop_at("b6")
        self.attention(True)
        self.tailB()
        self.slow()
        if self.stop:
            self.dump()
        a.put("L_fin")
        if self.stamps:
            a("s_waitcnt vmcnt(0)")
            a("s_memtime s[86:87]")
            a("s_lshl_b32 s10, s2, 3")
            a(f"s_add_u32 s10, s10, s{sW}")
            a("s_lshl_b32 s10, s10, 6")
            a(f"s_add_u32 s10, s10, {STAMP}")
            a("v_mov_b32 v1, 0")
            a("s_waitcnt lgkmcnt(0)")
            for i in range(12):
                a(f"v_mov_b32 v{4+i}, s{sST+i}")
            a("v_mov_b32 v16, s86")
            a("s_memrealtime s[86:87]")
            a("s_waitcnt lgkmcnt(0)")
            a("v_mov_b32 v17, s86")
            a("s_mov_b64 exec, 1")
            for i in range(4):
                a(f"buffer_store_dwordx4 {v(4+4*i,4)}, v1, s[{SWS}:{SWS+3}], s10 offen offset:{16*i}")
        if self.rt:
            a("s_waitcnt vmcnt(0)")
            a("s_memrealtime s[86:87]")
            a("s_memtime s[94:95]")
            a("s_not_b32 s99, s98")
            a("v_mov_b32 v1, 0")
            a("v_mov_b32 v4, s99")
            a("v_mov_b32 v6, s98")
            a("s_waitcnt lgkmcnt(0)")
            a("s_sub_u32 s94, s94, s96")
            a("v_mov_b32 v5, s86")
            a("v_mov_b32 v7, s94")
            a("s_mov_b64 exec, 1")
            a("global_atomic_umax v1, v4, s[46:47] offset:16 sc1")
            a("global_atomic_umax v1, v5, s[46:47] offset:20 sc1")
            a("global_atomic_umax v1, v6, s[46:47] offset:24 sc1")
            a("global_atomic_umax v1, v7, s[46:47] offset:28 sc1")
        a.put("L_end")
        a("s_endpgm")
        a.put("L_codeend")
        return a


HEAD = open("cdna_kernels/" + NAME + ".s.ref").read().split("; Override launch")[0]


def emit(path, **kw):
    g = Gen(**kw)
    a = g.build()
    a.lines, msgs = autofix(a.lines)
    if kw.get("verbose", path.endswith("prompt.s")):
        for m in msgs[:30]:
            print("fixed", m)
    assert not check_hazards(a.lines)
    if path.endswith('prompt.s'):
        for m in check_inflight(a.lines)[:30]:
            print(m)
    src = HEAD + f"""; @launch grid=(256,1,1) block=(512,1,1) lds={LDS_BYTES}
.amdgcn_target "amdgcn-amd-amdhsa--gfx950"
.text
.globl {NAME}_kernel
.p2align 8
.type {NAME}_kernel,@function
{NAME}_kernel:
{a.text()}.section .rodata,"a"
.p2align 6
.amdhsa_kernel {NAME}_kernel
  .amdhsa_next_free_vgpr 256
  .amdhsa_next_free_sgpr 102
  .amdhsa_accum_offset 256
  .amdhsa_group_segment_fixed_size 0
  .amdhsa_kernarg_size 136
  .amdhsa_user_sgpr_count 2
  .amdhsa_user_sgpr_kernarg_segment_ptr 1
  .amdhsa_system_sgpr_workgroup_id_x 1
.end_amdhsa_kernel
"""
    open(path, "w").write(src)
    return len(msgs)


if __name__ == "__main__":
    import os
    os.makedirs("out", exist_ok=True)
    n = emit("cdna_kernels/" + NAME + ".s")
    emit("b1.s", stop="b1", dump_regs=(176, 16))
    emit("b6.s", stop="b6")
    emit("t1.s", stop="t1", dump_regs=(80, 32))
    emit("full.s")
    emit("slow.s", force_slow=True)
    emit("stamp.s", stamps=True)
    emit("rt.s", rt=True)
    print("hazards", n)
```

```python
import sys, struct
from asmlib import Asm, v, s, check_hazards, autofix, check_inflight

NAME = "concat_heads__grouped_kv_mqa__ssm_conv_s4__prompt"

BLK = 5248
SLOT = 41984
WL = 81920
AUX = 122880
KGB = 122880
KGA = 143360
KVP = 148480
QP = 115712
KC = 125952
KCS = 8320
UT = 102400
UTS = 4672
USCR = 121088
CNT = 159232
LDS_BYTES = 163840

FLG_KV = 0x30000
FLG_O = 0x31000
OIMG = 0x40000
WS_SIZE = 0x300000
DBG = 0x400000
STAMP = 0x380000

sW, sT, sG, sD0 = 3, 4, 5, 50
SX, SWQ, SKV, SWS, SOUT, SWO, SU = 52, 56, 60, 64, 68, 72, 76
sN = 80
sST = 88

LOG2E = 1.4426950408889634


def f2u(x):
    return struct.unpack("<I", struct.pack("<f", x))[0]


class LG:
    def __init__(self, a, name, maxc):
        self.a, self.name, self.maxc, self.q = a, name, maxc, []

    def issue(self, tag=None):
        self.q.append(tag)

    def wait(self, tag):
        idx = max(i for i, t in enumerate(self.q) if t == tag)
        n = len(self.q) - 1 - idx
        self.a(f"s_waitcnt {self.name}({min(n, self.maxc)})")
        self.q = self.q[idx + 1:]

    def waitstr(self, tag):
        idx = max(i for i, t in enumerate(self.q) if t == tag)
        n = len(self.q) - 1 - idx
        self.q = self.q[idx + 1:]
        return f"{self.name}({min(n, self.maxc)})"

    def all(self):
        self.q = []


class Gen:
    def __init__(self, stop=None, stamps=False, force_slow=False, dump_regs=None, rt=False):
        self.rt = rt
        self.a = Asm()
        self.stop = stop
        self.stamps = stamps
        self.force_slow = force_slow
        self.debug = stop is not None or stamps
        self.dump_regs = dump_regs

    def srd(self, d, base, size):
        a = self.a
        a(f"s_mov_b32 s{d}, s{base}")
        a(f"s_mov_b32 s{d+1}, s{base+1}")
        a(f"s_mov_b32 s{d+2}, {size}")
        a(f"s_mov_b32 s{d+3}, 0x20000")

    def stamp(self, i):
        if self.stamps:
            self.a("s_memtime s[86:87]")
            self.a("s_waitcnt lgkmcnt(0)")
            self.a(f"s_mov_b32 s{sST+i}, s86")

    def stop_at(self, name):
        if self.stop == name:
            self.a("s_branch L_dump")

    def cmul(self, d, x, y, conj=False):
        a = self.a
        a(f"v_pk_mul_f32 {v(d,2)}, {v(x,2)}, {v(y,2)} op_sel:[0,0] op_sel_hi:[1,0]")
        neg = "neg_hi:[0,1,0]" if conj else "neg_lo:[0,1,0]"
        return f"v_pk_fma_f32 {v(d,2)}, {v(x,2)}, {v(y,2)}, {v(d,2)} op_sel:[1,1,0] op_sel_hi:[0,1,1] {neg}"

    def cmuls(self, lst, conj=False):
        tail = [self.cmul(d, x, y, conj) for d, x, y in lst]
        for t in tail:
            self.a(t)

    def get_nonce(self, vt, vz):
        a = self.a
        lp, dn = a.label("Lnon"), a.label("Lnond")
        a("s_mov_b32 s82, 0")
        a.put(lp)
        a(f"v_readfirstlane_b32 s{sN}, {v(vt)}")
        a(f"v_readfirstlane_b32 s{sN+1}, {v(vt+1)}")
        a("s_add_u32 s82, s82, 1")
        a(f"s_bitcmp1_b32 s{sN}, 0")
        a(f"s_cbranch_scc1 {dn}")
        a("s_cmp_gt_u32 s82, 20000")
        a(f"s_cbranch_scc1 {dn}")
        a("s_sleep 4")
        a(f"global_load_dwordx2 {v(vt,2)}, {v(vz)}, s[46:47] sc1")
        a("s_waitcnt vmcnt(0)")
        a(f"s_branch {lp}")
        a.put(dn)

    def prologue(self):
        a = self.a
        a("s_cmp_ge_u32 s2, 0x100")
        a("s_cbranch_scc1 L_end")
        a("s_load_dwordx16 s[16:31], s[0:1], 0")
        a("s_load_dwordx16 s[32:47], s[0:1], 64")
        a("s_load_dwordx2 s[48:49], s[0:1], 128")
        if self.rt:
            a("s_memrealtime s[98:99]")
            a("s_memtime s[96:97]")
        a("s_getpc_b64 s[6:7]")
        a.put("L_pc")
        a("v_lshlrev_b32 v1, 7, v0")
        a("v_min_u32 v1, L_codeend-L_pc-4, v1")
        a("global_load_dword v255, v1, s[6:7]")
        if self.stamps:
            a("s_memtime s[86:87]")
        a("v_lshrrev_b32 v1, 6, v0")
        a("v_and_b32 v0, 63, v0")
        a("s_and_b32 s8, s2, 7")
        a(f"v_readfirstlane_b32 s{sW}, v1")
        a("s_lshr_b32 s9, s2, 3")
        a(f"s_and_b32 s{sT}, s9, 3")
        a(f"s_lshl2_add_u32 s{sT}, s8, s{sT}")
        a(f"s_lshr_b32 s{sG}, s9, 2")
        a(f"s_mul_i32 s{sD0}, s8, 80")
        a(f"s_lshl2_add_u32 s{sD0}, s9, s{sD0}")
        a(f"s_sub_u32 s{sD0}, s{sD0}, 48")
        a("v_lshrrev_b32 v2, 4, v0")
        a(f"s_and_b32 s10, s{sW}, 3")
        a("s_lshl_b32 s11, s10, 2")
        a("v_add_u32 v3, s11, v2")
        a("v_and_b32 v4, 15, v0")
        a("v_xor_b32 v3, v3, v4")
        a("v_lshlrev_b32 v3, 4, v3")
        a("s_movk_i32 s12, 1280")
        a("v_mad_u32_u24 v7, v2, s12, v3")
        a("v_lshlrev_b32 v8, 4, v0")
        a(f"s_lshr_b32 s11, s{sW}, 2")
        a(f"s_mul_i32 s13, s{sT}, 81920")
        a("s_mul_i32 s12, s10, 5120")
        a("s_add_u32 s13, s13, s12")
        a("s_mul_i32 s12, s11, 40960")
        a("s_add_u32 s13, s13, s12")
        a("s_lshl_b32 s14, s10, 10")
        a("s_lshl_b32 s12, s11, 13")
        a("s_add_u32 s14, s14, s12")
        a(f"s_cmp_ge_u32 s{sG}, 5")
        a("s_cselect_b32 s12, 5, 0")
        a(f"s_sub_u32 s15, s{sG}, s12")
        a(f"s_add_u32 s12, s{sD0}, s10")
        a("s_lshl_b32 s82, s12, 8")
        a("s_lshl_b32 s83, s11, 7")
        a("s_add_u32 s82, s82, s83")
        a("v_lshl_add_u32 v9, v0, 1, s82")
        a("s_lshl_b32 s12, s12, 1")
        a("v_mov_b32 v17, s12")
        for r in range(10, 17):
            a(f"v_mov_b32 v{r}, 0")
        a("s_waitcnt lgkmcnt(0)")
        if self.stamps:
            a(f"s_mov_b32 s{sST}, s86")
        self.srd(SX, 16, 2621440)
        a(f"s_cmp_lt_u32 s{sG}, 3")
        a("s_cbranch_scc1 L_pro_P")
        for i, p in enumerate((40, 28, 30, 32, 34, 36, 38)):
            dst = 16 if i == 0 else 9 + i
            a(f"global_load_short_d16_hi v{dst}, {'v17' if i == 0 else 'v9'}, s[{p}:{p+1}]")
        a("s_branch L_pro_X")
        a.put("L_pro_P")
        a(f"s_or_b32 s12, s2, s{sW}")
        a("s_cmp_eq_u32 s12, 0")
        a("s_cbranch_scc0 L_pro_nn")
        a("s_memrealtime s[84:85]")
        a("s_waitcnt lgkmcnt(0)")
        a("s_or_b32 s84, s84, 1")
        a("v_mov_b32 v12, s84")
        a("v_mov_b32 v13, s85")
        a("s_mov_b64 exec, 1")
        a("global_store_dwordx2 v10, v[12:13], s[46:47] sc1")
        a("s_mov_b64 exec, -1")
        a.put("L_pro_nn")
        a(f"s_cmp_eq_u32 s{sG}, 2")
        a("s_cbranch_scc1 L_pro_X")
        a(f"s_cmp_eq_u32 s{sG}, 0")
        a(f"s_cselect_b32 s{SKV}, s20, s22")
        a(f"s_cselect_b32 s{SKV+1}, s21, s23")
        a(f"s_mov_b32 s{SKV+2}, 25600")
        a(f"s_mov_b32 s{SKV+3}, 0x20000")
        a(f"s_lshl_b32 s12, s{sW}, 10")
        a(f"s_cmp_eq_u32 s{sW}, 0")
        a("s_cbranch_scc0 L_pro_kv")
        a(f"s_mov_b32 m0, {AUX + 24576}")
        a("s_movk_i32 s82, 24576")
        a(f"buffer_load_dwordx4 v8, s[{SKV}:{SKV+3}], s82 offen lds")
        a.put("L_pro_kv")
        for i in range(3):
            a(f"s_add_u32 m0, s12, {AUX}")
            a("s_nop 0")
            a(f"buffer_load_dwordx4 v8, s[{SKV}:{SKV+3}], s12 offen lds")
            if i < 2:
                a("s_add_u32 s12, s12, 8192")
        a.put("L_pro_X")
        for i in range(5):
            a("s_lshl_b32 s82, s15, 8")
            a("s_add_u32 s82, s82, s13")
            a("s_lshl_b32 s83, s15, 14")
            a("s_add_u32 m0, s83, s14")
            a("s_add_u32 s15, s15, 1")
            a(f"buffer_load_dwordx4 v7, s[{SX}:{SX+3}], s82 offen lds")
            a("s_add_u32 m0, m0, 4096")
            a("s_add_u32 s82, s82, 20480")
            a(f"buffer_load_dwordx4 v7, s[{SX}:{SX+3}], s82 offen lds")
            if i < 4:
                a("s_cmp_eq_u32 s15, 5")
                a("s_cselect_b32 s15, 0, s15")
        self.srd(SWQ, 18, 819200)
        self.wvoff(2, True)
        a(f"s_mul_i32 s13, s{sG}, 160")
        a(f"s_mul_i32 s12, s{sW}, 40960")
        a("s_add_u32 s12, s12, s13")
        a(f"s_mul_i32 s14, s{sW}, 5120")
        a(f"s_add_u32 m0, s14, {WL}")
        for i in range(5):
            a("s_nop 0")
            a(f"buffer_load_dwordx4 v{2+i}, s[{SWQ}:{SWQ+3}], s12 offen lds")
            if i < 4:
                a("s_add_u32 m0, m0, 1024")
        self.srd(SWS, 48, 0x10000000 if self.debug else WS_SIZE)
        self.srd(SOUT, 44, 5242880)
        self.srd(SWO, 24, 819200)
        self.srd(SU, 26, 2621440)

    def wvoff(self, base, perm, t0=20):
        a = self.a
        p, q, c, k = t0, t0 + 1, t0 + 2, t0 + 3
        a("s_mov_b32 s82, 0xcccd")
        a("s_movk_i32 s83, 1280")
        for i in range(5):
            a(f"v_add_u32 v{p}, {64*i}, v0")
            a(f"v_mul_u32_u24 v{q}, s82, v{p}")
            a(f"v_lshrrev_b32 v{q}, 19, v{q}")
            a(f"v_mul_u32_u24 v{c}, 10, v{q}")
            a(f"v_sub_u32 v{c}, v{p}, v{c}")
            a(f"v_lshlrev_b32 v{c}, 4, v{c}")
            if perm:
                a(f"v_and_b32 v{k}, 1, v{q}")
                a(f"v_bfe_u32 v{p}, v{q}, 1, 2")
                a(f"v_lshl_add_u32 v{k}, v{k}, 2, v{p}")
                a(f"v_and_b32 v{q}, 24, v{q}")
                a(f"v_add_u32 v{q}, v{q}, v{k}")
            a(f"v_mad_u32_u24 v{base+i}, v{q}, s83, v{c}")

    def kgen(self):
        a = self.a
        R0, R1, H, H1, PA, PB = 32, 64, 192, 224, 96, 236
        FL0, FL1, FH0, FH1, D = 112, 128, 144, 160, 176
        Z1, Z8, Z256, B16 = 18, R0 + 2, 22, 20
        WW = H1 + 8
        a(f"s_and_b32 s10, s{sW}, 3")
        a("s_mul_i32 s10, s10, 4608")
        a(f"s_cmp_lt_u32 s{sW}, 4")
        a(f"s_cselect_b32 s11, {KGA-KGB}, 0")
        a("s_add_u32 s10, s10, s11")
        a(f"s_add_u32 s10, s10, {KGB}")
        a("v_add_u32 v26, s10, v8")
        a("v_lshrrev_b32 v27, 2, v0")
        a("v_lshlrev_b32 v27, 4, v27")
        a("v_and_b32 v28, 1, v0")
        a("v_lshl_add_u32 v27, v28, 3, v27")
        a("v_bfe_u32 v28, v0, 1, 1")
        a("s_movk_i32 s11, 1152")
        a("v_mad_u32_u24 v27, v28, s11, v27")
        a("v_add_u32 v27, s10, v27")
        l2e_hi = f2u(LOG2E)
        l2e_lo = f2u(LOG2E - struct.unpack("<f", struct.pack("<I", l2e_hi))[0])
        a(f"s_mov_b32 s12, {l2e_hi:#x}")
        a(f"s_mov_b32 s13, {l2e_lo:#x}")
        a(f"v_mov_b32 v{R0}, 1.0")
        a(f"v_mov_b32 v{R0+1}, 0")
        a("s_waitcnt vmcnt(15)")
        a("v_mul_f32 v28, s12, v16")
        a("v_fma_f32 v29, v16, s12, -v28")
        a("v_fmac_f32 v29, s13, v16")
        a("v_exp_f32 v28, v28")
        a(f"v_mul_f32 v29, {f2u(0.6931471805599453):#x}, v29")
        a("v_fma_f32 v28, v28, v29, v28")
        a("v_cvt_pk_bf16_f32 v28, v28, v28")
        a("v_lshlrev_b32 v28, 16, v28")
        a("v_mul_f32 v10, v28, v10")
        a("v_mul_f32 v11, v28, v11")
        a("v_mul_f32 v12, v28, v12")
        a("v_mul_f32 v13, v28, v13")
        a("v_mul_f32 v10, s12, v10")
        a("v_mul_f32 v11, 0.15915494, v11")
        self.cmuls([(WW, 14, 12)])
        for p, Z, t in ((8, Z8, 96), (1, Z1, 100), (256, Z256, 104)):
            if p == 1:
                a(f"v_exp_f32 v{t}, v10")
                a(f"v_fract_f32 v{t+1}, v11")
            else:
                a(f"v_mul_f32 v{t}, {f2u(float(p)):#x}, v10")
                a(f"v_mul_f32 v{t+1}, {f2u(float(p)):#x}, v11")
                a(f"v_exp_f32 v{t}, v{t}")
                a(f"v_fract_f32 v{t+1}, v{t+1}")
            a(f"v_cos_f32 v{t+2}, v{t+1}")
            a(f"v_sin_f32 v{t+3}, v{t+1}")
            a("s_nop 0")
            a(f"v_pk_mul_f32 {v(Z,2)}, {v(t+2,2)}, {v(t,2)} op_sel:[0,0] op_sel_hi:[1,0]")
        a(f"v_xor_b32 v{WW+1}, 0x80000000, v{WW+1}")
        r = lambda j: R0 + 2 * j
        h = lambda j: H + 2 * j
        h1 = lambda j: H1 + 2 * j

        def pack(src, P, nd=8):
            for q in range(nd):
                a(f"v_cvt_pk_bf16_f32 v{P+q}, v{src+4*q}, v{src+4*q+2}")
                a(f"v_cvt_pk_bf16_f32 v{P+8+q}, v{src+4*q+1}, v{src+4*q+3}")

        def wr_tr(P, F, planes=(0, 1, 2, 3)):
            for pl in planes:
                a(f"ds_write_b128 v26, {v(P+4*pl,4)} offset:{1152*pl}")
            for sidx in range(4):
                a(f"ds_read_b64_tr_b16 {v(F+4*sidx,2)}, v27 offset:{256*sidx}")
                a(f"ds_read_b64_tr_b16 {v(F+4*sidx+2,2)}, v27 offset:{2304+256*sidx}")
        chain = [(h(0), WW, Z1)] + [(h(j), h(j - 1), Z1) for j in range(1, 8)]
        levels = [[(r(2), r(1), r(1))], [(r(3), r(2), r(1)), (r(4), r(2), r(2))],
                  [(r(5), r(4), r(1)), (r(6), r(4), r(2)), (r(7), r(4), r(3)), (r(8), r(4), r(4))],
                  [(r(8 + i), r(8), r(i)) for i in range(1, 5)],
                  [(r(8 + i), r(8), r(i)) for i in range(5, 8)] + [(B16, r(8), r(8))]]
        for lv in levels:
            t = self.cmul(*chain.pop(0), conj=True)
            self.cmuls(lv)
            a(t)
        pack(R0, PA)
        wr_tr(PA, FL0)
        a(f"v_mov_b32 v{R1}, v{B16}")
        a(f"v_mov_b32 v{R1+1}, v{B16+1}")
        rest = [(R1 + 2 * j, r(j), B16) for j in range(1, 16)]
        for grp in (rest[:5], rest[5:10], rest[10:]):
            t = self.cmul(*chain.pop(0), conj=True)
            self.cmuls(grp)
            a(t)
        self.cmuls([(h(8), h(1), Z256), (h(9), h(3), Z256), (h(10), h(5), Z256), (h(11), h(7), Z256)], conj=True)
        pack(R1, PB)
        wr_tr(PB, FL1)
        self.cmuls([(h(12), h(9), Z256), (h(13), h(11), Z256)], conj=True)
        self.cmuls([(h(14), h(12), Z256), (h(15), h(13), Z256)], conj=True)
        self.cmuls([(h1(0), h(15), Z256)], conj=True)
        a("s_waitcnt lgkmcnt(12)")
        t = self.cmul(h1(1), h1(0), Z256, conj=True)
        a(t)
        pack(H, PA)
        t = self.cmul(h1(2), h1(1), Z256, conj=True)
        a(t)
        wr_tr(PA, FH0)
        t = self.cmul(h1(3), h1(2), Z256, conj=True)
        a(t)
        a("s_waitcnt lgkmcnt(12)")
        for q in range(3):
            x, y = (h1(2 * q), h1(2 * q + 1)) if q < 2 else (WW, WW)
            a(f"v_cvt_pk_bf16_f32 v{PB+q}, v{x}, v{y}")
            a(f"v_cvt_pk_bf16_f32 v{PB+8+q}, v{x+1}, v{y+1}")
        wr_tr(PB, FH1, planes=(0, 2))
        a("s_waitcnt lgkmcnt(10)")
        for sidx in range(4):
            c0 = "0" if sidx == 0 else v(D, 4)
            c1 = "0" if sidx == 0 else v(D + 4, 4)
            a(f"v_mfma_f32_16x16x32_bf16 {v(D,4)}, {v(FH0+4*sidx,4)}, {v(FL0+4*sidx,4)}, {c0}")
            a(f"v_mfma_f32_16x16x32_bf16 {v(D+4,4)}, {v(FH0+4*sidx,4)}, {v(FL1+4*sidx,4)}, {c1}")
        a("s_waitcnt lgkmcnt(0)")
        for sidx in range(4):
            c0 = "0" if sidx == 0 else v(D + 8, 4)
            c1 = "0" if sidx == 0 else v(D + 12, 4)
            a(f"v_mfma_f32_16x16x32_bf16 {v(D+8,4)}, {v(FL0+4*sidx,4)}, {v(FH1+4*sidx,4)}, {c0}")
            a(f"v_mfma_f32_16x16x32_bf16 {v(D+12,4)}, {v(FL1+4*sidx,4)}, {v(FH1+4*sidx,4)}, {c1}")
        a(f"s_cmp_lt_u32 s{sW}, 4")
        a("s_cbranch_scc0 L_b1")
        a.nop(8)
        for i in range(4):
            a(f"ds_write_b128 v26, {v(D+4*i,4)} offset:{1024*i}")
        a("s_branch L_b1")

    def kvjob(self):
        a = self.a
        a(f"s_cmp_eq_u32 s{sG}, 2")
        a("s_cbranch_scc1 L_b1")
        a("v_and_b32 v20, 31, v0")
        a("v_lshrrev_b32 v21, 5, v0")
        a("v_and_b32 v22, 0x13, v20")
        a("v_bfe_u32 v23, v20, 2, 1")
        a("v_lshl_or_b32 v22, v23, 3, v22")
        a("v_bfe_u32 v23, v20, 3, 1")
        a("v_lshl_or_b32 v22, v23, 2, v22")
        a(f"s_cmp_eq_u32 s{sG}, 1")
        a("s_cselect_b64 vcc, -1, 0")
        a("v_cndmask_b32 v20, v20, v22, vcc")
        a(f"s_and_b32 s10, s{sW}, 1")
        a(f"s_bfe_u32 s11, s{sW}, 0x10001")
        a("v_and_b32 v22, 15, v20")
        a("v_xor_b32 v22, v22, v21")
        a("v_lshlrev_b32 v22, 4, v22")
        a("v_lshl_or_b32 v22, v20, 8, v22")
        a("s_lshl_b32 s12, s10, 13")
        a("s_lshl_b32 s13, s11, 7")
        a("s_or_b32 s12, s12, s13")
        a("v_xor_b32 v10, s12, v22")
        for k in range(1, 4):
            a(f"v_xor_b32 v{10+k}, {32*k}, v10")
        a("v_bfe_u32 v22, v0, 2, 2")
        a("v_lshl_add_u32 v22, v21, 3, v22")
        a("v_mul_u32_u24 v22, 40, v22")
        a("v_bfe_u32 v23, v0, 4, 1")
        a("v_and_b32 v24, 3, v0")
        a("v_lshl_add_u32 v23, v23, 2, v24")
        a("v_min_u32 v23, 4, v23")
        a("v_lshl_add_u32 v22, v23, 3, v22")
        a("s_mul_i32 s12, s11, 2560")
        a(f"s_add_u32 s12, s12, {AUX}")
        a("v_add_u32 v14, s12, v22")
        a("s_waitcnt vmcnt(5)")
        a("s_barrier")
        self.stamp(1)
        a(f"s_cmp_lt_u32 s{sW}, 4")
        a("s_cbranch_scc1 L_b1")
        a(f"s_cmp_eq_u32 s{sG}, 1")
        a("s_cbranch_scc1 L_kv_V")
        ACC = 80
        for isV in (0, 1):
            if isV:
                a.put("L_kv_V")
            lg = LG(a, "lgkmcnt", 15)

            def issue(n):
                b, ks = divmod(n, 4)
                F = 16 + 8 * (n % 6)
                if n == 16:
                    for k in range(4):
                        a(f"v_add_u32 v{10+k}, 0x10000, v{10+k}")
                a(f"ds_read_b128 {v(F,4)}, v{10+ks} offset:{16384*(b%4)}")
                a(f"ds_read_b64_tr_b16 {v(F+4,2)}, v14 offset:{5120*b+640*ks}")
                a(f"ds_read_b64_tr_b16 {v(F+6,2)}, v14 offset:{5120*b+640*ks+160}")
                for _ in range(3):
                    lg.issue(n)
            for n in range(5):
                issue(n)
            for n in range(20):
                lg.wait(n)
                F = 16 + 8 * (n % 6)
                A, B = (F, F + 4) if isV else (F + 4, F)
                a(f"v_mfma_f32_32x32x16_bf16 {v(ACC,16)}, {v(A,4)}, {v(B,4)}, {'0' if n == 0 else v(ACC,16)}")
                if n + 5 < 20:
                    issue(n + 5)
            if not isV:
                a("s_branch L_kv_d")
        a.put("L_kv_d")
        a("s_lshl_b32 s12, s10, 12")
        a(f"s_add_u32 s12, s12, {KVP}")
        a("v_add_u32 v15, s12, v8")
        a(f"s_cmp_lt_u32 s{sW}, 6")
        a("s_cbranch_scc1 L_b1")
        a.nop(10)
        for i in range(4):
            a(f"ds_write_b128 v15, {v(ACC+4*i,4)} offset:{1024*i}")

    def qgemm(self):
        a = self.a
        XA, WA = 64, 72
        a("v_mov_b32 v1, 0")
        a("global_load_dwordx2 v[2:3], v1, s[46:47] sc1")
        a("v_and_b32 v20, 31, v0")
        a("v_lshrrev_b32 v21, 5, v0")
        a("v_and_b32 v22, 15, v20")
        a("v_xor_b32 v22, v22, v21")
        a("v_lshlrev_b32 v22, 4, v22")
        a(f"v_lshl_or_b32 v{XA}, v20, 8, v22")
        for k in range(1, 8):
            a(f"v_xor_b32 v{XA+k}, {32*k}, v{XA}")
        a("v_bfe_u32 v22, v0, 2, 2")
        a("v_lshlrev_b32 v22, 1, v22")
        a("v_lshl_add_u32 v22, v21, 3, v22")
        a("v_mul_u32_u24 v22, 0xa0, v22")
        a("v_bfe_u32 v23, v0, 4, 1")
        a("v_and_b32 v24, 3, v0")
        a("v_lshl_add_u32 v23, v23, 2, v24")
        a("v_min_u32 v23, 4, v23")
        a("v_lshl_add_u32 v22, v23, 3, v22")
        a(f"s_mul_i32 s12, s{sW}, 40")
        a(f"s_add_u32 s12, s12, {WL}")
        a(f"v_add_u32 v{WA}, s12, v22")
        a(f"v_add_u32 v{WA+1}, 61440, v{WA}")
        for c in range(5):
            lg = LG(a, "lgkmcnt", 15)
            wreg = WA + 1 if c == 3 else WA
            woff = {0: 0, 1: 20480, 2: 40960, 3: 0, 4: 0}[c]
            if c == 4:
                for k in range(8):
                    a(f"v_add_u32 v{XA+k}, 0x10000, v{XA+k}")

            def issue(ks):
                F = 16 + 12 * (ks % 4)
                a(f"ds_read_b64_tr_b16 {v(F,2)}, v{wreg} offset:{woff+2560*ks}")
                a(f"ds_read_b64_tr_b16 {v(F+2,2)}, v{wreg} offset:{woff+2560*ks+160}")
                a(f"ds_read_b128 {v(F+4,4)}, v{XA+ks} offset:{16384*(c%4)}")
                a(f"ds_read_b128 {v(F+8,4)}, v{XA+ks} offset:{16384*(c%4)+8192}")
                for _ in range(4):
                    lg.issue(ks)
            for ks in range(3):
                issue(ks)
            for ks in range(8):
                lg.wait(ks)
                F = 16 + 12 * (ks % 4)
                first = c == 0 and ks == 0
                a(f"v_mfma_f32_32x32x16_bf16 v[80:95], {v(F,4)}, {v(F+4,4)}, {'0' if first else 'v[80:95]'}")
                a(f"v_mfma_f32_32x32x16_bf16 v[96:111], {v(F,4)}, {v(F+8,4)}, {'0' if first else 'v[96:111]'}")
                if ks + 3 < 8:
                    issue(ks + 3)
            if c < 4:
                a("s_barrier")
                self.stamp(3 + c)
        a("s_waitcnt vmcnt(0)")
        self.get_nonce(2, 1)
        a(f"s_mov_b32 s12, {f2u(LOG2E / 20 ** 0.5):#x}")
        a(f"s_mul_i32 s13, s{sW}, 2560")
        a(f"s_add_u32 s13, s13, {QP}")
        a("v_add_u32 v9, s13, v8")
        a("v_lshl_add_u32 v10, v0, 3, s13")
        a.nop(4)
        for T, O in ((0, 80), (1, 96)):
            for r in range(12):
                a(f"v_mul_f32 v{O+r}, s12, v{O+r}")
        for T, O in ((0, 80), (1, 96)):
            for q in range(4):
                a(f"v_cvt_pk_bf16_f32 v{112+4*T+q}, v{O+2*q}, v{O+2*q+1}")
            for q in range(2):
                a(f"v_cvt_pk_bf16_f32 v{120+2*T+q}, v{O+8+2*q}, v{O+9+2*q}")
        a("ds_write_b128 v9, v[112:115]")
        a("ds_write_b128 v9, v[116:119] offset:1024")
        a("v_permlane32_swap_b32 v120, v122")
        a("v_permlane32_swap_b32 v121, v123")
        a("s_nop 1")
        a("ds_write_b64 v10, v[120:121] offset:2048")
        a("s_waitcnt lgkmcnt(0)")
        a("s_barrier")
        self.stamp(7)

    def wload(self, groups):
        a = self.a
        for g0 in groups:
            lds = WL + 5120 * (g0 % 16)
            a(f"s_add_u32 s12, s14, {40960*g0}")
            a(f"s_add_u32 m0, s15, {lds}")
            for e in range(2):
                for i in range(5):
                    a("s_nop 0")
                    a(f"buffer_load_dwordx4 v{2+i}, s[{SWQ}:{SWQ+3}], s12 offen lds")
                    if not (e == 1 and i == 4):
                        a("s_add_u32 m0, m0, 1024")
                if e == 0:
                    a("s_add_u32 s12, s12, 40960")

    def bphase1(self):
        a = self.a
        D = 176
        a(f"s_cmp_lt_u32 s{sW}, 6")
        a("s_cbranch_scc1 L_b_nl1")
        a(f"s_and_b32 s10, s{sW}, 1")
        a("s_mul_i32 s14, s10, 81920")
        a(f"s_mul_i32 s13, s{sG}, 160")
        a("s_add_u32 s14, s14, s13")
        a("s_mul_i32 s15, s10, 10240")
        self.wload([8])
        a("s_branch L_b_nl1d")
        a.put("L_b_nl1")
        a("v_mov_b32 v1, 0")
        a("global_load_dwordx2 v[2:3], v1, s[46:47] sc1")
        a.put("L_b_nl1d")
        a(f"s_cmp_lt_u32 s{sG}, 3")
        a("s_cbranch_scc1 L_b_P1")
        a(f"v_add_u32 v15, {KGA-KGB}, v26")
        for i in range(4):
            a(f"ds_read_b128 {v(16+4*i,4)}, v15 offset:{1024*i}")
        a(f"s_and_b32 s10, s{sW}, 3")
        a("s_mul_i32 s11, s10, 2304")
        a("s_add_u32 s11, s11, 16")
        a("v_and_b32 v45, 15, v0")
        a("v_lshrrev_b32 v46, 4, v0")
        a("v_max_u32 v47, 1, v46")
        a("v_add_u32 v47, -1, v47")
        a("v_lshrrev_b32 v47, v47, 16")
        a("v_cmp_gt_u32 vcc, 2, v46")
        a("v_cndmask_b32 v48, 8, 3, vcc")
        a("v_lshlrev_b32 v48, v48, v46")
        a("v_mad_u32_u24 v40, v45, v47, v48")
        a("v_add_u32 v40, s11, v40")
        a("v_cmp_eq_u32 vcc, 3, v46")
        a("v_cndmask_b32 v48, 2, 64, vcc")
        a("v_lshl_add_u32 v41, v48, 1, v40")
        a("v_lshl_add_u32 v42, v47, 4, v40")
        a("v_lshl_add_u32 v43, v47, 4, v41")
        a("v_lshlrev_b32 v44, 6, v45")
        a("v_lshl_add_u32 v44, v46, 3, v44")
        a("v_add_u32 v44, s11, v44")
        a("s_waitcnt lgkmcnt(0)")
        for i in range(8):
            a(f"v_pk_add_f32 {v(D+2*i,2)}, {v(D+2*i,2)}, {v(16+2*i,2)}")
        for i in range(8):
            a(f"v_cvt_pk_bf16_f32 v{32+i}, v{D+2*i}, v{D+2*i+1}")
        a(f"v_cvt_pk_bf16_f32 v49, 0, v{D+8}")
        a("s_sub_u32 s12, s11, 4")
        a("v_mov_b32 v50, s12")
        a("s_branch L_b_2")
        a.put("L_b_P1")
        a(f"s_cmp_lt_u32 s{sG}, 2")
        a("s_cbranch_scc0 L_b_2")
        a(f"s_cmp_lt_u32 s{sW}, 6")
        a("s_cbranch_scc0 L_b_2")
        for i in range(4):
            a(f"ds_read_b128 {v(16+4*i,4)}, v15 offset:{1024*i}")
        a(f"s_mul_i32 s12, s{sT}, {BLK}")
        a(f"s_and_b32 s10, s{sW}, 1")
        a("v_and_b32 v40, 31, v0")
        a("v_lshrrev_b32 v41, 5, v0")
        a("v_bfrev_b32 v44, 1")
        a("s_waitcnt lgkmcnt(0)")
        for i in range(8):
            a(f"v_pk_add_f32 {v(80+2*i,2)}, {v(80+2*i,2)}, {v(16+2*i,2)}")
        for i in range(8):
            a(f"v_cvt_pk_bf16_f32 v{32+i}, v{80+2*i}, v{80+2*i+1}")
        a(f"s_cmp_eq_u32 s{sG}, 1")
        a("s_cbranch_scc1 L_b_PV")
        a("s_lshl_b32 s13, s10, 10")
        a("s_add_u32 s13, s13, s12")
        a(f"buffer_store_dwordx4 v[32:35], v8, s[{SWS}:{SWS+3}], s13 offen sc1")
        a("v_lshlrev_b32 v42, 3, v0")
        a("v_cmp_gt_u32 vcc, 32, v0")
        a("s_lshl_b32 s13, s10, 8")
        a("v_cndmask_b32 v42, v44, v42, vcc")
        a("s_add_u32 s13, s13, s12")
        a(f"buffer_store_dwordx2 v[36:37], v42, s[{SWS}:{SWS+3}], s13 offen offset:2048 sc1")
        a("s_branch L_b_2")
        a.put("L_b_PV")
        a("v_mov_b32 v43, 0x3f803f80")
        a("v_cmp_eq_u32 vcc, 20, v40")
        a("s_mul_i32 s13, s10, 1344")
        a("s_add_u32 s13, s13, s12")
        for i in range(8):
            a(f"v_cndmask_b32 v{32+i}, v{32+i}, v43, vcc")
        a("v_mul_u32_u24 v42, 0x150, v41")
        a("v_lshl_add_u32 v42, v40, 4, v42")
        a("v_cmp_gt_u32 vcc, 21, v40")
        a("s_nop 1")
        a("v_cndmask_b32 v42, v44, v42, vcc")
        a(f"buffer_store_dwordx4 v[32:35], v42, s[{SWS}:{SWS+3}], s13 offen offset:2560 sc1")
        a(f"buffer_store_dwordx4 v[36:39], v42, s[{SWS}:{SWS+3}], s13 offen offset:3232 sc1")
        a.put("L_b_2")
        a("s_barrier")
        self.stamp(3)
        a(f"s_cmp_lt_u32 s{sW}, 6")
        a("s_cbranch_scc1 L_b_nl2")
        self.wload([12, 16])
        a.put("L_b_nl2")
        a(f"s_cmp_lt_u32 s{sG}, 3")
        a("s_cbranch_scc1 L_b_3")
        a("ds_write_b32 v40, v32")
        a("ds_write_b32 v41, v33")
        a("ds_write_b32 v42, v34")
        a("ds_write_b32 v43, v35")
        a("ds_write_b64 v44, v[36:37] offset:1024")
        a("ds_write_b64 v44, v[38:39] offset:1056")
        a("s_mov_b64 exec, 16")
        a("ds_write_b32 v50, v49")
        a("s_mov_b64 exec, -1")
        a("s_add_u32 s12, s11, 508")
        a("v_lshl_add_u32 v51, v0, 2, s12")
        a("v_lshl_add_u32 v52, v0, 3, v50")
        a("ds_read2_b32 v[54:55], v51 offset0:128 offset1:129")
        a("ds_read2_b32 v[56:57], v51 offset0:64 offset1:65")
        a("ds_read2_b32 v[58:59], v51 offset0:0 offset1:1")
        a("ds_read2_b32 v[60:61], v52 offset0:0 offset1:1")
        a("ds_read_b32 v62, v52 offset:8")
        sel = dict(cc=0x07060706, bb=0x05040504, aa=0x03020302, ba=0x03020504, cb=0x05040706)
        sreg = {}
        for i, (k, x) in enumerate(sel.items()):
            sreg[k] = 8 + i if i < 2 else 82 + i - 2
            a(f"s_mov_b32 s{sreg[k]}, {x:#x}")
        a("v_mov_b32 v63, 0x03020302")
        a("v_mov_b32 v53, 0x01000302")
        a("v_cmp_eq_u32 vcc, 0, v0")
        a("s_nop 1")
        a("v_cndmask_b32 v63, v63, v53, vcc")
        a("s_waitcnt lgkmcnt(0)")

        def perms(dst, pat, d0):
            for i, k in enumerate(pat):
                a(f"v_perm_b32 v{dst+i}, v{d0+1}, v{d0}, s{sreg[k]}")
        perms(16, ["cc", "cc", "bb", "bb", "bb", "ba", "aa", "aa"], 54)
        perms(24, ["cc", "cb", "bb", "bb", "bb", "aa", "aa", "aa"], 54)
        perms(32, ["cc", "bb", "ba", "aa"], 56)
        perms(36, ["cb", "bb", "aa", "aa"], 56)
        perms(40, ["cb", "aa"], 58)
        perms(42, ["ba"], 58)
        a("v_perm_b32 v43, v59, v58, v63")
        a(f"v_perm_b32 v44, v62, v61, s{sreg['ba']}")
        a(f"v_perm_b32 v45, v61, v60, s{sreg['ba']}")
        a("v_alignbit_b32 v46, v61, v61, 16")
        a("v_alignbit_b32 v47, v60, v60, 16")
        a(f"s_mul_i32 s11, s10, {KCS}")
        a(f"s_add_u32 s11, s11, {KC}")
        a("v_lshlrev_b32 v48, 5, v0")
        a("s_add_u32 s12, s11, 2016")
        a("v_sub_u32 v48, s12, v48")
        a("s_add_u32 s12, s11, 3056")
        a("v_sub_u32 v49, s12, v8")
        a("v_lshlrev_b32 v50, 3, v0")
        a("s_add_u32 s12, s11, 3576")
        a("v_sub_u32 v50, s12, v50")
        a("v_bfe_u32 v51, v0, 4, 1")
        a("v_mul_u32_u24 v51, 0x1040, v51")
        a("v_and_b32 v52, 15, v0")
        a("v_lshl_add_u32 v51, v52, 2, v51")
        a("v_add_u32 v51, s11, v51")
        a.put("L_b_3")
        a("s_waitcnt vmcnt(20)")
        a("s_barrier")
        self.stamp(4)
        a(f"s_cmp_lt_u32 s{sW}, 6")
        a("s_cbranch_scc0 L_b_4")
        a("s_waitcnt vmcnt(0)")
        self.get_nonce(2, 1)
        a(f"s_cmp_lt_u32 s{sG}, 2")
        a("s_cbranch_scc0 L_b_4")
        a(f"s_lshl_b32 s12, s{sT}, 7")
        a(f"s_lshl_b32 s13, s{sG}, 4")
        a("s_add_u32 s12, s12, s13")
        a("s_lshl_b32 s13, s10, 3")
        a("s_add_u32 s12, s12, s13")
        a(f"s_add_u32 s12, s12, {FLG_KV}")
        a("s_mov_b64 exec, 1")
        a(f"buffer_store_dwordx2 v[2:3], v1, s[{SWS}:{SWS+3}], s12 offen sc1")
        a("s_mov_b64 exec, -1")
        self.stamp(8)
        a.put("L_b_4")
        a("s_waitcnt vmcnt(10)")
        a("s_barrier")
        self.stamp(5)
        a(f"s_cmp_lt_u32 s{sW}, 6")
        a("s_cbranch_scc1 L_b_5")
        a("s_waitcnt vmcnt(0)")
        a.put("L_b_5")
        a("s_barrier")
        self.stamp(6)
        a("v_mov_b32 v52, 0")
        a(f"v_mov_b32 v53, {CNT}")
        a("ds_write_b32 v53, v52")
        a(f"s_cmp_lt_u32 s{sG}, 3")
        a("s_cbranch_scc1 L_b_6")
        a("ds_write_b128 v48, v[16:19]")
        a("ds_write_b128 v48, v[20:23] offset:16")
        a("ds_write_b128 v48, v[24:27] offset:4160")
        a("ds_write_b128 v48, v[28:31] offset:4176")
        a("ds_write_b128 v49, v[32:35]")
        a("ds_write_b128 v49, v[36:39] offset:4160")
        a("ds_write_b64 v50, v[40:41]")
        a("ds_write_b64 v50, v[42:43] offset:4160")
        a("ds_write_b64 v50, v[44:45] offset:512")
        a("ds_write_b64 v50, v[46:47] offset:4672")
        a("ds_write_b32 v51, v52 offset:4096")
        a.put("L_b_6")
        a(f"s_cmp_eq_u32 s{sW}, 4")
        a("s_cbranch_scc0 L_b_7")
        a("v_lshrrev_b32 v4, 1, v0")
        a("v_lshlrev_b32 v4, 7, v4")
        a("v_and_b32 v5, 1, v0")
        a("v_lshl_add_u32 v4, v5, 4, v4")
        a(f"s_mov_b32 s12, {FLG_KV}")
        a("s_mov_b32 s82, 0")
        a.put("L_pkv")
        a(f"buffer_load_dwordx4 v[56:59], v4, s[{SWS}:{SWS+3}], s12 offen sc1")
        a("s_add_u32 s82, s82, 1")
        a("s_waitcnt vmcnt(0)")
        a(f"v_cmp_eq_u64 vcc, s[{sN}:{sN+1}], v[56:57]")
        a(f"v_cmp_eq_u64 s[84:85], s[{sN}:{sN+1}], v[58:59]")
        a("s_nop 0")
        a("s_and_b64 vcc, vcc, s[84:85]")
        a("s_cmp_eq_u64 vcc, -1")
        a("s_cbranch_scc1 L_b_7")
        a("s_cmp_gt_u32 s82, 20000")
        a("s_cbranch_scc1 L_b_7")
        a("s_sleep 2")
        a("s_branch L_pkv")
        a.put("L_b_7")
        a(f"s_and_b32 s10, s{sW}, 3")
        a("s_mul_i32 s13, s10, 2560")
        a(f"s_add_u32 s13, s13, {QP}")
        a("v_add_u32 v9, s13, v8")
        a("v_lshl_add_u32 v10, v0, 3, s13")
        a("s_waitcnt lgkmcnt(0)")
        a("s_barrier")
        self.stamp(7)
        a("ds_read_b128 v[112:115], v9")
        a("ds_read_b128 v[116:119], v9 offset:1024")
        a("ds_read_b64 v[120:121], v10 offset:2048")

    def kvdma(self, c, i):
        if i < 0:
            lab = self.a.label("Lx")
            return [f"s_cmp_eq_u32 s{sW}, 0", f"s_cbranch_scc0 {lab}",
                    f"s_mov_b32 m0, {SLOT*(c%3)+40960}", f"s_mov_b32 s12, {SLOT*c+40960}",
                    f"buffer_load_dwordx4 v8, s[{SWS}:{SWS+3}], s12 offen sc1 lds", lab + ":"]
        return [f"s_add_u32 m0, s51, {SLOT*(c%3)+8192*i}", f"s_add_u32 s12, s51, {SLOT*c+8192*i}",
                f"buffer_load_dwordx4 v8, s[{SWS}:{SWS+3}], s12 offen sc1 lds"]

    def attention(self, isB):
        a = self.a
        S = (16, 48)
        O0, O1, QA, QB, Q4, K4, K16 = 80, 96, 112, 116, 120, 122, 124
        V = (128, 136)
        IDX, AK16, AK4, AV = 144, 145, 148, 151
        URAW, UTR = 160, 176
        UOFF, USW, USR, UTW, UTZ = 155, 156, 157, 158, 159
        a(f"s_lshl_b32 s51, s{sW}, 10")
        for c, i in [(0, -1), (1, -1)] + [(0, i) for i in range(5)] + [(1, i) for i in range(5)]:
            for ln in self.kvdma(c, i):
                a(ln)
        kh = BLK if isB else 0
        a(f"v_add_u32 v{AK16}, {kh}, v8" if kh else f"v_mov_b32 v{AK16}, v8")
        a(f"v_lshlrev_b32 v{AK4}, 3, v0")
        a(f"v_add_u32 v{AK4}, {kh+2048}, v{AK4}")
        a("v_and_b32 v1, 31, v0")
        a("v_min_u32 v2, 20, v1")
        a("v_cmp_lt_u32 vcc, 27, v1")
        a("v_lshrrev_b32 v3, 5, v0")
        a("v_cndmask_b32 v2, v2, 4, vcc")
        a("v_mul_u32_u24 v3, 0x150, v3")
        a("v_lshl_add_u32 v2, v2, 4, v3")
        a(f"v_add_u32 v{AV}, {kh+2560}, v2")
        for r in (AK16, AK4, AV):
            a(f"v_add_u32 v{r+1}, {SLOT}, v{r}")
            a(f"v_add_u32 v{r+2}, {2*SLOT}, v{r}")
        a(f"v_mov_b32 v{IDX}, 0xdddddddd")
        for r in range(32):
            a(f"v_mov_b32 v{O0+r}, 0")
        if isB:
            a(f"s_and_b32 s10, s{sW}, 3")
            a("s_mul_i32 s11, s10, 655360")
            a(f"s_lshl_b32 s12, s{sD0}, 1")
            a("s_add_u32 s11, s11, s12")
            a(f"s_cmp_lt_u32 s{sG}, 3")
            a("s_cselect_b32 s11, 0x80000000, s11")
            a("s_movk_i32 s12, 1280")
            a("v_mov_b32 v1, s11")
            a(f"v_mad_u32_u24 v{UOFF}, v0, s12, v1")
            a("s_lshl_b32 s11, s10, 9")
            a(f"s_add_u32 s11, s11, {USCR}")
            a(f"v_lshl_add_u32 v{USW}, v0, 3, s11")
            a("v_and_b32 v1, 48, v0")
            a("v_and_b32 v2, 3, v0")
            a("v_lshl_add_u32 v1, v2, 2, v1")
            a("v_bfe_u32 v3, v0, 2, 2")
            a("v_add_u32 v1, v1, v3")
            a(f"v_lshl_add_u32 v{USR}, v1, 3, s11")
            a("s_lshl_b32 s11, s10, 10")
            a(f"s_add_u32 s11, s11, {UT+480}")
            a("v_lshrrev_b32 v1, 2, v0")
            a("v_lshl_add_u32 v1, v1, 3, s11")
            a(f"s_movk_i32 s12, {UTS}")
            a(f"v_mad_u32_u24 v{UTW}, v2, s12, v1")
            a(f"s_mul_i32 s11, s10, {UTS}")
            a(f"s_add_u32 s11, s11, {UT}")
            a("v_min_u32 v1, 59, v0")
            a(f"v_lshl_add_u32 v{UTZ}, v1, 3, s11")
            a("v_mov_b32 v4, 0")
            a("v_mov_b32 v5, 0")
        a("s_waitcnt vmcnt(5) lgkmcnt(0)")
        a("s_barrier")
        self.stamp(9)
        self.stop_at("e0")
        lg = LG(a, "lgkmcnt", 15)

        def loc(m):
            c = m >> 3
            return c % 3, 2 * BLK * ((m >> 1) & 3), m & 1

        def rdK16(m):
            sl, off, aa = loc(m)
            a(f"ds_read_b128 {v(K16,4)}, v{AK16+sl} offset:{off+1024*aa}")
            lg.issue(("K16", m))

        def rdK4(m):
            sl, off, aa = loc(m)
            a(f"ds_read_b64 {v(K4,2)}, v{AK4+sl} offset:{off}")
            lg.issue(("K4", m))

        def rdV(m, f):
            sl, off, aa = loc(m)
            a(f"ds_read_b128 {v(V[m&1]+4*f,4)}, v{AV+sl} offset:{off+672*(2*aa+f)}")
            lg.issue(("V", m, f))

        def pv(O, B, Vr):
            a(f"v_smfmac_f32_32x32x32_bf16 {v(O,16)}, {v(Vr,4)}, {v(B,8)}, v{IDX}")

        def qk4(m, dst):
            a(f"v_mfma_f32_32x32x4_2b_bf16 {v(dst,32)}, {v(K4,2)}, {v(Q4,2)}, 0 cbsz:1 abid:{m&1}")

        def qk16(dst, Q):
            a(f"v_mfma_f32_32x32x16_bf16 {v(dst,16)}, {v(K16,4)}, {v(Q,4)}, {v(dst,16)}")
        rdK4(0)
        rdK16(0)
        rdV(0, 0)
        rdV(0, 1)
        lg.wait(("K16", 0))
        qk4(0, S[0])
        a.nop(18)
        qk16(S[0], QA)
        qk16(S[0] + 16, QB)
        rdK16(1)
        lg.wait(("V", 0, 1))
        a.nop(10)
        hk = {}

        def hook(n, pos, lines):
            hk.setdefault((n, pos), []).extend(lines)
        hook(0, "a2", self.kvdma(2, -1))
        for i in range(5):
            hook(i, "a5", self.kvdma(2, i))
        hook(7, "a2", self.kvdma(3, -1))
        for i in range(5):
            hook(7 + i, "a5", self.kvdma(3, i))
        bars = {2: "vmcnt(3)", 6: "vmcnt(0)", 14: "vmcnt(0)", 22: None, 30: None}
        dsx = {}
        if isB:
            for i in range(8):
                hook(15 + i, "a2", [f"s_mov_b32 s12, {81920*i}",
                                    f"buffer_load_dwordx2 {v(URAW+2*i,2)}, v{UOFF}, s[{SU}:{SU+3}], s12 offen"])
            hook(25, "a1w", ["s_waitcnt vmcnt(0)"])
            dsx[(24, "a1")] = [f"ds_write_b64 v{UTZ}, v[4:5]"]
            for k in range(4):
                for e, pos in ((0, "a1"), (1, "a3")):
                    i = 2 * k + e
                    dsx.setdefault((25 + k, pos), []).extend(
                        [f"ds_write_b64 v{USW}, {v(URAW+2*i,2)}", f"ds_read_b64_tr_b16 {v(UTR+2*i,2)}, v{USR}"])
                    dsx.setdefault((26 + k, "a2" if e == 0 else "a5"), []).append(
                        f"ds_write_b64 v{UTW}, {v(UTR+2*i,2)} offset:{128*i}")
        prio = {}
        for st, en in ((0, 2), (3, 6), (7, 14), (15, 22), (23, 30)):
            ln = en - st + 1
            for n in range(st, en + 1):
                prio[n] = 3 - (n - st) * 4 // max(ln, 4) if ln >= 4 else 3 - (n - st)
        prio[31] = 3

        def run(n, pos):
            for ln in hk.get((n, pos), []):
                a(ln)
            for ln in dsx.get((n, pos), []):
                a(ln)
                lg.issue("x")
        a(f"s_setprio {prio[0]}")
        for n in range(32):
            cur, nxt = S[n & 1], S[(n + 1) & 1]
            Vc, Vp = V[n & 1], V[(n + 1) & 1]
            e = lambda lo, hi: [a(f"v_exp_f32 v{cur+i}, v{cur+i}") for i in range(lo, hi + 1)]
            e(0, 1)
            if n > 0:
                pv(O1, nxt + 24, Vp + 4)
            run(n, "a1w")
            if n < 31:
                rdV(n + 1, 0)
            run(n, "a1")
            e(2, 5)
            if n < 31:
                qk4(n + 1, nxt)
            run(n, "a2")
            e(6, 13)
            pv(O0, cur, Vc)
            if n < 31:
                rdV(n + 1, 1)
            run(n, "a3")
            e(14, 17)
            pv(O0, cur + 8, Vc + 4)
            if n < 31:
                lg.wait(("K16", n + 1))
            if n % 2 == 0 and n + 2 < 32:
                rdK4(n + 2)
            e(18, 21)
            if n < 31:
                qk16(nxt, QA)
            run(n, "a5")
            e(22, 25)
            if n < 31:
                qk16(nxt + 16, QB)
            last = len(lg.q)
            if n + 2 < 32:
                rdK16(n + 2)
            if n < 31 and prio[n + 1] != prio[n] and n not in bars:
                a(f"s_setprio {prio[n+1]}")
            e(26, 29)
            pv(O1, cur + 16, Vc)
            if n < 31:
                cnt = len(lg.q) - last
                w = f"lgkmcnt({cnt})"
                lg.q = lg.q[last:]
                if n in bars and bars[n]:
                    w = bars[n] + " " + w
                a(f"s_waitcnt {w}")
                if n in bars:
                    a("s_barrier")
                    a(f"s_setprio {prio[n+1]}")
            e(30, 31)
        a("s_nop 1")
        pv(O1, S[1] + 24, V[1] + 4)
        self.stamp(10)

    def tailB(self):
        a = self.a
        URAW, TS = 160, 192
        a(f"s_and_b32 s10, s{sW}, 3")
        a("s_mul_i32 s11, s10, 25600")
        a("v_add_u32 v9, s11, v8")
        a.nop(8)
        for i in range(3):
            a(f"ds_write_b128 v9, {v(80+4*i,4)} offset:{1024*i}")
        a.nop(2)
        for i in range(3):
            a(f"ds_write_b128 v9, {v(96+4*i,4)} offset:{3072+1024*i}")
        a("s_waitcnt lgkmcnt(0)")
        a("s_barrier")
        self.stop_at("t1")
        a(f"s_cmp_lt_u32 s{sG}, 3")
        a("s_cbranch_scc1 L_fin")
        a("s_setprio 0")
        a(f"s_lshl_b32 s12, s{sD0}, 1")
        a("s_load_dwordx2 s[14:15], s[42:43], s12")
        a(f"s_mul_i32 s11, s10, {KCS}")
        a(f"s_add_u32 s11, s11, {KC}")
        a("v_and_b32 v10, 15, v0")
        a("v_lshrrev_b32 v11, 4, v0")
        a("v_sub_u32 v12, 0x7ef, v10")
        a("v_lshrrev_b32 v12, 1, v12")
        a("v_lshl_add_u32 v12, v11, 2, v12")
        a("v_lshlrev_b32 v12, 2, v12")
        a("v_and_b32 v13, 1, v0")
        a("v_xor_b32 v13, 1, v13")
        a("v_mul_u32_u24 v13, 0x1040, v13")
        a("s_sub_u32 s12, s11, 960")
        a("v_add3_u32 v2, v12, v13, s12")
        for b in range(1, 4):
            a(f"v_subrev_u32 v{2+b}, {1024*b}, v2")
        a("v_lshlrev_b32 v12, 5, v10")
        a(f"s_mul_i32 s12, s10, {UTS}")
        a(f"s_add_u32 s12, s12, {UT}")
        a("v_lshl_add_u32 v13, v11, 4, v12")
        a("v_add_u32 v6, s12, v13")
        a("s_lshr_b32 s12, s10, 1")
        a("s_lshl_b32 s12, s12, 6")
        a("s_add_u32 s12, s12, s11")
        a("v_lshl_add_u32 v13, v11, 3, v12")
        a("v_add_u32 v7, s12, v13")
        ACC = 224
        lg = LG(a, "lgkmcnt", 15)

        def reads(r):
            base = 16 + 64 * (r & 1)
            out = []
            for k in range(8):
                sidx = 8 * k + r
                o = 16 * (15 - (sidx & 15))
                A = base + 4 * k
                out.append(f"ds_read2_b32 {v(A,2)}, v{2+(sidx>>4)} offset0:{o} offset1:{o+1}")
                out.append(f"ds_read2_b32 {v(A+2,2)}, v{2+(sidx>>4)} offset0:{o+2} offset1:{o+3}")
                e = 8 * k - r
                out.append(f"ds_read_b128 {v(base+32+4*k,4)}, v6 offset:{64*(e+7)}")
            return out
        a("s_waitcnt lgkmcnt(0)")
        a("s_lshl_b32 s8, s14, 16")
        a("s_and_b32 s9, s14, 0xffff0000")
        a("s_lshl_b32 s14, s15, 16")
        a("s_and_b32 s15, s15, 0xffff0000")
        a("s_mov_b32 s13, 0xffff0000")
        extra = []
        for i in range(8):
            for hh, sp in ((0, "s[8:9]"), (1, "s[14:15]")):
                t = TS + 4 * i + 2 * hh
                u = URAW + 2 * i + hh
                extra.append([f"v_lshlrev_b32 v{t}, 16, v{u}", f"v_and_b32 v{t+1}, s13, v{u}",
                              f"v_pk_mul_f32 {v(t,2)}, {v(t,2)}, {sp}",
                              f"v_cvt_pk_bf16_f32 v{t+1}, v{t}, v{t+1}",
                              f"v_lshlrev_b32 v{t}, 16, v{t+1}", f"v_and_b32 v{t+1}, s13, v{t+1}"])
        extra = [x for grp in extra for x in grp]
        for ln in reads(0):
            a(ln)
        a("s_waitcnt lgkmcnt(0)")
        for r in range(8):
            base = 16 + 64 * (r & 1)
            nxt = reads(r + 1) if r < 7 else []
            cnt = 0
            for sg in range(8):
                for i in range(sg, 8):
                    first = r == 0 and sg == 0
                    c = "0" if first else v(ACC + 4 * i, 4)
                    a(f"v_mfma_f32_16x16x32_bf16 {v(ACC+4*i,4)}, {v(base+4*sg,4)}, {v(base+32+4*(i-sg),4)}, {c}")
                    if nxt:
                        a(nxt.pop(0))
                    elif extra:
                        a(extra.pop(0))
                    cnt += 1
            if r < 7:
                a("s_waitcnt lgkmcnt(0)")
        while extra:
            a(extra.pop(0))
        a("v_bfe_u32 v12, v0, 2, 2")
        a(f"s_movk_i32 s12, {KCS}")
        a("v_lshrrev_b32 v13, 1, v12")
        a("v_lshlrev_b32 v13, 6, v13")
        a("v_mad_u32_u24 v13, v12, s12, v13")
        a("v_lshl_add_u32 v13, v11, 5, v13")
        a("v_and_b32 v12, 3, v0")
        a("v_lshl_add_u32 v13, v12, 3, v13")
        a("s_lshl_b32 s12, s10, 10")
        a(f"s_add_u32 s12, s12, {KC}")
        a("v_add_u32 v14, s12, v13")
        a("s_mul_i32 s11, s10, 1310720")
        a(f"s_lshl_b32 s12, s{sD0}, 1")
        a("s_add_u32 s11, s11, s12")
        a("s_add_u32 s11, s11, 1280")
        a("s_movk_i32 s12, 2560")
        a("v_mov_b32 v15, s11")
        a("v_mad_u32_u24 v15, v0, s12, v15")
        for i in range(8):
            a(f"v_cvt_pk_bf16_f32 v{16+2*i}, v{ACC+4*i}, v{ACC+4*i+1}")
            a(f"v_cvt_pk_bf16_f32 v{17+2*i}, v{ACC+4*i+2}, v{ACC+4*i+3}")
            a(f"ds_write_b64 v7, {v(16+2*i,2)} offset:{512*i}")
        a("s_waitcnt lgkmcnt(0)")
        self.stamp(11)
        a("s_barrier")
        for i in range(8):
            a(f"ds_read_b64_tr_b16 {v(32+2*i,2)}, v14 offset:{128*i}")
        for i in range(8):
            a(f"s_waitcnt lgkmcnt({7-i})")
            y = 48 + 4 * i
            for hh in range(2):
                a(f"v_lshlrev_b32 v{y+2*hh}, 16, v{32+2*i+hh}")
                a(f"v_and_b32 v{y+2*hh+1}, s13, v{32+2*i+hh}")
            for hh in range(2):
                a(f"v_pk_add_f32 {v(y+2*hh,2)}, {v(y+2*hh,2)}, {v(TS+4*i+2*hh,2)}")
            a(f"v_cvt_pk_bf16_f32 v{y}, v{y}, v{y+1}")
            a(f"v_cvt_pk_bf16_f32 v{y+1}, v{y+2}, v{y+3}")
            a(f"s_mov_b32 s12, {163840*i}")
            a(f"buffer_store_dwordx2 {v(y,2)}, v15, s[{SOUT}:{SOUT+3}], s12 offen")
        a("s_branch L_fin")

    def tailA(self):
        a = self.a
        O = (80, 96)
        a(f"s_mul_i32 s11, s{sW}, 25600")
        a("v_add_u32 v9, s11, v8")
        self.wvoff(2, False, t0=160)
        a("s_barrier")
        self.stop_at("t1")
        for i in range(6):
            a(f"ds_read_b128 {v(16+4*i,4)}, v9 offset:{1024*i}")
        a("v_and_b32 v12, 15, v0")
        a("v_lshlrev_b32 v12, 4, v12")
        a("s_movk_i32 s12, 20480")
        a("v_lshrrev_b32 v13, 4, v0")
        a("v_mad_u32_u24 v11, v13, s12, v12")
        a("v_and_b32 v13, 1, v13")
        a("v_mad_u32_u24 v10, v13, s12, v12")
        a("v_lshrrev_b32 v13, 5, v0")
        a("v_lshl_add_u32 v10, v13, 8, v10")
        a(f"s_mul_i32 s14, s{sT}, 81920")
        a(f"s_add_u32 s14, s14, {OIMG}")
        a(f"s_mul_i32 s15, s{sG}, 2560")
        a("s_add_u32 s15, s15, s14")
        a("s_waitcnt lgkmcnt(0)")
        for T in range(2):
            for i in range(6):
                a(f"v_pk_add_f32 {v(O[T]+2*i,2)}, {v(O[T]+2*i,2)}, {v(16+12*T+2*i,2)}")
        a("s_mov_b32 s13, 0")
        a.put("L_lext")
        for T in range(2):
            a(f"v_mov_b32 v{16+2*T}, v{O[T]+8}")
            a(f"v_mov_b32 v{17+2*T}, v{O[T]+8}")
        a("v_mov_b32 v20, 0")
        a("v_mov_b32 v21, 0")
        a("v_permlane32_swap_b32 v16, v17")
        a("v_permlane32_swap_b32 v18, v19")
        for T in range(2):
            for i in range(6):
                a(f"v_pk_fma_f32 v[20:21], {v(O[T]+2*i,2)}, 0, v[20:21] op_sel_hi:[1,0,1]")
        a("v_rcp_f32 v22, v17")
        a("v_rcp_f32 v24, v19")
        a("s_cmp_eq_u32 s13, 1")
        a("s_cbranch_scc1 L_norm")
        a("v_add_f32 v20, v20, v21")
        a("v_min_f32 v16, v17, v19")
        a("v_max_f32 v18, v17, v19")
        a("v_add_f32 v16, v16, v20")
        a(f"s_mov_b32 s12, {f2u(2.0**48):#x}")
        a(f"v_cmp_le_f32 vcc, {f2u(2.0**-24):#x}, v16")
        a("v_cmp_ge_f32 s[84:85], s12, v18")
        a("s_nop 0")
        a("s_and_b64 vcc, vcc, s[84:85]")
        a("s_cmp_eq_u64 vcc, -1")
        a("s_branch L_slow" if self.force_slow else "s_cbranch_scc0 L_slow")
        a.put("L_norm")
        a("s_nop 0")
        for T in range(2):
            for i in range(6):
                a(f"v_pk_mul_f32 {v(O[T]+2*i,2)}, {v(O[T]+2*i,2)}, {v(22+2*T,2)} op_sel_hi:[1,0]")
        for T in range(2):
            for q in range(4):
                a(f"v_cvt_pk_bf16_f32 v{28+4*T+q}, v{O[T]+2*q}, v{O[T]+2*q+1}")
            for q in range(2):
                a(f"v_cvt_pk_bf16_f32 v{36+2*T+q}, v{O[T]+8+2*q}, v{O[T]+9+2*q}")
        a(f"s_lshl_b32 s12, s{sW}, 9")
        a("s_add_u32 s12, s12, s15")
        a(f"buffer_store_dwordx4 v[28:31], v10, s[{SWS}:{SWS+3}], s12 offen sc1")
        a("s_add_u32 s12, s12, 40960")
        a("v_permlane32_swap_b32 v36, v38")
        a("v_permlane32_swap_b32 v37, v39")
        a(f"buffer_store_dwordx4 v[32:35], v10, s[{SWS}:{SWS+3}], s12 offen sc1")
        a(f"s_and_b32 s12, s{sW}, 1")
        a("s_lshl_b32 s12, s12, 8")
        a(f"s_lshr_b32 s13, s{sW}, 1")
        a("s_lshl3_add_u32 s12, s13, s12")
        a("s_add_u32 s12, s12, s15")
        a(f"buffer_store_dwordx2 v[36:37], v11, s[{SWS}:{SWS+3}], s12 offen offset:2048 sc1")
        a(f"s_mul_i32 s12, s{sW}, 204800")
        a(f"s_mul_i32 s13, s{sG}, 160")
        a("s_add_u32 s12, s12, s13")
        a("s_mov_b32 m0, s11")
        for gi in range(5):
            for i in range(5):
                a("s_nop 0")
                a(f"buffer_load_dwordx4 v{2+i}, s[{SWO}:{SWO+3}], s12 offen lds")
                a("s_add_u32 m0, m0, 1024")
                if gi == 1 and i == 4:
                    a(f"v_mov_b32 v12, {CNT}")
                    a("v_mov_b32 v13, 1")
                    a("s_waitcnt vmcnt(10)")
                    self.stamp(11)
                    a("s_mov_b64 exec, 1")
                    a("ds_add_rtn_u32 v14, v12, v13")
                    a("s_waitcnt lgkmcnt(0)")
                    a("v_readfirstlane_b32 s13, v14")
                    a(f"s_lshl_b32 s10, s{sT}, 7")
                    a(f"s_add_u32 s10, s10, {FLG_O}")
                    a("s_cmp_eq_u32 s13, 3")
                    a("s_cbranch_scc0 L_noflag")
                    a(f"v_mov_b32 v12, s{sN}")
                    a(f"v_mov_b32 v13, s{sN+1}")
                    a(f"s_lshl_b32 s13, s{sG}, 3")
                    a("v_mov_b32 v14, s13")
                    a(f"buffer_store_dwordx2 v[12:13], v14, s[{SWS}:{SWS+3}], s10 offen sc1")
                    a.put("L_noflag")
                    a("s_mov_b64 exec, -1")
            a("s_add_u32 s12, s12, 40960")
        AD = 240
        a("v_lshrrev_b32 v16, 4, v0")
        a("v_bfe_u32 v17, v0, 2, 2")
        a("v_and_b32 v18, 3, v0")
        a("v_lshlrev_b32 v18, 3, v18")
        a("s_movk_i32 s13, 0xa0")
        a("v_mad_u32_u24 v17, v17, s13, v18")
        for m in range(5):
            a(f"v_add_u32 v19, {4*m}, v16")
            a("v_cmp_lt_u32 vcc, 9, v19")
            a("v_add_u32 v20, -10, v19")
            a("s_nop 0")
            a("v_cndmask_b32 v19, v19, v20, vcc")
            a("v_cndmask_b32 v20, 0, 20, vcc")
            a("v_lshrrev_b32 v21, 1, v19")
            a("v_mul_u32_u24 v21, 5, v21")
            a("v_and_b32 v22, 1, v19")
            a("v_add_u32 v21, v21, v22")
            a("v_mul_u32_u24 v22, 5, v22")
            a("v_add_u32 v22, 4, v22")
            a("v_cmp_gt_u32 vcc, 8, v19")
            a("s_movk_i32 s13, 640")
            a("s_nop 0")
            a("v_cndmask_b32 v21, v22, v21, vcc")
            a("v_cndmask_b32 v22, 10, 2, vcc")
            a("v_add_u32 v21, v21, v20")
            a(f"v_mad_u32_u24 v{AD+2*m}, v21, s13, v17")
            a(f"v_mad_u32_u24 v{AD+2*m+1}, v22, s13, v{AD+2*m}")
        a("v_and_b32 v18, 15, v0")
        a("s_movk_i32 s13, 2560")
        a("v_lshlrev_b32 v16, 3, v16")
        a("v_mad_u32_u24 v7, v18, s13, v16")
        a("v_and_b32 v14, 7, v0")
        a("v_lshlrev_b32 v14, 3, v14")
        a("s_mov_b32 s82, 0")
        a.put("L_po")
        a(f"buffer_load_dwordx2 v[12:13], v14, s[{SWS}:{SWS+3}], s10 offen sc1")
        a("s_add_u32 s82, s82, 1")
        a("s_waitcnt vmcnt(0)")
        a(f"v_cmp_eq_u64 vcc, s[{sN}:{sN+1}], v[12:13]")
        a("s_nop 0")
        a("s_cmp_eq_u64 vcc, -1")
        a("s_cbranch_scc1 L_pod")
        a("s_cmp_gt_u32 s82, 20000")
        a("s_cbranch_scc1 L_pod")
        a("s_sleep 2")
        a("s_branch L_po")
        a.put("L_pod")
        self.stamp(8)
        OF = 16
        a(f"s_mul_i32 s12, s{sW}, 20480")
        a("s_add_u32 s12, s12, s14")
        for ks in range(20):
            a(f"buffer_load_dwordx4 {v(OF+4*ks,4)}, v8, s[{SWS}:{SWS+3}], s12 offen offset:{1024*(ks%4)} sc1")
            if ks % 4 == 3:
                a("s_add_u32 s12, s12, 4096")
        a("s_barrier")
        self.stamp(1)
        ACC, TR = 96, 120
        lg = LG(a, "lgkmcnt", 15)
        seq = [(ks, ct) for ks in range(20) for ct in range(5)]

        def issue(n):
            ks, ct = seq[n]
            if ks == 10 and ct == 0:
                for k in range(10):
                    a(f"v_add_u32 v{AD+k}, 51200, v{AD+k}")
            F = TR + 4 * (n % 8)
            off = 25600 * ((ks // 5) % 2) + 32 * ct
            m = ks % 5
            a(f"ds_read_b64_tr_b16 {v(F,2)}, v{AD+2*m} offset:{off}")
            a(f"ds_read_b64_tr_b16 {v(F+2,2)}, v{AD+2*m+1} offset:{off}")
            lg.issue(n)
            lg.issue(n)
        for n in range(7):
            issue(n)
        for n in range(100):
            ks, ct = seq[n]
            w = lg.waitstr(n)
            if ct == 0:
                w = f"vmcnt({19-ks}) " + w
            a(f"s_waitcnt {w}")
            F = TR + 4 * (n % 8)
            c = "0" if ks == 0 else v(ACC + 4 * ct, 4)
            a(f"v_mfma_f32_16x16x32_bf16 {v(ACC+4*ct,4)}, {v(F,4)}, {v(OF+4*ks,4)}, {c}")
            if n + 7 < 100:
                issue(n + 7)
        a(f"s_lshl_b32 s12, s{sT}, 6")
        a(f"s_lshl4_add_u32 s12, s{sW}, s12")
        a("s_mul_i32 s12, s12, 2560")
        a(f"s_mul_i32 s13, s{sG}, 160")
        a("s_add_u32 s12, s12, s13")
        a.nop(2)
        for ct in range(5):
            if ct == 4:
                a.nop(2)
            a(f"v_cvt_pk_bf16_f32 v{16+2*ct}, v{ACC+4*ct}, v{ACC+4*ct+1}")
            a(f"v_cvt_pk_bf16_f32 v{17+2*ct}, v{ACC+4*ct+2}, v{ACC+4*ct+3}")
            a(f"buffer_store_dwordx2 {v(16+2*ct,2)}, v7, s[{SOUT}:{SOUT+3}], s12 offen offset:{32*ct}")
        a("s_branch L_fin")

    def slow(self):
        a = self.a
        S0, O0, O1, QA, QB, Q4, K4, K16, V, IDX, AV = 16, 80, 96, 112, 116, 120, 122, 124, 128, 144, 151
        M0, M1 = 60, 61
        a.put("L_slow")
        a("v_and_b32 v62, 31, v0")
        a("v_lshlrev_b32 v62, 3, v62")
        a(f"v_mov_b32 v{M0}, 0xff800000")
        a(f"v_mov_b32 v{M1}, 0xff800000")
        for ps in range(2):
            if ps == 1:
                for M, t in ((M0, 63), (M1, 64)):
                    a(f"v_mov_b32 v{t}, v{M}")
                a("s_nop 1")
                a(f"v_permlane32_swap_b32 v{M0}, v63")
                a(f"v_permlane32_swap_b32 v{M1}, v64")
                a("s_nop 1")
                a(f"v_max_f32 v{M0}, v{M0}, v63")
                a(f"v_max_f32 v{M1}, v{M1}, v64")
                for r in range(32):
                    a(f"v_mov_b32 v{O0+r}, 0")
            a("s_mov_b32 s8, 0")
            a.put(f"L_sl{ps}")
            a("s_lshr_b32 s9, s8, 1")
            a(f"s_mul_i32 s9, s9, {BLK}")
            a("s_and_b32 s10, s8, 1")
            a("s_lshl_b32 s12, s10, 10")
            a("s_add_u32 s12, s12, s9")
            a(f"buffer_load_dwordx4 {v(K16,4)}, v8, s[{SWS}:{SWS+3}], s12 offen sc1")
            a("s_lshl_b32 s12, s10, 8")
            a("s_add_u32 s12, s12, s9")
            a(f"buffer_load_dwordx2 {v(K4,2)}, v62, s[{SWS}:{SWS+3}], s12 offen offset:2048 sc1")
            if ps == 1:
                a("s_mul_i32 s12, s10, 1344")
                a("s_add_u32 s12, s12, s9")
                a(f"buffer_load_dwordx4 {v(V,4)}, v{AV}, s[{SWS}:{SWS+3}], s12 offen sc1")
                a(f"buffer_load_dwordx4 {v(V+4,4)}, v{AV}, s[{SWS}:{SWS+3}], s12 offen offset:672 sc1")
            a("s_waitcnt vmcnt(0)")
            a(f"v_mfma_f32_32x32x4_2b_bf16 {v(S0,32)}, {v(K4,2)}, {v(Q4,2)}, 0 cbsz:1 abid:0")
            a.nop(18)
            a(f"v_mfma_f32_32x32x16_bf16 {v(S0,16)}, {v(K16,4)}, {v(QA,4)}, {v(S0,16)}")
            a(f"v_mfma_f32_32x32x16_bf16 {v(S0+16,16)}, {v(K16,4)}, {v(QB,4)}, {v(S0+16,16)}")
            a.nop(14)
            if ps == 0:
                for T, M in ((0, M0), (1, M1)):
                    for r in range(0, 16, 2):
                        a(f"v_max3_f32 v{M}, v{S0+16*T+r}, v{S0+16*T+r+1}, v{M}")
            else:
                for T, M in ((0, M0), (1, M1)):
                    for r in range(16):
                        a(f"v_sub_f32 v{S0+16*T+r}, v{S0+16*T+r}, v{M}")
                for r in range(32):
                    a(f"v_exp_f32 v{S0+r}, v{S0+r}")
                a("s_nop 1")
                for T, O in ((0, O0), (1, O1)):
                    for f in range(2):
                        a(f"v_smfmac_f32_32x32x32_bf16 {v(O,16)}, {v(V+4*f,4)}, {v(S0+16*T+8*f,8)}, v{IDX}")
                a.nop(14)
            a("s_add_u32 s8, s8, 1")
            a("s_cmp_lt_u32 s8, 64")
            a(f"s_cbranch_scc1 L_sl{ps}")
        a("s_mov_b32 s13, 1")
        a("s_branch L_lext")

    def dump(self):
        a = self.a
        a.put("L_dump")
        a("s_waitcnt vmcnt(0) lgkmcnt(0)")
        a("s_barrier")
        a(f"s_lshl_b32 s10, s{sW}, 10")
        a("v_lshl_add_u32 v250, v0, 4, s10")
        a(f"s_mul_i32 s11, s2, {LDS_BYTES}")
        a(f"s_add_u32 s11, s11, {DBG}")
        a("v_mov_b32 v251, v250")
        for i in range(20):
            a("ds_read_b128 v[252:255], v251")
            a("s_waitcnt lgkmcnt(0)")
            a(f"buffer_store_dwordx4 v[252:255], v250, s[{SWS}:{SWS+3}], s11 offen")
            a("s_waitcnt vmcnt(0)")
            a("v_add_u32 v251, 0x2000, v251")
            a("s_add_u32 s11, s11, 0x2000")
        if self.dump_regs:
            lo, n = self.dump_regs
            a(f"s_lshl_b32 s10, s2, 3")
            a(f"s_add_u32 s10, s10, s{sW}")
            a(f"s_mul_i32 s10, s10, {256*n}")
            a(f"s_add_u32 s10, s10, {DBG + 256*LDS_BYTES}")
            a("v_lshlrev_b32 v250, 2, v0")
            for i in range(n):
                a(f"buffer_store_dword v{lo+i}, v250, s[{SWS}:{SWS+3}], s10 offen")
                a("s_add_u32 s10, s10, 256")
            a("s_waitcnt vmcnt(0)")
        a("s_endpgm")

    def build(self):
        a = self.a
        self.prologue()
        a(f"s_cmp_lt_u32 s{sG}, 3")
        a("s_cbranch_scc1 L_P")
        self.kgen()
        a.put("L_P")
        self.kvjob()
        a.put("L_b1")
        a("s_waitcnt vmcnt(0) lgkmcnt(0)")
        a("s_barrier")
        self.stamp(2)
        self.stop_at("b1")
        a(f"s_cmp_lt_u32 s{sW}, 4")
        a("s_cbranch_scc0 L_B")
        self.qgemm()
        self.stop_at("b6")
        self.attention(False)
        self.tailA()
        a.put("L_B")
        self.bphase1()
        self.stop_at("b6")
        self.attention(True)
        self.tailB()
        self.slow()
        if self.stop:
            self.dump()
        a.put("L_fin")
        if self.stamps:
            a("s_waitcnt vmcnt(0)")
            a("s_memtime s[86:87]")
            a("s_lshl_b32 s10, s2, 3")
            a(f"s_add_u32 s10, s10, s{sW}")
            a("s_lshl_b32 s10, s10, 6")
            a(f"s_add_u32 s10, s10, {STAMP}")
            a("v_mov_b32 v1, 0")
            a("s_waitcnt lgkmcnt(0)")
            for i in range(12):
                a(f"v_mov_b32 v{4+i}, s{sST+i}")
            a("v_mov_b32 v16, s86")
            a("s_memrealtime s[86:87]")
            a("s_waitcnt lgkmcnt(0)")
            a("v_mov_b32 v17, s86")
            a("s_mov_b64 exec, 1")
            for i in range(4):
                a(f"buffer_store_dwordx4 {v(4+4*i,4)}, v1, s[{SWS}:{SWS+3}], s10 offen offset:{16*i}")
        if self.rt:
            a("s_cmp_lt_u32 s2, 250")
            a("s_cbranch_scc1 L_end")
            a(f"s_cmp_eq_u32 s{sW}, 4")
            a("s_cbranch_scc0 L_end")
            a("s_waitcnt vmcnt(0)")
            a("s_memrealtime s[86:87]")
            a("s_memtime s[94:95]")
            a("s_sub_u32 s10, s2, 248")
            a("s_lshl_b32 s10, s10, 3")
            a("v_mov_b32 v1, s10")
            a("s_waitcnt lgkmcnt(0)")
            a("s_sub_u32 s94, s94, s96")
            a(f"s_sub_u32 s86, s86, s{sN}")
            a("v_mov_b32 v4, s86")
            a("v_mov_b32 v5, s94")
            a("s_mov_b64 exec, 1")
            a("global_store_dwordx2 v1, v[4:5], s[46:47]")
        a.put("L_end")
        a("s_endpgm")
        a.put("L_codeend")
        return a


HEAD = open("cdna_kernels/" + NAME + ".s.ref").read().split("; Override launch")[0]


def emit(path, **kw):
    g = Gen(**kw)
    a = g.build()
    a.lines, msgs = autofix(a.lines)
    if kw.get("verbose", path.endswith("prompt.s")):
        for m in msgs[:30]:
            print("fixed", m)
    assert not check_hazards(a.lines)
    if path.endswith('prompt.s'):
        for m in check_inflight(a.lines)[:30]:
            print(m)
    src = HEAD + f"""; @launch grid=(256,1,1) block=(512,1,1) lds={LDS_BYTES}
.amdgcn_target "amdgcn-amd-amdhsa--gfx950"
.text
.globl {NAME}_kernel
.p2align 8
.type {NAME}_kernel,@function
{NAME}_kernel:
{a.text()}.section .rodata,"a"
.p2align 6
.amdhsa_kernel {NAME}_kernel
  .amdhsa_next_free_vgpr 256
  .amdhsa_next_free_sgpr 102
  .amdhsa_accum_offset 256
  .amdhsa_group_segment_fixed_size 0
  .amdhsa_kernarg_size 136
  .amdhsa_user_sgpr_count 2
  .amdhsa_user_sgpr_kernarg_segment_ptr 1
  .amdhsa_system_sgpr_workgroup_id_x 1
.end_amdhsa_kernel
"""
    open(path, "w").write(src)
    return len(msgs)


if __name__ == "__main__":
    import os
    os.makedirs("out", exist_ok=True)
    n = emit("cdna_kernels/" + NAME + ".s")
    emit("b1.s", stop="b1", dump_regs=(176, 16))
    emit("b6.s", stop="b6")
    emit("t1.s", stop="t1", dump_regs=(80, 32))
    emit("full.s")
    emit("slow.s", force_slow=True)
    emit("stamp.s", stamps=True)
    emit("rt.s", rt=True)
    print("hazards", n)
```

```python
import sys, struct
from asmlib import Asm, v, s, check_hazards, autofix, check_inflight

NAME = "concat_heads__grouped_kv_mqa__ssm_conv_s4__prompt"

BLK = 5248
SLOT = 41984
WL = 81920
WOFF = (58368, 0, 37888, 58368, 0)
AUX = 110592
KGB = 102400
KGS = 4352
KVP = 102400
QP = 102400
KC = 125952
KCS = 8320
WO = 1024
UT = 103424
UTS = 4672
USCR = 122112
CNT = 162816
LDS_BYTES = 163840

FLG_KV = 0x30000
FLG_O = 0x31000
OIMG = 0x40000
WS_SIZE = 0x300000
DBG = 0x400000
STAMP = 0x300000

sW, sT, sG, sD0 = 3, 4, 5, 50
SX, SWQ, SKV, SWS, SOUT, SWO, SU = 52, 56, 60, 64, 68, 72, 76
sN = 80
sST = 88

LOG2E = 1.4426950408889634
STN = ['start']
KBAR = (0, 40, 1000, 1000, 1000)
KGW = 8
WV0 = 3
OPRIO = 0
NXU = 8


def f2u(x):
    return struct.unpack("<I", struct.pack("<f", x))[0]


class LG:
    def __init__(self, a, name, maxc):
        self.a, self.name, self.maxc, self.q = a, name, maxc, []

    def issue(self, tag=None):
        self.q.append(tag)

    def wait(self, tag):
        idx = max(i for i, t in enumerate(self.q) if t == tag)
        n = len(self.q) - 1 - idx
        self.a(f"s_waitcnt {self.name}({min(n, self.maxc)})")
        self.q = self.q[idx + 1:]

    def waitstr(self, tag):
        idx = max(i for i, t in enumerate(self.q) if t == tag)
        n = len(self.q) - 1 - idx
        self.q = self.q[idx + 1:]
        return f"{self.name}({min(n, self.maxc)})"

    def all(self):
        self.q = []


class Gen:
    def __init__(self, stop=None, stamps=False, force_slow=False, dump_regs=None, rt=False, x=()):
        self.rt = rt
        self.x = set(x) | ({'not'} if 'touch' not in x and 'latet' not in x else set())
        self.a = Asm()
        self.stop = stop
        self.stamps = stamps
        self.force_slow = force_slow
        self.debug = stop is not None or stamps
        self.dump_regs = dump_regs

    def srd(self, d, base, size):
        a = self.a
        a(f"s_mov_b32 s{d}, s{base}")
        a(f"s_mov_b32 s{d+1}, s{base+1}")
        a(f"s_mov_b32 s{d+2}, {size}")
        a(f"s_mov_b32 s{d+3}, 0x20000")

    def stamp(self, name):
        if self.stamps:
            if name not in STN:
                STN.append(name)
            self.a("s_memtime s[86:87]")
            self.a("s_memrealtime s[88:89]")
            self.a("s_waitcnt lgkmcnt(0)")
            self.a(f"v_writelane_b32 v254, s86, {STN.index(name)}")
            self.a(f"v_writelane_b32 v253, s88, {STN.index(name)}")

    def stop_at(self, name):
        if self.stop == name:
            self.a("s_branch L_dump")

    def cmul(self, d, x, y, conj=False):
        a = self.a
        a(f"v_pk_mul_f32 {v(d,2)}, {v(x,2)}, {v(y,2)} op_sel:[0,0] op_sel_hi:[1,0]")
        neg = "neg_hi:[0,1,0]" if conj else "neg_lo:[0,1,0]"
        return f"v_pk_fma_f32 {v(d,2)}, {v(x,2)}, {v(y,2)}, {v(d,2)} op_sel:[1,1,0] op_sel_hi:[0,1,1] {neg}"

    def cmuls(self, lst, conj=False):
        tail = [self.cmul(d, x, y, conj) for d, x, y in lst]
        for t in tail:
            self.a(t)

    def get_nonce(self, vt, vz):
        a = self.a
        lp, dn = a.label("Lnon"), a.label("Lnond")
        a("s_mov_b32 s82, 0")
        a.put(lp)
        a(f"v_readfirstlane_b32 s{sN}, {v(vt)}")
        a(f"v_readfirstlane_b32 s{sN+1}, {v(vt+1)}")
        a("s_add_u32 s82, s82, 1")
        a(f"s_bitcmp1_b32 s{sN}, 0")
        a(f"s_cbranch_scc1 {dn}")
        a("s_cmp_gt_u32 s82, 20000")
        a(f"s_cbranch_scc1 {dn}")
        a("s_sleep 4")
        a(f"global_load_dwordx2 {v(vt,2)}, {v(vz)}, s[46:47] sc1")
        a("s_waitcnt vmcnt(0)")
        a(f"s_branch {lp}")
        a.put(dn)

    def wdma(self, c, i):
        return [f"s_add_u32 m0, s85, {WOFF[c]+1024*i}", f"s_add_u32 s12, s84, {163840*c}",
                f"buffer_load_dwordx4 v{2+i}, s[{SWQ}:{SWQ+3}], s12 offen lds"]

    def prologue(self):
        a = self.a
        a("s_cmp_ge_u32 s2, 0x100")
        a("s_cbranch_scc1 L_end")
        a("s_load_dwordx16 s[16:31], s[0:1], 0")
        a("s_load_dwordx16 s[32:47], s[0:1], 64")
        a("s_load_dwordx2 s[48:49], s[0:1], 128")
        if self.rt:
            a("s_memrealtime s[98:99]")
            a("s_memtime s[96:97]")
        if self.stamps:
            a("s_memtime s[86:87]")
            a("s_memrealtime s[88:89]")
        a("s_getpc_b64 s[6:7]")
        a.put("L_pc")
        a("s_lshr_b32 s9, s2, 3")
        a("v_lshlrev_b32 v1, 12, v0")
        a("s_lshl_b32 s8, s9, 7")
        a("v_add_u32 v1, s8, v1")
        a("v_min_u32 v1, L_codeend-L_pc-4, v1")
        a("global_load_dword v255, v1, s[6:7]")
        a("v_lshrrev_b32 v1, 6, v0")
        a("v_and_b32 v0, 63, v0")
        a("s_and_b32 s8, s2, 7")
        a(f"v_readfirstlane_b32 s{sW}, v1")
        a(f"s_and_b32 s{sT}, s9, 3")
        a(f"s_lshl2_add_u32 s{sT}, s8, s{sT}")
        a(f"s_lshr_b32 s{sG}, s9, 2")
        a("v_lshlrev_b32 v8, 4, v0")
        a(f"s_cmp_lt_u32 s{sW}, 4")
        a("s_cbranch_scc0 L_B0")

    def kargwait(self):
        a = self.a
        a("s_waitcnt lgkmcnt(0)")
        if self.stamps:
            a("v_mov_b32 v254, 0")
            a("v_writelane_b32 v254, s86, 0")
            a("v_mov_b32 v253, 0")
            a("v_writelane_b32 v253, s88, 0")
        self.stamp("karg")

    def srds(self):
        self.srd(SWS, 48, 0x10000000 if self.debug else WS_SIZE)
        self.srd(SOUT, 44, 5242880)
        self.srd(SWO, 24, 819200)
        self.srd(SU, 26, 2621440)

    def startA(self):
        a = self.a
        a("s_add_u32 s10, s6, L_tabA-L_pc")
        a("s_addc_u32 s11, s7, 0")
        for k in range(3):
            a(f"global_load_dwordx4 {v(240+4*k,4)}, v8, s[10:11] offset:{1024*k}")
        a("global_load_dwordx4 v[148:151], v8, s[10:11] offset:3072")
        a("v_lshrrev_b32 v2, 4, v0")
        a(f"s_lshl_b32 s13, s{sW}, 2")
        a("v_add_u32 v3, s13, v2")
        a("v_and_b32 v4, 15, v0")
        a("v_xor_b32 v3, v3, v4")
        a("v_lshlrev_b32 v3, 4, v3")
        a("s_movk_i32 s12, 1280")
        a("v_mad_u32_u24 v7, v2, s12, v3")
        a(f"s_mul_i32 s92, s{sT}, 81920")
        a(f"s_mul_i32 s85, s{sW}, 5120")
        a("s_add_u32 s92, s92, s85")
        a(f"s_lshl_b32 s51, s{sW}, 10")
        a(f"s_cmp_ge_u32 s{sG}, 5")
        a("s_cselect_b32 s12, 5, 0")
        a(f"s_sub_u32 s94, s{sG}, s12")
        self.wvoff(2, True, nat=155, n=WV0)
        self.kargwait()
        self.srd(SX, 16, 2621440)
        for it in range(5):
            a("s_lshl_b32 s82, s94, 8")
            a("s_add_u32 s82, s82, s92")
            a("s_lshl_b32 s83, s94, 14")
            a("s_add_u32 m0, s83, s51")
            a("s_add_u32 s94, s94, 1")
            for m in range(4):
                a(f"buffer_load_dwordx4 v7, s[{SX}:{SX+3}], s82 offen lds")
                if m < 3:
                    a("s_add_u32 m0, m0, 4096")
                    a("s_add_u32 s82, s82, 20480")
            if it < 4:
                a("s_cmp_eq_u32 s94, 5")
                a("s_cselect_b32 s94, 0, s94")
            if it == 1:
                self.wvoff(2, True, nat=155, n0=WV0)
                self.srd(SWQ, 18, 819200)
                a(f"s_mul_i32 s84, s{sG}, 160")
                a(f"s_mul_i32 s12, s{sW}, 40960")
                a("s_add_u32 s84, s84, s12")
                a(f"s_add_u32 s91, s85, {WO}")
                a(f"s_add_u32 s85, s85, {WL}")
                a("s_mov_b32 s90, s84")
        self.stamp("Xiss")
        for c in range(2):
            for i in range(5):
                for ln in self.wdma(c, i):
                    a(ln)
        a(f"s_cmp_lt_u32 s{sG}, 2")
        a("s_cbranch_scc1 L_a_P")
        for i in range(5):
            for ln in self.wdma(2, i):
                a(ln)
        self.stamp("Wiss")
        self.qsetup()
        if self.stamps:
            a("s_waitcnt vmcnt(15)")
            self.stamp("B0")
        a("s_waitcnt vmcnt(10)")
        self.stamp("ownld")
        a("s_barrier")
        a("s_branch L_a_Q")
        a.put("L_a_P")
        a("s_waitcnt vmcnt(10)")
        a("s_barrier")
        self.stamp("B0")
        self.qsetup()
        a("s_waitcnt vmcnt(5)")
        self.stamp("ownld")
        a("s_barrier")
        for i in range(5):
            for ln in self.wdma(2, i):
                a(ln)
        a.put("L_a_Q")
        self.stamp("B1")

    def touchW(self, lo, hi):
        a = self.a
        lab = a.label("Lt")
        out = [f"s_sub_u32 s12, s{sW}, {lo}", f"s_cmp_lt_u32 s12, {hi-lo}", f"s_cbranch_scc0 {lab}",
               f"buffer_load_dword v255, v18, s[{SWQ}:{SWQ+3}], 0 offen"]
        if lo == 6:
            out += ["s_mov_b32 s12, 393216", f"buffer_load_dword v255, v18, s[{SWQ}:{SWQ+3}], s12 offen"]
        return out + [lab + ":"]

    def startB(self):
        a = self.a
        a("s_setprio 3")
        a(f"s_mul_i32 s{sD0}, s8, 80")
        a(f"s_lshl2_add_u32 s{sD0}, s9, s{sD0}")
        a(f"s_sub_u32 s{sD0}, s{sD0}, 48")
        a(f"s_and_b32 s10, s{sW}, 3")
        a(f"s_cmp_lt_u32 s{sG}, 2")
        a("s_cbranch_scc1 L_b_P")
        a(f"s_add_u32 s12, s{sD0}, s10")
        a("s_lshl_b32 s82, s12, 8")
        a("v_lshl_add_u32 v9, v0, 2, s82")
        a("s_lshl_b32 s12, s12, 1")
        a("v_mov_b32 v17, s12")
        a("v_mov_b32 v16, 0")
        a("s_mul_i32 s12, s10, 1536")
        a("s_add_u32 s12, s12, s9")
        a("s_sub_u32 s12, s12, 8")
        a("s_lshl_b32 s12, s12, 7")
        a("s_movk_i32 s83, 3072")
        a("v_mov_b32 v18, s12")
        a("v_mad_u32_u24 v18, v0, s83, v18")
        self.kargwait()
        self.srd(SWQ, 18, 819200)
        a(f"s_cmp_eq_u32 s{sG}, 2")
        a("s_cbranch_scc1 L_b_G2")
        a("global_load_short_d16_hi v16, v17, s[40:41]")
        for i, p in enumerate((28, 30, 32, 34, 36, 38)):
            a(f"global_load_dword v{160+i}, v9, s[{p}:{p+1}]")
        a(f"s_cmp_lt_u32 s{sW}, {0 if self.x & {'latet', 'not'} else 6}")
        a("s_cselect_b32 s12, 0, 0x80000000")
        a(f"buffer_load_dword v255, v18, s[{SWQ}:{SWQ+3}], s12 offen")
        self.srds()
        self.kgen()
        a("s_branch L_b_6")
        a.put("L_b_G2")
        if "latet" in self.x:
            a("s_waitcnt vmcnt(0)")
        for ln in [] if "not" in self.x else self.touchW(4, 6) + self.touchW(6, 8):
            a(ln)
        self.srds()
        self.attn_setup(True)
        a("v_mov_b32 v1, 0")
        for k in range(5):
            a("s_barrier")
            if k == 0:
                a("global_load_dwordx2 v[12:13], v1, s[46:47] sc1")
        a("s_waitcnt vmcnt(0)")
        self.get_nonce(12, 1)
        a("s_branch L_b_6")
        a.put("L_b_P")
        self.kargwait()
        a(f"s_cmp_eq_u32 s{sG}, 0")
        a(f"s_cselect_b32 s{SKV}, s20, s22")
        a(f"s_cselect_b32 s{SKV+1}, s21, s23")
        a(f"s_mov_b32 s{SKV+2}, 25600")
        a(f"s_mov_b32 s{SKV+3}, 0x20000")
        a("s_lshl_b32 s12, s10, 10")
        for i in range(6):
            a(f"s_add_u32 m0, s12, {AUX}")
            a("s_nop 0")
            a(f"buffer_load_dwordx4 v8, s[{SKV}:{SKV+3}], s12 offen lds")
            a("s_add_u32 s12, s12, 4096")
        a(f"s_cmp_eq_u32 s{sW}, 4")
        a("s_cbranch_scc0 L_pro_kv")
        a(f"s_add_u32 m0, s12, {AUX}")
        a("s_nop 0")
        a(f"buffer_load_dwordx4 v8, s[{SKV}:{SKV+3}], s12 offen lds")
        a("s_cmp_eq_u32 s2, 0")
        a("s_cbranch_scc0 L_pro_kv")
        a("s_memrealtime s[84:85]")
        a("v_mov_b32 v10, 0")
        a("s_waitcnt lgkmcnt(0)")
        a("s_or_b32 s84, s84, 1")
        a("v_mov_b32 v12, s84")
        a("v_mov_b32 v13, s85")
        a("s_mov_b64 exec, 1")
        a("global_store_dwordx2 v10, v[12:13], s[46:47] sc1")
        a("s_mov_b64 exec, -1")
        a.put("L_pro_kv")
        self.srds()
        self.attn_setup(True, zero=False)
        self.kvjob()
        self.bphaseP()

    def wvoff(self, base, perm, t0=20, nat=None, n0=0, n=5):
        a = self.a
        p, q, c, k = t0, t0 + 1, t0 + 2, t0 + 3
        a("s_mov_b32 s82, 0xcccd")
        a("s_movk_i32 s83, 1280")
        for i in range(n0, n):
            a(f"v_add_u32 v{p}, {64*i}, v0")
            a(f"v_mul_u32_u24 v{q}, s82, v{p}")
            a(f"v_lshrrev_b32 v{q}, 19, v{q}")
            a(f"v_mul_u32_u24 v{c}, 10, v{q}")
            a(f"v_sub_u32 v{c}, v{p}, v{c}")
            a(f"v_lshlrev_b32 v{c}, 4, v{c}")
            if nat:
                a(f"v_mad_u32_u24 v{nat+i}, v{q}, s83, v{c}")
            if perm:
                a(f"v_and_b32 v{k}, 1, v{q}")
                a(f"v_bfe_u32 v{p}, v{q}, 1, 2")
                a(f"v_lshl_add_u32 v{k}, v{k}, 2, v{p}")
                a(f"v_and_b32 v{q}, 24, v{q}")
                a(f"v_add_u32 v{q}, v{q}, v{k}")
            a(f"v_mad_u32_u24 v{base+i}, v{q}, s83, v{c}")

    def kgen(self):
        a = self.a
        R0, T, CV, H, D = 32, 64, 72, 80, 112
        FL0, FL1, FH0, FH1 = 176, 192, 208, 224
        Z1, Z8, Z256, WW, B16 = 24, R0 + 2, 22, 20, 30
        TA, KA = 128, 140
        BIAS = 57344
        self.attn_setup(True, zero=False)
        a(f"s_mul_i32 s11, s10, {KGS}")
        a(f"s_add_u32 m0, s11, {KGB-BIAS}")
        a(f"s_add_u32 s11, s11, {KGB}")
        a("v_and_b32 v45, 15, v0")
        a("v_lshrrev_b32 v46, 4, v0")
        a("v_mul_u32_u24 v27, 0x110, v45")
        a("v_lshl_add_u32 v27, v46, 4, v27")
        a("v_add_u32 v27, s11, v27")
        a("s_add_u32 s11, s11, 16")
        a("v_max_u32 v47, 1, v46")
        a("v_cmp_gt_u32 vcc, 2, v46")
        a("v_add_u32 v47, -1, v47")
        a("v_lshrrev_b32 v47, v47, 16")
        a("v_cndmask_b32 v48, 8, 3, vcc")
        a("v_cmp_eq_u32 vcc, 3, v46")
        a("v_lshlrev_b32 v48, v48, v46")
        a(f"v_mad_u32_u24 v{TA}, v45, v47, v48")
        a(f"v_add_u32 v{TA}, s11, v{TA}")
        a("v_cndmask_b32 v48, 2, 64, vcc")
        a(f"v_lshl_add_u32 v{TA+1}, v48, 1, v{TA}")
        a(f"v_lshl_add_u32 v{TA+2}, v47, 4, v{TA}")
        a(f"v_lshl_add_u32 v{TA+3}, v47, 4, v{TA+1}")
        a(f"v_lshlrev_b32 v{TA+4}, 6, v45")
        a(f"v_lshl_add_u32 v{TA+4}, v46, 3, v{TA+4}")
        a(f"v_add_u32 v{TA+4}, s11, v{TA+4}")
        a("s_sub_u32 s12, s11, 4")
        a(f"v_mov_b32 v{TA+5}, s12")
        a("s_add_u32 s12, s11, 508")
        a(f"v_lshl_add_u32 v{TA+6}, v0, 2, s12")
        a(f"v_lshl_add_u32 v{TA+7}, v0, 3, v{TA+5}")
        a(f"v_mov_b32 v{TA+8}, 0x03020302")
        a("v_cmp_eq_u32 vcc, 0, v0")
        a("v_mov_b32 v53, 0x01000302")
        a(f"s_mul_i32 s11, s10, {KCS}")
        a(f"s_add_u32 s11, s11, {KC}")
        a(f"v_cndmask_b32 v{TA+8}, v{TA+8}, v53, vcc")
        a("v_lshlrev_b32 v48, 5, v0")
        a("s_add_u32 s12, s11, 2016")
        a(f"v_sub_u32 v{KA}, s12, v48")
        a("s_add_u32 s12, s11, 3056")
        a(f"v_sub_u32 v{KA+1}, s12, v8")
        a("v_lshlrev_b32 v50, 3, v0")
        a("s_add_u32 s12, s11, 3576")
        a(f"v_sub_u32 v{KA+2}, s12, v50")
        a("v_bfe_u32 v51, v0, 4, 1")
        a("v_mul_u32_u24 v51, 0x1040, v51")
        a("v_lshl_add_u32 v51, v45, 2, v51")
        a(f"v_add_u32 v{KA+3}, s11, v51")
        l2e_hi = f2u(LOG2E)
        l2e_lo = f2u(LOG2E - struct.unpack("<f", struct.pack("<I", l2e_hi))[0])
        a(f"s_mov_b32 s8, {l2e_hi:#x}")
        a(f"s_mov_b32 s9, {l2e_lo:#x}")
        a("v_mov_b32 v1, 0")
        a("v_mov_b32 v26, 0x3f80")
        self.stamp("Bset")
        a("s_waitcnt vmcnt(1)")
        self.stamp("param")
        for ln in [] if "not" in self.x else (self.touchW(4, 6) if "latet" in self.x else []) + self.touchW(6, 8):
            a(ln)
        k0 = len(a.lines)
        a("v_mul_f32 v28, s8, v16")
        a("v_fma_f32 v29, v16, s8, -v28")
        a("v_fmac_f32 v29, s9, v16")
        a("v_exp_f32 v28, v28")
        a(f"v_mul_f32 v29, {f2u(0.6931471805599453):#x}, v29")
        a("v_fma_f32 v28, v28, v29, v28")
        a("v_cvt_pk_bf16_f32 v28, v28, v28")
        a("v_lshlrev_b32 v28, 16, v28")
        r = lambda j: R0 + 2 * j
        h = lambda j: H + 2 * j
        st = dict(cv=0)

        def put(rows):
            w = []
            for j, src in rows:
                if src is None:
                    w.append((j, 26))
                    continue
                c = CV + st["cv"] % 8
                st["cv"] += 1
                a(f"v_cvt_pk_bf16_f32 v{c}, v{src}, v{src+1}")
                w.append((j, c))
            for j, c in w:
                a(f"ds_write_addtid_b32 v{c} offset:{BIAS+272*j}")

        def get(F):
            for sidx in range(4):
                a(f"ds_read_b128 {v(F+4*sidx,4)}, v27 offset:{64*sidx}")

        def mm(first):
            out = []
            for k, (A, B) in enumerate(((FH0, FL0), (FH0, FL1), (FL0, FH1), (FL1, FH1))):
                for sidx in range(4):
                    c = "0" if first and sidx == 0 else v(D + 4 * k, 4)
                    out.append(f"v_mfma_f32_16x16x32_bf16 {v(D+4*k,4)}, {v(A+4*sidx,4)}, {v(B+4*sidx,4)}, {c}")
            return out
        for half in range(2):
            k1 = len(a.lines)
            for i in range(6):
                a(f"v_lshlrev_b32 v{10+i}, 16, v{160+i}" if half == 0 else f"v_and_b32 v{10+i}, 0xffff0000, v{160+i}")
            for i in range(4):
                a(f"v_mul_f32 v{10+i}, v28, v{10+i}")
            a("v_mul_f32 v10, s8, v10")
            a("v_mul_f32 v11, 0.15915494, v11")
            tt = (40, 44, 48)
            for p, t in zip((8, 256), tt):
                a(f"v_mul_f32 v{t}, {f2u(float(p)):#x}, v10")
                a(f"v_mul_f32 v{t+1}, {f2u(float(p)):#x}, v11")
            a(f"v_fract_f32 v{tt[2]+1}, v11")
            a(f"v_fract_f32 v{tt[0]+1}, v{tt[0]+1}")
            a(f"v_fract_f32 v{tt[1]+1}, v{tt[1]+1}")
            a(f"v_exp_f32 v{tt[2]}, v10")
            a(f"v_exp_f32 v{tt[0]}, v{tt[0]}")
            a(f"v_exp_f32 v{tt[1]}, v{tt[1]}")
            for t in tt:
                a(f"v_cos_f32 v{t+2}, v{t+1}")
                a(f"v_sin_f32 v{t+3}, v{t+1}")
            if half:
                body = a.lines[k1:]
                del a.lines[k1:]
                pend = mm(True)
                for n, ln in enumerate(body):
                    if n == 4:
                        a("s_waitcnt lgkmcnt(9)")
                    if n == 18:
                        a("s_waitcnt lgkmcnt(0)")
                    if (4 <= n < 18 and n % 2 == 0 or n >= 18) and pend:
                        a(pend.pop(0))
                    a(ln)
                assert not pend
            self.cmuls([(WW, 14, 12)])
            for Z, t in zip((Z8, Z256, Z1), tt):
                a(f"v_pk_mul_f32 {v(Z,2)}, {v(t+2,2)}, {v(t,2)} op_sel:[0,0] op_sel_hi:[1,0]")
            a(f"v_xor_b32 v{WW+1}, 0x80000000, v{WW+1}")
            self.cmuls([(r(2), r(1), r(1))])
            self.cmuls([(r(3), r(2), r(1)), (r(4), r(2), r(2))])
            put([(0, None), (1, r(1)), (2, r(2)), (3, r(3)), (4, r(4))])
            self.cmuls([(r(4 + i), r(4), r(i)) for i in range(1, 5)])
            put([(4 + i, r(4 + i)) for i in range(1, 5)])
            self.cmuls([(r(8 + i), r(8), r(i)) for i in range(1, 5)])
            put([(8 + i, r(8 + i)) for i in range(1, 5)])
            self.cmuls([(r(8 + i), r(8), r(i)) for i in range(5, 8)] + [(B16, r(8), r(8))])
            put([(8 + i, r(8 + i)) for i in range(5, 8)])
            get(FL0)
            for g4 in range(4):
                js = [j for j in range(4 * g4, 4 * g4 + 4) if j]
                self.cmuls([(T + 2 * (j % 4), r(j), B16) for j in js])
                put(([(0, B16)] if g4 == 0 else []) + [(j, T + 2 * (j % 4)) for j in js])
            get(FL1)
            for g4 in range(2):
                for j in range(4 * g4, 4 * g4 + 4):
                    self.cmuls([(h(j), h(j - 1) if j else WW, Z1)], conj=True)
                put([(j, h(j)) for j in range(4 * g4, 4 * g4 + 4)])
            self.cmuls([(h(8), h(1), Z256), (h(9), h(3), Z256), (h(10), h(5), Z256), (h(11), h(7), Z256)], conj=True)
            put([(j, h(j)) for j in range(8, 12)])
            self.cmuls([(h(12), h(9), Z256), (h(13), h(11), Z256)], conj=True)
            self.cmuls([(h(14), h(12), Z256), (h(15), h(13), Z256)], conj=True)
            put([(j, h(j)) for j in range(12, 16)])
            get(FH0)
            for j in range(4):
                self.cmuls([(T + 2 * j, T + 2 * j - 2 if j else h(15), Z256)], conj=True)
            self.kpk = len(a.lines) - k0
            put([(j, T + 2 * j) for j in range(4)] + [(4, WW)])
            get(FH1)
        self.kleft = 0
        a("global_load_dwordx2 v[12:13], v1, s[46:47] sc1")
        m = mm(False)
        a("s_waitcnt lgkmcnt(9)")
        for ln in m[:8]:
            a(ln)
        a("s_waitcnt lgkmcnt(0)")
        for ln in m[8:]:
            a(ln)
        sel = dict(cc=0x07060706, bb=0x05040504, aa=0x03020302, ba=0x03020504, cb=0x05040706)
        sreg = {}
        for i, (k, x) in enumerate(sel.items()):
            sreg[k] = 8 + i if i < 2 else 13 + i - 2
            a(f"s_mov_b32 s{sreg[k]}, {x:#x}")
        for i in range(8):
            a(f"v_cvt_pk_bf16_f32 v{32+i}, v{D+2*i}, v{D+2*i+1}")
            if i < 4:
                a(f"ds_write_b32 v{TA+i}, v{32+i}")
        a(f"v_cvt_pk_bf16_f32 v49, 0, v{D+8}")
        a(f"ds_write_b64 v{TA+4}, v[36:37] offset:1024")
        a(f"ds_write_b64 v{TA+4}, v[38:39] offset:1056")
        a("s_mov_b64 exec, 16")
        a(f"ds_write_b32 v{TA+5}, v49")
        a("s_mov_b64 exec, -1")
        a(f"ds_read2_b32 v[54:55], v{TA+6} offset0:128 offset1:129")
        a(f"ds_read2_b32 v[56:57], v{TA+6} offset0:64 offset1:65")
        a(f"ds_read2_b32 v[58:59], v{TA+6} offset0:0 offset1:1")
        a(f"ds_read2_b32 v[60:61], v{TA+7} offset0:0 offset1:1")
        a(f"ds_read_b32 v62, v{TA+7} offset:8")
        self.ozero()
        a("s_waitcnt lgkmcnt(0)")

        def perms(dst, pat, d0):
            for i, k in enumerate(pat):
                a(f"v_perm_b32 v{dst+i}, v{d0+1}, v{d0}, s{sreg[k]}")
        perms(16, ["cc", "cc", "bb", "bb", "bb", "ba", "aa", "aa"], 54)
        perms(24, ["cc", "cb", "bb", "bb", "bb", "aa", "aa", "aa"], 54)
        perms(32, ["cc", "bb", "ba", "aa"], 56)
        perms(36, ["cb", "bb", "aa", "aa"], 56)
        perms(40, ["cb", "aa"], 58)
        perms(42, ["ba"], 58)
        a(f"v_perm_b32 v43, v59, v58, v{TA+8}")
        a(f"v_perm_b32 v44, v62, v61, s{sreg['ba']}")
        a(f"v_perm_b32 v45, v61, v60, s{sreg['ba']}")
        a("v_alignbit_b32 v46, v61, v61, 16")
        a("v_alignbit_b32 v47, v60, v60, 16")
        body = a.lines[k0:]
        del a.lines[k0:]
        self.klen = len(body)
        pos = [self.kpk + x for x in KBAR]
        if "k2x" in self.x:
            a("s_mov_b32 s97, 0")
            a.put("L_k2x")
            if "nods" in self.x:
                body = [("s_nop 0" if n < self.kpk and ln.startswith("ds_") else ln) for n, ln in enumerate(body)]
        for n, ln in enumerate(body):
            if "k2x" in self.x and n == self.kpk:
                a("s_cmp_eq_u32 s97, 1")
                a("s_cbranch_scc1 L_k2d")
                self.stamp("kpass1")
                a("s_mov_b32 s97, 1")
                a("s_branch L_k2x")
                a.put("L_k2d")
            while pos and pos[0] == n:
                self.stamp(f"k{6-len(pos)}")
                a("s_barrier")
                if len(pos) == 5:
                    a("s_setprio 0")
                self.stamp(f"B{6-len(pos)}")
                pos.pop(0)
            if "kst" in self.x and n % 40 == 0 and n:
                a("s_memtime s[86:87]")
            if "kst" in self.x and n % 40 == 39 and n > 40:
                nm = f"kk{n-39}"
                if nm not in STN:
                    STN.append(nm)
                a(f"v_writelane_b32 v254, s86, {STN.index(nm)}")
                a(f"v_writelane_b32 v253, s88, {STN.index(nm)}")
            a.lines.append(ln)
        self.stamp("kend")
        for k in range(len(pos)):
            a("s_barrier")
            self.stamp(f"B{6-len(pos)+k}")
        a("s_waitcnt vmcnt(0)")
        self.get_nonce(12, 1)

    def kvjob(self):
        a = self.a
        a("v_and_b32 v20, 31, v0")
        a("v_lshrrev_b32 v21, 5, v0")
        a("v_and_b32 v22, 0x13, v20")
        a("v_bfe_u32 v23, v20, 2, 1")
        a("v_lshl_or_b32 v22, v23, 3, v22")
        a("v_bfe_u32 v23, v20, 3, 1")
        a("v_lshl_or_b32 v22, v23, 2, v22")
        a(f"s_cmp_eq_u32 s{sG}, 1")
        a("s_cselect_b64 vcc, -1, 0")
        a("v_cndmask_b32 v20, v20, v22, vcc")
        a(f"s_and_b32 s10, s{sW}, 1")
        a(f"s_bfe_u32 s11, s{sW}, 0x10001")
        a("v_and_b32 v22, 15, v20")
        a("v_xor_b32 v22, v22, v21")
        a("v_lshlrev_b32 v22, 4, v22")
        a("v_lshl_or_b32 v22, v20, 8, v22")
        a("s_lshl_b32 s12, s10, 13")
        a("s_lshl_b32 s13, s11, 7")
        a("s_or_b32 s12, s12, s13")
        a("v_xor_b32 v10, s12, v22")
        for k in range(1, 4):
            a(f"v_xor_b32 v{10+k}, {32*k}, v10")
        a("v_bfe_u32 v22, v0, 2, 2")
        a("v_lshl_add_u32 v22, v21, 3, v22")
        a("v_mul_u32_u24 v22, 40, v22")
        a("v_bfe_u32 v23, v0, 4, 1")
        a("v_and_b32 v24, 3, v0")
        a("v_lshl_add_u32 v23, v23, 2, v24")
        a("v_min_u32 v23, 4, v23")
        a("v_lshl_add_u32 v22, v23, 3, v22")
        a("s_mul_i32 s12, s11, 2560")
        a(f"s_add_u32 s12, s12, {AUX}")
        a("v_add_u32 v14, s12, v22")
        a("s_waitcnt vmcnt(0)")
        a("s_barrier")
        self.stamp("B0")
        a(f"s_cmp_eq_u32 s{sG}, 1")
        a("s_cbranch_scc1 L_kv_V")
        ACC = 80
        for isV in (0, 1):
            if isV:
                a.put("L_kv_V")
            lg = LG(a, "lgkmcnt", 15)

            def issue(n):
                b, ks = divmod(n, 4)
                F = 16 + 8 * (n % 6)
                if n == 16:
                    for k in range(4):
                        a(f"v_add_u32 v{10+k}, 0x10000, v{10+k}")
                a(f"ds_read_b128 {v(F,4)}, v{10+ks} offset:{16384*(b%4)}")
                a(f"ds_read_b64_tr_b16 {v(F+4,2)}, v14 offset:{5120*b+640*ks}")
                a(f"ds_read_b64_tr_b16 {v(F+6,2)}, v14 offset:{5120*b+640*ks+160}")
                for _ in range(3):
                    lg.issue(n)
            for n in range(5):
                issue(n)
            for n in range(20):
                lg.wait(n)
                F = 16 + 8 * (n % 6)
                A, B = (F, F + 4) if isV else (F + 4, F)
                a(f"v_mfma_f32_32x32x16_bf16 {v(ACC,16)}, {v(A,4)}, {v(B,4)}, {'0' if n == 0 else v(ACC,16)}")
                if n + 5 < 20:
                    issue(n + 5)
            if not isV:
                a("s_branch L_kv_d")
        a.put("L_kv_d")
        a("s_lshl_b32 s12, s10, 12")
        a(f"s_add_u32 s12, s12, {KVP}")
        a("v_add_u32 v15, s12, v8")
        a(f"s_cmp_lt_u32 s{sW}, 6")
        a("s_cbranch_scc1 L_p_fin")
        a.nop(10)
        for i in range(4):
            a(f"ds_write_b128 v15, {v(ACC+4*i,4)} offset:{1024*i}")
        a("s_waitcnt lgkmcnt(0)")
        for k in range(5):
            a("s_barrier")
            if k == 0:
                self.ozero()
        a("s_branch L_b_6")

    def qsetup(self):
        a = self.a
        XA, WA = 64, 72
        a("v_and_b32 v20, 31, v0")
        a("v_lshrrev_b32 v21, 5, v0")
        a("v_and_b32 v22, 15, v20")
        a("v_xor_b32 v22, v22, v21")
        a("v_lshlrev_b32 v22, 4, v22")
        a(f"v_lshl_or_b32 v{XA}, v20, 8, v22")
        for k in range(1, 8):
            a(f"v_xor_b32 v{XA+k}, {32*k}, v{XA}")
        a("v_bfe_u32 v22, v0, 2, 2")
        a("v_lshlrev_b32 v22, 1, v22")
        a("v_lshl_add_u32 v22, v21, 3, v22")
        a("v_mul_u32_u24 v22, 0xa0, v22")
        a("v_bfe_u32 v23, v0, 4, 1")
        a("v_and_b32 v24, 3, v0")
        a("v_lshl_add_u32 v23, v23, 2, v24")
        a("v_min_u32 v23, 4, v23")
        a("v_lshl_add_u32 v22, v23, 3, v22")
        a(f"s_mul_i32 s12, s{sW}, 40")
        a(f"s_add_u32 s12, s12, {WL}")
        a(f"v_add_u32 v{WA}, s12, v22")
        a(f"v_add_u32 v{WA+1}, {WOFF[0]}, v{WA}")
        a("v_mov_b32 v1, 0")
        self.srds()
        self.setupA()

    def qgemm(self):
        a = self.a
        XA, WA, RG = 64, 72, 168
        lg = LG(a, "lgkmcnt", 15)

        def issue(n):
            c, ks = divmod(n, 8)
            wreg = WA + 1 if WOFF[c] > 40000 else WA
            woff = 0 if WOFF[c] > 40000 else WOFF[c]
            F = RG + 12 * (n % 6)
            if c == 4:
                a(f"v_add_u32 v{XA+ks}, 0x10000, v{XA+ks}")
            a(f"ds_read_b64_tr_b16 {v(F,2)}, v{wreg} offset:{woff+2560*ks}")
            a(f"ds_read_b64_tr_b16 {v(F+2,2)}, v{wreg} offset:{woff+2560*ks+160}")
            a(f"ds_read_b128 {v(F+4,4)}, v{XA+ks} offset:{16384*(c%4)}")
            a(f"ds_read_b128 {v(F+8,4)}, v{XA+ks} offset:{16384*(c%4)+8192}")
            for _ in range(4):
                lg.issue(n)
        for n in range(3):
            issue(n)
        a("global_load_dwordx2 v[16:17], v1, s[46:47] sc1")
        dma = {7 + i: self.wdma(3, i) for i in range(5)}
        dma.update({15 + i: self.wdma(4, i) for i in range(5)})
        for n in range(40):
            c, ks = divmod(n, 8)
            if ks == 6 and c < 4:
                a(f"s_waitcnt vmcnt({(6, 6, 5, 0)[c]}) {lg.waitstr(n + 1)}")
                a("s_barrier")
                self.stamp(f"B{2+c}")
                issue(n + 2)
            elif not (ks == 7 and c < 4):
                lg.wait(n)
            F = RG + 12 * (n % 6)
            a(f"v_mfma_f32_32x32x16_bf16 v[32:47], {v(F,4)}, {v(F+4,4)}, {'0' if n == 0 else 'v[32:47]'}")
            a(f"v_mfma_f32_32x32x16_bf16 v[48:63], {v(F,4)}, {v(F+8,4)}, {'0' if n == 0 else 'v[48:63]'}")
            if n + 3 < 40 and ks != 5:
                issue(n + 3)
            for ln in dma.get(n + 1, []):
                a(ln)
            if n == 25:
                for ln in self.setupA2():
                    a(ln)
            if n == 33:
                self.get_nonce(16, 1)
                a(f"s_mov_b32 s10, {f2u(LOG2E / 20 ** 0.5):#x}")
                a("s_mov_b32 s11, s10")
                a(f"s_mul_i32 s13, s{sW}, 2560")
                a(f"s_add_u32 s13, s13, {QP}")
                a("v_add_u32 v12, s13, v8")
                a("v_lshl_add_u32 v13, v0, 3, s13")
        a.nop(10)
        for T, O in ((0, 32), (1, 48)):
            for r in range(6):
                a(f"v_pk_mul_f32 {v(O+2*r,2)}, {v(O+2*r,2)}, s[10:11]")
            for q in range(4):
                a(f"v_cvt_pk_bf16_f32 v{112+4*T+q}, v{O+2*q}, v{O+2*q+1}")
            a(f"ds_write_b128 v12, {v(112+4*T,4)} offset:{1024*T}")
            for q in range(2):
                a(f"v_cvt_pk_bf16_f32 v{120+2*T+q}, v{O+8+2*q}, v{O+9+2*q}")
        a("s_nop 1")
        a("v_permlane32_swap_b32 v120, v122")
        a("v_permlane32_swap_b32 v121, v123")
        a("s_nop 1")
        a("ds_write_b64 v13, v[120:121] offset:2048")
        a("s_waitcnt lgkmcnt(0)")
        self.stamp("Qdone")
        a("s_barrier")
        self.stamp("B6")

    def bphaseP(self):
        a = self.a
        a.put("L_p_fin")
        a("v_mov_b32 v1, 0")
        a("global_load_dwordx2 v[12:13], v1, s[46:47] sc1")
        a(f"s_mul_i32 s12, s{sT}, {BLK}")
        a("v_and_b32 v40, 31, v0")
        a("v_lshrrev_b32 v41, 5, v0")
        a("v_bfrev_b32 v44, 1")
        a(f"s_cmp_eq_u32 s{sG}, 1")
        a("s_cbranch_scc1 L_b_PV")
        a("s_lshl_b32 s13, s10, 10")
        a("s_add_u32 s13, s13, s12")
        a("v_lshlrev_b32 v42, 3, v0")
        a("v_cmp_gt_u32 vcc, 32, v0")
        a("s_lshl_b32 s14, s10, 8")
        a("s_add_u32 s14, s14, s12")
        a("v_cndmask_b32 v42, v44, v42, vcc")
        a("s_barrier")
        self.stamp("B1")
        for i in range(4):
            a(f"ds_read_b128 {v(16+4*i,4)}, v15 offset:{1024*i}")
        a("s_waitcnt lgkmcnt(0)")
        for i in range(12):
            a(f"v_add_f32 v{80+i}, v{80+i}, v{16+i}")
        for i in range(6):
            a(f"v_cvt_pk_bf16_f32 v{32+i}, v{80+2*i}, v{80+2*i+1}")
        a(f"buffer_store_dwordx4 v[32:35], v8, s[{SWS}:{SWS+3}], s13 offen sc1")
        a(f"buffer_store_dwordx2 v[36:37], v42, s[{SWS}:{SWS+3}], s14 offen offset:2048 sc1")
        a("s_branch L_p_2")
        a.put("L_b_PV")
        a("s_mul_i32 s13, s10, 1344")
        a("s_add_u32 s13, s13, s12")
        a("v_mul_u32_u24 v42, 0x150, v41")
        a("v_lshl_add_u32 v42, v40, 4, v42")
        a("v_cmp_gt_u32 vcc, 21, v40")
        a("v_mov_b32 v43, 0x3f803f80")
        a("s_nop 0")
        a("v_cndmask_b32 v42, v44, v42, vcc")
        a("v_cmp_eq_u32 vcc, 20, v40")
        a("s_barrier")
        self.stamp("B1")
        for i in range(4):
            a(f"ds_read_b128 {v(16+4*i,4)}, v15 offset:{1024*i}")
        a("s_waitcnt lgkmcnt(0)")
        for i in range(16):
            a(f"v_add_f32 v{80+i}, v{80+i}, v{16+i}")
        for i in range(8):
            a(f"v_cvt_pk_bf16_f32 v{32+i}, v{80+2*i}, v{80+2*i+1}")
        for i in range(8):
            a(f"v_cndmask_b32 v{32+i}, v{32+i}, v43, vcc")
        a(f"buffer_store_dwordx4 v[32:35], v42, s[{SWS}:{SWS+3}], s13 offen offset:2560 sc1")
        a(f"buffer_store_dwordx4 v[36:39], v42, s[{SWS}:{SWS+3}], s13 offen offset:3232 sc1")
        a.put("L_p_2")
        self.stamp("kvst")
        a(f"s_lshl_b32 s12, s{sT}, 7")
        a(f"s_lshl_b32 s13, s{sG}, 4")
        a("s_add_u32 s12, s12, s13")
        a("s_lshl_b32 s13, s10, 3")
        a("s_add_u32 s12, s12, s13")
        a(f"s_add_u32 s12, s12, {FLG_KV}")
        self.ozero()
        a("s_barrier")
        a("s_barrier")
        a("s_waitcnt vmcnt(0)")
        self.get_nonce(12, 1)
        a("s_mov_b64 exec, 1")
        a(f"buffer_store_dwordx2 v[12:13], v1, s[{SWS}:{SWS+3}], s12 offen sc1")
        a("s_mov_b64 exec, -1")
        self.stamp("kvflag")
        a("s_barrier")
        a("s_barrier")

    def bphase1(self):
        a = self.a
        a.put("L_b_6")
        a("s_setprio 0")
        a("v_lshrrev_b32 v6, 1, v0")
        a("v_lshlrev_b32 v6, 7, v6")
        a("v_and_b32 v7, 1, v0")
        a("v_lshl_add_u32 v6, v7, 4, v6")
        a(f"s_and_b32 s10, s{sW}, 3")
        a(f"s_mov_b32 s15, {FLG_KV}")
        a(f"s_cmp_eq_u32 s{sW}, 4")
        a("s_cbranch_scc0 L_b_6a")
        a(f"buffer_load_dwordx4 v[56:59], v6, s[{SWS}:{SWS+3}], s15 offen sc1")
        a.put("L_b_6a")
        self.kcwrite()
        a(f"v_mov_b32 v60, {CNT}")
        a("ds_write_b128 v60, v[80:83]")
        a("s_mul_i32 s13, s10, 2560")
        a(f"s_add_u32 s13, s13, {QP}")
        a("v_add_u32 v12, s13, v8")
        a("v_lshl_add_u32 v13, v0, 3, s13")
        a(f"s_cmp_eq_u32 s{sW}, 4")
        a("s_cbranch_scc0 L_b_7")
        a("s_mov_b32 s82, 0")
        a.put("L_pkv")
        a("s_add_u32 s82, s82, 1")
        a("s_waitcnt vmcnt(0)")
        a(f"v_cmp_eq_u64 vcc, s[{sN}:{sN+1}], v[56:57]")
        a(f"v_cmp_eq_u64 s[84:85], s[{sN}:{sN+1}], v[58:59]")
        a("s_nop 0")
        a("s_and_b64 vcc, vcc, s[84:85]")
        a("s_cmp_eq_u64 vcc, -1")
        a("s_cbranch_scc1 L_b_7")
        a("s_cmp_gt_u32 s82, 20000")
        a("s_cbranch_scc1 L_b_7")
        a(f"buffer_load_dwordx4 v[56:59], v6, s[{SWS}:{SWS+3}], s15 offen sc1")
        a("s_branch L_pkv")
        a.put("L_b_7")
        self.stamp("kvseen")
        a("s_barrier")
        self.stamp("B6")
        a("ds_read_b128 v[112:115], v12")
        a("ds_read_b128 v[116:119], v12 offset:1024")
        a("ds_read_b64 v[120:121], v13 offset:2048")

    def kcwrite(self):
        a = self.a
        lab = a.label("Lkc")
        a(f"s_cmp_lt_u32 s{sG}, 3")
        a(f"s_cbranch_scc1 {lab}")
        a("ds_write_b128 v140, v[16:19]")
        a("ds_write_b128 v140, v[20:23] offset:16")
        a("ds_write_b128 v140, v[24:27] offset:4160")
        a("ds_write_b128 v140, v[28:31] offset:4176")
        a("ds_write_b128 v141, v[32:35]")
        a("ds_write_b128 v141, v[36:39] offset:4160")
        a("ds_write_b64 v142, v[40:41]")
        a("ds_write_b64 v142, v[42:43] offset:4160")
        a("ds_write_b64 v142, v[44:45] offset:512")
        a("ds_write_b64 v142, v[46:47] offset:4672")
        a("ds_write_b32 v143, v4 offset:4096")
        a.put(lab)

    def kvdma(self, c, i):
        if i < 0:
            lab = self.a.label("Lx")
            return [f"s_cmp_eq_u32 s{sW}, 0", f"s_cbranch_scc0 {lab}",
                    f"s_mov_b32 m0, {SLOT*(c%3)+40960}", f"s_mov_b32 s12, {SLOT*c+40960}",
                    f"buffer_load_dwordx4 v8, s[{SWS}:{SWS+3}], s12 offen sc1 lds", lab + ":"]
        return [f"s_add_u32 m0, s51, {SLOT*(c%3)+8192*i}", f"s_add_u32 s12, s51, {SLOT*c+8192*i}",
                f"buffer_load_dwordx4 v8, s[{SWS}:{SWS+3}], s12 offen sc1 lds"]

    def ozero(self):
        for r in range(16):
            self.a(f"v_mov_b64 {v(80+2*r,2)}, 0")

    def attn_setup(self, isB, zero=True):
        a = self.a
        O0 = 80
        IDX, AK16, AK4, AV = 144, 145, 148, 151
        UOFF, USW, USR, UTW, UTZ = 155, 156, 157, 158, 159
        a(f"s_lshl_b32 s51, s{sW}, 10")
        kh = BLK if isB else 0
        a(f"v_add_u32 v{AK16}, {kh}, v8" if kh else f"v_mov_b32 v{AK16}, v8")
        a(f"v_lshlrev_b32 v{AK4}, 3, v0")
        a(f"v_add_u32 v{AK4}, {kh+2048}, v{AK4}")
        a("v_and_b32 v60, 31, v0")
        a("v_cmp_lt_u32 vcc, 20, v60")
        a("v_lshrrev_b32 v62, 5, v0")
        a("v_mul_u32_u24 v62, 0x150, v62")
        a("v_lshl_add_u32 v61, v60, 4, v62")
        a(f"v_add_u32 v{AV}, {kh+2560}, v61")
        a("v_mov_b32 v61, 0x30000")
        a(f"v_cndmask_b32 v{AV}, v{AV}, v61, vcc")
        for r in (AK16, AK4, AV):
            a(f"v_add_u32 v{r+1}, {SLOT}, v{r}")
            a(f"v_add_u32 v{r+2}, {2*SLOT}, v{r}")
        a(f"v_mov_b32 v{IDX}, 0xdddddddd")
        if zero:
            self.ozero()
        if isB:
            a(f"s_and_b32 s10, s{sW}, 3")
            a("s_mul_i32 s11, s10, 655360")
            a(f"s_lshl_b32 s12, s{sD0}, 1")
            a("s_add_u32 s11, s11, s12")
            a(f"s_cmp_lt_u32 s{sG}, 3")
            a("s_cselect_b32 s11, 0x80000000, s11")
            a("s_movk_i32 s12, 1280")
            a("v_mov_b32 v1, s11")
            a(f"v_mad_u32_u24 v{UOFF}, v0, s12, v1")
            a("s_lshl_b32 s11, s10, 9")
            a(f"s_add_u32 s11, s11, {USCR}")
            a(f"v_lshl_add_u32 v{USW}, v0, 3, s11")
            a("v_and_b32 v1, 48, v0")
            a("v_and_b32 v2, 3, v0")
            a("v_lshl_add_u32 v1, v2, 2, v1")
            a("v_bfe_u32 v3, v0, 2, 2")
            a("v_add_u32 v1, v1, v3")
            a(f"v_lshl_add_u32 v{USR}, v1, 3, s11")
            a("s_lshl_b32 s11, s10, 10")
            a(f"s_add_u32 s11, s11, {UT+480}")
            a("v_lshrrev_b32 v1, 2, v0")
            a("v_lshl_add_u32 v1, v1, 3, s11")
            a(f"s_movk_i32 s12, {UTS}")
            a(f"v_mad_u32_u24 v{UTW}, v2, s12, v1")
            a(f"s_mul_i32 s11, s10, {UTS}")
            a(f"s_add_u32 s11, s11, {UT}")
            a("v_min_u32 v1, 59, v0")
            a(f"v_lshl_add_u32 v{UTZ}, v1, 3, s11")
            a("v_mov_b32 v4, 0")
            a("v_mov_b32 v5, 0")
            self.setupB()

    def attention(self, isB):
        a = self.a
        S = (16, 48)
        O0, O1, QA, QB, Q4, K4, K16 = 80, 96, 112, 116, 120, 122, 124
        V = (128, 136)
        IDX, AK16, AK4, AV = 144, 145, 148, 151
        URAW, UTR = 160, 176
        UOFF, USW, USR, UTW, UTZ = 155, 156, 157, 158, 159
        for c, i in [(0, -1), (1, -1)] + [(0, i) for i in range(5)] + [(1, i) for i in range(5)]:
            for ln in self.kvdma(c, i):
                a(ln)
        a("s_waitcnt vmcnt(5) lgkmcnt(0)")
        a("s_barrier")
        self.stamp("E0")
        self.stop_at("e0")
        lg = LG(a, "lgkmcnt", 15)

        def loc(m):
            c = m >> 3
            return c % 3, 2 * BLK * ((m >> 1) & 3), m & 1

        def rdK16(m):
            sl, off, aa = loc(m)
            a(f"ds_read_b128 {v(K16,4)}, v{AK16+sl} offset:{off+1024*aa}")
            lg.issue(("K16", m))

        def rdK4(m):
            sl, off, aa = loc(m)
            a(f"ds_read_b64 {v(K4,2)}, v{AK4+sl} offset:{off}")
            lg.issue(("K4", m))

        def rdV(m, f):
            sl, off, aa = loc(m)
            a(f"ds_read_b128 {v(V[m&1]+4*f,4)}, v{AV+sl} offset:{off+672*(2*aa+f)}")
            lg.issue(("V", m, f))

        def pv(O, B, Vr):
            if "nopv" in self.x:
                return
            a(f"v_smfmac_f32_32x32x32_bf16 {v(O,16)}, {v(Vr,4)}, {v(B,8)}, v{IDX}")

        def qk4(m, dst):
            if "no2b" in self.x:
                return
            a(f"v_mfma_f32_32x32x4_2b_bf16 {v(dst,32)}, {v(K4,2)}, {v(Q4,2)}, 0 cbsz:1 abid:{m&1}")

        def qk16(dst, Q):
            a(f"v_mfma_f32_32x32x16_bf16 {v(dst,16)}, {v(K16,4)}, {v(Q,4)}, {'0' if 'no2b' in self.x else v(dst,16)}")
        rdK4(0)
        rdK16(0)
        rdV(0, 0)
        rdV(0, 1)
        lg.wait(("K16", 0))
        qk4(0, S[0])
        a.nop(18)
        qk16(S[0], QA)
        qk16(S[0] + 16, QB)
        rdK16(1)
        lg.wait(("V", 0, 1))
        a.nop(10)
        hk = {}

        def hook(n, pos, lines):
            hk.setdefault((n, pos), []).extend(lines)
        hook(0, "a2", self.kvdma(2, -1))
        for i in range(5):
            hook(i, "a5", self.kvdma(2, i))
        hook(7, "a2", self.kvdma(3, -1))
        for i in range(5):
            hook(7 + i, "a5", self.kvdma(3, i))
        bars = {2: "vmcnt(3)", 6: "vmcnt(1)", 14: "vmcnt(0)", 22: None, 30: None if isB else "vmcnt(0)"}
        hook(5, "a5", [f"buffer_load_dword v255, v154, s[{SU if isB else SWO}:{(SU if isB else SWO)+3}], 0 offen"])
        if not isB:
            sl = [(15, "a2"), (15, "a5"), (16, "a2"), (16, "a5")] + [(n, "a5") for n in range(17, 23)] + [(n, "a5") for n in range(23, 28)]
            for k, (n, pos) in enumerate(sl):
                g0, i = 8 + 4 * (k // 5), k % 5
                hook(n, pos, [f"s_add_u32 m0, s91, {5120*g0+1024*i}", f"s_add_u32 s12, s90, {40960*g0}",
                              f"buffer_load_dwordx4 v{155+i}, s[{SWO}:{SWO+3}], s12 offen lds"])
        dsx = {}
        if isB:
            for i in range(8):
                hook(15 + i, "a2", [f"s_mov_b32 s12, {81920*i}",
                                    f"buffer_load_dwordx2 {v(URAW+2*i,2)}, v{UOFF}, s[{SU}:{SU+3}], s12 offen"])
            hook(25, "a1w", ["s_waitcnt vmcnt(0)"])
            dsx[(24, "a1")] = [f"ds_write_b64 v{UTZ}, v[4:5]"]
            for k in range(4):
                for e, pos in ((0, "a1"), (1, "a3")):
                    i = 2 * k + e
                    dsx.setdefault((25 + k, pos), []).extend(
                        [f"ds_write_b64 v{USW}, {v(URAW+2*i,2)}", f"ds_read_b64_tr_b16 {v(UTR+2*i,2)}, v{USR}"])
                    dsx.setdefault((26 + k, "a2" if e == 0 else "a5"), []).append(
                        f"ds_write_b64 v{UTW}, {v(UTR+2*i,2)} offset:{128*i}")
        prio = {}
        for st, en in ((0, 2), (3, 6), (7, 14), (15, 22), (23, 30)):
            ln = en - st + 1
            for n in range(st, en + 1):
                prio[n] = 3 - (n - st) * 4 // max(ln, 4) if ln >= 4 else 3 - (n - st)
        prio[31] = 3 if isB else 0

        def run(n, pos):
            for ln in hk.get((n, pos), []):
                a(ln)
            for ln in dsx.get((n, pos), []):
                a(ln)
                lg.issue("x")
        a(f"s_setprio {prio[0]}")
        for n in range(32):
            cur, nxt = S[n & 1], S[(n + 1) & 1]
            Vc, Vp = V[n & 1], V[(n + 1) & 1]
            eop = "v_exp_f32" if "noexp" not in self.x else "v_fract_f32"
            e = lambda lo, hi: [a(f"{eop} v{cur+i}, v{cur+i}") for i in range(lo, hi + 1)]
            e(0, 1)
            if n > 0:
                pv(O1, nxt + 24, Vp + 4)
            run(n, "a1w")
            if n < 31:
                rdV(n + 1, 0)
            run(n, "a1")
            e(2, 5)
            if n < 31:
                qk4(n + 1, nxt)
            run(n, "a2")
            e(6, 13)
            pv(O0, cur, Vc)
            if n < 31:
                rdV(n + 1, 1)
            run(n, "a3")
            e(14, 17)
            pv(O0, cur + 8, Vc + 4)
            if n < 31:
                lg.wait(("K16", n + 1))
            if n % 2 == 0 and n + 2 < 32:
                rdK4(n + 2)
            e(18, 21)
            if n < 31:
                qk16(nxt, QA)
            run(n, "a5")
            e(22, 25)
            if n < 31:
                qk16(nxt + 16, QB)
            last = len(lg.q)
            if n + 2 < 32:
                rdK16(n + 2)
            if n < 31 and prio[n + 1] != prio[n] and n not in bars:
                a(f"s_setprio {prio[n+1]}")
            e(26, 29)
            pv(O1, cur + 16, Vc)
            if n < 31:
                cnt = len(lg.q) - last
                w = f"lgkmcnt({cnt})"
                lg.q = lg.q[last:]
                if n in bars and bars[n]:
                    w = bars[n] + " " + w
                a(f"s_waitcnt {w}")
                if n in bars:
                    a("s_barrier")
                    a(f"s_setprio {prio[n+1]}")
            e(30, 31)
        a("s_nop 1")
        pv(O1, S[1] + 24, V[1] + 4)
        self.stamp("attn")

    def lds_sync(self, off, n, vt):
        a = self.a
        lp, dn = a.label("Lsy"), a.label("Lsyd")
        a(f"v_mov_b32 v{vt}, {CNT+off}")
        a(f"v_mov_b32 v{vt+1}, 1")
        a("s_mov_b64 exec, 1")
        a(f"ds_add_u32 v{vt}, v{vt+1}")
        a("s_mov_b64 exec, -1")
        return lp, dn

    def lds_spin(self, lp, dn, n, vt):
        a = self.a
        a("s_mov_b32 s82, 0")
        a.put(lp)
        a(f"ds_read_b32 v{vt+1}, v{vt}")
        a("s_add_u32 s82, s82, 1")
        a("s_waitcnt lgkmcnt(0)")
        a(f"v_readfirstlane_b32 s83, v{vt+1}")
        a("s_cmp_gt_u32 s82, 0x40000")
        a(f"s_cbranch_scc1 {dn}")
        a(f"s_cmp_lt_u32 s83, {n}")
        a(f"s_cbranch_scc1 {lp}")
        a.put(dn)

    def setupB(self):
        a = self.a
        a(f"s_max_i32 s12, s{sD0}, 0")
        a("s_lshl_b32 s12, s12, 1")
        a("s_load_dwordx2 s[94:95], s[42:43], s12")
        a(f"s_mul_i32 s11, s10, {KCS}")
        a(f"s_add_u32 s11, s11, {KC}")
        a("v_and_b32 v10, 15, v0")
        a("v_lshrrev_b32 v11, 4, v0")
        a("v_sub_u32 v12, 0x7ef, v10")
        a("v_lshrrev_b32 v12, 1, v12")
        a("v_lshl_add_u32 v12, v11, 2, v12")
        a("v_lshlrev_b32 v12, 2, v12")
        a("v_and_b32 v13, 1, v0")
        a("v_xor_b32 v13, 1, v13")
        a("v_mul_u32_u24 v13, 0x1040, v13")
        a("s_sub_u32 s12, s11, 960")
        a("v_add3_u32 v240, v12, v13, s12")
        for b in range(1, 4):
            a(f"v_subrev_u32 v{240+b}, {1024*b}, v240")
        a("v_lshlrev_b32 v12, 5, v10")
        a(f"s_mul_i32 s12, s10, {UTS}")
        a(f"s_add_u32 s12, s12, {UT}")
        a("v_lshl_add_u32 v13, v11, 4, v12")
        a("v_add_u32 v244, s12, v13")
        a("s_lshr_b32 s12, s10, 1")
        a("s_lshl_b32 s12, s12, 6")
        a("s_add_u32 s12, s12, s11")
        a("v_lshl_add_u32 v13, v11, 3, v12")
        a("v_add_u32 v245, s12, v13")
        a("v_bfe_u32 v12, v0, 2, 2")
        a(f"s_movk_i32 s12, {KCS}")
        a("v_lshrrev_b32 v13, 1, v12")
        a("v_lshlrev_b32 v13, 6, v13")
        a("v_mad_u32_u24 v13, v12, s12, v13")
        a("v_lshl_add_u32 v13, v11, 5, v13")
        a("v_and_b32 v12, 3, v0")
        a("v_lshl_add_u32 v13, v12, 3, v13")
        a("s_lshl_b32 s12, s10, 10")
        a(f"s_add_u32 s12, s12, {KC}")
        a("v_add_u32 v246, s12, v13")
        a("s_mul_i32 s11, s10, 1310720")
        a(f"s_lshl_b32 s12, s{sD0}, 1")
        a("s_add_u32 s11, s11, s12")
        a("s_add_u32 s11, s11, 1280")
        a("s_movk_i32 s12, 2560")
        a("v_mov_b32 v247, s11")
        a("v_mad_u32_u24 v247, v0, s12, v247")
        a("s_mul_i32 s11, s10, 10240")
        a(f"s_add_u32 s11, s11, {WO}")
        a("v_add_u32 v9, s11, v8")
        a("s_lshr_b32 s11, s2, 3")
        a("s_mul_i32 s11, s11, 81920")
        a("s_and_b32 s12, s2, 7")
        a("s_mul_i32 s12, s12, 160")
        a("s_add_u32 s11, s11, s12")
        a("s_mul_i32 s12, s10, 156")
        a("s_add_u32 s11, s11, s12")
        a("s_cmp_lt_u32 s10, 2")
        a("s_cselect_b32 s11, s11, 0x80000000")
        a("s_movk_i32 s12, 1280")
        a("v_mov_b32 v154, s11")
        a("v_mad_u32_u24 v154, v0, s12, v154")
        a("s_waitcnt lgkmcnt(0)")
        a("s_lshl_b32 s92, s94, 16")
        a("s_and_b32 s93, s94, 0xffff0000")
        a("s_lshl_b32 s94, s95, 16")
        a("s_and_b32 s95, s95, 0xffff0000")

    def tailB(self):
        a = self.a
        URAW, TS, ACC = 160, 176, 208

        def reads(r):
            base = 16 + 64 * (r & 1)
            out = []
            for k in range(8):
                sidx = 8 * k + r
                o = 16 * (15 - (sidx & 15))
                A = base + 4 * k
                out.append(f"ds_read2_b32 {v(A,2)}, v{240+(sidx>>4)} offset0:{o} offset1:{o+1}")
                out.append(f"ds_read2_b32 {v(A+2,2)}, v{240+(sidx>>4)} offset0:{o+2} offset1:{o+3}")
                e = 8 * k - r
                out.append(f"ds_read_b128 {v(base+32+4*k,4)}, v244 offset:{64*(e+7)}")
            return out
        for i in range(3):
            a(f"ds_write_b128 v9, {v(80+4*i,4)} offset:{1024*i}")
        r0 = reads(0)
        for ln in r0[:9]:
            a(ln)
        for i in range(3):
            a(f"ds_write_b128 v9, {v(96+4*i,4)} offset:{3072+1024*i}")
        for ln in r0[9:]:
            a(ln)
        a("s_waitcnt lgkmcnt(15)")
        a("s_barrier")
        self.stamp("T1")
        self.stop_at("t1")
        a("s_setprio 1")
        a("s_mov_b32 s13, 0xffff0000")
        a(f"s_cmp_lt_u32 s{sG}, 3")
        a("s_waitcnt lgkmcnt(0)")
        a("s_cbranch_scc1 L_fin")
        extra = []
        for i in range(8):
            for hh, sp in ((0, "s[92:93]"), (1, "s[94:95]")):
                t = TS + 4 * i + 2 * hh
                u = URAW + 2 * i + hh
                extra.append([f"v_lshlrev_b32 v{t}, 16, v{u}", f"v_and_b32 v{t+1}, s13, v{u}",
                              f"v_pk_mul_f32 {v(t,2)}, {v(t,2)}, {sp}",
                              f"v_cvt_pk_bf16_f32 v{t+1}, v{t}, v{t+1}",
                              f"v_lshlrev_b32 v{t}, 16, v{t+1}", f"v_and_b32 v{t+1}, s13, v{t+1}"])
        extra = [x for grp in extra for x in grp]

        def fin(i):
            return [f"v_cvt_pk_bf16_f32 v{16+2*i}, v{ACC+4*i}, v{ACC+4*i+1}",
                    f"v_cvt_pk_bf16_f32 v{17+2*i}, v{ACC+4*i+2}, v{ACC+4*i+3}",
                    f"ds_write_b64 v245, {v(16+2*i,2)} offset:{512*i}"]
        while extra:
            a(extra.pop(0))
        self.stamp("cv_s")
        pend = []
        for r in range(8):
            base = 16 + 64 * (r & 1)
            nxt = reads(r + 1) if r < 7 else []
            cnt = 0
            for sg in range(8):
                if r == 7 and 1 <= sg <= 5:
                    pend += fin(sg - 1)
                for i in range(sg, 8):
                    first = r == 0 and sg == 0
                    c = "0" if first else v(ACC + 4 * i, 4)
                    a(f"v_mfma_f32_16x16x32_bf16 {v(ACC+4*i,4)}, {v(base+4*sg,4)}, {v(base+32+4*(i-sg),4)}, {c}")
                    if nxt and cnt % 5 != 4:
                        a(nxt.pop(0))
                    elif pend:
                        a(pend.pop(0))
                    elif extra:
                        a(extra.pop(0))
                        if r < 7 and extra and cnt % 5 == 4:
                            a(extra.pop(0))
                    cnt += 1
            assert not nxt
            if r < 7:
                a("s_waitcnt lgkmcnt(0)")
        assert not extra
        for ln in pend + fin(5) + fin(6) + fin(7):
            a(ln)
        a("s_waitcnt lgkmcnt(0)")
        self.stamp("conv")
        lp, dn = self.lds_sync(8, 4, 2)
        self.lds_spin(lp, dn, 4, 2)
        self.stamp("T2")
        for i in range(8):
            a(f"ds_read_b64_tr_b16 {v(32+2*i,2)}, v246 offset:{128*i}")
        for i in range(8):
            a(f"s_waitcnt lgkmcnt({7-i})")
            y = 48 + 4 * i
            for hh in range(2):
                a(f"v_lshlrev_b32 v{y+2*hh}, 16, v{32+2*i+hh}")
                a(f"v_and_b32 v{y+2*hh+1}, s13, v{32+2*i+hh}")
            for hh in range(4):
                a(f"v_add_f32 v{y+hh}, v{y+hh}, v{TS+4*i+hh}")
            a(f"v_cvt_pk_bf16_f32 v{y}, v{y}, v{y+1}")
            a(f"v_cvt_pk_bf16_f32 v{y+1}, v{y+2}, v{y+3}")
            a(f"s_mov_b32 s12, {163840*i}")
            a(f"buffer_store_dwordx2 {v(y,2)}, v247, s[{SOUT}:{SOUT+3}], s12 offen")
        a("s_branch L_fin")

    def setupA(self):
        a = self.a
        a(f"s_lshl_b32 s11, s{sW}, 11")
        a("s_lshr_b32 s12, s2, 3")
        a("s_add_u32 s11, s11, s12")
        a("s_lshl_b32 s11, s11, 7")
        a("v_lshl_add_u32 v154, v0, 12, s11")
        a(f"s_mul_i32 s11, s{sW}, 10240")
        a(f"s_add_u32 s11, s11, {WO}")
        a("v_add_u32 v9, s11, v8")
        a(f"s_mul_i32 s14, s{sT}, 81920")
        a(f"s_add_u32 s14, s14, {OIMG}")
        a(f"s_mul_i32 s15, s{sG}, 2560")
        a("s_add_u32 s15, s15, s14")
        a("v_mov_b32 v144, 0xdddddddd")
        a("v_mov_b32 v145, v8")
        a(f"v_add_u32 v146, {SLOT}, v8")
        a(f"v_add_u32 v147, {2*SLOT}, v8")
        for r in range(16):
            a(f"v_mov_b64 {v(80+2*r,2)}, 0")

    def setupA2(self):
        return ["v_mov_b32 v10, v149", "v_mov_b32 v11, v150", f"v_add_u32 v149, {SLOT}, v148", f"v_add_u32 v150, {2*SLOT}, v148",
                f"v_add_u32 v152, {SLOT}, v151", f"v_add_u32 v153, {2*SLOT}, v151"]

    def tables(self):
        out = []
        cols = [[] for _ in range(16)]
        for l in range(64):
            G, r, c = l >> 4, (l >> 2) & 3, l & 3
            for m in range(5):
                P = 4 * m + G
                g2, p = divmod(P, 10)
                for tt in range(2):
                    row = 80 * g2 + (20 * (p >> 1) + 4 * (p & 1) + 8 * tt if p < 8 else 20 * (p - 8 + 2 * tt) + 16)
                    cols[2 * m + tt].append(WO + 51200 + 160 * (row + r) + 8 * c)
            cols[10].append((l & 15) * 2560 + 8 * G)
            cols[11].append(8 * (l & 7))
            cols[12].append(2048 + 8 * l)
            cols[13].append((G & 1) * 20480 + 16 * (l & 15) + 256 * (l >> 5))
            cols[14].append(G * 20480 + 16 * (l & 15))
            cols[15].append(2560 + 336 * (l >> 5) + 16 * (l & 31) if (l & 31) <= 20 else 0x30000)
        out.append(".p2align 7")
        out.append(".type L_tabA,@object")
        out.append("L_tabA:")
        for k in range(4):
            for l in range(64):
                out.append(".long " + ", ".join(str(cols[4 * k + e][l]) for e in range(4)))
        return out

    def tailA(self):
        a = self.a
        O = (80, 96)
        AD, OF, ACC, TR, NR = 240, 16, 96, 116, 30
        a("s_setprio 3")
        a("s_barrier")
        self.stamp("T1")
        self.stop_at("t1")
        for i in range(6):
            a(f"ds_read_b128 {v(16+4*i,4)}, v9 offset:{1024*i}")
        a(f"s_lshl_b32 s10, s{sW}, 9")
        a("s_add_u32 s10, s10, s15")
        a("s_add_u32 s11, s10, 40960")
        a(f"s_and_b32 s12, s{sW}, 1")
        a("s_lshl_b32 s12, s12, 8")
        a(f"s_lshr_b32 s13, s{sW}, 1")
        a("s_lshl3_add_u32 s12, s13, s12")
        a("s_add_u32 s15, s12, s15")
        a("s_mov_b32 s13, 0")
        for T in range(2):
            a(f"s_waitcnt lgkmcnt({3-3*T})")
            for i in range(6):
                a(f"v_pk_add_f32 {v(O[T]+2*i,2)}, {v(O[T]+2*i,2)}, {v(16+12*T+2*i,2)}")
        a.put("L_lext")
        for T in range(2):
            a(f"v_mov_b32 v{16+2*T}, v{O[T]+8}")
            a(f"v_mov_b32 v{17+2*T}, v{O[T]+8}")
        a(f"v_pk_mul_f32 v[20:21], {v(O[0],2)}, 0 op_sel_hi:[1,0]")
        a(f"v_pk_mul_f32 v[26:27], {v(O[1],2)}, 0 op_sel_hi:[1,0]")
        a("v_permlane32_swap_b32 v16, v17")
        a("v_permlane32_swap_b32 v18, v19")
        for i in range(1, 6):
            for T in range(2):
                a(f"v_pk_fma_f32 {v(20+6*T,2)}, {v(O[T]+2*i,2)}, 0, {v(20+6*T,2)} op_sel_hi:[1,0,1]")
        a("v_rcp_f32 v22, v17")
        a("v_rcp_f32 v24, v19")
        a("s_cmp_eq_u32 s13, 1")
        a("s_cbranch_scc1 L_norm")
        a("v_pk_add_f32 v[20:21], v[20:21], v[26:27]")
        a("v_min_f32 v16, v17, v19")
        a("v_max_f32 v18, v17, v19")
        a("v_add3_u32 v20, v20, v21, 0" if False else "v_add_f32 v20, v20, v21")
        a(f"s_mov_b32 s12, {f2u(2.0**48):#x}")
        a("v_add_f32 v16, v16, v20")
        a("v_cmp_ge_f32 s[84:85], s12, v18")
        a(f"v_cmp_le_f32 vcc, {f2u(2.0**-24):#x}, v16")
        a("s_nop 0")
        a("s_and_b64 vcc, vcc, s[84:85]")
        a("s_cmp_eq_u64 vcc, -1")
        a("s_branch L_slow" if self.force_slow else "s_cbranch_scc0 L_slow")
        a.put("L_norm")
        a("s_nop 0")
        for T in range(2):
            for i in range(6):
                a(f"v_pk_mul_f32 {v(O[T]+2*i,2)}, {v(O[T]+2*i,2)}, {v(22+2*T,2)} op_sel_hi:[1,0]")
            for q in range(4):
                a(f"v_cvt_pk_bf16_f32 v{28+4*T+q}, v{O[T]+2*q}, v{O[T]+2*q+1}")
            a(f"buffer_store_dwordx4 {v(28+4*T,4)}, v10, s[{SWS}:{SWS+3}], s{10+T} offen sc1")
            for q in range(2):
                a(f"v_cvt_pk_bf16_f32 v{36+2*T+q}, v{O[T]+8+2*q}, v{O[T]+9+2*q}")
        a(f"s_add_u32 s12, s90, s90")
        a(f"s_mul_i32 s13, s{sG}, 160")
        a("v_permlane32_swap_b32 v36, v38")
        a("v_permlane32_swap_b32 v37, v39")
        a("s_sub_u32 s12, s12, s13")
        a(f"buffer_store_dwordx2 v[36:37], v11, s[{SWS}:{SWS+3}], s15 offen offset:2048 sc1")
        self.stamp("Oiss")
        a("s_add_u32 m0, s91, s91")
        a(f"s_sub_u32 m0, m0, {WO}")
        for gi in range(2):
            for i in range(5):
                a("s_nop 0")
                a(f"buffer_load_dwordx4 v{155+i}, s[{SWO}:{SWO+3}], s12 offen lds")
                a("s_add_u32 m0, m0, 1024")
            a("s_add_u32 s12, s12, 40960")
        order = list(range(10, 20)) + list(range(10))
        seq = [(ks, ct) for ks in order for ct in range(5)]

        def issue(n):
            ks, ct = seq[n]
            if n == 50:
                for k in range(10):
                    a(f"v_subrev_u32 v{AD+k}, 51200, v{AD+k}")
            F = TR + 4 * (n % NR)
            off = 25600 * ((ks // 5) % 2) + 32 * ct
            m = ks % 5
            a(f"ds_read_b64_tr_b16 {v(F,2)}, v{AD+2*m} offset:{off}")
            a(f"ds_read_b64_tr_b16 {v(F+2,2)}, v{AD+2*m+1} offset:{off}")
        for n in range(9):
            issue(n)
        a(f"v_mov_b32 v12, {CNT}")
        a("v_mov_b32 v13, 1")
        a(f"s_lshl_b32 s10, s{sT}, 7")
        a(f"s_add_u32 s10, s10, {FLG_O}")
        a("s_waitcnt vmcnt(10)")
        self.stamp("Ostored")
        a("s_mov_b64 exec, 1")
        a("ds_add_rtn_u32 v15, v12, v13")
        a(f"v_mov_b32 v12, s{sN}")
        a(f"v_mov_b32 v13, s{sN+1}")
        a(f"s_lshl_b32 s13, s{sG}, 3")
        a("v_mov_b32 v6, s13")
        a("s_waitcnt lgkmcnt(0)")
        a("v_readfirstlane_b32 s13, v15")
        a("s_cmp_eq_u32 s13, 3")
        a("s_cbranch_scc0 L_noflag")
        a(f"buffer_store_dwordx2 v[12:13], v6, s[{SWS}:{SWS+3}], s10 offen sc1")
        a.put("L_noflag")
        a("s_mov_b64 exec, -1")
        a(f"buffer_load_dwordx2 v[2:3], v251, s[{SWS}:{SWS+3}], s10 offen sc1")
        for n in range(9, NR):
            issue(n)
        a("s_waitcnt vmcnt(0)")
        lp, dn = self.lds_sync(4, 4, 4)
        a("s_mov_b32 s82, 0")
        a.put("L_po")
        a(f"v_cmp_eq_u64 vcc, s[{sN}:{sN+1}], v[2:3]")
        a("s_add_u32 s82, s82, 1")
        a("s_cmp_eq_u64 vcc, -1")
        a("s_cbranch_scc1 L_pod")
        a("s_cmp_gt_u32 s82, 20000")
        a("s_cbranch_scc1 L_pod")
        a(f"buffer_load_dwordx2 v[2:3], v251, s[{SWS}:{SWS+3}], s10 offen sc1")
        a("s_waitcnt vmcnt(0)")
        a("s_branch L_po")
        a.put("L_pod")
        self.stamp("Oseen")
        a(f"s_mul_i32 s12, s{sW}, 20480")
        a("s_add_u32 s12, s12, s14")

        def oload(k):
            ks = order[k]
            a(f"s_add_u32 s13, s12, {4096*(ks//4)}")
            a(f"buffer_load_dwordx4 {v(OF+4*ks,4)}, v8, s[{SWS}:{SWS+3}], s13 offen offset:{1024*(ks%4)} sc1")
        NUP = 10
        for k in range(NUP):
            oload(k)
        self.lds_spin(lp, dn, 4, 4)
        a(f"s_setprio {OPRIO}")
        self.stamp("T2")
        for n in range(100):
            ks, ct = seq[n]
            k = n // 5
            if ct == 0:
                if k + NUP < 20:
                    oload(k + NUP)
                vm = min(19, k + NUP) - k
                lk = 10 if n + NR - 5 < 100 else 0
                a(f"s_waitcnt vmcnt({vm}) lgkmcnt({lk})")
            F = TR + 4 * (n % NR)
            c = "0" if k == 0 else v(ACC + 4 * ct, 4)
            a(f"v_mfma_f32_16x16x32_bf16 {v(ACC+4*ct,4)}, {v(F,4)}, {v(OF+4*ks,4)}, {c}")
            if n >= 1 and n - 1 + NR < 100:
                issue(n - 1 + NR)
            if n in (0, 50):
                self.stamp(f"op{n}")
        a(f"s_lshl_b32 s12, s{sT}, 6")
        a(f"s_lshl4_add_u32 s12, s{sW}, s12")
        a("s_mul_i32 s12, s12, 2560")
        a(f"s_mul_i32 s13, s{sG}, 160")
        a("s_add_u32 s12, s12, s13")
        for ct in range(5):
            a(f"v_cvt_pk_bf16_f32 v{116+2*ct}, v{ACC+4*ct}, v{ACC+4*ct+1}")
            a(f"v_cvt_pk_bf16_f32 v{117+2*ct}, v{ACC+4*ct+2}, v{ACC+4*ct+3}")
            a(f"buffer_store_dwordx2 {v(116+2*ct,2)}, v250, s[{SOUT}:{SOUT+3}], s12 offen offset:{32*ct}")
        a("s_branch L_fin")

    def slow(self):
        a = self.a
        S0, O0, O1, QA, QB, Q4, K4, K16, V, IDX, AV = 16, 80, 96, 112, 116, 120, 122, 124, 128, 144, 151
        M0, M1 = 60, 61
        a.put("L_slow")
        a("v_and_b32 v62, 31, v0")
        a("v_lshlrev_b32 v62, 3, v62")
        a(f"v_mov_b32 v{M0}, 0xff800000")
        a(f"v_mov_b32 v{M1}, 0xff800000")
        for ps in range(2):
            if ps == 1:
                for M, t in ((M0, 63), (M1, 64)):
                    a(f"v_mov_b32 v{t}, v{M}")
                a("s_nop 1")
                a(f"v_permlane32_swap_b32 v{M0}, v63")
                a(f"v_permlane32_swap_b32 v{M1}, v64")
                a("s_nop 1")
                a(f"v_max_f32 v{M0}, v{M0}, v63")
                a(f"v_max_f32 v{M1}, v{M1}, v64")
                for r in range(32):
                    a(f"v_mov_b32 v{O0+r}, 0")
            a("s_mov_b32 s8, 0")
            a.put(f"L_sl{ps}")
            a("s_lshr_b32 s9, s8, 1")
            a(f"s_mul_i32 s9, s9, {BLK}")
            a("s_and_b32 s82, s8, 1")
            a("s_lshl_b32 s12, s82, 10")
            a("s_add_u32 s12, s12, s9")
            a(f"buffer_load_dwordx4 {v(K16,4)}, v8, s[{SWS}:{SWS+3}], s12 offen sc1")
            a("s_lshl_b32 s12, s82, 8")
            a("s_add_u32 s12, s12, s9")
            a(f"buffer_load_dwordx2 {v(K4,2)}, v62, s[{SWS}:{SWS+3}], s12 offen offset:2048 sc1")
            if ps == 1:
                a("s_mul_i32 s12, s82, 1344")
                a("s_add_u32 s12, s12, s9")
                a(f"buffer_load_dwordx4 {v(V,4)}, v{AV}, s[{SWS}:{SWS+3}], s12 offen sc1")
                a(f"buffer_load_dwordx4 {v(V+4,4)}, v{AV}, s[{SWS}:{SWS+3}], s12 offen offset:672 sc1")
            a("s_waitcnt vmcnt(0)")
            a(f"v_mfma_f32_32x32x4_2b_bf16 {v(S0,32)}, {v(K4,2)}, {v(Q4,2)}, 0 cbsz:1 abid:0")
            a.nop(18)
            a(f"v_mfma_f32_32x32x16_bf16 {v(S0,16)}, {v(K16,4)}, {v(QA,4)}, {v(S0,16)}")
            a(f"v_mfma_f32_32x32x16_bf16 {v(S0+16,16)}, {v(K16,4)}, {v(QB,4)}, {v(S0+16,16)}")
            a.nop(14)
            if ps == 0:
                for T, M in ((0, M0), (1, M1)):
                    for r in range(0, 16, 2):
                        a(f"v_max3_f32 v{M}, v{S0+16*T+r}, v{S0+16*T+r+1}, v{M}")
            else:
                for T, M in ((0, M0), (1, M1)):
                    for r in range(16):
                        a(f"v_sub_f32 v{S0+16*T+r}, v{S0+16*T+r}, v{M}")
                for r in range(32):
                    a(f"v_exp_f32 v{S0+r}, v{S0+r}")
                a("s_nop 1")
                for T, O in ((0, O0), (1, O1)):
                    for f in range(2):
                        a(f"v_smfmac_f32_32x32x32_bf16 {v(O,16)}, {v(V+4*f,4)}, {v(S0+16*T+8*f,8)}, v{IDX}")
                a.nop(14)
            a("s_add_u32 s8, s8, 1")
            a("s_cmp_lt_u32 s8, 64")
            a(f"s_cbranch_scc1 L_sl{ps}")
        a("s_mov_b32 s13, 1")
        a("s_branch L_lext")

    def dump(self):
        a = self.a
        a.put("L_dump")
        a("s_waitcnt vmcnt(0) lgkmcnt(0)")
        a("s_barrier")
        a(f"s_lshl_b32 s10, s{sW}, 10")
        a("v_lshl_add_u32 v250, v0, 4, s10")
        a(f"s_mul_i32 s11, s2, {LDS_BYTES}")
        a(f"s_add_u32 s11, s11, {DBG}")
        a("v_mov_b32 v251, v250")
        for i in range(20):
            a("ds_read_b128 v[252:255], v251")
            a("s_waitcnt lgkmcnt(0)")
            a(f"buffer_store_dwordx4 v[252:255], v250, s[{SWS}:{SWS+3}], s11 offen")
            a("s_waitcnt vmcnt(0)")
            a("v_add_u32 v251, 0x2000, v251")
            a("s_add_u32 s11, s11, 0x2000")
        if self.dump_regs:
            lo, n = self.dump_regs
            a(f"s_lshl_b32 s10, s2, 3")
            a(f"s_add_u32 s10, s10, s{sW}")
            a(f"s_mul_i32 s10, s10, {256*n}")
            a(f"s_add_u32 s10, s10, {DBG + 256*LDS_BYTES}")
            a("v_lshlrev_b32 v250, 2, v0")
            for i in range(n):
                a(f"buffer_store_dword v{lo+i}, v250, s[{SWS}:{SWS+3}], s10 offen")
                a("s_add_u32 s10, s10, 256")
            a("s_waitcnt vmcnt(0)")
        a("s_endpgm")

    def build(self):
        a = self.a
        self.prologue()
        self.startA()
        self.qgemm()
        self.attention(False)
        self.tailA()
        a.put("L_B0")
        self.startB()
        self.bphase1()
        self.attention(True)
        self.tailB()
        self.slow()
        if self.stop:
            self.dump()
        a.put("L_fin")
        if self.stamps:
            self.stamp("issued")
            a("s_waitcnt vmcnt(0)")
            self.stamp("end")
            a("s_memrealtime s[86:87]")
            a("s_lshl_b32 s10, s2, 3")
            a(f"s_add_u32 s10, s10, s{sW}")
            a("s_lshl_b32 s10, s10, 9")
            a(f"s_add_u32 s10, s10, {STAMP}")
            a("v_lshlrev_b32 v1, 2, v0")
            a("s_waitcnt lgkmcnt(0)")
            a("v_writelane_b32 v254, s86, 63")
            a(f"buffer_store_dword v254, v1, s[{SWS}:{SWS+3}], s10 offen")
            a(f"buffer_store_dword v253, v1, s[{SWS}:{SWS+3}], s10 offen offset:256")
        if self.rt:
            a("s_cmp_lt_u32 s2, 250")
            a("s_cbranch_scc1 L_end")
            a(f"s_cmp_eq_u32 s{sW}, 4")
            a("s_cbranch_scc0 L_end")
            a("s_waitcnt vmcnt(0)")
            a("s_memrealtime s[86:87]")
            a("s_memtime s[94:95]")
            a("s_sub_u32 s10, s2, 248")
            a("s_lshl_b32 s10, s10, 3")
            a("v_mov_b32 v1, s10")
            a("s_waitcnt lgkmcnt(0)")
            a("s_sub_u32 s94, s94, s96")
            a(f"s_sub_u32 s86, s86, s{sN}")
            a("v_mov_b32 v4, s86")
            a("v_mov_b32 v5, s94")
            a("s_mov_b64 exec, 1")
            a("global_store_dwordx2 v1, v[4:5], s[46:47]")
        a.put("L_end")
        a("s_endpgm")
        a.put("L_codeend")
        a.lines += self.tables()
        return a


HEAD = open("cdna_kernels/" + NAME + ".s.ref").read().split("; Override launch")[0]


def emit(path, **kw):
    g = Gen(**kw)
    a = g.build()
    a.lines, msgs = autofix(a.lines)
    if kw.get("verbose", path.endswith("prompt.s")):
        for m in msgs[:30]:
            print("fixed", m)
    assert not check_hazards(a.lines)
    if path.endswith('prompt.s'):
        for m in check_inflight(a.lines)[:30]:
            print(m)
    src = HEAD + f"""; @launch grid=(256,1,1) block=(512,1,1) lds={LDS_BYTES}
.amdgcn_target "amdgcn-amd-amdhsa--gfx950"
.text
.globl {NAME}_kernel
.p2align 8
.type {NAME}_kernel,@function
{NAME}_kernel:
{a.text()}.section .rodata,"a"
.p2align 6
.amdhsa_kernel {NAME}_kernel
  .amdhsa_next_free_vgpr 256
  .amdhsa_next_free_sgpr 102
  .amdhsa_accum_offset 256
  .amdhsa_group_segment_fixed_size 0
  .amdhsa_kernarg_size 136
  .amdhsa_user_sgpr_count 2
  .amdhsa_user_sgpr_kernarg_segment_ptr 1
  .amdhsa_system_sgpr_workgroup_id_x 1
.end_amdhsa_kernel
"""
    open(path, "w").write(src)
    if path.endswith('prompt.s'):
        print('klen', g.klen, 'lastpk', g.kpk, 'left', g.kleft)
    return len(msgs)


if __name__ == "__main__":
    import os
    os.makedirs("out", exist_ok=True)
    n = emit("cdna_kernels/" + NAME + ".s")
    emit("b6.s", stop="e0")
    emit("t1.s", stop="t1", dump_regs=(80, 32))
    emit("full.s")
    emit("slow.s", force_slow=True)
    emit("stamp.s", stamps=True)
    emit("rt.s", rt=True)
    for arg in sys.argv[1:]:
        emit(f"stamp_{arg}.s", stamps=True, x=arg.split("+"))
        emit(f"full_{arg}.s", x=arg.split("+"))
    open("stn.txt", "w").write(" ".join(STN))
    print("hazards", n)
```

```python
import sys, struct
from asmlib import Asm, v, s, check_hazards, autofix, check_inflight

NAME = "concat_heads__grouped_kv_mqa__ssm_conv_s4__prompt"

BLK = 5248
SLOT = 41984
WL = 81920
WOFF = (58368, 0, 37888, 58368, 0)
AUX = 110592
KGB = 102400
KGS = 4352
KVP = 102400
QP = 102400
KC = 125952
KCS = 8320
WO = 1024
UT = 103424
UTS = 4592
UTP = 2544
KPS = 4224
USCR = 123840
CNT = 163808
LDS_BYTES = 163840

FLG_KV = 0x30000
FLG_O = 0x31000
FLG_K = 0x32000
OIMG = 0x40000
KIMG = 0x2C0000
WS_SIZE = 0x580000
DBG = 0x700000
STAMP = 0x600000

sW, sT, sG, sD0 = 3, 4, 5, 50
SX, SWQ, SKV, SWS, SOUT, SWO, SU = 52, 56, 60, 64, 68, 72, 76
sN = 80
sST = 88

LOG2E = 1.4426950408889634
STN = ['start']
KBAR = (0, 40, 1000, 1000, 1000)
KGW = 8
WV0 = 3
OPRIO = 0
NUP = 10
PROBE = 0x98986420
LT1 = ('a1', 'a2', 'a3', 'a5')
OST = 2
NXU = 8


def f2u(x):
    return struct.unpack("<I", struct.pack("<f", x))[0]


class LG:
    def __init__(self, a, name, maxc):
        self.a, self.name, self.maxc, self.q = a, name, maxc, []

    def issue(self, tag=None):
        self.q.append(tag)

    def wait(self, tag):
        idx = max(i for i, t in enumerate(self.q) if t == tag)
        n = len(self.q) - 1 - idx
        self.a(f"s_waitcnt {self.name}({min(n, self.maxc)})")
        self.q = self.q[idx + 1:]

    def waitstr(self, tag):
        idx = max(i for i, t in enumerate(self.q) if t == tag)
        n = len(self.q) - 1 - idx
        self.q = self.q[idx + 1:]
        return f"{self.name}({min(n, self.maxc)})"

    def all(self):
        self.q = []


class Gen:
    def __init__(self, stop=None, stamps=False, force_slow=False, dump_regs=None, rt=False, x=()):
        self.rt = rt
        self.x = set(x) | ({'not'} if 'touch' not in x and 'latet' not in x else set())
        self.a = Asm()
        self.stop = stop
        self.stamps = stamps
        self.force_slow = force_slow
        self.debug = stop is not None or stamps
        self.dump_regs = dump_regs

    def srd(self, d, base, size):
        a = self.a
        a(f"s_mov_b32 s{d}, s{base}")
        a(f"s_mov_b32 s{d+1}, s{base+1}")
        a(f"s_mov_b32 s{d+2}, {size}")
        a(f"s_mov_b32 s{d+3}, 0x20000")

    def stamp(self, name):
        if self.stamps:
            if name not in STN:
                STN.append(name)
            self.a("s_memtime s[86:87]")
            self.a("s_memrealtime s[88:89]")
            self.a("s_waitcnt lgkmcnt(0)")
            self.a(f"v_writelane_b32 v254, s86, {STN.index(name)}")
            self.a(f"v_writelane_b32 v253, s88, {STN.index(name)}")

    def stop_at(self, name):
        if self.stop == name:
            self.a("s_branch L_dump")

    def cmul(self, d, x, y, conj=False):
        a = self.a
        a(f"v_pk_mul_f32 {v(d,2)}, {v(x,2)}, {v(y,2)} op_sel:[0,0] op_sel_hi:[1,0]")
        neg = "neg_hi:[0,1,0]" if conj else "neg_lo:[0,1,0]"
        return f"v_pk_fma_f32 {v(d,2)}, {v(x,2)}, {v(y,2)}, {v(d,2)} op_sel:[1,1,0] op_sel_hi:[0,1,1] {neg}"

    def cmuls(self, lst, conj=False):
        tail = [self.cmul(d, x, y, conj) for d, x, y in lst]
        for t in tail:
            self.a(t)

    def get_nonce(self, vt, vz):
        a = self.a
        lp, dn = a.label("Lnon"), a.label("Lnond")
        a("s_mov_b32 s82, 0")
        a.put(lp)
        a(f"v_readfirstlane_b32 s{sN}, {v(vt)}")
        a(f"v_readfirstlane_b32 s{sN+1}, {v(vt+1)}")
        a("s_add_u32 s82, s82, 1")
        a(f"s_bitcmp1_b32 s{sN}, 0")
        a(f"s_cbranch_scc1 {dn}")
        a("s_cmp_gt_u32 s82, 20000")
        a(f"s_cbranch_scc1 {dn}")
        a("s_sleep 4")
        a(f"global_load_dwordx2 {v(vt,2)}, {v(vz)}, s[46:47] sc1")
        a("s_waitcnt vmcnt(0)")
        a(f"s_branch {lp}")
        a.put(dn)

    def wdma(self, c, i):
        return [f"s_add_u32 m0, s85, {WOFF[c]+1024*i}", f"s_add_u32 s12, s84, {163840*c}",
                f"buffer_load_dwordx4 v{2+i}, s[{SWQ}:{SWQ+3}], s12 offen lds"]

    def prologue(self):
        a = self.a
        a("s_cmp_ge_u32 s2, 0x100")
        a("s_cbranch_scc1 L_end")
        a("s_load_dwordx16 s[16:31], s[0:1], 0")
        a("s_load_dwordx16 s[32:47], s[0:1], 64")
        a("s_load_dwordx2 s[48:49], s[0:1], 128")
        if self.rt:
            a("s_memrealtime s[98:99]")
            a("s_memtime s[96:97]")
        if self.stamps:
            a("s_memtime s[86:87]")
            a("s_memrealtime s[88:89]")
        a("s_getpc_b64 s[6:7]")
        a.put("L_pc")
        a("s_lshr_b32 s9, s2, 3")
        a("v_lshlrev_b32 v1, 12, v0")
        a("s_lshl_b32 s8, s9, 7")
        a("v_add_u32 v1, s8, v1")
        a("v_min_u32 v1, L_codeend-L_pc-4, v1")
        a("global_load_dword v255, v1, s[6:7]")
        a("v_lshrrev_b32 v1, 6, v0")
        a("v_and_b32 v0, 63, v0")
        a("s_and_b32 s8, s2, 7")
        a(f"v_readfirstlane_b32 s{sW}, v1")
        a(f"s_and_b32 s{sT}, s9, 3")
        a(f"s_lshl2_add_u32 s{sT}, s8, s{sT}")
        a(f"s_lshr_b32 s{sG}, s9, 2")
        a("v_lshlrev_b32 v8, 4, v0")
        a(f"s_cmp_lt_u32 s{sW}, 4")
        a("s_cbranch_scc0 L_B0")

    def kargwait(self):
        a = self.a
        a("s_waitcnt lgkmcnt(0)")
        if self.stamps:
            a("v_mov_b32 v254, 0")
            a("v_writelane_b32 v254, s86, 0")
            a("v_mov_b32 v253, 0")
            a("v_writelane_b32 v253, s88, 0")
        self.stamp("karg")

    def srds(self):
        self.srd(SWS, 48, 0x10000000 if self.debug else WS_SIZE)
        self.srd(SOUT, 44, 5242880)
        self.srd(SWO, 24, 819200)
        self.srd(SU, 26, 2621440)

    def startA(self):
        a = self.a
        a("s_add_u32 s10, s6, L_tabA-L_pc")
        a("s_addc_u32 s11, s7, 0")
        for k in range(3):
            a(f"global_load_dwordx4 {v(240+4*k,4)}, v8, s[10:11] offset:{1024*k}")
        a("global_load_dwordx4 v[148:151], v8, s[10:11] offset:3072")
        a("v_lshrrev_b32 v2, 4, v0")
        a(f"s_lshl_b32 s13, s{sW}, 2")
        a("v_add_u32 v3, s13, v2")
        a("v_and_b32 v4, 15, v0")
        a("v_xor_b32 v3, v3, v4")
        a("v_lshlrev_b32 v3, 4, v3")
        a("s_movk_i32 s12, 1280")
        a("v_mad_u32_u24 v7, v2, s12, v3")
        a(f"s_mul_i32 s92, s{sT}, 81920")
        a(f"s_mul_i32 s85, s{sW}, 5120")
        a("s_add_u32 s92, s92, s85")
        a(f"s_lshl_b32 s51, s{sW}, 10")
        a(f"s_cmp_ge_u32 s{sG}, 5")
        a("s_cselect_b32 s12, 5, 0")
        a(f"s_sub_u32 s94, s{sG}, s12")
        self.wvoff(2, True, nat=155, n=WV0)
        self.kargwait()
        self.srd(SX, 16, 2621440)
        for it in range(5):
            a("s_lshl_b32 s82, s94, 8")
            a("s_add_u32 s82, s82, s92")
            a("s_lshl_b32 s83, s94, 14")
            a("s_add_u32 m0, s83, s51")
            a("s_add_u32 s94, s94, 1")
            for m in range(4):
                a(f"buffer_load_dwordx4 v7, s[{SX}:{SX+3}], s82 offen lds")
                if m < 3:
                    a("s_add_u32 m0, m0, 4096")
                    a("s_add_u32 s82, s82, 20480")
            if it < 4:
                a("s_cmp_eq_u32 s94, 5")
                a("s_cselect_b32 s94, 0, s94")
            if it == 1:
                self.wvoff(2, True, nat=155, n0=WV0)
                self.srd(SWQ, 18, 819200)
                a(f"s_mul_i32 s84, s{sG}, 160")
                a(f"s_mul_i32 s12, s{sW}, 40960")
                a("s_add_u32 s84, s84, s12")
                a(f"s_add_u32 s91, s85, {WO}")
                a(f"s_add_u32 s85, s85, {WL}")
                a("s_mov_b32 s90, s84")
        self.stamp("Xiss")
        for c in range(2):
            for i in range(5):
                for ln in self.wdma(c, i):
                    a(ln)
        a(f"s_cmp_lt_u32 s{sG}, 2")
        a("s_cbranch_scc1 L_a_P")
        for i in range(5):
            for ln in self.wdma(2, i):
                a(ln)
        self.stamp("Wiss")
        self.qsetup()
        if self.stamps:
            a("s_waitcnt vmcnt(15)")
            self.stamp("B0")
        a("s_waitcnt vmcnt(10)")
        self.stamp("ownld")
        a("s_barrier")
        a("s_branch L_a_Q")
        a.put("L_a_P")
        a("s_waitcnt vmcnt(10)")
        a("s_barrier")
        self.stamp("B0")
        self.qsetup()
        a("s_waitcnt vmcnt(5)")
        self.stamp("ownld")
        a("s_barrier")
        for i in range(5):
            for ln in self.wdma(2, i):
                a(ln)
        a.put("L_a_Q")
        self.stamp("B1")

    def touchW(self, lo, hi):
        a = self.a
        lab = a.label("Lt")
        out = [f"s_sub_u32 s12, s{sW}, {lo}", f"s_cmp_lt_u32 s12, {hi-lo}", f"s_cbranch_scc0 {lab}",
               f"buffer_load_dword v255, v18, s[{SWQ}:{SWQ+3}], 0 offen"]
        if lo == 6:
            out += ["s_mov_b32 s12, 393216", f"buffer_load_dword v255, v18, s[{SWQ}:{SWQ+3}], s12 offen"]
        return out + [lab + ":"]

    def startB(self):
        a = self.a
        a("s_setprio 3")
        a(f"s_mul_i32 s{sD0}, s8, 80")
        a("s_min_u32 s11, s9, 9")
        a(f"s_lshl3_add_u32 s11, s11, s{sD0}")
        a(f"s_lshl2_add_u32 s{sD0}, s9, s{sD0}")
        a(f"s_sub_u32 s{sD0}, s{sD0}, 48")
        a(f"s_cmp_lt_u32 s{sG}, 3")
        a(f"s_cselect_b32 s{sD0}, s11, s{sD0}")
        a(f"s_and_b32 s10, s{sW}, 3")
        a(f"s_cmp_lt_u32 s{sG}, 2")
        a("s_cbranch_scc1 L_b_P")
        a(f"s_add_u32 s12, s{sD0}, s10")
        a("s_lshl_b32 s82, s12, 8")
        a("v_lshl_add_u32 v9, v0, 2, s82")
        a("s_lshl_b32 s12, s12, 1")
        a("v_mov_b32 v17, s12")
        a("v_mov_b32 v16, 0")
        a("s_mul_i32 s12, s10, 1536")
        a("s_add_u32 s12, s12, s9")
        a("s_sub_u32 s12, s12, 8")
        a("s_lshl_b32 s12, s12, 7")
        a("s_movk_i32 s83, 3072")
        a("v_mov_b32 v18, s12")
        a("v_mad_u32_u24 v18, v0, s83, v18")
        self.kargwait()
        self.srd(SWQ, 18, 819200)
        a(f"s_cmp_eq_u32 s{sG}, 2")
        a("s_cbranch_scc1 L_b_G2")
        a("global_load_short_d16_hi v16, v17, s[40:41]")
        for i, p in enumerate((28, 30, 32, 34, 36, 38)):
            a(f"global_load_dword v{160+i}, v9, s[{p}:{p+1}]")
        a(f"s_cmp_lt_u32 s{sW}, {0 if self.x & {'latet', 'not'} else 6}")
        a("s_cselect_b32 s12, 0, 0x80000000")
        a(f"buffer_load_dword v255, v18, s[{SWQ}:{SWQ+3}], s12 offen")
        self.srds()
        self.kgen()
        a("s_branch L_b_6")
        a.put("L_b_G2")
        if "latet" in self.x:
            a("s_waitcnt vmcnt(0)")
        for ln in [] if "not" in self.x else self.touchW(4, 6) + self.touchW(6, 8):
            a(ln)
        self.srds()
        self.attn_setup(True, P=True)
        a("v_mov_b32 v1, 0")
        for k in range(5):
            a("s_barrier")
            if k == 0:
                a("global_load_dwordx2 v[12:13], v1, s[46:47] sc1")
        a("s_waitcnt vmcnt(0)")
        self.get_nonce(12, 1)
        a("s_branch L_b_6")
        a.put("L_b_P")
        self.kargwait()
        a(f"s_cmp_eq_u32 s{sG}, 0")
        a(f"s_cselect_b32 s{SKV}, s20, s22")
        a(f"s_cselect_b32 s{SKV+1}, s21, s23")
        a(f"s_mov_b32 s{SKV+2}, 25600")
        a(f"s_mov_b32 s{SKV+3}, 0x20000")
        a("s_lshl_b32 s12, s10, 10")
        for i in range(6):
            a(f"s_add_u32 m0, s12, {AUX}")
            a("s_nop 0")
            a(f"buffer_load_dwordx4 v8, s[{SKV}:{SKV+3}], s12 offen lds")
            a("s_add_u32 s12, s12, 4096")
        a(f"s_cmp_eq_u32 s{sW}, 4")
        a("s_cbranch_scc0 L_pro_kv")
        a(f"s_add_u32 m0, s12, {AUX}")
        a("s_nop 0")
        a(f"buffer_load_dwordx4 v8, s[{SKV}:{SKV+3}], s12 offen lds")
        a("s_cmp_eq_u32 s2, 0")
        a("s_cbranch_scc0 L_pro_kv")
        a("s_memrealtime s[84:85]")
        a("v_mov_b32 v10, 0")
        a("s_waitcnt lgkmcnt(0)")
        a("s_or_b32 s84, s84, 1")
        a("v_mov_b32 v12, s84")
        a("v_mov_b32 v13, s85")
        a("s_mov_b64 exec, 1")
        a("global_store_dwordx2 v10, v[12:13], s[46:47] sc1")
        a("s_mov_b64 exec, -1")
        a.put("L_pro_kv")
        self.srds()
        self.attn_setup(True, zero=False, P=True)
        self.kvjob()
        self.bphaseP()

    def wvoff(self, base, perm, t0=20, nat=None, n0=0, n=5):
        a = self.a
        p, q, c, k = t0, t0 + 1, t0 + 2, t0 + 3
        a("s_mov_b32 s82, 0xcccd")
        a("s_movk_i32 s83, 1280")
        for i in range(n0, n):
            a(f"v_add_u32 v{p}, {64*i}, v0")
            a(f"v_mul_u32_u24 v{q}, s82, v{p}")
            a(f"v_lshrrev_b32 v{q}, 19, v{q}")
            a(f"v_mul_u32_u24 v{c}, 10, v{q}")
            a(f"v_sub_u32 v{c}, v{p}, v{c}")
            a(f"v_lshlrev_b32 v{c}, 4, v{c}")
            if nat:
                a(f"v_mad_u32_u24 v{nat+i}, v{q}, s83, v{c}")
            if perm:
                a(f"v_and_b32 v{k}, 1, v{q}")
                a(f"v_bfe_u32 v{p}, v{q}, 1, 2")
                a(f"v_lshl_add_u32 v{k}, v{k}, 2, v{p}")
                a(f"v_and_b32 v{q}, 24, v{q}")
                a(f"v_add_u32 v{q}, v{q}, v{k}")
            a(f"v_mad_u32_u24 v{base+i}, v{q}, s83, v{c}")

    def kgen(self):
        a = self.a
        R0, T, CV, H, D = 32, 64, 72, 80, 112
        FL0, FL1, FH0, FH1 = 176, 192, 208, 224
        Z1, Z8, Z256, WW, B16 = 24, R0 + 2, 22, 20, 30
        TA, KA = 128, 140
        BIAS = 57344
        self.attn_setup(True, zero=False)
        a(f"s_mul_i32 s11, s10, {KGS}")
        a(f"s_add_u32 m0, s11, {KGB-BIAS}")
        a(f"s_add_u32 s11, s11, {KGB}")
        a("v_and_b32 v45, 15, v0")
        a("v_lshrrev_b32 v46, 4, v0")
        a("v_mul_u32_u24 v27, 0x110, v45")
        a("v_lshl_add_u32 v27, v46, 4, v27")
        a("v_add_u32 v27, s11, v27")
        a("s_add_u32 s11, s11, 16")
        a("v_max_u32 v47, 1, v46")
        a("v_cmp_gt_u32 vcc, 2, v46")
        a("v_add_u32 v47, -1, v47")
        a("v_lshrrev_b32 v47, v47, 16")
        a("v_cndmask_b32 v48, 8, 3, vcc")
        a("v_cmp_eq_u32 vcc, 3, v46")
        a("v_lshlrev_b32 v48, v48, v46")
        a(f"v_mad_u32_u24 v{TA}, v45, v47, v48")
        a(f"v_add_u32 v{TA}, s11, v{TA}")
        a("v_cndmask_b32 v48, 2, 64, vcc")
        a(f"v_lshl_add_u32 v{TA+1}, v48, 1, v{TA}")
        a(f"v_lshl_add_u32 v{TA+2}, v47, 4, v{TA}")
        a(f"v_lshl_add_u32 v{TA+3}, v47, 4, v{TA+1}")
        a(f"v_lshlrev_b32 v{TA+4}, 6, v45")
        a(f"v_lshl_add_u32 v{TA+4}, v46, 3, v{TA+4}")
        a(f"v_add_u32 v{TA+4}, s11, v{TA+4}")
        a("s_sub_u32 s12, s11, 4")
        a(f"v_mov_b32 v{TA+5}, s12")
        a("s_add_u32 s12, s11, 508")
        a(f"v_lshl_add_u32 v{TA+6}, v0, 2, s12")
        a(f"v_lshl_add_u32 v{TA+7}, v0, 3, v{TA+5}")
        a(f"v_mov_b32 v{TA+8}, 0x03020302")
        a("v_cmp_eq_u32 vcc, 0, v0")
        a("v_mov_b32 v53, 0x01000302")
        a(f"s_mul_i32 s11, s10, {KCS}")
        a(f"s_add_u32 s11, s11, {KC}")
        a(f"v_cndmask_b32 v{TA+8}, v{TA+8}, v53, vcc")
        a("v_lshlrev_b32 v48, 5, v0")
        a("s_add_u32 s12, s11, 2016")
        a(f"v_sub_u32 v{KA}, s12, v48")
        a("s_add_u32 s12, s11, 3056")
        a(f"v_sub_u32 v{KA+1}, s12, v8")
        a("v_lshlrev_b32 v50, 3, v0")
        a("s_add_u32 s12, s11, 3576")
        a(f"v_sub_u32 v{KA+2}, s12, v50")
        a("v_bfe_u32 v51, v0, 4, 1")
        a("v_mul_u32_u24 v51, 0x1040, v51")
        a("v_lshl_add_u32 v51, v45, 2, v51")
        a(f"v_add_u32 v{KA+3}, s11, v51")
        l2e_hi = f2u(LOG2E)
        l2e_lo = f2u(LOG2E - struct.unpack("<f", struct.pack("<I", l2e_hi))[0])
        a(f"s_mov_b32 s8, {l2e_hi:#x}")
        a(f"s_mov_b32 s9, {l2e_lo:#x}")
        a("v_mov_b32 v1, 0")
        a("v_mov_b32 v26, 0x3f80")
        self.stamp("Bset")
        a("s_waitcnt vmcnt(1)")
        self.stamp("param")
        a(f"s_lshl_b32 s12, s{sD0}, 1")
        a("s_load_dwordx2 s[92:93], s[42:43], s12")
        for ln in [] if "not" in self.x else (self.touchW(4, 6) if "latet" in self.x else []) + self.touchW(6, 8):
            a(ln)
        k0 = len(a.lines)
        a("v_mul_f32 v28, s8, v16")
        a("v_fma_f32 v29, v16, s8, -v28")
        a("v_fmac_f32 v29, s9, v16")
        a("v_exp_f32 v28, v28")
        a(f"v_mul_f32 v29, {f2u(0.6931471805599453):#x}, v29")
        a("v_fma_f32 v28, v28, v29, v28")
        a("v_cvt_pk_bf16_f32 v28, v28, v28")
        a("v_lshlrev_b32 v28, 16, v28")
        r = lambda j: R0 + 2 * j
        h = lambda j: H + 2 * j
        st = dict(cv=0)

        def put(rows):
            w = []
            for j, src in rows:
                if src is None:
                    w.append((j, 26))
                    continue
                c = CV + st["cv"] % 8
                st["cv"] += 1
                a(f"v_cvt_pk_bf16_f32 v{c}, v{src}, v{src+1}")
                w.append((j, c))
            for j, c in w:
                a(f"ds_write_addtid_b32 v{c} offset:{BIAS+272*j}")

        def get(F):
            for sidx in range(4):
                a(f"ds_read_b128 {v(F+4*sidx,4)}, v27 offset:{64*sidx}")

        def mm(first):
            out = []
            for k, (A, B) in enumerate(((FH0, FL0), (FH0, FL1), (FL0, FH1), (FL1, FH1))):
                for sidx in range(4):
                    c = "0" if first and sidx == 0 else v(D + 4 * k, 4)
                    out.append(f"v_mfma_f32_16x16x32_bf16 {v(D+4*k,4)}, {v(A+4*sidx,4)}, {v(B+4*sidx,4)}, {c}")
            return out
        for half in range(2):
            k1 = len(a.lines)
            for i in range(6):
                a(f"v_lshlrev_b32 v{10+i}, 16, v{160+i}" if half == 0 else f"v_and_b32 v{10+i}, 0xffff0000, v{160+i}")
            for i in range(4):
                a(f"v_mul_f32 v{10+i}, v28, v{10+i}")
            a("v_mul_f32 v10, s8, v10")
            a("v_mul_f32 v11, 0.15915494, v11")
            tt = (40, 44, 48)
            for p, t in zip((8, 256), tt):
                a(f"v_mul_f32 v{t}, {f2u(float(p)):#x}, v10")
                a(f"v_mul_f32 v{t+1}, {f2u(float(p)):#x}, v11")
            a(f"v_fract_f32 v{tt[2]+1}, v11")
            a(f"v_fract_f32 v{tt[0]+1}, v{tt[0]+1}")
            a(f"v_fract_f32 v{tt[1]+1}, v{tt[1]+1}")
            a(f"v_exp_f32 v{tt[2]}, v10")
            a(f"v_exp_f32 v{tt[0]}, v{tt[0]}")
            a(f"v_exp_f32 v{tt[1]}, v{tt[1]}")
            for t in tt:
                a(f"v_cos_f32 v{t+2}, v{t+1}")
                a(f"v_sin_f32 v{t+3}, v{t+1}")
            if half:
                body = a.lines[k1:]
                del a.lines[k1:]
                pend = mm(True)
                for n, ln in enumerate(body):
                    if n == 4:
                        a("s_waitcnt lgkmcnt(9)")
                    if n == 18:
                        a("s_waitcnt lgkmcnt(0)")
                    if (4 <= n < 18 and n % 2 == 0 or n >= 18) and pend:
                        a(pend.pop(0))
                    a(ln)
                assert not pend
            self.cmuls([(WW, 14, 12)])
            for Z, t in zip((Z8, Z256, Z1), tt):
                a(f"v_pk_mul_f32 {v(Z,2)}, {v(t+2,2)}, {v(t,2)} op_sel:[0,0] op_sel_hi:[1,0]")
            a(f"v_xor_b32 v{WW+1}, 0x80000000, v{WW+1}")
            self.cmuls([(r(2), r(1), r(1))])
            self.cmuls([(r(3), r(2), r(1)), (r(4), r(2), r(2))])
            put([(0, None), (1, r(1)), (2, r(2)), (3, r(3)), (4, r(4))])
            self.cmuls([(r(4 + i), r(4), r(i)) for i in range(1, 5)])
            put([(4 + i, r(4 + i)) for i in range(1, 5)])
            self.cmuls([(r(8 + i), r(8), r(i)) for i in range(1, 5)])
            put([(8 + i, r(8 + i)) for i in range(1, 5)])
            self.cmuls([(r(8 + i), r(8), r(i)) for i in range(5, 8)] + [(B16, r(8), r(8))])
            put([(8 + i, r(8 + i)) for i in range(5, 8)])
            get(FL0)
            for g4 in range(4):
                js = [j for j in range(4 * g4, 4 * g4 + 4) if j]
                self.cmuls([(T + 2 * (j % 4), r(j), B16) for j in js])
                put(([(0, B16)] if g4 == 0 else []) + [(j, T + 2 * (j % 4)) for j in js])
            get(FL1)
            for g4 in range(2):
                for j in range(4 * g4, 4 * g4 + 4):
                    self.cmuls([(h(j), h(j - 1) if j else WW, Z1)], conj=True)
                put([(j, h(j)) for j in range(4 * g4, 4 * g4 + 4)])
            self.cmuls([(h(8), h(1), Z256), (h(9), h(3), Z256), (h(10), h(5), Z256), (h(11), h(7), Z256)], conj=True)
            put([(j, h(j)) for j in range(8, 12)])
            self.cmuls([(h(12), h(9), Z256), (h(13), h(11), Z256)], conj=True)
            self.cmuls([(h(14), h(12), Z256), (h(15), h(13), Z256)], conj=True)
            put([(j, h(j)) for j in range(12, 16)])
            get(FH0)
            for j in range(4):
                self.cmuls([(T + 2 * j, T + 2 * j - 2 if j else h(15), Z256)], conj=True)
            self.kpk = len(a.lines) - k0
            put([(j, T + 2 * j) for j in range(4)] + [(4, WW)])
            get(FH1)
        self.kleft = 0
        a("global_load_dwordx2 v[12:13], v1, s[46:47] sc1")
        m = mm(False)
        a("s_waitcnt lgkmcnt(9)")
        for ln in m[:8]:
            a(ln)
        a("s_waitcnt lgkmcnt(0)")
        for ln in m[8:]:
            a(ln)
        sel = dict(cc=0x07060706, bb=0x05040504, aa=0x03020302, ba=0x03020504, cb=0x05040706)
        sreg = {}
        for i, (k, x) in enumerate(sel.items()):
            sreg[k] = 8 + i if i < 2 else 13 + i - 2
            a(f"s_mov_b32 s{sreg[k]}, {x:#x}")
        for i in range(8):
            a(f"v_cvt_pk_bf16_f32 v{32+i}, v{D+2*i}, v{D+2*i+1}")
            if i < 4:
                a(f"ds_write_b32 v{TA+i}, v{32+i}")
        a(f"v_cvt_pk_bf16_f32 v49, 0, v{D+8}")
        a(f"ds_write_b64 v{TA+4}, v[36:37] offset:1024")
        a(f"ds_write_b64 v{TA+4}, v[38:39] offset:1056")
        a("s_mov_b64 exec, 16")
        a(f"ds_write_b32 v{TA+5}, v49")
        a("s_mov_b64 exec, -1")
        a(f"ds_read2_b32 v[54:55], v{TA+6} offset0:128 offset1:129")
        a(f"ds_read2_b32 v[56:57], v{TA+6} offset0:64 offset1:65")
        a(f"ds_read2_b32 v[58:59], v{TA+6} offset0:0 offset1:1")
        a(f"ds_read2_b32 v[60:61], v{TA+7} offset0:0 offset1:1")
        a(f"ds_read_b32 v62, v{TA+7} offset:8")
        self.ozero()
        a("s_waitcnt lgkmcnt(0)")

        def perms(dst, pat, d0):
            for i, k in enumerate(pat):
                a(f"v_perm_b32 v{dst+i}, v{d0+1}, v{d0}, s{sreg[k]}")
        perms(16, ["cc", "cc", "bb", "bb", "bb", "ba", "aa", "aa"], 54)
        perms(24, ["cc", "cb", "bb", "bb", "bb", "aa", "aa", "aa"], 54)
        perms(196, ["cc", "bb", "ba", "aa"], 56)
        perms(200, ["cb", "bb", "aa", "aa"], 56)
        perms(204, ["cb", "aa"], 58)
        perms(206, ["ba"], 58)
        a(f"v_perm_b32 v207, v59, v58, v{TA+8}")
        a(f"v_perm_b32 v208, v62, v61, s{sreg['ba']}")
        a(f"v_perm_b32 v209, v61, v60, s{sreg['ba']}")
        a("v_alignbit_b32 v210, v61, v61, 16")
        a("v_alignbit_b32 v211, v60, v60, 16")
        body = a.lines[k0:]
        del a.lines[k0:]
        self.klen = len(body)
        pos = [self.kpk + x for x in KBAR]
        if "k2x" in self.x:
            a("s_mov_b32 s97, 0")
            a.put("L_k2x")
            if "nods" in self.x:
                body = [("s_nop 0" if n < self.kpk and ln.startswith("ds_") else ln) for n, ln in enumerate(body)]
        for n, ln in enumerate(body):
            if "k2x" in self.x and n == self.kpk:
                a("s_cmp_eq_u32 s97, 1")
                a("s_cbranch_scc1 L_k2d")
                self.stamp("kpass1")
                a("s_mov_b32 s97, 1")
                a("s_branch L_k2x")
                a.put("L_k2d")
            while pos and pos[0] == n:
                self.stamp(f"k{6-len(pos)}")
                a("s_barrier")
                if len(pos) == 5:
                    a("s_setprio 0")
                self.stamp(f"B{6-len(pos)}")
                pos.pop(0)
            if "kst" in self.x and n % 40 == 0 and n:
                a("s_memtime s[86:87]")
            if "kst" in self.x and n % 40 == 39 and n > 40:
                nm = f"kk{n-39}"
                if nm not in STN:
                    STN.append(nm)
                a(f"v_writelane_b32 v254, s86, {STN.index(nm)}")
                a(f"v_writelane_b32 v253, s88, {STN.index(nm)}")
            a.lines.append(ln)
        self.stamp("kend")
        for k in range(len(pos)):
            a("s_barrier")
            self.stamp(f"B{6-len(pos)+k}")
        a("s_waitcnt vmcnt(0)")
        self.get_nonce(12, 1)

    def kvjob(self):
        a = self.a
        a("v_and_b32 v20, 31, v0")
        a("v_lshrrev_b32 v21, 5, v0")
        a("v_and_b32 v22, 0x13, v20")
        a("v_bfe_u32 v23, v20, 2, 1")
        a("v_lshl_or_b32 v22, v23, 3, v22")
        a("v_bfe_u32 v23, v20, 3, 1")
        a("v_lshl_or_b32 v22, v23, 2, v22")
        a(f"s_cmp_eq_u32 s{sG}, 1")
        a("s_cselect_b64 vcc, -1, 0")
        a("v_cndmask_b32 v20, v20, v22, vcc")
        a(f"s_and_b32 s10, s{sW}, 1")
        a(f"s_bfe_u32 s11, s{sW}, 0x10001")
        a("v_and_b32 v22, 15, v20")
        a("v_xor_b32 v22, v22, v21")
        a("v_lshlrev_b32 v22, 4, v22")
        a("v_lshl_or_b32 v22, v20, 8, v22")
        a("s_lshl_b32 s12, s10, 13")
        a("s_lshl_b32 s13, s11, 7")
        a("s_or_b32 s12, s12, s13")
        a("v_xor_b32 v10, s12, v22")
        for k in range(1, 4):
            a(f"v_xor_b32 v{10+k}, {32*k}, v10")
        a("v_bfe_u32 v22, v0, 2, 2")
        a("v_lshl_add_u32 v22, v21, 3, v22")
        a("v_mul_u32_u24 v22, 40, v22")
        a("v_bfe_u32 v23, v0, 4, 1")
        a("v_and_b32 v24, 3, v0")
        a("v_lshl_add_u32 v23, v23, 2, v24")
        a("v_min_u32 v23, 4, v23")
        a("v_lshl_add_u32 v22, v23, 3, v22")
        a("s_mul_i32 s12, s11, 2560")
        a(f"s_add_u32 s12, s12, {AUX}")
        a("v_add_u32 v14, s12, v22")
        a("s_waitcnt vmcnt(0)")
        a("s_barrier")
        self.stamp("B0")
        a(f"s_cmp_eq_u32 s{sG}, 1")
        a("s_cbranch_scc1 L_kv_V")
        ACC = 80
        for isV in (0, 1):
            if isV:
                a.put("L_kv_V")
            lg = LG(a, "lgkmcnt", 15)

            def issue(n):
                b, ks = divmod(n, 4)
                F = 16 + 8 * (n % 6)
                if n == 16:
                    for k in range(4):
                        a(f"v_add_u32 v{10+k}, 0x10000, v{10+k}")
                a(f"ds_read_b128 {v(F,4)}, v{10+ks} offset:{16384*(b%4)}")
                a(f"ds_read_b64_tr_b16 {v(F+4,2)}, v14 offset:{5120*b+640*ks}")
                a(f"ds_read_b64_tr_b16 {v(F+6,2)}, v14 offset:{5120*b+640*ks+160}")
                for _ in range(3):
                    lg.issue(n)
            for n in range(5):
                issue(n)
            for n in range(20):
                lg.wait(n)
                F = 16 + 8 * (n % 6)
                A, B = (F, F + 4) if isV else (F + 4, F)
                a(f"v_mfma_f32_32x32x16_bf16 {v(ACC,16)}, {v(A,4)}, {v(B,4)}, {'0' if n == 0 else v(ACC,16)}")
                if n + 5 < 20:
                    issue(n + 5)
            if not isV:
                a("s_branch L_kv_d")
        a.put("L_kv_d")
        a("s_lshl_b32 s12, s10, 12")
        a(f"s_add_u32 s12, s12, {KVP}")
        a("v_add_u32 v15, s12, v8")
        a(f"s_cmp_lt_u32 s{sW}, 6")
        a("s_cbranch_scc1 L_p_fin")
        a.nop(10)
        for i in range(4):
            a(f"ds_write_b128 v15, {v(ACC+4*i,4)} offset:{1024*i}")
        a("s_waitcnt lgkmcnt(0)")
        for k in range(5):
            a("s_barrier")
            if k == 0:
                a("v_mov_b32 v1, 0")
                a("global_load_dwordx2 v[12:13], v1, s[46:47] sc1")
                self.ozero()
        a("s_waitcnt vmcnt(0)")
        self.get_nonce(12, 1)
        a("s_branch L_b_6")

    def qsetup(self):
        a = self.a
        XA, WA = 64, 72
        a("v_and_b32 v20, 31, v0")
        a("v_lshrrev_b32 v21, 5, v0")
        a("v_and_b32 v22, 15, v20")
        a("v_xor_b32 v22, v22, v21")
        a("v_lshlrev_b32 v22, 4, v22")
        a(f"v_lshl_or_b32 v{XA}, v20, 8, v22")
        for k in range(1, 8):
            a(f"v_xor_b32 v{XA+k}, {32*k}, v{XA}")
        a("v_bfe_u32 v22, v0, 2, 2")
        a("v_lshlrev_b32 v22, 1, v22")
        a("v_lshl_add_u32 v22, v21, 3, v22")
        a("v_mul_u32_u24 v22, 0xa0, v22")
        a("v_bfe_u32 v23, v0, 4, 1")
        a("v_and_b32 v24, 3, v0")
        a("v_lshl_add_u32 v23, v23, 2, v24")
        a("v_min_u32 v23, 4, v23")
        a("v_lshl_add_u32 v22, v23, 3, v22")
        a(f"s_mul_i32 s12, s{sW}, 40")
        a(f"s_add_u32 s12, s12, {WL}")
        a(f"v_add_u32 v{WA}, s12, v22")
        a(f"v_add_u32 v{WA+1}, {WOFF[0]}, v{WA}")
        a("v_mov_b32 v1, 0")
        self.srds()
        self.setupA()

    def qgemm(self):
        a = self.a
        XA, WA, RG = 64, 72, 168
        lg = LG(a, "lgkmcnt", 15)

        def issue(n):
            c, ks = divmod(n, 8)
            wreg = WA + 1 if WOFF[c] > 40000 else WA
            woff = 0 if WOFF[c] > 40000 else WOFF[c]
            F = RG + 12 * (n % 6)
            if c == 4:
                a(f"v_add_u32 v{XA+ks}, 0x10000, v{XA+ks}")
            a(f"ds_read_b64_tr_b16 {v(F,2)}, v{wreg} offset:{woff+2560*ks}")
            a(f"ds_read_b64_tr_b16 {v(F+2,2)}, v{wreg} offset:{woff+2560*ks+160}")
            a(f"ds_read_b128 {v(F+4,4)}, v{XA+ks} offset:{16384*(c%4)}")
            a(f"ds_read_b128 {v(F+8,4)}, v{XA+ks} offset:{16384*(c%4)+8192}")
            for _ in range(4):
                lg.issue(n)
        for n in range(3):
            issue(n)
        a("global_load_dwordx2 v[16:17], v1, s[46:47] sc1")
        dma = {7 + i: self.wdma(3, i) for i in range(5)}
        dma.update({15 + i: self.wdma(4, i) for i in range(5)})
        for n in range(40):
            c, ks = divmod(n, 8)
            if ks == 6 and c < 4:
                a(f"s_waitcnt vmcnt({(6, 6, 5, 0)[c]}) {lg.waitstr(n + 1)}")
                a("s_barrier")
                self.stamp(f"B{2+c}")
                issue(n + 2)
            elif not (ks == 7 and c < 4):
                lg.wait(n)
            F = RG + 12 * (n % 6)
            a(f"v_mfma_f32_32x32x16_bf16 v[32:47], {v(F,4)}, {v(F+4,4)}, {'0' if n == 0 else 'v[32:47]'}")
            a(f"v_mfma_f32_32x32x16_bf16 v[48:63], {v(F,4)}, {v(F+8,4)}, {'0' if n == 0 else 'v[48:63]'}")
            if n + 3 < 40 and ks != 5:
                issue(n + 3)
            for ln in dma.get(n + 1, []):
                a(ln)
            if n == 25:
                for ln in self.setupA2():
                    a(ln)
            if n == 33:
                self.get_nonce(16, 1)
                a("s_getreg_b32 s97, hwreg(HW_REG_XCC_ID, 0, 4)")
                a(f"s_mov_b32 s96, s{sN}")
                a("s_lshl_b32 s97, s97, 28")
                a(f"s_xor_b32 s97, s97, s{sN+1}")
                a("v_mov_b32 v14, s96")
                a("v_mov_b32 v15, s97")
                a(f"s_mov_b32 s10, {f2u(LOG2E / 20 ** 0.5):#x}")
                a("s_mov_b32 s11, s10")
                a(f"s_mul_i32 s13, s{sW}, 2560")
                a(f"s_add_u32 s13, s13, {QP}")
                a("v_add_u32 v12, s13, v8")
                a("v_lshl_add_u32 v13, v0, 3, s13")
        a.nop(10)
        for T, O in ((0, 32), (1, 48)):
            for r in range(6):
                a(f"v_pk_mul_f32 {v(O+2*r,2)}, {v(O+2*r,2)}, s[10:11]")
            for q in range(4):
                a(f"v_cvt_pk_bf16_f32 v{112+4*T+q}, v{O+2*q}, v{O+2*q+1}")
            a(f"ds_write_b128 v12, {v(112+4*T,4)} offset:{1024*T}")
            for q in range(2):
                a(f"v_cvt_pk_bf16_f32 v{120+2*T+q}, v{O+8+2*q}, v{O+9+2*q}")
        a("s_nop 1")
        a("v_permlane32_swap_b32 v120, v122")
        a("v_permlane32_swap_b32 v121, v123")
        a("s_nop 1")
        a("ds_write_b64 v13, v[120:121] offset:2048")
        a("s_waitcnt lgkmcnt(0)")
        self.stamp("Qdone")
        a("s_barrier")
        self.stamp("B6")

    def bphaseP(self):
        a = self.a
        a.put("L_p_fin")
        a("v_mov_b32 v1, 0")
        a("global_load_dwordx2 v[12:13], v1, s[46:47] sc1")
        a(f"s_mul_i32 s12, s{sT}, {BLK}")
        a("v_and_b32 v40, 31, v0")
        a("v_lshrrev_b32 v41, 5, v0")
        a("v_bfrev_b32 v44, 1")
        a(f"s_cmp_eq_u32 s{sG}, 1")
        a("s_cbranch_scc1 L_b_PV")
        a("s_lshl_b32 s13, s10, 10")
        a("s_add_u32 s13, s13, s12")
        a("v_lshlrev_b32 v42, 3, v0")
        a("v_cmp_gt_u32 vcc, 32, v0")
        a("s_lshl_b32 s14, s10, 8")
        a("s_add_u32 s14, s14, s12")
        a("v_cndmask_b32 v42, v44, v42, vcc")
        a("s_barrier")
        self.stamp("B1")
        for i in range(4):
            a(f"ds_read_b128 {v(16+4*i,4)}, v15 offset:{1024*i}")
        a("s_waitcnt lgkmcnt(0)")
        for i in range(12):
            a(f"v_add_f32 v{80+i}, v{80+i}, v{16+i}")
        for i in range(6):
            a(f"v_cvt_pk_bf16_f32 v{32+i}, v{80+2*i}, v{80+2*i+1}")
        a(f"buffer_store_dwordx4 v[32:35], v8, s[{SWS}:{SWS+3}], s13 offen sc1")
        a(f"buffer_store_dwordx2 v[36:37], v42, s[{SWS}:{SWS+3}], s14 offen offset:2048 sc1")
        a("s_branch L_p_2")
        a.put("L_b_PV")
        a("s_mul_i32 s13, s10, 1344")
        a("s_add_u32 s13, s13, s12")
        a("v_mul_u32_u24 v42, 0x150, v41")
        a("v_lshl_add_u32 v42, v40, 4, v42")
        a("v_cmp_gt_u32 vcc, 21, v40")
        a("v_mov_b32 v43, 0x3f803f80")
        a("s_nop 0")
        a("v_cndmask_b32 v42, v44, v42, vcc")
        a("v_cmp_eq_u32 vcc, 20, v40")
        a("s_barrier")
        self.stamp("B1")
        for i in range(4):
            a(f"ds_read_b128 {v(16+4*i,4)}, v15 offset:{1024*i}")
        a("s_waitcnt lgkmcnt(0)")
        for i in range(16):
            a(f"v_add_f32 v{80+i}, v{80+i}, v{16+i}")
        for i in range(8):
            a(f"v_cvt_pk_bf16_f32 v{32+i}, v{80+2*i}, v{80+2*i+1}")
        for i in range(8):
            a(f"v_cndmask_b32 v{32+i}, v{32+i}, v43, vcc")
        a(f"buffer_store_dwordx4 v[32:35], v42, s[{SWS}:{SWS+3}], s13 offen offset:2560 sc1")
        a(f"buffer_store_dwordx4 v[36:39], v42, s[{SWS}:{SWS+3}], s13 offen offset:3232 sc1")
        a.put("L_p_2")
        self.stamp("kvst")
        a(f"s_lshl_b32 s12, s{sT}, 7")
        a(f"s_lshl_b32 s13, s{sG}, 4")
        a("s_add_u32 s12, s12, s13")
        a("s_lshl_b32 s13, s10, 3")
        a("s_add_u32 s12, s12, s13")
        a(f"s_add_u32 s12, s12, {FLG_KV}")
        self.ozero()
        a("s_barrier")
        a("s_barrier")
        a("s_waitcnt vmcnt(0)")
        self.get_nonce(12, 1)
        a("s_mov_b64 exec, 1")
        a(f"buffer_store_dwordx2 v[12:13], v1, s[{SWS}:{SWS+3}], s12 offen sc1")
        a("s_mov_b64 exec, -1")
        self.stamp("kvflag")
        a("s_barrier")
        a("s_barrier")

    def bphase1(self):
        a = self.a
        a.put("L_b_6")
        a("s_setprio 0")
        a("s_waitcnt lgkmcnt(0)")
        a("v_lshrrev_b32 v6, 1, v0")
        a("v_lshlrev_b32 v6, 7, v6")
        a("v_and_b32 v7, 1, v0")
        a("v_lshl_add_u32 v6, v7, 4, v6")
        a(f"s_and_b32 s10, s{sW}, 3")
        a(f"s_mov_b32 s15, {FLG_KV}")
        a(f"s_cmp_eq_u32 s{sW}, 4")
        a("s_cbranch_scc0 L_b_6a")
        a(f"buffer_load_dwordx4 v[56:59], v6, s[{SWS}:{SWS+3}], s15 offen sc1")
        a.put("L_b_6a")
        self.kcwrite()
        a(f"v_mov_b32 v60, {CNT}")
        a("ds_write_b128 v60, v[80:83]")
        a("s_lshl_b32 s13, s10, 4")
        a("s_lshr_b64 s[92:93], s[92:93], s13")
        a("s_lshr_b64 s[94:95], s[94:95], s13")
        a("s_and_b32 s92, s92, 0xffff")
        a("s_and_b32 s94, s94, 0xffff")
        a("v_lshlrev_b32 v7, 4, v7")
        a("v_lshlrev_b32 v61, v7, s94")
        a("v_lshlrev_b32 v7, v7, s92")
        a("s_mov_b32 vcc_lo, 0")
        for q in range(4):
            a(f"s_mov_b32 vcc_hi, {(3 << 2*q) | (3 << (24+2*q)):#x}")
            a(f"v_cndmask_b32 v{192+q}, 0, v7, vcc")
            a(f"v_cndmask_b32 v{212+q}, 0, v61, vcc")
        a(f"v_mov_b32 v220, s{sN}")
        a(f"v_mov_b32 v221, s{sN+1}")
        a("s_mul_i32 s13, s10, 2560")
        a(f"s_add_u32 s13, s13, {QP}")
        a("v_add_u32 v12, s13, v8")
        a("v_lshl_add_u32 v13, v0, 3, s13")
        a(f"s_cmp_eq_u32 s{sW}, 4")
        a("s_cbranch_scc0 L_b_7")
        a("s_mov_b32 s82, 0")
        a.put("L_pkv")
        a("s_add_u32 s82, s82, 1")
        a("s_waitcnt vmcnt(0)")
        a(f"v_cmp_eq_u64 vcc, s[{sN}:{sN+1}], v[56:57]")
        a(f"v_cmp_eq_u64 s[84:85], s[{sN}:{sN+1}], v[58:59]")
        a("s_nop 0")
        a("s_and_b64 vcc, vcc, s[84:85]")
        a("s_cmp_eq_u64 vcc, -1")
        a("s_cbranch_scc1 L_b_7")
        a("s_cmp_gt_u32 s82, 20000")
        a("s_cbranch_scc1 L_b_7")
        a(f"buffer_load_dwordx4 v[56:59], v6, s[{SWS}:{SWS+3}], s15 offen sc1")
        a("s_branch L_pkv")
        a.put("L_b_7")
        self.stamp("kvseen")
        a("s_barrier")
        self.stamp("B6")
        a("ds_read_b128 v[112:115], v12")
        a("ds_read_b128 v[116:119], v12 offset:1024")
        a("ds_read_b64 v[120:121], v13 offset:2048")

    def kcwrite(self):
        a = self.a
        lab = a.label("Lkc")
        a(f"s_cmp_lt_u32 s{sG}, 3")
        a(f"s_cbranch_scc1 {lab}")
        a("ds_write_b128 v140, v[16:19]")
        a("ds_write_b128 v140, v[20:23] offset:16")
        a("ds_write_b128 v140, v[24:27] offset:4160")
        a("ds_write_b128 v140, v[28:31] offset:4176")
        a("ds_write_b128 v141, v[196:199]")
        a("ds_write_b128 v141, v[200:203] offset:4160")
        a("ds_write_b64 v142, v[204:205]")
        a("ds_write_b64 v142, v[206:207] offset:4160")
        a("ds_write_b64 v142, v[208:209] offset:512")
        a("ds_write_b64 v142, v[210:211] offset:4672")
        a("ds_write_b32 v143, v4 offset:4096")
        a.put(lab)

    def kvdma(self, c, i):
        if i < 0:
            lab = self.a.label("Lx")
            return [f"s_cmp_eq_u32 s{sW}, 0", f"s_cbranch_scc0 {lab}",
                    f"s_mov_b32 m0, {SLOT*(c%3)+40960}", f"s_mov_b32 s12, {SLOT*c+40960}",
                    f"buffer_load_dwordx4 v8, s[{SWS}:{SWS+3}], s12 offen sc1 lds", lab + ":"]
        return [f"s_add_u32 m0, s51, {SLOT*(c%3)+8192*i}", f"s_add_u32 s12, s51, {SLOT*c+8192*i}",
                f"buffer_load_dwordx4 v8, s[{SWS}:{SWS+3}], s12 offen sc1 lds"]

    def ozero(self):
        for r in range(16):
            self.a(f"v_mov_b64 {v(80+2*r,2)}, 0")

    def attn_setup(self, isB, zero=True, P=False):
        a = self.a
        O0 = 80
        IDX, AK16, AK4, AV = 144, 145, 148, 151
        UOFF, USW, USR, UTW, UTZ = 155, 156, 157, 158, 159
        a(f"s_lshl_b32 s51, s{sW}, 10")
        kh = BLK if isB else 0
        a(f"v_add_u32 v{AK16}, {kh}, v8" if kh else f"v_mov_b32 v{AK16}, v8")
        a(f"v_lshlrev_b32 v{AK4}, 3, v0")
        a(f"v_add_u32 v{AK4}, {kh+2048}, v{AK4}")
        a("v_and_b32 v60, 31, v0")
        a("v_cmp_lt_u32 vcc, 20, v60")
        a("v_lshrrev_b32 v62, 5, v0")
        a("v_mul_u32_u24 v62, 0x150, v62")
        a("v_lshl_add_u32 v61, v60, 4, v62")
        a(f"v_add_u32 v{AV}, {kh+2560}, v61")
        a("v_mov_b32 v61, 0x30000")
        a(f"v_cndmask_b32 v{AV}, v{AV}, v61, vcc")
        for r in (AK16, AK4, AV):
            a(f"v_add_u32 v{r+1}, {SLOT}, v{r}")
            a(f"v_add_u32 v{r+2}, {2*SLOT}, v{r}")
        a(f"v_mov_b32 v{IDX}, 0xdddddddd")
        if zero:
            self.ozero()
        if isB:
            a(f"s_and_b32 s10, s{sW}, 3")
            a(f"s_lshl_b32 s12, s{sD0}, 1")
            if P:
                a("s_load_dwordx4 s[92:95], s[42:43], s12")
                a("s_and_b32 s13, s10, 1")
                a("s_mul_i32 s11, s13, 655360")
                a("s_add_u32 s11, s11, s12")
                a("s_lshr_b32 s14, s10, 1")
                a("s_lshl3_add_u32 s11, s14, s11")
                a("s_cmp_lt_u32 s2, 80")
                a("s_cselect_b32 s11, s11, 0x80000000")
            else:
                a("s_mul_i32 s11, s10, 655360")
                a("s_add_u32 s11, s11, s12")
            a("s_movk_i32 s12, 1280")
            a("v_mov_b32 v1, s11")
            a(f"v_mad_u32_u24 v{UOFF}, v0, s12, v1")
            a("s_lshl_b32 s11, s10, 9")
            a(f"s_add_u32 s11, s11, {USCR}")
            a(f"v_lshl_add_u32 v{USW}, v0, 3, s11")
            a("v_and_b32 v1, 48, v0")
            a("v_and_b32 v2, 3, v0")
            a("v_lshl_add_u32 v1, v2, 2, v1")
            a("v_bfe_u32 v3, v0, 2, 2")
            a("v_add_u32 v1, v1, v3")
            a(f"v_lshl_add_u32 v{USR}, v1, 3, s11")
            uts = UTP if P else UTS
            if P:
                a(f"s_mul_i32 s11, s14, {4*UTP}")
                a("s_lshl_b32 s13, s13, 10")
                a("s_add_u32 s11, s11, s13")
            else:
                a("s_lshl_b32 s11, s10, 10")
            a(f"s_add_u32 s11, s11, {UT+480}")
            a("v_lshrrev_b32 v1, 2, v0")
            a("v_lshl_add_u32 v1, v1, 3, s11")
            a(f"s_movk_i32 s12, {uts}")
            a(f"v_mad_u32_u24 v{UTW}, v2, s12, v1")
            a(f"s_mul_i32 s11, s10, {uts}")
            a(f"s_add_u32 s11, s11, {UT}")
            a("v_min_u32 v1, 59, v0")
            a(f"v_lshl_add_u32 v{UTZ}, v1, 3, s11")
            a(f"v_add_u32 v249, {4*UTP if P else 0}, v{UTZ}")
            a("v_mov_b32 v4, 0")
            a("v_mov_b32 v5, 0")
            self.setupB(P)

    def attention(self, isB):
        a = self.a
        S = (16, 48)
        O0, O1, QA, QB, Q4, K4, K16 = 80, 96, 112, 116, 120, 122, 124
        V = (128, 136)
        IDX, AK16, AK4, AV = 144, 145, 148, 151
        URAW, UTR = 160, 176
        UOFF, USW, USR, UTW, UTZ = 155, 156, 157, 158, 159
        for c, i in [(0, -1), (1, -1)] + [(0, i) for i in range(5)] + [(1, i) for i in range(5)]:
            for ln in self.kvdma(c, i):
                a(ln)
        a("s_waitcnt vmcnt(5) lgkmcnt(0)")
        a("s_barrier")
        self.stamp("E0")
        self.stop_at("e0")
        lg = LG(a, "lgkmcnt", 15)

        def loc(m):
            c = m >> 3
            return c % 3, 2 * BLK * ((m >> 1) & 3), m & 1

        def rdK16(m):
            sl, off, aa = loc(m)
            a(f"ds_read_b128 {v(K16,4)}, v{AK16+sl} offset:{off+1024*aa}")
            lg.issue(("K16", m))

        def rdK4(m):
            sl, off, aa = loc(m)
            a(f"ds_read_b64 {v(K4,2)}, v{AK4+sl} offset:{off}")
            lg.issue(("K4", m))

        def rdV(m, f):
            sl, off, aa = loc(m)
            a(f"ds_read_b128 {v(V[m&1]+4*f,4)}, v{AV+sl} offset:{off+672*(2*aa+f)}")
            lg.issue(("V", m, f))

        def pv(O, B, Vr):
            if "nopv" in self.x:
                return
            a(f"v_smfmac_f32_32x32x32_bf16 {v(O,16)}, {v(Vr,4)}, {v(B,8)}, v{IDX}")

        def qk4(m, dst):
            if "no2b" in self.x:
                return
            a(f"v_mfma_f32_32x32x4_2b_bf16 {v(dst,32)}, {v(K4,2)}, {v(Q4,2)}, 0 cbsz:1 abid:{m&1}")

        def qk16(dst, Q):
            a(f"v_mfma_f32_32x32x16_bf16 {v(dst,16)}, {v(K16,4)}, {v(Q,4)}, {'0' if 'no2b' in self.x else v(dst,16)}")
        rdK4(0)
        rdK16(0)
        rdV(0, 0)
        rdV(0, 1)
        lg.wait(("K16", 0))
        qk4(0, S[0])
        a.nop(18)
        qk16(S[0], QA)
        qk16(S[0] + 16, QB)
        rdK16(1)
        lg.wait(("V", 0, 1))
        a.nop(10)
        hk = {}

        def hook(n, pos, lines):
            hk.setdefault((n, pos), []).extend(lines)
        hook(0, "a2", self.kvdma(2, -1))
        for i in range(5):
            hook(i, "a5", self.kvdma(2, i))
        hook(7, "a2", self.kvdma(3, -1))
        for i in range(5):
            hook(7 + i, "a5", self.kvdma(3, i))
        WS_ = f"s[{SWS}:{SWS+3}]"
        bars = {2: "vmcnt(10)" if isB else "vmcnt(6)", 6: "vmcnt(1)", 14: "vmcnt(0)", 22: None if isB else "vmcnt(0)", 30: None if isB else "vmcnt(0)"}
        hook(5, "a5", [f"buffer_load_dword v255, v154, s[{SU if isB else SWO}:{(SU if isB else SWO)+3}], 0 offen"])
        if not isB:
            hook(0, "a1", [f"s_lshl_b32 s10, s{sW}, 9", "s_add_u32 s10, s10, s15", "s_add_u32 s11, s10, 40960",
                           f"s_and_b32 s12, s{sW}, 1", "s_lshl_b32 s12, s12, 8", f"s_lshr_b32 s13, s{sW}, 1",
                           "s_lshl3_add_u32 s12, s13, s12", "s_add_u32 s15, s12, s15"])
            hook(0, "a3", [f"buffer_store_dwordx4 v[4:7], v10, {WS_}, s10 offen sc1"])
            hook(1, "a1", [f"buffer_store_dwordx4 v[4:7], v10, {WS_}, s11 offen sc1"])
            hook(1, "a3", [f"buffer_store_dwordx2 v[4:5], v11, {WS_}, s15 offen offset:2048 sc1"])
            hook(7, "a1", [f"s_lshl_b32 s92, s{sT}, 7", f"s_add_u32 s92, s92, {FLG_O}", f"s_lshl3_add_u32 s12, s{sG}, s92",
                           f"s_cmp_eq_u32 s{sW}, 0", "s_cselect_b32 s12, s12, 0x80000000",
                           f"buffer_store_dwordx2 v[14:15], v252, {WS_}, s12 offen sc1"])
            hook(8, "a1", ["v_and_b32 v1, 3, v0", "v_xor_b32 v1, 2, v1", "v_and_b32 v6, 2, v1", "v_add_u32 v1, v1, v6"])
            hook(9, "a1", ["v_mul_u32_u24 v1, 2560, v1", "v_bfe_u32 v6, v0, 2, 3", "v_lshlrev_b32 v6, 2, v6", f"s_mov_b32 s13, {PROBE:#x}",
                           "v_lshrrev_b32 v6, v6, s13"])
            hook(10, "a1", ["v_and_b32 v6, 15, v6", "v_lshl_add_u32 v1, v6, 8, v1", "v_mov_b32 v6, 0"])
            hook(28, "a5", [f"buffer_load_dwordx2 v[2:3], v251, {WS_}, s92 offen sc1"])
            hook(29, "a5", ["s_add_u32 s93, s90, s90", f"s_mul_i32 s13, s{sG}, 160", "s_sub_u32 s93, s93, s13",
                            "s_add_u32 s94, s93, 40960", "s_add_u32 s95, s91, s91"])
            for i, pos in enumerate(LT1):
                hook(31, pos, self.latewo(i))
            sl = [(n, pos) for n in range(15, 20) for pos in ("a2", "a5")] + [(n, "a5") for n in range(23, 28)]
            for k, (n, pos) in enumerate(sl):
                g0, i = 8 + 4 * (k // 5), k % 5
                hook(n, pos, [f"s_add_u32 m0, s91, {5120*g0+1024*i}", "s_nop 0",
                              f"buffer_load_dwordx4 v{155+i}, s[{SWO}:{SWO+3}], s{93+k//5} offen lds"])
        else:
            ex = [f"buffer_store_dwordx4 v[196:199], v250, {WS_}, s90 offen sc1",
                  f"buffer_store_dwordx4 v[200:203], v250, {WS_}, s90 offen offset:2112 sc1",
                  f"buffer_store_dwordx2 v[204:205], v251, {WS_}, s90 offen sc1",
                  f"buffer_store_dwordx2 v[206:207], v251, {WS_}, s90 offen offset:2112 sc1",
                  f"buffer_store_dwordx2 v[208:209], v251, {WS_}, s90 offen offset:512 sc1",
                  f"buffer_store_dwordx2 v[210:211], v251, {WS_}, s90 offen offset:2624 sc1",
                  f"buffer_store_dword v4, v252, {WS_}, s90 offen offset:2048 sc1"]
            for x, (n, pos) in zip(ex, [(0, "a1"), (0, "a3"), (1, "a1"), (1, "a2"), (1, "a3"), (2, "a1"), (2, "a2")]):
                hook(n, pos, [x])
            hook(7, "a1", [f"buffer_store_dwordx2 v[220:221], v248, {WS_}, s91 offen sc1"])
            hook(15, "a1", [f"buffer_load_dwordx4 v[216:219], v4, {WS_}, s99 offen sc1"])
            hook(17, "a1", ["s_cmp_lt_u32 s2, 80", "s_cbranch_scc0 L_kin0", "s_waitcnt vmcnt(2)",
                            f"v_cmp_eq_u64 vcc, s[{sN}:{sN+1}], v[216:217]", f"v_cmp_eq_u64 s[84:85], s[{sN}:{sN+1}], v[218:219]",
                            f"s_lshl_b32 s13, s10, 10", "s_and_b64 vcc, vcc, s[84:85]", "s_cbranch_scc0 L_kpoll", "L_kin0:"])
            for b in range(3):
                ls = ["s_cmp_lt_u32 s2, 80", f"s_cbranch_scc0 L_kin{b+1}"]
                for i in range(3 * b, 3 * b + 3):
                    ls += [f"s_add_u32 m0, s13, {KC+4096*i}", f"s_add_u32 s12, s98, {4096*i}",
                           f"buffer_load_dwordx4 v8, {WS_}, s12 offen sc1 lds"]
                hook(17 + 2 * b, "a5", ls + [f"L_kin{b+1}:"])
        dsx = {}
        if isB:
            for i in range(8):
                hook(15 + i, "a2", [f"s_mov_b32 s12, {81920*i}",
                                    f"buffer_load_dwordx2 {v(URAW+2*i,2)}, v{UOFF}, s[{SU}:{SU+3}], s12 offen"])
            hook(25, "a1w", ["s_waitcnt vmcnt(0)"])
            dsx[(24, "a1")] = [f"ds_write_b64 v{UTZ}, v[4:5]"]
            dsx[(24, "a3")] = ["ds_write_b64 v249, v[4:5]"]
            for k in range(4):
                for e, pos in ((0, "a1"), (1, "a3")):
                    i = 2 * k + e
                    dsx.setdefault((25 + k, pos), []).extend(
                        [f"ds_write_b64 v{USW}, {v(URAW+2*i,2)}", f"ds_read_b64_tr_b16 {v(UTR+2*i,2)}, v{USR}"])
                    dsx.setdefault((26 + k, "a2" if e == 0 else "a5"), []).append(
                        f"ds_write_b64 v{UTW}, {v(UTR+2*i,2)} offset:{128*i}")
        if not isB:
            wpre = [x for q in range(15) for x in self.woread(q)]
            for n in range(23, 31):
                for pos in ("a1", "a2", "a3", "a5"):
                    if wpre:
                        dsx.setdefault((n, pos), []).append(wpre.pop(0))
        prio = {}
        for st, en in ((0, 2), (3, 6), (7, 14), (15, 22), (23, 30)):
            ln = en - st + 1
            for n in range(st, en + 1):
                prio[n] = 3 - (n - st) * 4 // max(ln, 4) if ln >= 4 else 3 - (n - st)
        prio[31] = 3 if isB else 0

        def run(n, pos):
            for ln in hk.get((n, pos), []):
                a(ln)
            for ln in dsx.get((n, pos), []):
                a(ln)
                lg.issue("x")
        a(f"s_setprio {prio[0]}")
        for n in range(32):
            cur, nxt = S[n & 1], S[(n + 1) & 1]
            Vc, Vp = V[n & 1], V[(n + 1) & 1]
            eop = "v_exp_f32" if "noexp" not in self.x else "v_fract_f32"
            e = lambda lo, hi: [a(f"{eop} v{cur+i}, v{cur+i}") for i in range(lo, hi + 1)]
            e(0, 1)
            if n > 0:
                pv(O1, nxt + 24, Vp + 4)
            run(n, "a1w")
            if n < 31:
                rdV(n + 1, 0)
            run(n, "a1")
            e(2, 5)
            if n < 31:
                qk4(n + 1, nxt)
            run(n, "a2")
            e(6, 13)
            pv(O0, cur, Vc)
            if n < 31:
                rdV(n + 1, 1)
            run(n, "a3")
            e(14, 17)
            pv(O0, cur + 8, Vc + 4)
            if n < 31:
                lg.wait(("K16", n + 1))
            if n % 2 == 0 and n + 2 < 32:
                rdK4(n + 2)
            e(18, 21)
            if n < 31:
                qk16(nxt, QA)
            run(n, "a5")
            e(22, 25)
            if n < 31:
                qk16(nxt + 16, QB)
            last = len(lg.q)
            if n + 2 < 32:
                rdK16(n + 2)
            if n < 31 and prio[n + 1] != prio[n] and n not in bars:
                a(f"s_setprio {prio[n+1]}")
            e(26, 29)
            pv(O1, cur + 16, Vc)
            if n < 31:
                cnt = len(lg.q) - last
                w = f"lgkmcnt({cnt})"
                lg.q = lg.q[last:]
                if n in bars and bars[n]:
                    w = bars[n] + " " + w
                a(f"s_waitcnt {w}")
                if n in bars:
                    a("s_barrier")
                    a(f"s_setprio {prio[n+1]}")
            e(30, 31)
        a("s_nop 1")
        pv(O1, S[1] + 24, V[1] + 4)
        self.stamp("attn")

    def lds_sync(self, off, n, vt):
        a = self.a
        lp, dn = a.label("Lsy"), a.label("Lsyd")
        a(f"v_mov_b32 v{vt}, {CNT+off}")
        a(f"v_mov_b32 v{vt+1}, 1")
        a("s_mov_b64 exec, 1")
        a(f"ds_add_u32 v{vt}, v{vt+1}")
        a("s_mov_b64 exec, -1")
        return lp, dn

    def lds_spin(self, lp, dn, n, vt):
        a = self.a
        a("s_mov_b32 s82, 0")
        a.put(lp)
        a(f"ds_read_b32 v{vt+1}, v{vt}")
        a("s_add_u32 s82, s82, 1")
        a("s_waitcnt lgkmcnt(0)")
        a(f"v_readfirstlane_b32 s83, v{vt+1}")
        a("s_cmp_gt_u32 s82, 0x40000")
        a(f"s_cbranch_scc1 {dn}")
        a(f"s_cmp_lt_u32 s83, {n}")
        a(f"s_cbranch_scc1 {lp}")
        a.put(dn)

    def setupB(self, P):
        a = self.a
        kcs, uts = (KPS, UTP) if P else (KCS, UTS)
        a(f"s_mul_i32 s11, s10, {kcs}")
        a(f"s_add_u32 s11, s11, {KC}")
        a("v_and_b32 v10, 15, v0")
        a("v_lshrrev_b32 v11, 4, v0")
        a("v_sub_u32 v12, 0x7ef, v10")
        a("v_lshrrev_b32 v12, 1, v12")
        a("v_lshl_add_u32 v12, v11, 2, v12")
        a("v_lshlrev_b32 v12, 2, v12")
        a("v_and_b32 v13, 1, v0")
        a("v_xor_b32 v13, 1, v13")
        a(f"v_mul_u32_u24 v13, {kcs//2}, v13")
        a(f"s_sub_u32 s12, s11, {960 + (2048 if P else 0)}")
        a("v_add3_u32 v240, v12, v13, s12")
        if P:
            a("v_subrev_u32 v241, 1024, v240")
            a(f"v_add_u32 v242, {4*KPS}, v240")
            a(f"v_add_u32 v243, {4*KPS}, v241")
        else:
            for b in range(1, 4):
                a(f"v_subrev_u32 v{240+b}, {1024*b}, v240")
        a("v_lshlrev_b32 v12, 5, v10")
        a(f"s_mul_i32 s12, s10, {uts}")
        a(f"s_add_u32 s12, s12, {UT}")
        a("v_lshl_add_u32 v13, v11, 4, v12")
        a("v_add_u32 v244, s12, v13")
        a("s_lshr_b32 s12, s10, 1")
        a("s_lshl_b32 s12, s12, 6")
        a("s_add_u32 s12, s12, s11")
        a("v_lshl_add_u32 v13, v11, 3, v12")
        a("v_add_u32 v245, s12, v13")
        a("v_bfe_u32 v12, v0, 2, 2")
        a(f"s_movk_i32 s12, {kcs}")
        a("v_lshrrev_b32 v13, 1, v12")
        a("v_lshlrev_b32 v13, 6, v13")
        a("v_mad_u32_u24 v13, v12, s12, v13")
        a("v_lshl_add_u32 v13, v11, 5, v13")
        a("v_and_b32 v12, 3, v0")
        a("v_lshl_add_u32 v13, v12, 3, v13")
        a("s_lshl_b32 s12, s10, 7")
        a(f"s_add_u32 s12, s12, {KC}")
        a("v_add_u32 v246, s12, v13")
        a("s_mul_i32 s11, s10, 163840")
        a(f"s_lshl_b32 s12, s{sD0}, 1")
        a("s_add_u32 s11, s11, s12")
        a("s_add_u32 s11, s11, 1280")
        a("s_movk_i32 s12, 2560")
        a("v_mov_b32 v247, s11")
        a("v_mad_u32_u24 v247, v0, s12, v247")
        a("v_sub_u32 v250, 1008, v8")
        a("v_lshlrev_b32 v251, 3, v0")
        a("v_sub_u32 v251, 1528, v251")
        a("v_and_b32 v12, 1, v11")
        a("v_mul_u32_u24 v12, 2112, v12")
        a("v_lshl_add_u32 v252, v10, 2, v12")
        a("v_lshlrev_b32 v248, 24, v0")
        a(f"s_add_u32 s11, s{sD0}, s10")
        a(f"s_lshr_b32 s12, s{sD0}, 3")
        a("s_lshl_b32 s12, s12, 7")
        a(f"s_add_u32 s99, s12, {FLG_K}")
        if P:
            a("s_mov_b32 s90, 0x80000000")
            a("s_mov_b32 s91, 0x80000000")
            a(f"s_mul_i32 s98, s{sD0}, {KPS}")
            a("s_lshl_b32 s12, s10, 10")
            a("s_add_u32 s98, s98, s12")
            a(f"s_add_u32 s98, s98, {KIMG}")
        else:
            a(f"s_mul_i32 s90, s11, {KPS}")
            a(f"s_add_u32 s90, s90, {KIMG}")
            a(f"s_and_b32 s12, s{sD0}, 4")
            a("s_lshl1_add_u32 s91, s12, s99")
            a("s_cmp_eq_u32 s10, 0")
            a("s_cselect_b32 s91, s91, 0x80000000")
            a("s_mov_b32 s98, 0")
        a("s_mul_i32 s11, s10, 6144")
        a(f"s_add_u32 s11, s11, {WO+40960}")
        a("v_add_u32 v9, s11, v8")
        a("s_lshr_b32 s11, s2, 3")
        a("s_mul_i32 s11, s11, 81920")
        a("s_and_b32 s12, s2, 7")
        a("s_mul_i32 s12, s12, 160")
        a("s_add_u32 s11, s11, s12")
        a("s_mul_i32 s12, s10, 156")
        a("s_add_u32 s11, s11, s12")
        a("s_cmp_lt_u32 s10, 2")
        a("s_cselect_b32 s11, s11, 0x80000000")
        a("s_movk_i32 s12, 1280")
        a("v_mov_b32 v154, s11")
        a("v_mad_u32_u24 v154, v0, s12, v154")

    def tailB(self):
        a = self.a
        for i in range(3):
            a(f"ds_write_b128 v9, {v(80+4*i,4)} offset:{1024*i}")
        a(f"s_cmp_lt_u32 s{sG}, 3")
        a("s_cbranch_scc1 L_tailP")
        self.conv(False)
        a.put("L_tailP")
        self.conv(True)
        a.put("L_kpoll")
        a("s_mov_b32 s82, 0")
        a.put("L_kpoll1")
        a(f"buffer_load_dwordx4 v[216:219], v4, s[{SWS}:{SWS+3}], s99 offen sc1")
        a("s_add_u32 s82, s82, 1")
        a("s_cmp_gt_u32 s82, 20000")
        a("s_waitcnt vmcnt(0)")
        a("s_cbranch_scc1 L_kin0")
        a(f"v_cmp_eq_u64 vcc, s[{sN}:{sN+1}], v[216:217]")
        a(f"v_cmp_eq_u64 s[84:85], s[{sN}:{sN+1}], v[218:219]")
        a("s_nop 0")
        a("s_and_b64 vcc, vcc, s[84:85]")
        a("s_cbranch_scc0 L_kpoll1")
        a("s_branch L_kin0")

    def conv(self, P):
        a = self.a
        ACC = 144
        lg = LG(a, "lgkmcnt", 15)
        b2 = lambda r: 16 + 64 * (r & 1)

        def reads(r):
            base = b2(r)

            def K(k):
                sidx = 8 * (k & 3 if P else k) + r
                o = 16 * (15 - (sidx & 15))
                ar = 240 + (sidx >> 4) + (2 * (k >> 2) if P else 0)
                A = base + 4 * k
                return [(("K", r, k), f"ds_read2_b32 {v(A,2)}, v{ar} offset0:{o} offset1:{o+1}"),
                        (("K", r, k), f"ds_read2_b32 {v(A+2,2)}, v{ar} offset0:{o+2} offset1:{o+3}")]

            def U(k):
                e = 8 * (k & 3 if P else k) - r
                return [(("U", r, k), f"ds_read_b128 {v(base+32+4*k,4)}, v244 offset:{64*(e+7)+(4*UTP*(k>>2) if P else 0)}")]
            if P:
                out = []
                for c in (0, 4):
                    out += K(c) + U(c) + U(c + 1) + U(c + 2) + U(c + 3) + K(c + 1) + K(c + 2) + K(c + 3)
                return out
            out = K(0)
            for k in range(4, 8):
                out += U(k)
            for sg in range(1, 8):
                out += K(sg) + (U(4 - sg) if sg <= 4 else [])
            return out

        def emit(x):
            a(x[1])
            lg.issue(x[0])
        r0 = reads(0)
        early = [x for x in r0 if x[0][0] == "K"][:9]
        for x in early:
            emit(x)
        for i in range(3):
            emit((None, f"ds_write_b128 v9, {v(96+4*i,4)} offset:{3072+1024*i}"))
        for x in r0:
            if x not in early:
                emit(x)
        a("s_waitcnt lgkmcnt(15)")
        a("s_barrier")
        self.stamp("T1")
        self.stop_at("t1")
        a("s_setprio 1")
        if P:
            a("s_cmp_lt_u32 s2, 80")
            a("s_cbranch_scc0 L_fin")
        self.stamp("cv_s")

        def fin(i):
            t = 16 + 2 * i
            off = 512 * (i & 3) + 4 * KPS * (i >> 2) if P else 512 * i
            return [f"v_cvt_pk_bf16_f32 v{t}, v{ACC+4*i}, v{ACC+4*i+1}",
                    f"v_cvt_pk_bf16_f32 v{t+1}, v{ACC+4*i+2}, v{ACC+4*i+3}", f"ds_write_b64 v245, {v(t,2)} offset:{off}"]

        def mm(i, A, B, first=False):
            return f"v_mfma_f32_16x16x32_bf16 {v(ACC+4*i,4)}, {v(A,4)}, {v(B,4)}, {'0' if first else v(ACC+4*i,4)}"
        outs = range(8) if P else range(4, 8)
        pend = []
        for r in range(8):
            base = b2(r)
            nxt = reads(r + 1) if r < 7 else []
            ms = []
            if P:
                for c in (0, 4):
                    if r == 0:
                        ms += [(c + i, None, c + i, mm(c + i, 192 + 5 * c, base + 32 + 4 * (c + i), True)) for i in range(4)]
                    ms += [(c + i, c + sg, c + i - sg, mm(c + i, base + 4 * (c + sg), base + 32 + 4 * (c + i - sg))) for sg in range(4) for i in range(sg, 4)]
            else:
                if r == 0:
                    ms += [(i, None, i, mm(i, 192, base + 32 + 4 * i, True)) for i in outs]
                ms += [(i, sg, i - sg, mm(i, base + 4 * sg, base + 32 + 4 * (i - sg))) for sg in range(8) for i in range(max(sg, 4), 8)]
            if r == 7:
                ms = [x for x in ms if x[0] != 7] + [x for x in ms if x[0] == 7]
            done = set()
            if "rst" in self.x:
                if r:
                    nm = f"r{r-1}"
                    if nm not in STN:
                        STN.append(nm)
                    a(f"v_writelane_b32 v254, s86, {STN.index(nm)}")
                    a(f"v_writelane_b32 v253, s88, {STN.index(nm)}")
                a("s_memtime s[86:87]")
            for n, (i, kk, uu, ln) in enumerate(ms):
                need = [t for t in (("K", r, kk), ("U", r, uu)) if t in lg.q]
                if need:
                    lg.wait(max(need, key=lambda t: max(q for q, z in enumerate(lg.q) if z == t)))
                a(ln)
                if r == 7:
                    for j in outs:
                        last = max(q for q, z in enumerate(ms) if z[0] == j)
                        if j not in done and n >= last + 4:
                            done.add(j)
                            pend += fin(j)
                    for _ in range(2):
                        if pend:
                            y = pend.pop(0)
                            a(y)
                            if y.startswith("ds_"):
                                lg.issue(None)
                if n >= 1:
                    for _ in range(2 if len(nxt) > len(ms) - n else 1):
                        if nxt:
                            emit(nxt.pop(0))
            assert not nxt
        for j in outs:
            if j not in done:
                pend += fin(j)
        for ln in pend:
            a(ln)
        self.stamp("conv")
        lp, dn = self.lds_sync(8, 4, 2)
        self.lds_spin(lp, dn, 4 if "nohold" in self.x else 68, 2)
        self.stamp("T2")
        if P:
            for i in range(4):
                a(f"ds_read_b64_tr_b16 {v(32+4*i,2)}, v246 offset:{512*i}")
                a(f"ds_read_b64_tr_b16 {v(34+4*i,2)}, v246 offset:{512*i+4*KPS}")
            for i in range(4):
                a(f"s_mov_b32 s12, {655360*i}")
                a(f"s_waitcnt lgkmcnt({6-2*i})")
                a(f"buffer_store_dwordx4 {v(32+4*i,4)}, v247, s[{SOUT}:{SOUT+3}], s12 offen")
        else:
            for i in outs:
                a(f"ds_read_b64_tr_b16 {v(32+2*i,2)}, v246 offset:{512*i}")
            for i in outs:
                a(f"s_mov_b32 s12, {655360*i}")
                a(f"s_waitcnt lgkmcnt({7-i})")
                a(f"buffer_store_dwordx2 {v(32+2*i,2)}, v247, s[{SOUT}:{SOUT+3}], s12 offen")
        a("s_branch L_fin")

    def setupA(self):
        a = self.a
        a(f"s_lshl_b32 s11, s{sW}, 11")
        a("s_lshr_b32 s12, s2, 3")
        a("s_add_u32 s11, s11, s12")
        a("s_lshl_b32 s11, s11, 7")
        a("v_lshl_add_u32 v154, v0, 12, s11")
        a(f"s_mul_i32 s11, s{sW}, 6144")
        a(f"s_add_u32 s11, s11, {WO+40960}")
        a("v_add_u32 v9, s11, v8")
        a(f"s_mul_i32 s14, s{sT}, 81920")
        a(f"s_add_u32 s14, s14, {OIMG}")
        a(f"s_mul_i32 s15, s{sG}, 2560")
        a("s_add_u32 s15, s15, s14")
        a("v_mov_b32 v144, 0xdddddddd")
        a("v_mov_b32 v145, v8")
        a(f"v_add_u32 v146, {SLOT}, v8")
        a(f"v_add_u32 v147, {2*SLOT}, v8")
        for r in range(16):
            a(f"v_mov_b64 {v(80+2*r,2)}, 0")

    def setupA2(self):
        return ["v_mov_b32 v10, v149", "v_mov_b32 v11, v150", f"v_add_u32 v149, {SLOT}, v148", f"v_add_u32 v150, {2*SLOT}, v148",
                f"v_add_u32 v152, {SLOT}, v151", f"v_add_u32 v153, {2*SLOT}, v151",
                f"s_and_b32 s13, s{sW}, 1", "s_mul_i32 s10, s13, 15360", "s_sub_u32 s10, s10, 10240", "s_mul_i32 s11, s13, 10240",
                "s_add_u32 s11, s11, 5120"] + [f"v_add_u32 v{240+k}, s{10 if k < 6 else 11}, v{240+k}" for k in range(10)] + [
                f"s_lshl_b32 s13, s{sW}, 3", f"s_mul_i32 s10, s{sG}, 160"] + [x for q, c in enumerate((0x0f0c0b0a, 0x0e0d1110, 0x09081312)) for x in (
                    f"s_lshr_b32 s11, {c:#x}, s13", "s_and_b32 s11, s11, 0xff", f"s_mul_i32 s11, s11, 40960", f"s_add_u32 s{93+q}, s11, s10")] + [
                "v_mov_b64 v[4:5], -1", "v_mov_b64 v[6:7], -1", "v_lshlrev_b32 v252, 24, v0"]

    def tables(self):
        out = []
        cols = [[] for _ in range(16)]
        for l in range(64):
            G, r, c = l >> 4, (l >> 2) & 3, l & 3
            for m in range(5):
                P = 4 * m + G
                g2, p = divmod(P, 10)
                for tt in range(2):
                    row = 80 * g2 + (20 * (p >> 1) + 4 * (p & 1) + 8 * tt if p < 8 else 20 * (p - 8 + 2 * tt) + 16)
                    cols[2 * m + tt].append(WO + 51200 + 160 * (row + r) + 8 * c)
            cols[10].append((l & 15) * 2560 + 8 * G)
            cols[11].append(8 * (l & 7))
            cols[12].append(2048 + 8 * l)
            cols[13].append((G & 1) * 20480 + 16 * (l & 15) + 256 * (l >> 5))
            cols[14].append(G * 20480 + 16 * (l & 15))
            cols[15].append(2560 + 336 * (l >> 5) + 16 * (l & 31) if (l & 31) <= 20 else 0x30000)
        out.append(".p2align 7")
        out.append(".type L_tabA,@object")
        out.append("L_tabA:")
        for k in range(4):
            for l in range(64):
                out.append(".long " + ", ".join(str(cols[4 * k + e][l]) for e in range(4)))
        return out

    def latewo(self, i):
        return [f"s_add_u32 m0, s95, {1024*i-WO}" if i else f"s_sub_u32 m0, s95, {WO}", "s_nop 0",
                f"buffer_load_dwordx4 v{155+i%5}, s[{SWO}:{SWO+3}], s{93+i//5} offen lds"]

    def wofrag(self, n):
        j = n % 25
        return 160 + 4 * j if j < 20 else 136 + 4 * (j - 20)

    def woread(self, n):
        k, ct = divmod(n, 5)
        F, m = self.wofrag(n), k % 5
        return [f"ds_read_b64_tr_b16 {v(F,2)}, v{240+2*m} offset:{32*ct}",
                f"ds_read_b64_tr_b16 {v(F+2,2)}, v{241+2*m} offset:{32*ct}"]

    def tailA(self):
        a = self.a
        O = (80, 96)
        AD, OF = 240, 16
        a("s_setprio 3")
        pre = [f"s_and_b32 s98, s{sW}, 1", "s_mul_i32 s12, s98, 5120", "s_add_u32 s14, s14, s12", f"s_mul_i32 s90, s{sW}, 20480",
               "s_add_u32 s90, s90, s14", f"s_xor_b32 s99, s{sW}, 1", "s_mul_i32 s91, s99, 20480", "s_add_u32 s91, s91, s14"]
        for i in range(len(LT1), 10):
            x = self.latewo(i)
            a(x[0])
            a(pre.pop(0) if pre else x[1])
            a(x[2])
        for ln in pre:
            a(ln)
        a("v_cmp_eq_u64 s[94:95], s[96:97], v[2:3]")
        a("s_mov_b32 s13, 0")
        a(f"s_mov_b32 s83, {f2u(2.0**48):#x}")
        a("s_barrier")
        self.stamp("T1")
        self.stop_at("t1")
        for i in (2, 5, 0, 1, 3, 4):
            a(f"ds_read_b128 {v(16+4*i,4)}, v9 offset:{1024*i}")
        a("s_waitcnt lgkmcnt(4)")
        for T in range(2):
            a(f"v_add_f32 v{O[T]+8}, v{O[T]+8}, v{24+12*T}")
        a.put("L_lext")
        for T in range(2):
            a(f"v_mov_b32 v{40+2*T}, v{O[T]+8}")
            a(f"v_mov_b32 v{41+2*T}, v{O[T]+8}")
        for T in range(2):
            for i in (9, 10, 11):
                a(f"v_add_f32 v{O[T]+i}, v{O[T]+i}, v{16+12*T+i}")
        a("v_permlane32_swap_b32 v40, v41")
        a("v_permlane32_swap_b32 v42, v43")
        a("s_cmp_eq_u32 s13, 1")
        a("v_rcp_f32 v44, v41")
        a("v_rcp_f32 v45, v43")
        a("v_min_f32 v40, v41, v43")
        a("v_max_f32 v42, v41, v43")
        for T in range(2):
            a(f"s_waitcnt lgkmcnt({2-2*T})")
            for i in range(8):
                a(f"v_add_f32 v{O[T]+i}, v{O[T]+i}, v{16+12*T+i}")
            for i in range(12):
                a(f"v_mul_f32 v{O[T]+i}, v{O[T]+i}, v{44+T}")
            for q in range(4):
                a(f"v_cvt_pk_bf16_f32 v{48+4*T+q}, v{O[T]+2*q}, v{O[T]+2*q+1}")
            for q in range(2):
                a(f"v_cvt_pk_bf16_f32 v{56+2*T+q}, v{O[T]+8+2*q}, v{O[T]+9+2*q}")
        a("s_cbranch_scc1 L_norm")
        a("v_permlane32_swap_b32 v56, v58")
        a("v_permlane32_swap_b32 v57, v59")
        for T in range(2):
            for q in range(6):
                a(f"v_fmac_f32 v6, v{O[T]+2*q}, v{O[T]+2*q+1}")
        a("v_cmp_ge_f32 s[84:85], s83, v42")
        a("v_fmac_f32 v40, 0, v6")
        a(f"v_cmp_le_f32 vcc, {f2u(2.0**-24):#x}, v40")
        a("s_nop 0")
        a("s_and_b64 vcc, vcc, s[84:85]")
        a("s_cmp_eq_u64 vcc, -1")
        a("s_branch L_slow" if self.force_slow else "s_cbranch_scc0 L_slow")
        a.put("L_norm2")
        ACC, TR, NR = 96, 40, 25
        WS_ = f"s[{SWS}:{SWS+3}]"

        def ostore(pol):
            a(f"buffer_store_dwordx4 v[48:51], v10, {WS_}, s10 offen{pol}")
            a(f"buffer_store_dwordx4 v[52:55], v10, {WS_}, s11 offen{pol}")
            a(f"buffer_store_dwordx2 v[56:57], v11, {WS_}, s15 offen offset:2048{pol}")
        a("s_cmp_eq_u64 s[94:95], -1")
        a("s_branch L_far" if "far" in self.x else "s_cbranch_scc0 L_far")
        ostore("")
        a.put("L_pod")
        self.stamp("Oiss")
        if "aexit" in self.x:
            a("s_branch L_fin")
        a(f"buffer_load_dwordx4 {v(ACC,4)}, v1, {WS_}, s90 offen sc1")

        def issue(n):
            for ln in self.woread(n):
                a(ln)
        for n in range(15, 25):
            issue(n)
        a("s_mov_b32 s82, 0")
        a("s_waitcnt vmcnt(4)")
        lp, dn = self.lds_sync(0, 4, 4)
        self.stamp("Ostored")
        a.put("L_pr")
        a("s_waitcnt vmcnt(0)")
        a(f"v_max_u32 v6, v{ACC}, v{ACC+2}")
        a("s_add_u32 s82, s82, 1")
        a("v_cmp_eq_u32 vcc, -1, v6")
        a("s_cbranch_vccz L_prd")
        a("s_cmp_gt_u32 s82, 20000")
        a("s_cbranch_scc1 L_prd")
        a(f"buffer_load_dwordx4 {v(ACC,4)}, v1, {WS_}, s90 offen sc1")
        a("s_branch L_pr")
        a.put("L_prd")
        self.stamp("Oseen")

        def oload(k):
            o = 10240 + 1024 * k if k < 5 else 1024 * (k - 5)
            for rt in range(2):
                a(f"s_add_u32 s13, s{90+rt}, {o & ~4095}")
                a(f"buffer_load_dwordx4 {v(OF+8*k+4*rt,4)}, v8, s[{SWS}:{SWS+3}], s13 offen offset:{o & 4095} sc1")
        for k in range(NUP):
            oload(k)
        a(f"v_mov_b32 v12, {CNT+8}")
        a("v_mov_b32 v13, 16")
        if NUP == 10 and "nohold" not in self.x:
            a("s_mov_b64 exec, 1")
            a("ds_add_u32 v12, v13")
            a("s_mov_b64 exec, -1")
        a("s_mul_i32 s10, s98, 10240")
        a("s_sub_u32 s10, s10, 40960")
        a("s_mul_i32 s11, s98, 66560")
        a("s_sub_u32 s11, s11, 56320")
        for k in range(10):
            a(f"v_add_u32 v{AD+k}, s{10 if k < 6 else 11}, v{AD+k}")
        a(f"s_mul_i32 s12, s{sW}, 5120")
        a(f"s_add_u32 s12, s12, {WO+40960}")
        a("v_add_u32 v15, s12, v8")
        a("s_mul_i32 s12, s99, 5120")
        a(f"s_add_u32 s12, s12, {WO+40960}")
        a("v_add_u32 v14, s12, v8")
        a(f"s_and_b32 s12, s{sW}, 2")
        a(f"s_lshl2_add_u32 s12, s12, {CNT+4}")
        a("v_mov_b32 v7, s12")
        self.lds_spin(lp, dn, 4, 4)
        self.stamp("T2")
        a(f"s_setprio {OPRIO}")
        a(f"s_lshl_b32 s12, s{sT}, 6")
        a(f"s_lshl4_add_u32 s12, s{sW}, s12")
        a("s_mul_i32 s12, s12, 2560")
        a(f"s_mul_i32 s11, s{sG}, 160")
        a("s_add_u32 s12, s12, s11")
        a("v_mov_b32 v5, 1")
        a("s_mov_b32 s82, 0")
        nld = [NUP]

        def more():
            for kk in range(nld[0], min(10, nld[0] + OST)):
                oload(kk)
                if kk == 9 and "nohold" not in self.x:
                    a("s_mov_b64 exec, 1")
                    a("ds_add_u32 v12, v13")
                    a("s_mov_b64 exec, -1")
            nld[0] = min(10, nld[0] + OST)

        def chk(k):
            F = OF + 8 * k
            return [f"v_max3_u32 v6, v{F}, v{F+2}, v{F+4}", f"v_max_u32 v6, v6, v{F+6}", "v_cmp_eq_u32 vcc, -1, v6"]

        def mm(n, rt):
            k, ct = divmod(n, 5)
            F = self.wofrag(n)
            D = ACC + 20 * rt + 4 * ct
            a(f"v_mfma_f32_16x16x32_bf16 {v(D,4)}, {v(F,4)}, {v(OF+8*k+4*rt,4)}, {'0' if k == 0 else v(D,4)}")
        more()
        a(f"s_waitcnt vmcnt({2*(nld[0]-1)})")
        for ln in chk(0):
            a(ln)
        for k in range(10):
            lk = {8: 10, 9: 0}.get(k, 15)
            a(f"s_cbranch_vccnz L_re{k}")
            a.put(f"L_ok{k}")
            if k >= 5:
                a(f"s_waitcnt lgkmcnt({lk})")
            if k == 0:
                self.stamp("op0")
            if k < 9:
                c = chk(k + 1)
                for n in range(5 * k, 5 * k + 5):
                    mm(n, 0)
                    if n % 5 == 0:
                        more()
                    if n % 5 == 3:
                        a(f"s_waitcnt vmcnt({2*(nld[0]-k-2)})")
                        a(c[0])
                    if n % 5 == 4:
                        a(c[2])
                    mm(n, 1)
                    if n % 5 == 3:
                        a(c[1])
                    if n >= 1 and n - 1 + NR < 50:
                        issue(n - 1 + NR)
            else:
                for n in range(45, 50):
                    mm(n, 1)
                for n in range(45, 50):
                    mm(n, 0)
                    a(f"ds_write_b128 v15, {v(ACC+20+4*(n-45),4)} offset:{1024*(n-45)}")
        a("s_mov_b64 exec, 1")
        a("ds_add_u32 v7, v5")
        a("s_mov_b64 exec, -1")
        self.stamp("op50")
        a("s_mov_b32 s82, 0")
        a.put("L_ex")
        a("ds_read_b32 v5, v7")
        for ct in range(5):
            a(f"ds_read_b128 {v(TR+4*ct,4)}, v14 offset:{1024*ct}")
        a("s_add_u32 s82, s82, 1")
        a("s_waitcnt lgkmcnt(5)")
        a("v_readfirstlane_b32 s83, v5")
        a("s_cmp_gt_u32 s82, 0x40000")
        a("s_cbranch_scc1 L_exd")
        a("s_cmp_lt_u32 s83, 2")
        a("s_cbranch_scc1 L_ex")
        a.put("L_exd")
        for ct in range(5):
            a(f"s_waitcnt lgkmcnt({4-ct})")
            for e in range(4):
                a(f"v_add_f32 v{ACC+4*ct+e}, v{ACC+4*ct+e}, v{TR+4*ct+e}")
            a(f"v_cvt_pk_bf16_f32 v{16+2*ct}, v{ACC+4*ct}, v{ACC+4*ct+1}")
            a(f"v_cvt_pk_bf16_f32 v{17+2*ct}, v{ACC+4*ct+2}, v{ACC+4*ct+3}")
            a(f"buffer_store_dwordx2 {v(16+2*ct,2)}, v250, s[{SOUT}:{SOUT+3}], s12 offen offset:{32*ct}")
        a("s_branch L_fin")
        a.put("L_norm")
        a("v_permlane32_swap_b32 v56, v58")
        a("v_permlane32_swap_b32 v57, v59")
        a("s_branch L_norm2")
        a.put("L_far")
        ostore(" sc1")
        a("s_mov_b32 s82, 0")
        a.put("L_po")
        a(f"v_xor_b32 v3, s{sN+1}, v3")
        a(f"v_xor_b32 v2, s{sN}, v2")
        a("v_lshl_or_b32 v2, v3, 4, v2")
        a("s_add_u32 s82, s82, 1")
        a("v_cmp_ne_u32 vcc, 0, v2")
        a("s_cbranch_vccz L_pod")
        a("s_cmp_gt_u32 s82, 20000")
        a("s_cbranch_scc1 L_pod")
        a(f"buffer_load_dwordx2 v[2:3], v251, {WS_}, s92 offen sc1")
        a("s_waitcnt vmcnt(0)")
        a("s_branch L_po")
        for k in range(10):
            a.put(f"L_re{k}")
            oload(k)
            a("s_add_u32 s82, s82, 1")
            a("s_cmp_gt_u32 s82, 20000")
            a("s_waitcnt vmcnt(0)")
            a(f"s_cbranch_scc1 L_ok{k}")
            for ln in chk(k):
                a(ln)
            a(f"s_cbranch_vccnz L_re{k}")
            a(f"s_branch L_ok{k}")

    def slow(self):
        a = self.a
        S0, O0, O1, QA, QB, Q4, K4, K16, V, IDX, AV = 16, 80, 96, 112, 116, 120, 122, 124, 128, 144, 151
        M0, M1 = 60, 61
        a.put("L_slow")
        a("v_and_b32 v62, 31, v0")
        a("v_lshlrev_b32 v62, 3, v62")
        a(f"v_mov_b32 v{M0}, 0xff800000")
        a(f"v_mov_b32 v{M1}, 0xff800000")
        for ps in range(2):
            if ps == 1:
                for M, t in ((M0, 63), (M1, 64)):
                    a(f"v_mov_b32 v{t}, v{M}")
                a("s_nop 1")
                a(f"v_permlane32_swap_b32 v{M0}, v63")
                a(f"v_permlane32_swap_b32 v{M1}, v64")
                a("s_nop 1")
                a(f"v_max_f32 v{M0}, v{M0}, v63")
                a(f"v_max_f32 v{M1}, v{M1}, v64")
                for r in range(32):
                    a(f"v_mov_b32 v{O0+r}, 0")
            a("s_mov_b32 s8, 0")
            a.put(f"L_sl{ps}")
            a("s_lshr_b32 s9, s8, 1")
            a(f"s_mul_i32 s9, s9, {BLK}")
            a("s_and_b32 s82, s8, 1")
            a("s_lshl_b32 s12, s82, 10")
            a("s_add_u32 s12, s12, s9")
            a(f"buffer_load_dwordx4 {v(K16,4)}, v8, s[{SWS}:{SWS+3}], s12 offen sc1")
            a("s_lshl_b32 s12, s82, 8")
            a("s_add_u32 s12, s12, s9")
            a(f"buffer_load_dwordx2 {v(K4,2)}, v62, s[{SWS}:{SWS+3}], s12 offen offset:2048 sc1")
            if ps == 1:
                a("s_mul_i32 s12, s82, 1344")
                a("s_add_u32 s12, s12, s9")
                a(f"buffer_load_dwordx4 {v(V,4)}, v{AV}, s[{SWS}:{SWS+3}], s12 offen sc1")
                a(f"buffer_load_dwordx4 {v(V+4,4)}, v{AV}, s[{SWS}:{SWS+3}], s12 offen offset:672 sc1")
            a("s_waitcnt vmcnt(0)")
            a(f"v_mfma_f32_32x32x4_2b_bf16 {v(S0,32)}, {v(K4,2)}, {v(Q4,2)}, 0 cbsz:1 abid:0")
            a.nop(18)
            a(f"v_mfma_f32_32x32x16_bf16 {v(S0,16)}, {v(K16,4)}, {v(QA,4)}, {v(S0,16)}")
            a(f"v_mfma_f32_32x32x16_bf16 {v(S0+16,16)}, {v(K16,4)}, {v(QB,4)}, {v(S0+16,16)}")
            a.nop(14)
            if ps == 0:
                for T, M in ((0, M0), (1, M1)):
                    for r in range(0, 16, 2):
                        a(f"v_max3_f32 v{M}, v{S0+16*T+r}, v{S0+16*T+r+1}, v{M}")
            else:
                for T, M in ((0, M0), (1, M1)):
                    for r in range(16):
                        a(f"v_sub_f32 v{S0+16*T+r}, v{S0+16*T+r}, v{M}")
                for r in range(32):
                    a(f"v_exp_f32 v{S0+r}, v{S0+r}")
                a("s_nop 1")
                for T, O in ((0, O0), (1, O1)):
                    for f in range(2):
                        a(f"v_smfmac_f32_32x32x32_bf16 {v(O,16)}, {v(V+4*f,4)}, {v(S0+16*T+8*f,8)}, v{IDX}")
                a.nop(14)
            a("s_add_u32 s8, s8, 1")
            a("s_cmp_lt_u32 s8, 64")
            a(f"s_cbranch_scc1 L_sl{ps}")
        for r in range(16, 40, 2):
            a(f"v_mov_b64 {v(r,2)}, 0")
        a("s_mov_b32 s13, 1")
        a("s_branch L_lext")

    def dump(self):
        a = self.a
        a.put("L_dump")
        a("s_waitcnt vmcnt(0) lgkmcnt(0)")
        a("s_barrier")
        a(f"s_lshl_b32 s10, s{sW}, 10")
        a("v_lshl_add_u32 v250, v0, 4, s10")
        a(f"s_mul_i32 s11, s2, {LDS_BYTES}")
        a(f"s_add_u32 s11, s11, {DBG}")
        a("v_mov_b32 v251, v250")
        for i in range(20):
            a("ds_read_b128 v[252:255], v251")
            a("s_waitcnt lgkmcnt(0)")
            a(f"buffer_store_dwordx4 v[252:255], v250, s[{SWS}:{SWS+3}], s11 offen")
            a("s_waitcnt vmcnt(0)")
            a("v_add_u32 v251, 0x2000, v251")
            a("s_add_u32 s11, s11, 0x2000")
        if self.dump_regs:
            lo, n = self.dump_regs
            a(f"s_lshl_b32 s10, s2, 3")
            a(f"s_add_u32 s10, s10, s{sW}")
            a(f"s_mul_i32 s10, s10, {256*n}")
            a(f"s_add_u32 s10, s10, {DBG + 256*LDS_BYTES}")
            a("v_lshlrev_b32 v250, 2, v0")
            for i in range(n):
                a(f"buffer_store_dword v{lo+i}, v250, s[{SWS}:{SWS+3}], s10 offen")
                a("s_add_u32 s10, s10, 256")
            a("s_waitcnt vmcnt(0)")
        a("s_endpgm")

    def build(self):
        a = self.a
        self.prologue()
        self.startA()
        self.qgemm()
        self.attention(False)
        self.tailA()
        a.put("L_B0")
        self.startB()
        self.bphase1()
        self.attention(True)
        self.tailB()
        self.slow()
        if self.stop:
            self.dump()
        a.put("L_fin")
        a("s_waitcnt lgkmcnt(0)")
        if self.stamps:
            self.stamp("issued")
            a("s_waitcnt vmcnt(0)")
            self.stamp("end")
            a("s_memrealtime s[86:87]")
            a("s_lshl_b32 s10, s2, 3")
            a(f"s_add_u32 s10, s10, s{sW}")
            a("s_lshl_b32 s10, s10, 9")
            a(f"s_add_u32 s10, s10, {STAMP}")
            a("v_lshlrev_b32 v1, 2, v0")
            a("s_waitcnt lgkmcnt(0)")
            a("v_writelane_b32 v254, s86, 63")
            a(f"buffer_store_dword v254, v1, s[{SWS}:{SWS+3}], s10 offen")
            a(f"buffer_store_dword v253, v1, s[{SWS}:{SWS+3}], s10 offen offset:256")
        if self.rt:
            a("s_cmp_lt_u32 s2, 250")
            a("s_cbranch_scc1 L_end")
            a(f"s_cmp_eq_u32 s{sW}, 4")
            a("s_cbranch_scc0 L_end")
            a("s_waitcnt vmcnt(0)")
            a("s_memrealtime s[86:87]")
            a("s_memtime s[94:95]")
            a("s_sub_u32 s10, s2, 248")
            a("s_lshl_b32 s10, s10, 3")
            a("v_mov_b32 v1, s10")
            a("s_waitcnt lgkmcnt(0)")
            a("s_sub_u32 s94, s94, s96")
            a(f"s_sub_u32 s86, s86, s{sN}")
            a("v_mov_b32 v4, s86")
            a("v_mov_b32 v5, s94")
            a("s_mov_b64 exec, 1")
            a("global_store_dwordx2 v1, v[4:5], s[46:47]")
        a.put("L_end")
        a("s_endpgm")
        a.put("L_codeend")
        a.lines += self.tables()
        return a


HEAD = open("cdna_kernels/" + NAME + ".s.ref").read().split("; Override launch")[0]


def emit(path, **kw):
    g = Gen(**kw)
    a = g.build()
    a.lines, msgs = autofix(a.lines)
    if kw.get("verbose", path.endswith("prompt.s")):
        for m in msgs[:30]:
            print("fixed", m)
    assert not check_hazards(a.lines)
    if path.endswith('prompt.s'):
        for m in check_inflight(a.lines)[:30]:
            print(m)
    src = HEAD + f"""; @launch grid=(256,1,1) block=(512,1,1) lds={LDS_BYTES}
.amdgcn_target "amdgcn-amd-amdhsa--gfx950"
.text
.globl {NAME}_kernel
.p2align 8
.type {NAME}_kernel,@function
{NAME}_kernel:
{a.text()}.section .rodata,"a"
.p2align 6
.amdhsa_kernel {NAME}_kernel
  .amdhsa_next_free_vgpr 256
  .amdhsa_next_free_sgpr 102
  .amdhsa_accum_offset 256
  .amdhsa_group_segment_fixed_size 0
  .amdhsa_kernarg_size 136
  .amdhsa_user_sgpr_count 2
  .amdhsa_user_sgpr_kernarg_segment_ptr 1
  .amdhsa_system_sgpr_workgroup_id_x 1
.end_amdhsa_kernel
"""
    open(path, "w").write(src)
    if path.endswith('prompt.s'):
        print('klen', g.klen, 'lastpk', g.kpk, 'left', g.kleft)
    return len(msgs)


if __name__ == "__main__":
    import os
    os.makedirs("out", exist_ok=True)
    n = emit("cdna_kernels/" + NAME + ".s")
    emit("b6.s", stop="e0")
    emit("t1.s", stop="t1", dump_regs=(80, 32))
    emit("full.s")
    emit("slow.s", force_slow=True)
    emit("stamp.s", stamps=True)
    emit("rt.s", rt=True)
    for arg in sys.argv[1:]:
        emit(f"stamp_{arg}.s", stamps=True, x=arg.split("+"))
        emit(f"full_{arg}.s", x=arg.split("+"))
    open("stn.txt", "w").write(" ".join(STN))
    print("hazards", n)
```

```python
import sys, struct
from asmlib import Asm, v, s, check_hazards, autofix, check_inflight

NAME = "concat_heads__grouped_kv_mqa__ssm_conv_s4__prompt"

BLK = 5248
SLOT = 41984
WL = 81920
WOFF = (58368, 0, 37888, 58368, 0)
AUX = 110592
KGB = 102400
KGS = 4352
KVP = 102400
QP = 102400
KC = 125952
KCS = 8320
WO = 1024
UT = 103424
UTS = 4592
UTP = 2544
KPS = 4224
USCR = 123840
CNT = 163808
LDS_BYTES = 163840

FLG_KV = 0x30000
FLG_O = 0x31000
FLG_K = 0x32000
OIMG = 0x40000
KIMG = 0x2C0000
WS_SIZE = 0x580000
DBG = 0x700000
STAMP = 0x600000

sW, sT, sG, sD0 = 3, 4, 5, 50
SX, SWQ, SKV, SWS, SOUT, SWO, SU = 52, 56, 60, 64, 68, 72, 76
sN = 80
sST = 88

LOG2E = 1.4426950408889634
STN = ['start']
KBAR = (0, 40, 1000, 1000, 1000)
KGW = 8
WV0 = 3
OPRIO = 0
NUP = 10
EXR = 12
PROBE = 0x98986420
LT1 = ('a1', 'a2', 'a3', 'a5')
OST = 2
NXU = 8


def f2u(x):
    return struct.unpack("<I", struct.pack("<f", x))[0]


class LG:
    def __init__(self, a, name, maxc):
        self.a, self.name, self.maxc, self.q = a, name, maxc, []

    def issue(self, tag=None):
        self.q.append(tag)

    def wait(self, tag):
        idx = max(i for i, t in enumerate(self.q) if t == tag)
        n = len(self.q) - 1 - idx
        self.a(f"s_waitcnt {self.name}({min(n, self.maxc)})")
        self.q = self.q[idx + 1:]

    def waitstr(self, tag):
        idx = max(i for i, t in enumerate(self.q) if t == tag)
        n = len(self.q) - 1 - idx
        self.q = self.q[idx + 1:]
        return f"{self.name}({min(n, self.maxc)})"

    def all(self):
        self.q = []


class Gen:
    def __init__(self, stop=None, stamps=False, force_slow=False, dump_regs=None, rt=False, x=()):
        self.rt = rt
        self.x = set(x) | ({'not'} if 'touch' not in x and 'latet' not in x else set())
        self.a = Asm()
        self.stop = stop
        self.stamps = stamps
        self.force_slow = force_slow
        self.debug = stop is not None or stamps
        self.dump_regs = dump_regs

    def srd(self, d, base, size):
        a = self.a
        a(f"s_mov_b32 s{d}, s{base}")
        a(f"s_mov_b32 s{d+1}, s{base+1}")
        a(f"s_mov_b32 s{d+2}, {size}")
        a(f"s_mov_b32 s{d+3}, 0x20000")

    def stamp(self, name):
        if self.stamps:
            if name not in STN:
                STN.append(name)
            self.a("s_memtime s[86:87]")
            self.a("s_memrealtime s[88:89]")
            self.a("s_waitcnt lgkmcnt(0)")
            self.a(f"v_writelane_b32 v254, s86, {STN.index(name)}")
            self.a(f"v_writelane_b32 v253, s88, {STN.index(name)}")

    def stop_at(self, name):
        if self.stop == name:
            self.a("s_branch L_dump")

    def cmul(self, d, x, y, conj=False):
        a = self.a
        a(f"v_pk_mul_f32 {v(d,2)}, {v(x,2)}, {v(y,2)} op_sel:[0,0] op_sel_hi:[1,0]")
        neg = "neg_hi:[0,1,0]" if conj else "neg_lo:[0,1,0]"
        return f"v_pk_fma_f32 {v(d,2)}, {v(x,2)}, {v(y,2)}, {v(d,2)} op_sel:[1,1,0] op_sel_hi:[0,1,1] {neg}"

    def cmuls(self, lst, conj=False):
        tail = [self.cmul(d, x, y, conj) for d, x, y in lst]
        for t in tail:
            self.a(t)

    def get_nonce(self, vt, vz):
        a = self.a
        lp, dn = a.label("Lnon"), a.label("Lnond")
        a("s_mov_b32 s82, 0")
        a.put(lp)
        a(f"v_readfirstlane_b32 s{sN}, {v(vt)}")
        a(f"v_readfirstlane_b32 s{sN+1}, {v(vt+1)}")
        a("s_add_u32 s82, s82, 1")
        a(f"s_bitcmp1_b32 s{sN}, 0")
        a(f"s_cbranch_scc1 {dn}")
        a("s_cmp_gt_u32 s82, 20000")
        a(f"s_cbranch_scc1 {dn}")
        a("s_sleep 4")
        a(f"global_load_dwordx2 {v(vt,2)}, {v(vz)}, s[46:47] sc1")
        a("s_waitcnt vmcnt(0)")
        a(f"s_branch {lp}")
        a.put(dn)

    def wdma(self, c, i):
        return [f"s_add_u32 m0, s85, {WOFF[c]+1024*i}", f"s_add_u32 s12, s84, {163840*c}",
                f"buffer_load_dwordx4 v{2+i}, s[{SWQ}:{SWQ+3}], s12 offen lds"]

    def prologue(self):
        a = self.a
        a("s_cmp_ge_u32 s2, 0x100")
        a("s_cbranch_scc1 L_end")
        a("s_load_dwordx16 s[16:31], s[0:1], 0")
        a("s_load_dwordx16 s[32:47], s[0:1], 64")
        a("s_load_dwordx2 s[48:49], s[0:1], 128")
        if self.rt:
            a("s_memrealtime s[98:99]")
            a("s_memtime s[96:97]")
        if self.stamps:
            a("s_memtime s[86:87]")
            a("s_memrealtime s[88:89]")
        a("s_getpc_b64 s[6:7]")
        a.put("L_pc")
        a("s_lshr_b32 s9, s2, 3")
        a("v_lshlrev_b32 v1, 12, v0")
        a("s_lshl_b32 s8, s9, 7")
        a("v_add_u32 v1, s8, v1")
        a("v_min_u32 v1, L_codeend-L_pc-4, v1")
        a("global_load_dword v255, v1, s[6:7]")
        a("v_lshrrev_b32 v1, 6, v0")
        a("v_and_b32 v0, 63, v0")
        a("s_and_b32 s8, s2, 7")
        a(f"v_readfirstlane_b32 s{sW}, v1")
        a(f"s_and_b32 s{sT}, s9, 3")
        a(f"s_lshl2_add_u32 s{sT}, s8, s{sT}")
        a(f"s_lshr_b32 s{sG}, s9, 2")
        a("v_lshlrev_b32 v8, 4, v0")
        a(f"s_cmp_lt_u32 s{sW}, 4")
        a("s_cbranch_scc0 L_B0")

    def kargwait(self):
        a = self.a
        a("s_waitcnt lgkmcnt(0)")
        if self.stamps:
            a("v_mov_b32 v254, 0")
            a("v_writelane_b32 v254, s86, 0")
            a("v_mov_b32 v253, 0")
            a("v_writelane_b32 v253, s88, 0")
        self.stamp("karg")

    def srds(self):
        self.srd(SWS, 48, 0x10000000 if self.debug else WS_SIZE)
        self.srd(SOUT, 44, 5242880)
        self.srd(SWO, 24, 819200)
        self.srd(SU, 26, 2621440)

    def startA(self):
        a = self.a
        a("s_add_u32 s10, s6, L_tabA-L_pc")
        a("s_addc_u32 s11, s7, 0")
        for k in range(3):
            a(f"global_load_dwordx4 {v(240+4*k,4)}, v8, s[10:11] offset:{1024*k}")
        a("global_load_dwordx4 v[148:151], v8, s[10:11] offset:3072")
        a("v_lshrrev_b32 v2, 4, v0")
        a(f"s_lshl_b32 s13, s{sW}, 2")
        a("v_add_u32 v3, s13, v2")
        a("v_and_b32 v4, 15, v0")
        a("v_xor_b32 v3, v3, v4")
        a("v_lshlrev_b32 v3, 4, v3")
        a("s_movk_i32 s12, 1280")
        a("v_mad_u32_u24 v7, v2, s12, v3")
        a(f"s_mul_i32 s92, s{sT}, 81920")
        a(f"s_mul_i32 s85, s{sW}, 5120")
        a("s_add_u32 s92, s92, s85")
        a(f"s_lshl_b32 s51, s{sW}, 10")
        a(f"s_cmp_ge_u32 s{sG}, 5")
        a("s_cselect_b32 s12, 5, 0")
        a(f"s_sub_u32 s94, s{sG}, s12")
        self.wvoff(2, True, nat=155, n=WV0)
        self.kargwait()
        self.srd(SX, 16, 2621440)
        for it in range(5):
            a("s_lshl_b32 s82, s94, 8")
            a("s_add_u32 s82, s82, s92")
            a("s_lshl_b32 s83, s94, 14")
            a("s_add_u32 m0, s83, s51")
            a("s_add_u32 s94, s94, 1")
            for m in range(4):
                a(f"buffer_load_dwordx4 v7, s[{SX}:{SX+3}], s82 offen lds")
                if m < 3:
                    a("s_add_u32 m0, m0, 4096")
                    a("s_add_u32 s82, s82, 20480")
            if it < 4:
                a("s_cmp_eq_u32 s94, 5")
                a("s_cselect_b32 s94, 0, s94")
            if it == 1:
                self.wvoff(2, True, nat=155, n0=WV0)
                self.srd(SWQ, 18, 819200)
                a(f"s_mul_i32 s84, s{sG}, 160")
                a(f"s_mul_i32 s12, s{sW}, 40960")
                a("s_add_u32 s84, s84, s12")
                a(f"s_add_u32 s91, s85, {WO}")
                a(f"s_add_u32 s85, s85, {WL}")
                a("s_mov_b32 s90, s84")
        self.stamp("Xiss")
        for c in range(2):
            for i in range(5):
                for ln in self.wdma(c, i):
                    a(ln)
        a(f"s_cmp_lt_u32 s{sG}, 2")
        a("s_cbranch_scc1 L_a_P")
        for i in range(5):
            for ln in self.wdma(2, i):
                a(ln)
        self.stamp("Wiss")
        self.qsetup()
        if self.stamps:
            a("s_waitcnt vmcnt(15)")
            self.stamp("B0")
        a("s_waitcnt vmcnt(10)")
        self.stamp("ownld")
        a("s_barrier")
        a("s_branch L_a_Q")
        a.put("L_a_P")
        a("s_waitcnt vmcnt(10)")
        a("s_barrier")
        self.stamp("B0")
        self.qsetup()
        a("s_waitcnt vmcnt(5)")
        self.stamp("ownld")
        a("s_barrier")
        for i in range(5):
            for ln in self.wdma(2, i):
                a(ln)
        a.put("L_a_Q")
        self.stamp("B1")

    def touchW(self, lo, hi):
        a = self.a
        lab = a.label("Lt")
        out = [f"s_sub_u32 s12, s{sW}, {lo}", f"s_cmp_lt_u32 s12, {hi-lo}", f"s_cbranch_scc0 {lab}",
               f"buffer_load_dword v255, v18, s[{SWQ}:{SWQ+3}], 0 offen"]
        if lo == 6:
            out += ["s_mov_b32 s12, 393216", f"buffer_load_dword v255, v18, s[{SWQ}:{SWQ+3}], s12 offen"]
        return out + [lab + ":"]

    def startB(self):
        a = self.a
        a("s_setprio 3")
        a(f"s_mul_i32 s{sD0}, s8, 80")
        a("s_min_u32 s11, s9, 9")
        a(f"s_lshl3_add_u32 s11, s11, s{sD0}")
        a(f"s_lshl2_add_u32 s{sD0}, s9, s{sD0}")
        a(f"s_sub_u32 s{sD0}, s{sD0}, 48")
        a(f"s_cmp_lt_u32 s{sG}, 3")
        a(f"s_cselect_b32 s{sD0}, s11, s{sD0}")
        a(f"s_and_b32 s10, s{sW}, 3")
        a(f"s_cmp_lt_u32 s{sG}, 2")
        a("s_cbranch_scc1 L_b_P")
        a(f"s_add_u32 s12, s{sD0}, s10")
        a("s_lshl_b32 s82, s12, 8")
        a("v_lshl_add_u32 v9, v0, 2, s82")
        a("s_lshl_b32 s12, s12, 1")
        a("v_mov_b32 v17, s12")
        a("v_mov_b32 v16, 0")
        a("s_mul_i32 s12, s10, 1536")
        a("s_add_u32 s12, s12, s9")
        a("s_sub_u32 s12, s12, 8")
        a("s_lshl_b32 s12, s12, 7")
        a("s_movk_i32 s83, 3072")
        a("v_mov_b32 v18, s12")
        a("v_mad_u32_u24 v18, v0, s83, v18")
        self.kargwait()
        self.srd(SWQ, 18, 819200)
        a(f"s_cmp_eq_u32 s{sG}, 2")
        a("s_cbranch_scc1 L_b_G2")
        a("global_load_short_d16_hi v16, v17, s[40:41]")
        for i, p in enumerate((28, 30, 32, 34, 36, 38)):
            a(f"global_load_dword v{160+i}, v9, s[{p}:{p+1}]")
        a(f"s_cmp_lt_u32 s{sW}, {0 if self.x & {'latet', 'not'} else 6}")
        a("s_cselect_b32 s12, 0, 0x80000000")
        a(f"buffer_load_dword v255, v18, s[{SWQ}:{SWQ+3}], s12 offen")
        self.srds()
        self.kgen()
        a("s_branch L_b_6")
        a.put("L_b_G2")
        if "latet" in self.x:
            a("s_waitcnt vmcnt(0)")
        for ln in [] if "not" in self.x else self.touchW(4, 6) + self.touchW(6, 8):
            a(ln)
        self.srds()
        self.attn_setup(True, P=True)
        a("v_mov_b32 v1, 0")
        for k in range(5):
            a("s_barrier")
            if k == 0:
                a("global_load_dwordx2 v[12:13], v1, s[46:47] sc1")
        a("s_waitcnt vmcnt(0)")
        self.get_nonce(12, 1)
        a("s_branch L_b_6")
        a.put("L_b_P")
        self.kargwait()
        a(f"s_cmp_eq_u32 s{sG}, 0")
        a(f"s_cselect_b32 s{SKV}, s20, s22")
        a(f"s_cselect_b32 s{SKV+1}, s21, s23")
        a(f"s_mov_b32 s{SKV+2}, 25600")
        a(f"s_mov_b32 s{SKV+3}, 0x20000")
        a("s_lshl_b32 s12, s10, 10")
        for i in range(6):
            a(f"s_add_u32 m0, s12, {AUX}")
            a("s_nop 0")
            a(f"buffer_load_dwordx4 v8, s[{SKV}:{SKV+3}], s12 offen lds")
            a("s_add_u32 s12, s12, 4096")
        a(f"s_cmp_eq_u32 s{sW}, 4")
        a("s_cbranch_scc0 L_pro_kv")
        a(f"s_add_u32 m0, s12, {AUX}")
        a("s_nop 0")
        a(f"buffer_load_dwordx4 v8, s[{SKV}:{SKV+3}], s12 offen lds")
        a("s_cmp_eq_u32 s2, 0")
        a("s_cbranch_scc0 L_pro_kv")
        a("s_memrealtime s[84:85]")
        a("v_mov_b32 v10, 0")
        a("s_waitcnt lgkmcnt(0)")
        a("s_or_b32 s84, s84, 1")
        a("v_mov_b32 v12, s84")
        a("v_mov_b32 v13, s85")
        a("s_mov_b64 exec, 1")
        a("global_store_dwordx2 v10, v[12:13], s[46:47] sc1")
        a("s_mov_b64 exec, -1")
        a.put("L_pro_kv")
        self.srds()
        self.attn_setup(True, zero=False, P=True)
        self.kvjob()
        self.bphaseP()

    def wvoff(self, base, perm, t0=20, nat=None, n0=0, n=5):
        a = self.a
        p, q, c, k = t0, t0 + 1, t0 + 2, t0 + 3
        a("s_mov_b32 s82, 0xcccd")
        a("s_movk_i32 s83, 1280")
        for i in range(n0, n):
            a(f"v_add_u32 v{p}, {64*i}, v0")
            a(f"v_mul_u32_u24 v{q}, s82, v{p}")
            a(f"v_lshrrev_b32 v{q}, 19, v{q}")
            a(f"v_mul_u32_u24 v{c}, 10, v{q}")
            a(f"v_sub_u32 v{c}, v{p}, v{c}")
            a(f"v_lshlrev_b32 v{c}, 4, v{c}")
            if nat:
                a(f"v_mad_u32_u24 v{nat+i}, v{q}, s83, v{c}")
            if perm:
                a(f"v_and_b32 v{k}, 1, v{q}")
                a(f"v_bfe_u32 v{p}, v{q}, 1, 2")
                a(f"v_lshl_add_u32 v{k}, v{k}, 2, v{p}")
                a(f"v_and_b32 v{q}, 24, v{q}")
                a(f"v_add_u32 v{q}, v{q}, v{k}")
            a(f"v_mad_u32_u24 v{base+i}, v{q}, s83, v{c}")

    def kgen(self):
        a = self.a
        R0, T, CV, H, D = 32, 64, 72, 80, 112
        FL0, FL1, FH0, FH1 = 176, 192, 208, 224
        Z1, Z8, Z256, WW, B16 = 24, R0 + 2, 22, 20, 30
        TA, KA = 128, 140
        BIAS = 57344
        self.attn_setup(True, zero=False)
        a(f"s_mul_i32 s11, s10, {KGS}")
        a(f"s_add_u32 m0, s11, {KGB-BIAS}")
        a(f"s_add_u32 s11, s11, {KGB}")
        a("v_and_b32 v45, 15, v0")
        a("v_lshrrev_b32 v46, 4, v0")
        a("v_mul_u32_u24 v27, 0x110, v45")
        a("v_lshl_add_u32 v27, v46, 4, v27")
        a("v_add_u32 v27, s11, v27")
        a("s_add_u32 s11, s11, 16")
        a("v_max_u32 v47, 1, v46")
        a("v_cmp_gt_u32 vcc, 2, v46")
        a("v_add_u32 v47, -1, v47")
        a("v_lshrrev_b32 v47, v47, 16")
        a("v_cndmask_b32 v48, 8, 3, vcc")
        a("v_cmp_eq_u32 vcc, 3, v46")
        a("v_lshlrev_b32 v48, v48, v46")
        a(f"v_mad_u32_u24 v{TA}, v45, v47, v48")
        a(f"v_add_u32 v{TA}, s11, v{TA}")
        a("v_cndmask_b32 v48, 2, 64, vcc")
        a(f"v_lshl_add_u32 v{TA+1}, v48, 1, v{TA}")
        a(f"v_lshl_add_u32 v{TA+2}, v47, 4, v{TA}")
        a(f"v_lshl_add_u32 v{TA+3}, v47, 4, v{TA+1}")
        a(f"v_lshlrev_b32 v{TA+4}, 6, v45")
        a(f"v_lshl_add_u32 v{TA+4}, v46, 3, v{TA+4}")
        a(f"v_add_u32 v{TA+4}, s11, v{TA+4}")
        a("s_sub_u32 s12, s11, 4")
        a(f"v_mov_b32 v{TA+5}, s12")
        a("s_add_u32 s12, s11, 508")
        a(f"v_lshl_add_u32 v{TA+6}, v0, 2, s12")
        a(f"v_lshl_add_u32 v{TA+7}, v0, 3, v{TA+5}")
        a(f"v_mov_b32 v{TA+8}, 0x03020302")
        a("v_cmp_eq_u32 vcc, 0, v0")
        a("v_mov_b32 v53, 0x01000302")
        a(f"s_mul_i32 s11, s10, {KCS}")
        a(f"s_add_u32 s11, s11, {KC}")
        a(f"v_cndmask_b32 v{TA+8}, v{TA+8}, v53, vcc")
        a("v_lshlrev_b32 v48, 5, v0")
        a("s_add_u32 s12, s11, 2016")
        a(f"v_sub_u32 v{KA}, s12, v48")
        a("s_add_u32 s12, s11, 3056")
        a(f"v_sub_u32 v{KA+1}, s12, v8")
        a("v_lshlrev_b32 v50, 3, v0")
        a("s_add_u32 s12, s11, 3576")
        a(f"v_sub_u32 v{KA+2}, s12, v50")
        a("v_bfe_u32 v51, v0, 4, 1")
        a("v_mul_u32_u24 v51, 0x1040, v51")
        a("v_lshl_add_u32 v51, v45, 2, v51")
        a(f"v_add_u32 v{KA+3}, s11, v51")
        l2e_hi = f2u(LOG2E)
        l2e_lo = f2u(LOG2E - struct.unpack("<f", struct.pack("<I", l2e_hi))[0])
        a(f"s_mov_b32 s8, {l2e_hi:#x}")
        a(f"s_mov_b32 s9, {l2e_lo:#x}")
        a("v_mov_b32 v1, 0")
        a("v_mov_b32 v26, 0x3f80")
        self.stamp("Bset")
        a("s_waitcnt vmcnt(1)")
        self.stamp("param")
        a(f"s_lshl_b32 s12, s{sD0}, 1")
        a("s_load_dwordx2 s[92:93], s[42:43], s12")
        for ln in [] if "not" in self.x else (self.touchW(4, 6) if "latet" in self.x else []) + self.touchW(6, 8):
            a(ln)
        k0 = len(a.lines)
        a("v_mul_f32 v28, s8, v16")
        a("v_fma_f32 v29, v16, s8, -v28")
        a("v_fmac_f32 v29, s9, v16")
        a("v_exp_f32 v28, v28")
        a(f"v_mul_f32 v29, {f2u(0.6931471805599453):#x}, v29")
        a("v_fma_f32 v28, v28, v29, v28")
        a("v_cvt_pk_bf16_f32 v28, v28, v28")
        a("v_lshlrev_b32 v28, 16, v28")
        r = lambda j: R0 + 2 * j
        h = lambda j: H + 2 * j
        st = dict(cv=0)

        def put(rows):
            w = []
            for j, src in rows:
                if src is None:
                    w.append((j, 26))
                    continue
                c = CV + st["cv"] % 8
                st["cv"] += 1
                a(f"v_cvt_pk_bf16_f32 v{c}, v{src}, v{src+1}")
                w.append((j, c))
            for j, c in w:
                a(f"ds_write_addtid_b32 v{c} offset:{BIAS+272*j}")

        def get(F):
            for sidx in range(4):
                a(f"ds_read_b128 {v(F+4*sidx,4)}, v27 offset:{64*sidx}")

        def mm(first):
            out = []
            for k, (A, B) in enumerate(((FH0, FL0), (FH0, FL1), (FL0, FH1), (FL1, FH1))):
                for sidx in range(4):
                    c = "0" if first and sidx == 0 else v(D + 4 * k, 4)
                    out.append(f"v_mfma_f32_16x16x32_bf16 {v(D+4*k,4)}, {v(A+4*sidx,4)}, {v(B+4*sidx,4)}, {c}")
            return out
        for half in range(2):
            k1 = len(a.lines)
            for i in range(6):
                a(f"v_lshlrev_b32 v{10+i}, 16, v{160+i}" if half == 0 else f"v_and_b32 v{10+i}, 0xffff0000, v{160+i}")
            for i in range(4):
                a(f"v_mul_f32 v{10+i}, v28, v{10+i}")
            a("v_mul_f32 v10, s8, v10")
            a("v_mul_f32 v11, 0.15915494, v11")
            tt = (40, 44, 48)
            for p, t in zip((8, 256), tt):
                a(f"v_mul_f32 v{t}, {f2u(float(p)):#x}, v10")
                a(f"v_mul_f32 v{t+1}, {f2u(float(p)):#x}, v11")
            a(f"v_fract_f32 v{tt[2]+1}, v11")
            a(f"v_fract_f32 v{tt[0]+1}, v{tt[0]+1}")
            a(f"v_fract_f32 v{tt[1]+1}, v{tt[1]+1}")
            a(f"v_exp_f32 v{tt[2]}, v10")
            a(f"v_exp_f32 v{tt[0]}, v{tt[0]}")
            a(f"v_exp_f32 v{tt[1]}, v{tt[1]}")
            for t in tt:
                a(f"v_cos_f32 v{t+2}, v{t+1}")
                a(f"v_sin_f32 v{t+3}, v{t+1}")
            if half:
                body = a.lines[k1:]
                del a.lines[k1:]
                pend = mm(True)
                for n, ln in enumerate(body):
                    if n == 4:
                        a("s_waitcnt lgkmcnt(9)")
                    if n == 18:
                        a("s_waitcnt lgkmcnt(0)")
                    if (4 <= n < 18 and n % 2 == 0 or n >= 18) and pend:
                        a(pend.pop(0))
                    a(ln)
                assert not pend
            self.cmuls([(WW, 14, 12)])
            for Z, t in zip((Z8, Z256, Z1), tt):
                a(f"v_pk_mul_f32 {v(Z,2)}, {v(t+2,2)}, {v(t,2)} op_sel:[0,0] op_sel_hi:[1,0]")
            a(f"v_xor_b32 v{WW+1}, 0x80000000, v{WW+1}")
            self.cmuls([(r(2), r(1), r(1))])
            self.cmuls([(r(3), r(2), r(1)), (r(4), r(2), r(2))])
            put([(0, None), (1, r(1)), (2, r(2)), (3, r(3)), (4, r(4))])
            self.cmuls([(r(4 + i), r(4), r(i)) for i in range(1, 5)])
            put([(4 + i, r(4 + i)) for i in range(1, 5)])
            self.cmuls([(r(8 + i), r(8), r(i)) for i in range(1, 5)])
            put([(8 + i, r(8 + i)) for i in range(1, 5)])
            self.cmuls([(r(8 + i), r(8), r(i)) for i in range(5, 8)] + [(B16, r(8), r(8))])
            put([(8 + i, r(8 + i)) for i in range(5, 8)])
            get(FL0)
            for g4 in range(4):
                js = [j for j in range(4 * g4, 4 * g4 + 4) if j]
                self.cmuls([(T + 2 * (j % 4), r(j), B16) for j in js])
                put(([(0, B16)] if g4 == 0 else []) + [(j, T + 2 * (j % 4)) for j in js])
            get(FL1)
            for g4 in range(2):
                for j in range(4 * g4, 4 * g4 + 4):
                    self.cmuls([(h(j), h(j - 1) if j else WW, Z1)], conj=True)
                put([(j, h(j)) for j in range(4 * g4, 4 * g4 + 4)])
            self.cmuls([(h(8), h(1), Z256), (h(9), h(3), Z256), (h(10), h(5), Z256), (h(11), h(7), Z256)], conj=True)
            put([(j, h(j)) for j in range(8, 12)])
            self.cmuls([(h(12), h(9), Z256), (h(13), h(11), Z256)], conj=True)
            self.cmuls([(h(14), h(12), Z256), (h(15), h(13), Z256)], conj=True)
            put([(j, h(j)) for j in range(12, 16)])
            get(FH0)
            for j in range(4):
                self.cmuls([(T + 2 * j, T + 2 * j - 2 if j else h(15), Z256)], conj=True)
            self.kpk = len(a.lines) - k0
            put([(j, T + 2 * j) for j in range(4)] + [(4, WW)])
            get(FH1)
        self.kleft = 0
        a("global_load_dwordx2 v[12:13], v1, s[46:47] sc1")
        m = mm(False)
        a("s_waitcnt lgkmcnt(9)")
        for ln in m[:8]:
            a(ln)
        a("s_waitcnt lgkmcnt(0)")
        for ln in m[8:]:
            a(ln)
        sel = dict(cc=0x07060706, bb=0x05040504, aa=0x03020302, ba=0x03020504, cb=0x05040706)
        sreg = {}
        for i, (k, x) in enumerate(sel.items()):
            sreg[k] = 8 + i if i < 2 else 13 + i - 2
            a(f"s_mov_b32 s{sreg[k]}, {x:#x}")
        for i in range(8):
            a(f"v_cvt_pk_bf16_f32 v{32+i}, v{D+2*i}, v{D+2*i+1}")
            if i < 4:
                a(f"ds_write_b32 v{TA+i}, v{32+i}")
        a(f"v_cvt_pk_bf16_f32 v49, 0, v{D+8}")
        a(f"ds_write_b64 v{TA+4}, v[36:37] offset:1024")
        a(f"ds_write_b64 v{TA+4}, v[38:39] offset:1056")
        a("s_mov_b64 exec, 16")
        a(f"ds_write_b32 v{TA+5}, v49")
        a("s_mov_b64 exec, -1")
        a(f"ds_read2_b32 v[54:55], v{TA+6} offset0:128 offset1:129")
        a(f"ds_read2_b32 v[56:57], v{TA+6} offset0:64 offset1:65")
        a(f"ds_read2_b32 v[58:59], v{TA+6} offset0:0 offset1:1")
        a(f"ds_read2_b32 v[60:61], v{TA+7} offset0:0 offset1:1")
        a(f"ds_read_b32 v62, v{TA+7} offset:8")
        self.ozero()
        a("s_waitcnt lgkmcnt(0)")

        def perms(dst, pat, d0):
            for i, k in enumerate(pat):
                a(f"v_perm_b32 v{dst+i}, v{d0+1}, v{d0}, s{sreg[k]}")
        perms(16, ["cc", "cc", "bb", "bb", "bb", "ba", "aa", "aa"], 54)
        perms(24, ["cc", "cb", "bb", "bb", "bb", "aa", "aa", "aa"], 54)
        perms(196, ["cc", "bb", "ba", "aa"], 56)
        perms(200, ["cb", "bb", "aa", "aa"], 56)
        perms(204, ["cb", "aa"], 58)
        perms(206, ["ba"], 58)
        a(f"v_perm_b32 v207, v59, v58, v{TA+8}")
        a(f"v_perm_b32 v208, v62, v61, s{sreg['ba']}")
        a(f"v_perm_b32 v209, v61, v60, s{sreg['ba']}")
        a("v_alignbit_b32 v210, v61, v61, 16")
        a("v_alignbit_b32 v211, v60, v60, 16")
        body = a.lines[k0:]
        del a.lines[k0:]
        self.klen = len(body)
        pos = [self.kpk + x for x in KBAR]
        if "k2x" in self.x:
            a("s_mov_b32 s97, 0")
            a.put("L_k2x")
            if "nods" in self.x:
                body = [("s_nop 0" if n < self.kpk and ln.startswith("ds_") else ln) for n, ln in enumerate(body)]
        for n, ln in enumerate(body):
            if "k2x" in self.x and n == self.kpk:
                a("s_cmp_eq_u32 s97, 1")
                a("s_cbranch_scc1 L_k2d")
                self.stamp("kpass1")
                a("s_mov_b32 s97, 1")
                a("s_branch L_k2x")
                a.put("L_k2d")
            while pos and pos[0] == n:
                self.stamp(f"k{6-len(pos)}")
                a("s_barrier")
                if len(pos) == 5:
                    a("s_setprio 0")
                self.stamp(f"B{6-len(pos)}")
                pos.pop(0)
            if "kst" in self.x and n % 40 == 0 and n:
                a("s_memtime s[86:87]")
            if "kst" in self.x and n % 40 == 39 and n > 40:
                nm = f"kk{n-39}"
                if nm not in STN:
                    STN.append(nm)
                a(f"v_writelane_b32 v254, s86, {STN.index(nm)}")
                a(f"v_writelane_b32 v253, s88, {STN.index(nm)}")
            a.lines.append(ln)
        self.stamp("kend")
        for k in range(len(pos)):
            a("s_barrier")
            self.stamp(f"B{6-len(pos)+k}")
        a("s_waitcnt vmcnt(0)")
        self.get_nonce(12, 1)

    def kvjob(self):
        a = self.a
        a("v_and_b32 v20, 31, v0")
        a("v_lshrrev_b32 v21, 5, v0")
        a("v_and_b32 v22, 0x13, v20")
        a("v_bfe_u32 v23, v20, 2, 1")
        a("v_lshl_or_b32 v22, v23, 3, v22")
        a("v_bfe_u32 v23, v20, 3, 1")
        a("v_lshl_or_b32 v22, v23, 2, v22")
        a(f"s_cmp_eq_u32 s{sG}, 1")
        a("s_cselect_b64 vcc, -1, 0")
        a("v_cndmask_b32 v20, v20, v22, vcc")
        a(f"s_and_b32 s10, s{sW}, 1")
        a(f"s_bfe_u32 s11, s{sW}, 0x10001")
        a("v_and_b32 v22, 15, v20")
        a("v_xor_b32 v22, v22, v21")
        a("v_lshlrev_b32 v22, 4, v22")
        a("v_lshl_or_b32 v22, v20, 8, v22")
        a("s_lshl_b32 s12, s10, 13")
        a("s_lshl_b32 s13, s11, 7")
        a("s_or_b32 s12, s12, s13")
        a("v_xor_b32 v10, s12, v22")
        for k in range(1, 4):
            a(f"v_xor_b32 v{10+k}, {32*k}, v10")
        a("v_bfe_u32 v22, v0, 2, 2")
        a("v_lshl_add_u32 v22, v21, 3, v22")
        a("v_mul_u32_u24 v22, 40, v22")
        a("v_bfe_u32 v23, v0, 4, 1")
        a("v_and_b32 v24, 3, v0")
        a("v_lshl_add_u32 v23, v23, 2, v24")
        a("v_min_u32 v23, 4, v23")
        a("v_lshl_add_u32 v22, v23, 3, v22")
        a("s_mul_i32 s12, s11, 2560")
        a(f"s_add_u32 s12, s12, {AUX}")
        a("v_add_u32 v14, s12, v22")
        a("s_waitcnt vmcnt(0)")
        a("s_barrier")
        self.stamp("B0")
        a(f"s_cmp_eq_u32 s{sG}, 1")
        a("s_cbranch_scc1 L_kv_V")
        ACC = 80
        for isV in (0, 1):
            if isV:
                a.put("L_kv_V")
            lg = LG(a, "lgkmcnt", 15)

            def issue(n):
                b, ks = divmod(n, 4)
                F = 16 + 8 * (n % 6)
                if n == 16:
                    for k in range(4):
                        a(f"v_add_u32 v{10+k}, 0x10000, v{10+k}")
                a(f"ds_read_b128 {v(F,4)}, v{10+ks} offset:{16384*(b%4)}")
                a(f"ds_read_b64_tr_b16 {v(F+4,2)}, v14 offset:{5120*b+640*ks}")
                a(f"ds_read_b64_tr_b16 {v(F+6,2)}, v14 offset:{5120*b+640*ks+160}")
                for _ in range(3):
                    lg.issue(n)
            for n in range(5):
                issue(n)
            for n in range(20):
                lg.wait(n)
                F = 16 + 8 * (n % 6)
                A, B = (F, F + 4) if isV else (F + 4, F)
                a(f"v_mfma_f32_32x32x16_bf16 {v(ACC,16)}, {v(A,4)}, {v(B,4)}, {'0' if n == 0 else v(ACC,16)}")
                if n + 5 < 20:
                    issue(n + 5)
            if not isV:
                a("s_branch L_kv_d")
        a.put("L_kv_d")
        a("s_lshl_b32 s12, s10, 12")
        a(f"s_add_u32 s12, s12, {KVP}")
        a("v_add_u32 v15, s12, v8")
        a(f"s_cmp_lt_u32 s{sW}, 6")
        a("s_cbranch_scc1 L_p_fin")
        a.nop(10)
        for i in range(4):
            a(f"ds_write_b128 v15, {v(ACC+4*i,4)} offset:{1024*i}")
        a("s_waitcnt lgkmcnt(0)")
        for k in range(5):
            a("s_barrier")
            if k == 0:
                a("v_mov_b32 v1, 0")
                a("global_load_dwordx2 v[12:13], v1, s[46:47] sc1")
                self.ozero()
        a("s_waitcnt vmcnt(0)")
        self.get_nonce(12, 1)
        a("s_branch L_b_6")

    def qsetup(self):
        a = self.a
        XA, WA = 64, 72
        a("v_and_b32 v20, 31, v0")
        a("v_lshrrev_b32 v21, 5, v0")
        a("v_and_b32 v22, 15, v20")
        a("v_xor_b32 v22, v22, v21")
        a("v_lshlrev_b32 v22, 4, v22")
        a(f"v_lshl_or_b32 v{XA}, v20, 8, v22")
        for k in range(1, 8):
            a(f"v_xor_b32 v{XA+k}, {32*k}, v{XA}")
        a("v_bfe_u32 v22, v0, 2, 2")
        a("v_lshlrev_b32 v22, 1, v22")
        a("v_lshl_add_u32 v22, v21, 3, v22")
        a("v_mul_u32_u24 v22, 0xa0, v22")
        a("v_bfe_u32 v23, v0, 4, 1")
        a("v_and_b32 v24, 3, v0")
        a("v_lshl_add_u32 v23, v23, 2, v24")
        a("v_min_u32 v23, 4, v23")
        a("v_lshl_add_u32 v22, v23, 3, v22")
        a(f"s_mul_i32 s12, s{sW}, 40")
        a(f"s_add_u32 s12, s12, {WL}")
        a(f"v_add_u32 v{WA}, s12, v22")
        a(f"v_add_u32 v{WA+1}, {WOFF[0]}, v{WA}")
        a("v_mov_b32 v1, 0")
        self.srds()
        self.setupA()

    def qgemm(self):
        a = self.a
        XA, WA, RG = 64, 72, 168
        lg = LG(a, "lgkmcnt", 15)

        def issue(n):
            c, ks = divmod(n, 8)
            wreg = WA + 1 if WOFF[c] > 40000 else WA
            woff = 0 if WOFF[c] > 40000 else WOFF[c]
            F = RG + 12 * (n % 6)
            if c == 4:
                a(f"v_add_u32 v{XA+ks}, 0x10000, v{XA+ks}")
            a(f"ds_read_b64_tr_b16 {v(F,2)}, v{wreg} offset:{woff+2560*ks}")
            a(f"ds_read_b64_tr_b16 {v(F+2,2)}, v{wreg} offset:{woff+2560*ks+160}")
            a(f"ds_read_b128 {v(F+4,4)}, v{XA+ks} offset:{16384*(c%4)}")
            a(f"ds_read_b128 {v(F+8,4)}, v{XA+ks} offset:{16384*(c%4)+8192}")
            for _ in range(4):
                lg.issue(n)
        for n in range(3):
            issue(n)
        a("global_load_dwordx2 v[16:17], v1, s[46:47] sc1")
        dma = {7 + i: self.wdma(3, i) for i in range(5)}
        dma.update({15 + i: self.wdma(4, i) for i in range(5)})
        for n in range(40):
            c, ks = divmod(n, 8)
            if ks == 6 and c < 4:
                a(f"s_waitcnt vmcnt({(6, 6, 5, 0)[c]}) {lg.waitstr(n + 1)}")
                a("s_barrier")
                self.stamp(f"B{2+c}")
                issue(n + 2)
            elif not (ks == 7 and c < 4):
                lg.wait(n)
            F = RG + 12 * (n % 6)
            a(f"v_mfma_f32_32x32x16_bf16 v[32:47], {v(F,4)}, {v(F+4,4)}, {'0' if n == 0 else 'v[32:47]'}")
            a(f"v_mfma_f32_32x32x16_bf16 v[48:63], {v(F,4)}, {v(F+8,4)}, {'0' if n == 0 else 'v[48:63]'}")
            if n + 3 < 40 and ks != 5:
                issue(n + 3)
            for ln in dma.get(n + 1, []):
                a(ln)
            if n == 25:
                for ln in self.setupA2():
                    a(ln)
            if n == 33:
                self.get_nonce(16, 1)
                a("s_getreg_b32 s97, hwreg(HW_REG_XCC_ID, 0, 4)")
                a(f"s_mov_b32 s96, s{sN}")
                a("s_lshl_b32 s97, s97, 28")
                a(f"s_xor_b32 s97, s97, s{sN+1}")
                a("v_mov_b32 v14, s96")
                a("v_mov_b32 v15, s97")
                a(f"s_mov_b32 s10, {f2u(LOG2E / 20 ** 0.5):#x}")
                a("s_mov_b32 s11, s10")
                a(f"s_mul_i32 s13, s{sW}, 2560")
                a(f"s_add_u32 s13, s13, {QP}")
                a("v_add_u32 v12, s13, v8")
                a("v_lshl_add_u32 v13, v0, 3, s13")
        a.nop(10)
        for T, O in ((0, 32), (1, 48)):
            for r in range(6):
                a(f"v_pk_mul_f32 {v(O+2*r,2)}, {v(O+2*r,2)}, s[10:11]")
            for q in range(4):
                a(f"v_cvt_pk_bf16_f32 v{112+4*T+q}, v{O+2*q}, v{O+2*q+1}")
            a(f"ds_write_b128 v12, {v(112+4*T,4)} offset:{1024*T}")
            for q in range(2):
                a(f"v_cvt_pk_bf16_f32 v{120+2*T+q}, v{O+8+2*q}, v{O+9+2*q}")
        a("s_nop 1")
        a("v_permlane32_swap_b32 v120, v122")
        a("v_permlane32_swap_b32 v121, v123")
        a("s_nop 1")
        a("ds_write_b64 v13, v[120:121] offset:2048")
        a("s_waitcnt lgkmcnt(0)")
        self.stamp("Qdone")
        a("s_barrier")
        self.stamp("B6")

    def bphaseP(self):
        a = self.a
        a.put("L_p_fin")
        a("v_mov_b32 v1, 0")
        a("global_load_dwordx2 v[12:13], v1, s[46:47] sc1")
        a(f"s_mul_i32 s12, s{sT}, {BLK}")
        a("v_and_b32 v40, 31, v0")
        a("v_lshrrev_b32 v41, 5, v0")
        a("v_bfrev_b32 v44, 1")
        a(f"s_cmp_eq_u32 s{sG}, 1")
        a("s_cbranch_scc1 L_b_PV")
        a("s_lshl_b32 s13, s10, 10")
        a("s_add_u32 s13, s13, s12")
        a("v_lshlrev_b32 v42, 3, v0")
        a("v_cmp_gt_u32 vcc, 32, v0")
        a("s_lshl_b32 s14, s10, 8")
        a("s_add_u32 s14, s14, s12")
        a("v_cndmask_b32 v42, v44, v42, vcc")
        a("s_barrier")
        self.stamp("B1")
        for i in range(4):
            a(f"ds_read_b128 {v(16+4*i,4)}, v15 offset:{1024*i}")
        a("s_waitcnt lgkmcnt(0)")
        for i in range(12):
            a(f"v_add_f32 v{80+i}, v{80+i}, v{16+i}")
        for i in range(6):
            a(f"v_cvt_pk_bf16_f32 v{32+i}, v{80+2*i}, v{80+2*i+1}")
        a(f"buffer_store_dwordx4 v[32:35], v8, s[{SWS}:{SWS+3}], s13 offen sc1")
        a(f"buffer_store_dwordx2 v[36:37], v42, s[{SWS}:{SWS+3}], s14 offen offset:2048 sc1")
        a("s_branch L_p_2")
        a.put("L_b_PV")
        a("s_mul_i32 s13, s10, 1344")
        a("s_add_u32 s13, s13, s12")
        a("v_mul_u32_u24 v42, 0x150, v41")
        a("v_lshl_add_u32 v42, v40, 4, v42")
        a("v_cmp_gt_u32 vcc, 21, v40")
        a("v_mov_b32 v43, 0x3f803f80")
        a("s_nop 0")
        a("v_cndmask_b32 v42, v44, v42, vcc")
        a("v_cmp_eq_u32 vcc, 20, v40")
        a("s_barrier")
        self.stamp("B1")
        for i in range(4):
            a(f"ds_read_b128 {v(16+4*i,4)}, v15 offset:{1024*i}")
        a("s_waitcnt lgkmcnt(0)")
        for i in range(16):
            a(f"v_add_f32 v{80+i}, v{80+i}, v{16+i}")
        for i in range(8):
            a(f"v_cvt_pk_bf16_f32 v{32+i}, v{80+2*i}, v{80+2*i+1}")
        for i in range(8):
            a(f"v_cndmask_b32 v{32+i}, v{32+i}, v43, vcc")
        a(f"buffer_store_dwordx4 v[32:35], v42, s[{SWS}:{SWS+3}], s13 offen offset:2560 sc1")
        a(f"buffer_store_dwordx4 v[36:39], v42, s[{SWS}:{SWS+3}], s13 offen offset:3232 sc1")
        a.put("L_p_2")
        self.stamp("kvst")
        a(f"s_lshl_b32 s12, s{sT}, 7")
        a(f"s_lshl_b32 s13, s{sG}, 4")
        a("s_add_u32 s12, s12, s13")
        a("s_lshl_b32 s13, s10, 3")
        a("s_add_u32 s12, s12, s13")
        a(f"s_add_u32 s12, s12, {FLG_KV}")
        self.ozero()
        a("s_barrier")
        a("s_barrier")
        a("s_waitcnt vmcnt(0)")
        self.get_nonce(12, 1)
        a("s_mov_b64 exec, 1")
        a(f"buffer_store_dwordx2 v[12:13], v1, s[{SWS}:{SWS+3}], s12 offen sc1")
        a("s_mov_b64 exec, -1")
        self.stamp("kvflag")
        a("s_barrier")
        a("s_barrier")

    def bphase1(self):
        a = self.a
        a.put("L_b_6")
        a("s_setprio 0")
        a("s_waitcnt lgkmcnt(0)")
        a("v_lshrrev_b32 v6, 1, v0")
        a("v_lshlrev_b32 v6, 7, v6")
        a("v_and_b32 v7, 1, v0")
        a("v_lshl_add_u32 v6, v7, 4, v6")
        a(f"s_and_b32 s10, s{sW}, 3")
        a(f"s_mov_b32 s15, {FLG_KV}")
        a(f"s_cmp_eq_u32 s{sW}, 4")
        a("s_cbranch_scc0 L_b_6a")
        a(f"buffer_load_dwordx4 v[56:59], v6, s[{SWS}:{SWS+3}], s15 offen sc1")
        a.put("L_b_6a")
        self.kcwrite()
        a(f"v_mov_b32 v60, {CNT}")
        a("ds_write_b128 v60, v[80:83]")
        a("s_lshl_b32 s13, s10, 4")
        a("s_lshr_b64 s[92:93], s[92:93], s13")
        a("s_lshr_b64 s[94:95], s[94:95], s13")
        a("s_and_b32 s92, s92, 0xffff")
        a("s_and_b32 s94, s94, 0xffff")
        a("v_lshlrev_b32 v7, 4, v7")
        a("v_lshlrev_b32 v61, v7, s94")
        a("v_lshlrev_b32 v7, v7, s92")
        a("s_mov_b32 vcc_lo, 0")
        for q in range(4):
            a(f"s_mov_b32 vcc_hi, {(3 << 2*q) | (3 << (24+2*q)):#x}")
            a(f"v_cndmask_b32 v{192+q}, 0, v7, vcc")
            a(f"v_cndmask_b32 v{212+q}, 0, v61, vcc")
        a(f"v_mov_b32 v220, s{sN}")
        a(f"v_mov_b32 v221, s{sN+1}")
        a("s_mul_i32 s13, s10, 2560")
        a(f"s_add_u32 s13, s13, {QP}")
        a("v_add_u32 v12, s13, v8")
        a("v_lshl_add_u32 v13, v0, 3, s13")
        a(f"s_cmp_eq_u32 s{sW}, 4")
        a("s_cbranch_scc0 L_b_7")
        a("s_mov_b32 s82, 0")
        a.put("L_pkv")
        a("s_add_u32 s82, s82, 1")
        a("s_waitcnt vmcnt(0)")
        a(f"v_cmp_eq_u64 vcc, s[{sN}:{sN+1}], v[56:57]")
        a(f"v_cmp_eq_u64 s[84:85], s[{sN}:{sN+1}], v[58:59]")
        a("s_nop 0")
        a("s_and_b64 vcc, vcc, s[84:85]")
        a("s_cmp_eq_u64 vcc, -1")
        a("s_cbranch_scc1 L_b_7")
        a("s_cmp_gt_u32 s82, 20000")
        a("s_cbranch_scc1 L_b_7")
        a(f"buffer_load_dwordx4 v[56:59], v6, s[{SWS}:{SWS+3}], s15 offen sc1")
        a("s_branch L_pkv")
        a.put("L_b_7")
        self.stamp("kvseen")
        a("s_barrier")
        self.stamp("B6")
        a("ds_read_b128 v[112:115], v12")
        a("ds_read_b128 v[116:119], v12 offset:1024")
        a("ds_read_b64 v[120:121], v13 offset:2048")

    def kcwrite(self):
        a = self.a
        lab = a.label("Lkc")
        a(f"s_cmp_lt_u32 s{sG}, 3")
        a(f"s_cbranch_scc1 {lab}")
        a("ds_write_b128 v140, v[16:19]")
        a("ds_write_b128 v140, v[20:23] offset:16")
        a("ds_write_b128 v140, v[24:27] offset:4160")
        a("ds_write_b128 v140, v[28:31] offset:4176")
        a("ds_write_b128 v141, v[196:199]")
        a("ds_write_b128 v141, v[200:203] offset:4160")
        a("ds_write_b64 v142, v[204:205]")
        a("ds_write_b64 v142, v[206:207] offset:4160")
        a("ds_write_b64 v142, v[208:209] offset:512")
        a("ds_write_b64 v142, v[210:211] offset:4672")
        a("ds_write_b32 v143, v4 offset:4096")
        a.put(lab)

    def kvdma(self, c, i):
        if i < 0:
            lab = self.a.label("Lx")
            return [f"s_cmp_eq_u32 s{sW}, 0", f"s_cbranch_scc0 {lab}",
                    f"s_mov_b32 m0, {SLOT*(c%3)+40960}", f"s_mov_b32 s12, {SLOT*c+40960}",
                    f"buffer_load_dwordx4 v8, s[{SWS}:{SWS+3}], s12 offen sc1 lds", lab + ":"]
        return [f"s_add_u32 m0, s51, {SLOT*(c%3)+8192*i}", f"s_add_u32 s12, s51, {SLOT*c+8192*i}",
                f"buffer_load_dwordx4 v8, s[{SWS}:{SWS+3}], s12 offen sc1 lds"]

    def ozero(self):
        for r in range(16):
            self.a(f"v_mov_b64 {v(80+2*r,2)}, 0")

    def attn_setup(self, isB, zero=True, P=False):
        a = self.a
        O0 = 80
        IDX, AK16, AK4, AV = 144, 145, 148, 151
        UOFF, USW, USR, UTW, UTZ = 155, 156, 157, 158, 159
        a(f"s_lshl_b32 s51, s{sW}, 10")
        kh = BLK if isB else 0
        a(f"v_add_u32 v{AK16}, {kh}, v8" if kh else f"v_mov_b32 v{AK16}, v8")
        a(f"v_lshlrev_b32 v{AK4}, 3, v0")
        a(f"v_add_u32 v{AK4}, {kh+2048}, v{AK4}")
        a("v_and_b32 v60, 31, v0")
        a("v_cmp_lt_u32 vcc, 20, v60")
        a("v_lshrrev_b32 v62, 5, v0")
        a("v_mul_u32_u24 v62, 0x150, v62")
        a("v_lshl_add_u32 v61, v60, 4, v62")
        a(f"v_add_u32 v{AV}, {kh+2560}, v61")
        a("v_mov_b32 v61, 0x30000")
        a(f"v_cndmask_b32 v{AV}, v{AV}, v61, vcc")
        for r in (AK16, AK4, AV):
            a(f"v_add_u32 v{r+1}, {SLOT}, v{r}")
            a(f"v_add_u32 v{r+2}, {2*SLOT}, v{r}")
        a(f"v_mov_b32 v{IDX}, 0xdddddddd")
        if zero:
            self.ozero()
        if isB:
            a(f"s_and_b32 s10, s{sW}, 3")
            a(f"s_lshl_b32 s12, s{sD0}, 1")
            if P:
                a("s_load_dwordx4 s[92:95], s[42:43], s12")
                a("s_and_b32 s13, s10, 1")
                a("s_mul_i32 s11, s13, 655360")
                a("s_add_u32 s11, s11, s12")
                a("s_lshr_b32 s14, s10, 1")
                a("s_lshl3_add_u32 s11, s14, s11")
                a("s_cmp_lt_u32 s2, 80")
                a("s_cselect_b32 s11, s11, 0x80000000")
            else:
                a("s_mul_i32 s11, s10, 655360")
                a("s_add_u32 s11, s11, s12")
            a("s_movk_i32 s12, 1280")
            a("v_mov_b32 v1, s11")
            a(f"v_mad_u32_u24 v{UOFF}, v0, s12, v1")
            a("s_lshl_b32 s11, s10, 9")
            a(f"s_add_u32 s11, s11, {USCR}")
            a(f"v_lshl_add_u32 v{USW}, v0, 3, s11")
            a("v_and_b32 v1, 48, v0")
            a("v_and_b32 v2, 3, v0")
            a("v_lshl_add_u32 v1, v2, 2, v1")
            a("v_bfe_u32 v3, v0, 2, 2")
            a("v_add_u32 v1, v1, v3")
            a(f"v_lshl_add_u32 v{USR}, v1, 3, s11")
            uts = UTP if P else UTS
            if P:
                a(f"s_mul_i32 s11, s14, {4*UTP}")
                a("s_lshl_b32 s13, s13, 10")
                a("s_add_u32 s11, s11, s13")
            else:
                a("s_lshl_b32 s11, s10, 10")
            a(f"s_add_u32 s11, s11, {UT+480}")
            a("v_lshrrev_b32 v1, 2, v0")
            a("v_lshl_add_u32 v1, v1, 3, s11")
            a(f"s_movk_i32 s12, {uts}")
            a(f"v_mad_u32_u24 v{UTW}, v2, s12, v1")
            a(f"s_mul_i32 s11, s10, {uts}")
            a(f"s_add_u32 s11, s11, {UT}")
            a("v_min_u32 v1, 59, v0")
            a(f"v_lshl_add_u32 v{UTZ}, v1, 3, s11")
            a(f"v_add_u32 v249, {4*UTP if P else 0}, v{UTZ}")
            a("v_mov_b32 v4, 0")
            a("v_mov_b32 v5, 0")
            self.setupB(P)

    def attention(self, isB):
        a = self.a
        S = (16, 48)
        O0, O1, QA, QB, Q4, K4, K16 = 80, 96, 112, 116, 120, 122, 124
        V = (128, 136)
        IDX, AK16, AK4, AV = 144, 145, 148, 151
        URAW, UTR = 160, 176
        UOFF, USW, USR, UTW, UTZ = 155, 156, 157, 158, 159
        for c, i in [(0, -1), (1, -1)] + [(0, i) for i in range(5)] + [(1, i) for i in range(5)]:
            for ln in self.kvdma(c, i):
                a(ln)
        a("s_waitcnt vmcnt(5) lgkmcnt(0)")
        a("s_barrier")
        self.stamp("E0")
        self.stop_at("e0")
        lg = LG(a, "lgkmcnt", 15)

        def loc(m):
            c = m >> 3
            return c % 3, 2 * BLK * ((m >> 1) & 3), m & 1

        def rdK16(m):
            sl, off, aa = loc(m)
            a(f"ds_read_b128 {v(K16,4)}, v{AK16+sl} offset:{off+1024*aa}")
            lg.issue(("K16", m))

        def rdK4(m):
            sl, off, aa = loc(m)
            a(f"ds_read_b64 {v(K4,2)}, v{AK4+sl} offset:{off}")
            lg.issue(("K4", m))

        def rdV(m, f):
            sl, off, aa = loc(m)
            a(f"ds_read_b128 {v(V[m&1]+4*f,4)}, v{AV+sl} offset:{off+672*(2*aa+f)}")
            lg.issue(("V", m, f))

        def pv(O, B, Vr):
            if "nopv" in self.x:
                return
            a(f"v_smfmac_f32_32x32x32_bf16 {v(O,16)}, {v(Vr,4)}, {v(B,8)}, v{IDX}")

        def qk4(m, dst):
            if "no2b" in self.x:
                return
            a(f"v_mfma_f32_32x32x4_2b_bf16 {v(dst,32)}, {v(K4,2)}, {v(Q4,2)}, 0 cbsz:1 abid:{m&1}")

        def qk16(dst, Q):
            a(f"v_mfma_f32_32x32x16_bf16 {v(dst,16)}, {v(K16,4)}, {v(Q,4)}, {'0' if 'no2b' in self.x else v(dst,16)}")
        rdK4(0)
        rdK16(0)
        rdV(0, 0)
        rdV(0, 1)
        lg.wait(("K16", 0))
        qk4(0, S[0])
        a.nop(18)
        qk16(S[0], QA)
        qk16(S[0] + 16, QB)
        rdK16(1)
        lg.wait(("V", 0, 1))
        a.nop(10)
        hk = {}

        def hook(n, pos, lines):
            hk.setdefault((n, pos), []).extend(lines)
        hook(0, "a2", self.kvdma(2, -1))
        for i in range(5):
            hook(i, "a5", self.kvdma(2, i))
        hook(7, "a2", self.kvdma(3, -1))
        for i in range(5):
            hook(7 + i, "a5", self.kvdma(3, i))
        WS_ = f"s[{SWS}:{SWS+3}]"
        bars = {2: "vmcnt(10)" if isB else "vmcnt(6)", 6: "vmcnt(1)", 14: "vmcnt(0)", 22: None if isB else "vmcnt(0)", 30: None if isB else "vmcnt(0)"}
        hook(5, "a5", [f"buffer_load_dword v255, v154, s[{SU if isB else SWO}:{(SU if isB else SWO)+3}], 0 offen"])
        if not isB:
            hook(0, "a1", [f"s_lshl_b32 s10, s{sW}, 9", "s_add_u32 s10, s10, s15", "s_add_u32 s11, s10, 40960",
                           f"s_and_b32 s12, s{sW}, 1", "s_lshl_b32 s12, s12, 8", f"s_lshr_b32 s13, s{sW}, 1",
                           "s_lshl3_add_u32 s12, s13, s12", "s_add_u32 s15, s12, s15"])
            hook(0, "a3", [f"buffer_store_dwordx4 v[4:7], v10, {WS_}, s10 offen sc1"])
            hook(1, "a1", [f"buffer_store_dwordx4 v[4:7], v10, {WS_}, s11 offen sc1"])
            hook(1, "a3", [f"buffer_store_dwordx2 v[4:5], v11, {WS_}, s15 offen offset:2048 sc1"])
            hook(7, "a1", [f"s_lshl_b32 s92, s{sT}, 7", f"s_add_u32 s92, s92, {FLG_O}", f"s_lshl3_add_u32 s12, s{sG}, s92",
                           f"s_cmp_eq_u32 s{sW}, 0", "s_cselect_b32 s12, s12, 0x80000000",
                           f"buffer_store_dwordx2 v[14:15], v252, {WS_}, s12 offen sc1"])
            hook(12, "a2", ["s_add_u32 s98, s6, L_tabA-L_pc+4096", "s_addc_u32 s99, s7, 0", "global_load_dwordx4 v[12:15], v8, s[98:99]", "v_mov_b32 v6, 0"])
            hook(28, "a5", [f"buffer_load_dwordx2 v[2:3], v251, {WS_}, s92 offen sc1"])
            hook(29, "a5", ["s_add_u32 s93, s90, s90", f"s_mul_i32 s13, s{sG}, 160", "s_sub_u32 s93, s93, s13",
                            "s_add_u32 s94, s93, 40960", "s_add_u32 s95, s91, s91"])
            for i, pos in enumerate(LT1):
                hook(31, pos, self.latewo(i))
            sl = [(n, pos) for n in range(15, 20) for pos in ("a2", "a5")] + [(n, "a5") for n in range(23, 28)]
            for k, (n, pos) in enumerate(sl):
                g0, i = 8 + 4 * (k // 5), k % 5
                hook(n, pos, [f"s_add_u32 m0, s91, {5120*g0+1024*i}", "s_nop 0",
                              f"buffer_load_dwordx4 v{155+i}, s[{SWO}:{SWO+3}], s{93+k//5} offen lds"])
        else:
            ex = [f"buffer_store_dwordx4 v[196:199], v250, {WS_}, s90 offen sc1",
                  f"buffer_store_dwordx4 v[200:203], v250, {WS_}, s90 offen offset:2112 sc1",
                  f"buffer_store_dwordx2 v[204:205], v251, {WS_}, s90 offen sc1",
                  f"buffer_store_dwordx2 v[206:207], v251, {WS_}, s90 offen offset:2112 sc1",
                  f"buffer_store_dwordx2 v[208:209], v251, {WS_}, s90 offen offset:512 sc1",
                  f"buffer_store_dwordx2 v[210:211], v251, {WS_}, s90 offen offset:2624 sc1",
                  f"buffer_store_dword v4, v252, {WS_}, s90 offen offset:2048 sc1"]
            for x, (n, pos) in zip(ex, [(0, "a1"), (0, "a3"), (1, "a1"), (1, "a2"), (1, "a3"), (2, "a1"), (2, "a2")]):
                hook(n, pos, [x])
            hook(7, "a1", [f"buffer_store_dwordx2 v[220:221], v248, {WS_}, s91 offen sc1"])
            hook(15, "a1", [f"buffer_load_dwordx4 v[216:219], v4, {WS_}, s99 offen sc1"])
            hook(17, "a1", ["s_cmp_lt_u32 s2, 80", "s_cbranch_scc0 L_kin0", "s_waitcnt vmcnt(2)",
                            f"v_cmp_eq_u64 vcc, s[{sN}:{sN+1}], v[216:217]", f"v_cmp_eq_u64 s[84:85], s[{sN}:{sN+1}], v[218:219]",
                            f"s_lshl_b32 s13, s10, 10", "s_and_b64 vcc, vcc, s[84:85]", "s_cbranch_scc0 L_kpoll", "L_kin0:"])
            for b in range(3):
                ls = ["s_cmp_lt_u32 s2, 80", f"s_cbranch_scc0 L_kin{b+1}"]
                for i in range(3 * b, 3 * b + 3):
                    ls += [f"s_add_u32 m0, s13, {KC+4096*i}", f"s_add_u32 s12, s98, {4096*i}",
                           f"buffer_load_dwordx4 v8, {WS_}, s12 offen sc1 lds"]
                hook(17 + 2 * b, "a5", ls + [f"L_kin{b+1}:"])
        dsx = {}
        if isB:
            for i in range(8):
                hook(15 + i, "a2", [f"s_mov_b32 s12, {81920*i}",
                                    f"buffer_load_dwordx2 {v(URAW+2*i,2)}, v{UOFF}, s[{SU}:{SU+3}], s12 offen"])
            hook(25, "a1w", ["s_waitcnt vmcnt(0)"])
            dsx[(24, "a1")] = [f"ds_write_b64 v{UTZ}, v[4:5]"]
            dsx[(24, "a3")] = ["ds_write_b64 v249, v[4:5]"]
            for k in range(4):
                for e, pos in ((0, "a1"), (1, "a3")):
                    i = 2 * k + e
                    dsx.setdefault((25 + k, pos), []).extend(
                        [f"ds_write_b64 v{USW}, {v(URAW+2*i,2)}", f"ds_read_b64_tr_b16 {v(UTR+2*i,2)}, v{USR}"])
                    dsx.setdefault((26 + k, "a2" if e == 0 else "a5"), []).append(
                        f"ds_write_b64 v{UTW}, {v(UTR+2*i,2)} offset:{128*i}")
        if not isB:
            wpre = [x for q in range(15) for x in self.woread(q)]
            for n in range(23, 31):
                for pos in ("a1", "a2", "a3", "a5"):
                    if wpre:
                        dsx.setdefault((n, pos), []).append(wpre.pop(0))
        prio = {}
        for st, en in ((0, 2), (3, 6), (7, 14), (15, 22), (23, 30)):
            ln = en - st + 1
            for n in range(st, en + 1):
                prio[n] = 3 - (n - st) * 4 // max(ln, 4) if ln >= 4 else 3 - (n - st)
        prio[31] = 3 if isB else 0

        def run(n, pos):
            for ln in hk.get((n, pos), []):
                a(ln)
            for ln in dsx.get((n, pos), []):
                a(ln)
                lg.issue("x")
        a(f"s_setprio {prio[0]}")
        for n in range(32):
            cur, nxt = S[n & 1], S[(n + 1) & 1]
            Vc, Vp = V[n & 1], V[(n + 1) & 1]
            eop = "v_exp_f32" if "noexp" not in self.x else "v_fract_f32"
            e = lambda lo, hi: [a(f"{eop} v{cur+i}, v{cur+i}") for i in range(lo, hi + 1)]
            e(0, 1)
            if n > 0:
                pv(O1, nxt + 24, Vp + 4)
            run(n, "a1w")
            if n < 31:
                rdV(n + 1, 0)
            run(n, "a1")
            e(2, 5)
            if n < 31:
                qk4(n + 1, nxt)
            run(n, "a2")
            e(6, 13)
            pv(O0, cur, Vc)
            if n < 31:
                rdV(n + 1, 1)
            run(n, "a3")
            e(14, 17)
            pv(O0, cur + 8, Vc + 4)
            if n < 31:
                lg.wait(("K16", n + 1))
            if n % 2 == 0 and n + 2 < 32:
                rdK4(n + 2)
            e(18, 21)
            if n < 31:
                qk16(nxt, QA)
            run(n, "a5")
            e(22, 25)
            if n < 31:
                qk16(nxt + 16, QB)
            last = len(lg.q)
            if n + 2 < 32:
                rdK16(n + 2)
            if n < 31 and prio[n + 1] != prio[n] and n not in bars:
                a(f"s_setprio {prio[n+1]}")
            e(26, 29)
            pv(O1, cur + 16, Vc)
            if n < 31:
                cnt = len(lg.q) - last
                w = f"lgkmcnt({cnt})"
                lg.q = lg.q[last:]
                if n in bars and bars[n]:
                    w = bars[n] + " " + w
                a(f"s_waitcnt {w}")
                if n in bars:
                    a("s_barrier")
                    a(f"s_setprio {prio[n+1]}")
            e(30, 31)
        a("s_nop 1")
        pv(O1, S[1] + 24, V[1] + 4)
        self.stamp("attn")

    def lds_sync(self, off, n, vt):
        a = self.a
        lp, dn = a.label("Lsy"), a.label("Lsyd")
        a(f"v_mov_b32 v{vt}, {CNT+off}")
        a(f"v_mov_b32 v{vt+1}, 1")
        a("s_mov_b64 exec, 1")
        a(f"ds_add_u32 v{vt}, v{vt+1}")
        a("s_mov_b64 exec, -1")
        return lp, dn

    def lds_spin(self, lp, dn, n, vt):
        a = self.a
        a("s_mov_b32 s82, 0")
        a.put(lp)
        a(f"ds_read_b32 v{vt+1}, v{vt}")
        a("s_add_u32 s82, s82, 1")
        a("s_waitcnt lgkmcnt(0)")
        a(f"v_readfirstlane_b32 s83, v{vt+1}")
        a("s_cmp_gt_u32 s82, 0x40000")
        a(f"s_cbranch_scc1 {dn}")
        a(f"s_cmp_lt_u32 s83, {n}")
        a(f"s_cbranch_scc1 {lp}")
        a.put(dn)

    def setupB(self, P):
        a = self.a
        kcs, uts = (KPS, UTP) if P else (KCS, UTS)
        a(f"s_mul_i32 s11, s10, {kcs}")
        a(f"s_add_u32 s11, s11, {KC}")
        a("v_and_b32 v10, 15, v0")
        a("v_lshrrev_b32 v11, 4, v0")
        a("v_sub_u32 v12, 0x7ef, v10")
        a("v_lshrrev_b32 v12, 1, v12")
        a("v_lshl_add_u32 v12, v11, 2, v12")
        a("v_lshlrev_b32 v12, 2, v12")
        a("v_and_b32 v13, 1, v0")
        a("v_xor_b32 v13, 1, v13")
        a(f"v_mul_u32_u24 v13, {kcs//2}, v13")
        a(f"s_sub_u32 s12, s11, {960 + (2048 if P else 0)}")
        a("v_add3_u32 v240, v12, v13, s12")
        if P:
            a("v_subrev_u32 v241, 1024, v240")
            a(f"v_add_u32 v242, {4*KPS}, v240")
            a(f"v_add_u32 v243, {4*KPS}, v241")
        else:
            for b in range(1, 4):
                a(f"v_subrev_u32 v{240+b}, {1024*b}, v240")
        a("v_lshlrev_b32 v12, 5, v10")
        a(f"s_mul_i32 s12, s10, {uts}")
        a(f"s_add_u32 s12, s12, {UT}")
        a("v_lshl_add_u32 v13, v11, 4, v12")
        a("v_add_u32 v244, s12, v13")
        a("s_lshr_b32 s12, s10, 1")
        a("s_lshl_b32 s12, s12, 6")
        a("s_add_u32 s12, s12, s11")
        a("v_lshl_add_u32 v13, v11, 3, v12")
        a("v_add_u32 v245, s12, v13")
        a("v_bfe_u32 v12, v0, 2, 2")
        a(f"s_movk_i32 s12, {kcs}")
        a("v_lshrrev_b32 v13, 1, v12")
        a("v_lshlrev_b32 v13, 6, v13")
        a("v_mad_u32_u24 v13, v12, s12, v13")
        a("v_lshl_add_u32 v13, v11, 5, v13")
        a("v_and_b32 v12, 3, v0")
        a("v_lshl_add_u32 v13, v12, 3, v13")
        a("s_lshl_b32 s12, s10, 7")
        a(f"s_add_u32 s12, s12, {KC}")
        a("v_add_u32 v246, s12, v13")
        a("s_mul_i32 s11, s10, 163840")
        a(f"s_lshl_b32 s12, s{sD0}, 1")
        a("s_add_u32 s11, s11, s12")
        a("s_add_u32 s11, s11, 1280")
        a("s_movk_i32 s12, 2560")
        a("v_mov_b32 v247, s11")
        a("v_mad_u32_u24 v247, v0, s12, v247")
        a("v_sub_u32 v250, 1008, v8")
        a("v_lshlrev_b32 v251, 3, v0")
        a("v_sub_u32 v251, 1528, v251")
        a("v_and_b32 v12, 1, v11")
        a("v_mul_u32_u24 v12, 2112, v12")
        a("v_lshl_add_u32 v252, v10, 2, v12")
        a("v_lshlrev_b32 v248, 24, v0")
        a(f"s_add_u32 s11, s{sD0}, s10")
        a(f"s_lshr_b32 s12, s{sD0}, 3")
        a("s_lshl_b32 s12, s12, 7")
        a(f"s_add_u32 s99, s12, {FLG_K}")
        if P:
            a("s_mov_b32 s90, 0x80000000")
            a("s_mov_b32 s91, 0x80000000")
            a(f"s_mul_i32 s98, s{sD0}, {KPS}")
            a("s_lshl_b32 s12, s10, 10")
            a("s_add_u32 s98, s98, s12")
            a(f"s_add_u32 s98, s98, {KIMG}")
        else:
            a(f"s_mul_i32 s90, s11, {KPS}")
            a(f"s_add_u32 s90, s90, {KIMG}")
            a(f"s_and_b32 s12, s{sD0}, 4")
            a("s_lshl1_add_u32 s91, s12, s99")
            a("s_cmp_eq_u32 s10, 0")
            a("s_cselect_b32 s91, s91, 0x80000000")
            a("s_mov_b32 s98, 0")
        a("s_mul_i32 s11, s10, 6144")
        a(f"s_add_u32 s11, s11, {WO+40960}")
        a("v_add_u32 v9, s11, v8")
        a("s_lshr_b32 s11, s2, 3")
        a("s_mul_i32 s11, s11, 81920")
        a("s_and_b32 s12, s2, 7")
        a("s_mul_i32 s12, s12, 160")
        a("s_add_u32 s11, s11, s12")
        a("s_mul_i32 s12, s10, 156")
        a("s_add_u32 s11, s11, s12")
        a("s_cmp_lt_u32 s10, 2")
        a("s_cselect_b32 s11, s11, 0x80000000")
        a("s_movk_i32 s12, 1280")
        a("v_mov_b32 v154, s11")
        a("v_mad_u32_u24 v154, v0, s12, v154")

    def tailB(self):
        a = self.a
        for i in range(3):
            a(f"ds_write_b128 v9, {v(80+4*i,4)} offset:{1024*i}")
        a(f"s_cmp_lt_u32 s{sG}, 3")
        a("s_cbranch_scc1 L_tailP")
        self.conv(False)
        a.put("L_tailP")
        self.conv(True)
        a.put("L_kpoll")
        a("s_mov_b32 s82, 0")
        a.put("L_kpoll1")
        a(f"buffer_load_dwordx4 v[216:219], v4, s[{SWS}:{SWS+3}], s99 offen sc1")
        a("s_add_u32 s82, s82, 1")
        a("s_cmp_gt_u32 s82, 20000")
        a("s_waitcnt vmcnt(0)")
        a("s_cbranch_scc1 L_kin0")
        a(f"v_cmp_eq_u64 vcc, s[{sN}:{sN+1}], v[216:217]")
        a(f"v_cmp_eq_u64 s[84:85], s[{sN}:{sN+1}], v[218:219]")
        a("s_nop 0")
        a("s_and_b64 vcc, vcc, s[84:85]")
        a("s_cbranch_scc0 L_kpoll1")
        a("s_branch L_kin0")

    def conv(self, P):
        a = self.a
        ACC = 144
        lg = LG(a, "lgkmcnt", 15)
        b2 = lambda r: 16 + 64 * (r & 1)

        def reads(r):
            base = b2(r)

            def K(k):
                sidx = 8 * (k & 3 if P else k) + r
                o = 16 * (15 - (sidx & 15))
                ar = 240 + (sidx >> 4) + (2 * (k >> 2) if P else 0)
                A = base + 4 * k
                return [(("K", r, k), f"ds_read2_b32 {v(A,2)}, v{ar} offset0:{o} offset1:{o+1}"),
                        (("K", r, k), f"ds_read2_b32 {v(A+2,2)}, v{ar} offset0:{o+2} offset1:{o+3}")]

            def U(k):
                e = 8 * (k & 3 if P else k) - r
                return [(("U", r, k), f"ds_read_b128 {v(base+32+4*k,4)}, v244 offset:{64*(e+7)+(4*UTP*(k>>2) if P else 0)}")]
            if P:
                out = []
                for c in (0, 4):
                    out += K(c) + U(c) + U(c + 1) + U(c + 2) + U(c + 3) + K(c + 1) + K(c + 2) + K(c + 3)
                return out
            out = K(0)
            for k in range(4, 8):
                out += U(k)
            for sg in range(1, 8):
                out += K(sg) + (U(4 - sg) if sg <= 4 else [])
            return out

        def emit(x):
            a(x[1])
            lg.issue(x[0])
        r0 = reads(0)
        early = [x for x in r0 if x[0][0] == "K"][:9]
        for x in early:
            emit(x)
        for i in range(3):
            emit((None, f"ds_write_b128 v9, {v(96+4*i,4)} offset:{3072+1024*i}"))
        for x in r0:
            if x not in early:
                emit(x)
        a("s_waitcnt lgkmcnt(15)")
        a("s_barrier")
        self.stamp("T1")
        self.stop_at("t1")
        a("s_setprio 1")
        if P:
            a("s_cmp_lt_u32 s2, 80")
            a("s_cbranch_scc0 L_fin")
        self.stamp("cv_s")

        def fin(i):
            t = 16 + 2 * i
            off = 512 * (i & 3) + 4 * KPS * (i >> 2) if P else 512 * i
            return [f"v_cvt_pk_bf16_f32 v{t}, v{ACC+4*i}, v{ACC+4*i+1}",
                    f"v_cvt_pk_bf16_f32 v{t+1}, v{ACC+4*i+2}, v{ACC+4*i+3}", f"ds_write_b64 v245, {v(t,2)} offset:{off}"]

        def mm(i, A, B, first=False):
            return f"v_mfma_f32_16x16x32_bf16 {v(ACC+4*i,4)}, {v(A,4)}, {v(B,4)}, {'0' if first else v(ACC+4*i,4)}"
        outs = range(8) if P else range(4, 8)
        pend = []
        for r in range(8):
            base = b2(r)
            nxt = reads(r + 1) if r < 7 else []
            ms = []
            if P:
                for c in (0, 4):
                    if r == 0:
                        ms += [(c + i, None, c + i, mm(c + i, 192 + 5 * c, base + 32 + 4 * (c + i), True)) for i in range(4)]
                    ms += [(c + i, c + sg, c + i - sg, mm(c + i, base + 4 * (c + sg), base + 32 + 4 * (c + i - sg))) for sg in range(4) for i in range(sg, 4)]
            else:
                if r == 0:
                    ms += [(i, None, i, mm(i, 192, base + 32 + 4 * i, True)) for i in outs]
                ms += [(i, sg, i - sg, mm(i, base + 4 * sg, base + 32 + 4 * (i - sg))) for sg in range(8) for i in range(max(sg, 4), 8)]
            if r == 7:
                ms = [x for x in ms if x[0] != 7] + [x for x in ms if x[0] == 7]
            done = set()
            if "rst" in self.x:
                if r:
                    nm = f"r{r-1}"
                    if nm not in STN:
                        STN.append(nm)
                    a(f"v_writelane_b32 v254, s86, {STN.index(nm)}")
                    a(f"v_writelane_b32 v253, s88, {STN.index(nm)}")
                a("s_memtime s[86:87]")
            for n, (i, kk, uu, ln) in enumerate(ms):
                need = [t for t in (("K", r, kk), ("U", r, uu)) if t in lg.q]
                if need:
                    lg.wait(max(need, key=lambda t: max(q for q, z in enumerate(lg.q) if z == t)))
                a(ln)
                if r == 7:
                    for j in outs:
                        last = max(q for q, z in enumerate(ms) if z[0] == j)
                        if j not in done and n >= last + 4:
                            done.add(j)
                            pend += fin(j)
                    for _ in range(2):
                        if pend:
                            y = pend.pop(0)
                            a(y)
                            if y.startswith("ds_"):
                                lg.issue(None)
                if n >= 1:
                    for _ in range(2 if len(nxt) > len(ms) - n else 1):
                        if nxt:
                            emit(nxt.pop(0))
            assert not nxt
        for j in outs:
            if j not in done:
                pend += fin(j)
        for ln in pend:
            a(ln)
        self.stamp("conv")
        lp, dn = self.lds_sync(8, 4, 2)
        self.lds_spin(lp, dn, 4 if "nohold" in self.x else 68, 2)
        self.stamp("T2")
        if P:
            for i in range(4):
                a(f"ds_read_b64_tr_b16 {v(32+4*i,2)}, v246 offset:{512*i}")
                a(f"ds_read_b64_tr_b16 {v(34+4*i,2)}, v246 offset:{512*i+4*KPS}")
            for i in range(4):
                a(f"s_mov_b32 s12, {655360*i}")
                a(f"s_waitcnt lgkmcnt({6-2*i})")
                a(f"buffer_store_dwordx4 {v(32+4*i,4)}, v247, s[{SOUT}:{SOUT+3}], s12 offen")
        else:
            for i in outs:
                a(f"ds_read_b64_tr_b16 {v(32+2*i,2)}, v246 offset:{512*i}")
            for i in outs:
                a(f"s_mov_b32 s12, {655360*i}")
                a(f"s_waitcnt lgkmcnt({7-i})")
                a(f"buffer_store_dwordx2 {v(32+2*i,2)}, v247, s[{SOUT}:{SOUT+3}], s12 offen")
        a("s_branch L_fin")

    def setupA(self):
        a = self.a
        a(f"s_lshl_b32 s11, s{sW}, 11")
        a("s_lshr_b32 s12, s2, 3")
        a("s_add_u32 s11, s11, s12")
        a("s_lshl_b32 s11, s11, 7")
        a("v_lshl_add_u32 v154, v0, 12, s11")
        a(f"s_mul_i32 s11, s{sW}, 6144")
        a(f"s_add_u32 s11, s11, {WO+40960}")
        a("v_add_u32 v9, s11, v8")
        a(f"s_mul_i32 s14, s{sT}, 81920")
        a(f"s_add_u32 s14, s14, {OIMG}")
        a(f"s_mul_i32 s15, s{sG}, 2560")
        a("s_add_u32 s15, s15, s14")
        a("v_mov_b32 v144, 0xdddddddd")
        a("v_mov_b32 v145, v8")
        a(f"v_add_u32 v146, {SLOT}, v8")
        a(f"v_add_u32 v147, {2*SLOT}, v8")
        for r in range(16):
            a(f"v_mov_b64 {v(80+2*r,2)}, 0")

    def setupA2(self):
        return ["v_mov_b32 v10, v149", "v_mov_b32 v11, v150", f"v_add_u32 v149, {SLOT}, v148", f"v_add_u32 v150, {2*SLOT}, v148",
                f"v_add_u32 v152, {SLOT}, v151", f"v_add_u32 v153, {2*SLOT}, v151",
                f"s_and_b32 s13, s{sW}, 1", "s_mul_i32 s10, s13, 15360", "s_sub_u32 s10, s10, 10240", "s_mul_i32 s11, s13, 10240",
                "s_add_u32 s11, s11, 5120"] + [f"v_add_u32 v{240+k}, s{10 if k < 6 else 11}, v{240+k}" for k in range(10)] + [
                f"s_lshl_b32 s13, s{sW}, 3", f"s_mul_i32 s10, s{sG}, 160"] + [x for q, c in enumerate((0x0f0c0b0a, 0x0e0d1110, 0x09081312)) for x in (
                    f"s_lshr_b32 s11, {c:#x}, s13", "s_and_b32 s11, s11, 0xff", f"s_mul_i32 s11, s11, 40960", f"s_add_u32 s{93+q}, s11, s10")] + [
                "v_mov_b64 v[4:5], -1", "v_mov_b64 v[6:7], -1", "v_lshlrev_b32 v252, 24, v0"]

    def tables(self):
        out = []
        cols = [[] for _ in range(20)]
        for l in range(64):
            G, r, c = l >> 4, (l >> 2) & 3, l & 3
            for m in range(5):
                P = 4 * m + G
                g2, p = divmod(P, 10)
                for tt in range(2):
                    row = 80 * g2 + (20 * (p >> 1) + 4 * (p & 1) + 8 * tt if p < 8 else 20 * (p - 8 + 2 * tt) + 16)
                    cols[2 * m + tt].append(WO + 51200 + 160 * (row + r) + 8 * c)
            cols[10].append((l & 15) * 160 + 8 * G)
            for i in range(3):
                p = 64 * i + l
                cols[16 + i].append((p // 10) * 2560 + 16 * (p % 10) if p < 160 else 0x80000000)
            pr = ((l & 3) ^ 2)
            cols[19].append(2560 * (pr + (pr & 2)) + 256 * ((PROBE >> (4 * ((l >> 2) & 7))) & 15))
            cols[11].append(8 * (l & 7))
            cols[12].append(2048 + 8 * l)
            cols[13].append((G & 1) * 20480 + 16 * (l & 15) + 256 * (l >> 5))
            cols[14].append(G * 20480 + 16 * (l & 15))
            cols[15].append(2560 + 336 * (l >> 5) + 16 * (l & 31) if (l & 31) <= 20 else 0x30000)
        out.append(".p2align 7")
        out.append(".type L_tabA,@object")
        out.append("L_tabA:")
        for k in range(5):
            for l in range(64):
                out.append(".long " + ", ".join(str(cols[4 * k + e][l]) for e in range(4)))
        return out

    def latewo(self, i):
        return [f"s_add_u32 m0, s95, {1024*i-WO}" if i else f"s_sub_u32 m0, s95, {WO}", "s_nop 0",
                f"buffer_load_dwordx4 v{155+i%5}, s[{SWO}:{SWO+3}], s{93+i//5} offen lds"]

    def wofrag(self, n):
        j = n % 25
        return 160 + 4 * j if j < 20 else 136 + 4 * (j - 20)

    def woread(self, n):
        k, ct = divmod(n, 5)
        F, m = self.wofrag(n), k % 5
        return [f"ds_read_b64_tr_b16 {v(F,2)}, v{240+2*m} offset:{32*ct}",
                f"ds_read_b64_tr_b16 {v(F+2,2)}, v{241+2*m} offset:{32*ct}"]

    def tailA(self):
        a = self.a
        O = (80, 96)
        AD, OF = 240, 16
        a("s_setprio 3")
        pre = [f"s_and_b32 s98, s{sW}, 1", "s_mul_i32 s12, s98, 5120", "s_add_u32 s14, s14, s12", f"s_mul_i32 s90, s{sW}, 20480",
               "s_add_u32 s90, s90, s14", f"s_xor_b32 s99, s{sW}, 1", "s_mul_i32 s91, s99, 20480", "s_add_u32 s91, s91, s14"]
        for i in range(len(LT1), 10):
            x = self.latewo(i)
            a(x[0])
            a(pre.pop(0) if pre else x[1])
            a(x[2])
        for ln in pre:
            a(ln)
        a("v_cmp_eq_u64 s[94:95], s[96:97], v[2:3]")
        a("s_mov_b32 s13, 0")
        a(f"s_mov_b32 s83, {f2u(2.0**48):#x}")
        a("s_barrier")
        self.stamp("T1")
        self.stop_at("t1")
        for i in (2, 5, 0, 1, 3, 4):
            a(f"ds_read_b128 {v(16+4*i,4)}, v9 offset:{1024*i}")
        a("s_waitcnt lgkmcnt(4)")
        for T in range(2):
            a(f"v_add_f32 v{O[T]+8}, v{O[T]+8}, v{24+12*T}")
        a.put("L_lext")
        for T in range(2):
            a(f"v_mov_b32 v{40+2*T}, v{O[T]+8}")
            a(f"v_mov_b32 v{41+2*T}, v{O[T]+8}")
        for T in range(2):
            for i in (9, 10, 11):
                a(f"v_add_f32 v{O[T]+i}, v{O[T]+i}, v{16+12*T+i}")
        a("v_permlane32_swap_b32 v40, v41")
        a("v_permlane32_swap_b32 v42, v43")
        a("s_cmp_eq_u32 s13, 1")
        a("v_rcp_f32 v44, v41")
        a("v_rcp_f32 v45, v43")
        a("v_min_f32 v40, v41, v43")
        a("v_max_f32 v42, v41, v43")
        for T in range(2):
            a(f"s_waitcnt lgkmcnt({2-2*T})")
            for i in range(8):
                a(f"v_add_f32 v{O[T]+i}, v{O[T]+i}, v{16+12*T+i}")
            for i in range(12):
                a(f"v_mul_f32 v{O[T]+i}, v{O[T]+i}, v{44+T}")
            for q in range(4):
                a(f"v_cvt_pk_bf16_f32 v{124+4*T+q}, v{O[T]+2*q}, v{O[T]+2*q+1}")
            for q in range(2):
                a(f"v_cvt_pk_bf16_f32 v{132+2*T+q}, v{O[T]+8+2*q}, v{O[T]+9+2*q}")
        a("s_cbranch_scc1 L_norm")
        a("v_permlane32_swap_b32 v132, v134")
        a("v_permlane32_swap_b32 v133, v135")
        for T in range(2):
            for q in range(6):
                a(f"v_fmac_f32 v6, v{O[T]+2*q}, v{O[T]+2*q+1}")
        a("v_cmp_ge_f32 s[84:85], s83, v42")
        a("v_fmac_f32 v40, 0, v6")
        a(f"v_cmp_le_f32 vcc, {f2u(2.0**-24):#x}, v40")
        a("s_nop 0")
        a("s_and_b64 vcc, vcc, s[84:85]")
        a("s_cmp_eq_u64 vcc, -1")
        a("s_branch L_slow" if self.force_slow else "s_cbranch_scc0 L_slow")
        a.put("L_norm2")
        ACC, TR, NR = 96, 40, 25
        WS_ = f"s[{SWS}:{SWS+3}]"

        def ostore(pol):
            a(f"buffer_store_dwordx4 v[124:127], v10, {WS_}, s10 offen{pol}")
            a(f"buffer_store_dwordx4 v[128:131], v10, {WS_}, s11 offen{pol}")
            a(f"buffer_store_dwordx2 v[132:133], v11, {WS_}, s15 offen offset:2048{pol}")
        a("s_cmp_eq_u64 s[94:95], -1")
        a("s_branch L_far" if "far" in self.x else "s_cbranch_scc0 L_far")
        ostore("")
        a.put("L_pod")
        self.stamp("Oiss")
        if "aexit" in self.x:
            a("s_branch L_fin")
        a(f"buffer_load_dwordx4 {v(ACC,4)}, v15, {WS_}, s90 offen sc1")

        def issue(n):
            for ln in self.woread(n):
                a(ln)
        for n in range(15, 25):
            issue(n)
        a("s_mov_b32 s82, 0")
        a("s_waitcnt vmcnt(4)")
        lp, dn = self.lds_sync(0, 4, 4)
        self.stamp("Ostored")
        a.put("L_pr")
        a("s_waitcnt vmcnt(0)")
        a(f"v_max_u32 v6, v{ACC}, v{ACC+2}")
        a("s_add_u32 s82, s82, 1")
        a("v_cmp_eq_u32 vcc, -1, v6")
        a("s_cbranch_vccz L_prd")
        a("s_cmp_gt_u32 s82, 20000")
        a("s_cbranch_scc1 L_prd")
        a(f"buffer_load_dwordx4 {v(ACC,4)}, v15, {WS_}, s90 offen sc1")
        a("s_branch L_pr")
        a.put("L_prd")
        self.stamp("Oseen")

        def oload(k):
            o = 10240 + 1024 * k if k < 5 else 1024 * (k - 5)
            for rt in range(2):
                a(f"s_add_u32 s13, s{90+rt}, {o & ~4095}")
                a(f"buffer_load_dwordx4 {v(OF+8*k+4*rt,4)}, v8, s[{SWS}:{SWS+3}], s13 offen offset:{o & 4095} sc1")
        for k in range(NUP):
            oload(k)
        a(f"v_mov_b32 v2, {CNT+8}")
        a("v_mov_b32 v3, 16")
        if NUP == 10 and "nohold" not in self.x:
            a("s_mov_b64 exec, 1")
            a("ds_add_u32 v2, v3")
            a("s_mov_b64 exec, -1")
        a("s_mul_i32 s84, s98, 10240")
        a("s_sub_u32 s84, s84, 40960")
        a("s_mul_i32 s85, s98, 66560")
        a("s_sub_u32 s85, s85, 56320")
        for k in range(10):
            a(f"v_add_u32 v{AD+k}, s{84 if k < 6 else 85}, v{AD+k}")
        a(f"s_mul_i32 s12, s{sW}, 5120")
        a(f"s_add_u32 s12, s12, {WO+40960}")
        a("v_add_u32 v9, s12, v8")
        a("s_mul_i32 s12, s99, 5120")
        a(f"s_add_u32 s12, s12, {WO+40960}")
        a("v_add_u32 v1, s12, v8")
        a("v_add_u32 v250, s12, v250")
        a(f"s_and_b32 s12, s{sW}, 2")
        a(f"s_lshl2_add_u32 s12, s12, {CNT+4}")
        a("v_mov_b32 v7, s12")
        self.lds_spin(lp, dn, 4, 4)
        self.stamp("T2")
        a(f"s_setprio {OPRIO}")
        a(f"s_lshl_b32 s12, s{sT}, 6")
        a(f"s_lshl4_add_u32 s12, s{sW}, s12")
        a("s_mul_i32 s12, s12, 2560")
        a(f"s_mul_i32 s84, s{sG}, 160")
        a("s_add_u32 s12, s12, s84")
        a("v_mov_b32 v5, 1")
        RS = 0
        if "rest" in self.x:
            assert NUP == 10
            RS = 3
            a("s_waitcnt vmcnt(0)")
            ostore(" sc1")
        a("s_mov_b32 s82, 0")
        nld = [NUP]

        def more():
            for kk in range(nld[0], min(10, nld[0] + OST)):
                oload(kk)
                if kk == 9 and "nohold" not in self.x:
                    a("s_mov_b64 exec, 1")
                    a("ds_add_u32 v2, v3")
                    a("s_mov_b64 exec, -1")
            nld[0] = min(10, nld[0] + OST)

        def chk(k):
            F = OF + 8 * k
            return [f"v_max3_u32 v6, v{F}, v{F+2}, v{F+4}", f"v_max_u32 v6, v6, v{F+6}", "v_cmp_eq_u32 vcc, -1, v6"]

        def mm(n, rt):
            k, ct = divmod(n, 5)
            F = self.wofrag(n)
            D = ACC + 20 * rt + 4 * ct
            a(f"v_mfma_f32_16x16x32_bf16 {v(D,4)}, {v(F,4)}, {v(OF+8*k+4*rt,4)}, {'0' if k == 0 else v(D,4)}")
        more()
        a(f"s_waitcnt vmcnt({2*(nld[0]-1)+RS})")
        for ln in chk(0):
            a(ln)
        KS = 6
        for k in range(10):
            lk = {8: 10, 9: 0}.get(k, 15)
            a(f"s_cbranch_vccnz L_re{k}")
            a.put(f"L_ok{k}")
            if k >= 5:
                a(f"s_waitcnt lgkmcnt({lk})")
            if k == 0:
                self.stamp("op0")
            c = chk(k + 1) if k < 9 else None
            if k < KS:
                for n in range(5 * k, 5 * k + 5):
                    rd = self.woread(n - 1 + NR) if n >= 1 and n - 1 + NR < 50 else []
                    mm(n, 0)
                    for ln in rd[:1]:
                        a(ln)
                    if n % 5 == 0:
                        more()
                    if n % 5 == 3:
                        a(f"s_waitcnt vmcnt({2*(nld[0]-k-2)+RS})")
                        a(c[0])
                    if n % 5 == 4:
                        a(c[2])
                    mm(n, 1)
                    for ln in rd[1:]:
                        a(ln)
                    if n % 5 == 3:
                        a(c[1])
            else:
                for n in range(5 * k, 5 * k + 5):
                    mm(n, 1)
                    if c and n % 5 == 0:
                        a(f"s_waitcnt vmcnt({2*(nld[0]-k-2)+RS})")
                    if c and n % 5 < 3:
                        a(c[n % 5])
        exr = ["ds_read_b32 v6, v7"] + [f"ds_read_b128 {v(TR+4*ct,4)}, v1 offset:{1024*ct}" for ct in range(5)]
        fill = {1 + j: [f"ds_write_b128 v9, {v(ACC+20+4*j,4)} offset:{1024*j}"] for j in range(5)}
        fill[6] = ["s_mov_b64 exec, 1", "ds_add_u32 v7, v5", "s_mov_b64 exec, -1"]
        for j, ln in enumerate(exr):
            fill[EXR + j] = [ln]
        for j, n in enumerate(range(5 * KS, 50)):
            mm(n, 0)
            for ln in fill.get(j, []):
                a(ln)
        self.stamp("op50")
        a("s_mov_b32 s82, 0")
        a.put("L_ex")
        a("s_add_u32 s82, s82, 1")
        a("s_waitcnt lgkmcnt(5)")
        a("v_readfirstlane_b32 s83, v6")
        a("s_cmp_gt_u32 s82, 0x40000")
        a("s_cbranch_scc1 L_exd")
        a("s_cmp_lt_u32 s83, 2")
        a("s_cbranch_scc0 L_exd")
        for ln in exr:
            a(ln)
        a("s_branch L_ex")
        a.put("L_exd")
        for ct in range(5):
            a(f"s_waitcnt lgkmcnt(4)")
            for e in range(4):
                a(f"v_add_f32 v{ACC+4*ct+e}, v{ACC+4*ct+e}, v{TR+4*ct+e}")
            a(f"v_cvt_pk_bf16_f32 v{16+2*ct}, v{ACC+4*ct}, v{ACC+4*ct+1}")
            a(f"v_cvt_pk_bf16_f32 v{17+2*ct}, v{ACC+4*ct+2}, v{ACC+4*ct+3}")
            a(f"ds_write_b64 v250, {v(16+2*ct,2)} offset:{32*ct}")
        for i in range(3):
            a(f"ds_read_b128 {v(28+4*i,4)}, v1 offset:{1024*i}")
        pol = " nt" if "ont" in self.x else " sc1" if "osc1" in self.x else ""
        for i in range(3):
            a(f"s_waitcnt lgkmcnt({2-i})")
            a(f"buffer_store_dwordx4 {v(28+4*i,4)}, v{12+i}, s[{SOUT}:{SOUT+3}], s12 offen{pol}")
        a("s_branch L_fin")
        a.put("L_norm")
        a("v_permlane32_swap_b32 v132, v134")
        a("v_permlane32_swap_b32 v133, v135")
        a("s_branch L_norm2")
        a.put("L_far")
        ostore(" sc1")
        a("s_mov_b32 s82, 0")
        a.put("L_po")
        a(f"v_xor_b32 v3, s{sN+1}, v3")
        a(f"v_xor_b32 v2, s{sN}, v2")
        a("v_lshl_or_b32 v2, v3, 4, v2")
        a("s_add_u32 s82, s82, 1")
        a("v_cmp_ne_u32 vcc, 0, v2")
        a("s_cbranch_vccz L_pod")
        a("s_cmp_gt_u32 s82, 20000")
        a("s_cbranch_scc1 L_pod")
        a(f"buffer_load_dwordx2 v[2:3], v251, {WS_}, s92 offen sc1")
        a("s_waitcnt vmcnt(0)")
        a("s_branch L_po")
        for k in range(10):
            a.put(f"L_re{k}")
            oload(k)
            a("s_add_u32 s82, s82, 1")
            a("s_cmp_gt_u32 s82, 20000")
            a("s_waitcnt vmcnt(0)")
            a(f"s_cbranch_scc1 L_ok{k}")
            for ln in chk(k):
                a(ln)
            a(f"s_cbranch_vccnz L_re{k}")
            a(f"s_branch L_ok{k}")

    def slow(self):
        a = self.a
        S0, O0, O1, QA, QB, Q4, K4, K16, V, IDX, AV = 16, 80, 96, 112, 116, 120, 122, 124, 128, 144, 151
        M0, M1 = 60, 61
        a.put("L_slow")
        a("v_and_b32 v62, 31, v0")
        a("v_lshlrev_b32 v62, 3, v62")
        a(f"v_mov_b32 v{M0}, 0xff800000")
        a(f"v_mov_b32 v{M1}, 0xff800000")
        for ps in range(2):
            if ps == 1:
                for M, t in ((M0, 63), (M1, 64)):
                    a(f"v_mov_b32 v{t}, v{M}")
                a("s_nop 1")
                a(f"v_permlane32_swap_b32 v{M0}, v63")
                a(f"v_permlane32_swap_b32 v{M1}, v64")
                a("s_nop 1")
                a(f"v_max_f32 v{M0}, v{M0}, v63")
                a(f"v_max_f32 v{M1}, v{M1}, v64")
                for r in range(32):
                    a(f"v_mov_b32 v{O0+r}, 0")
            a("s_mov_b32 s8, 0")
            a.put(f"L_sl{ps}")
            a("s_lshr_b32 s9, s8, 1")
            a(f"s_mul_i32 s9, s9, {BLK}")
            a("s_and_b32 s82, s8, 1")
            a("s_lshl_b32 s12, s82, 10")
            a("s_add_u32 s12, s12, s9")
            a(f"buffer_load_dwordx4 {v(K16,4)}, v8, s[{SWS}:{SWS+3}], s12 offen sc1")
            a("s_lshl_b32 s12, s82, 8")
            a("s_add_u32 s12, s12, s9")
            a(f"buffer_load_dwordx2 {v(K4,2)}, v62, s[{SWS}:{SWS+3}], s12 offen offset:2048 sc1")
            if ps == 1:
                a("s_mul_i32 s12, s82, 1344")
                a("s_add_u32 s12, s12, s9")
                a(f"buffer_load_dwordx4 {v(V,4)}, v{AV}, s[{SWS}:{SWS+3}], s12 offen sc1")
                a(f"buffer_load_dwordx4 {v(V+4,4)}, v{AV}, s[{SWS}:{SWS+3}], s12 offen offset:672 sc1")
            a("s_waitcnt vmcnt(0)")
            a(f"v_mfma_f32_32x32x4_2b_bf16 {v(S0,32)}, {v(K4,2)}, {v(Q4,2)}, 0 cbsz:1 abid:0")
            a.nop(18)
            a(f"v_mfma_f32_32x32x16_bf16 {v(S0,16)}, {v(K16,4)}, {v(QA,4)}, {v(S0,16)}")
            a(f"v_mfma_f32_32x32x16_bf16 {v(S0+16,16)}, {v(K16,4)}, {v(QB,4)}, {v(S0+16,16)}")
            a.nop(14)
            if ps == 0:
                for T, M in ((0, M0), (1, M1)):
                    for r in range(0, 16, 2):
                        a(f"v_max3_f32 v{M}, v{S0+16*T+r}, v{S0+16*T+r+1}, v{M}")
            else:
                for T, M in ((0, M0), (1, M1)):
                    for r in range(16):
                        a(f"v_sub_f32 v{S0+16*T+r}, v{S0+16*T+r}, v{M}")
                for r in range(32):
                    a(f"v_exp_f32 v{S0+r}, v{S0+r}")
                a("s_nop 1")
                for T, O in ((0, O0), (1, O1)):
                    for f in range(2):
                        a(f"v_smfmac_f32_32x32x32_bf16 {v(O,16)}, {v(V+4*f,4)}, {v(S0+16*T+8*f,8)}, v{IDX}")
                a.nop(14)
            a("s_add_u32 s8, s8, 1")
            a("s_cmp_lt_u32 s8, 64")
            a(f"s_cbranch_scc1 L_sl{ps}")
        for r in range(16, 40, 2):
            a(f"v_mov_b64 {v(r,2)}, 0")
        a("s_mov_b32 s13, 1")
        a("s_branch L_lext")

    def dump(self):
        a = self.a
        a.put("L_dump")
        a("s_waitcnt vmcnt(0) lgkmcnt(0)")
        a("s_barrier")
        a(f"s_lshl_b32 s10, s{sW}, 10")
        a("v_lshl_add_u32 v250, v0, 4, s10")
        a(f"s_mul_i32 s11, s2, {LDS_BYTES}")
        a(f"s_add_u32 s11, s11, {DBG}")
        a("v_mov_b32 v251, v250")
        for i in range(20):
            a("ds_read_b128 v[252:255], v251")
            a("s_waitcnt lgkmcnt(0)")
            a(f"buffer_store_dwordx4 v[252:255], v250, s[{SWS}:{SWS+3}], s11 offen")
            a("s_waitcnt vmcnt(0)")
            a("v_add_u32 v251, 0x2000, v251")
            a("s_add_u32 s11, s11, 0x2000")
        if self.dump_regs:
            lo, n = self.dump_regs
            a(f"s_lshl_b32 s10, s2, 3")
            a(f"s_add_u32 s10, s10, s{sW}")
            a(f"s_mul_i32 s10, s10, {256*n}")
            a(f"s_add_u32 s10, s10, {DBG + 256*LDS_BYTES}")
            a("v_lshlrev_b32 v250, 2, v0")
            for i in range(n):
                a(f"buffer_store_dword v{lo+i}, v250, s[{SWS}:{SWS+3}], s10 offen")
                a("s_add_u32 s10, s10, 256")
            a("s_waitcnt vmcnt(0)")
        a("s_endpgm")

    def build(self):
        a = self.a
        self.prologue()
        self.startA()
        self.qgemm()
        self.attention(False)
        self.tailA()
        a.put("L_B0")
        self.startB()
        self.bphase1()
        self.attention(True)
        self.tailB()
        self.slow()
        if self.stop:
            self.dump()
        a.put("L_fin")
        a("s_waitcnt lgkmcnt(0)")
        if self.stamps:
            self.stamp("issued")
            a("s_waitcnt vmcnt(0)")
            self.stamp("end")
            a("s_memrealtime s[86:87]")
            a("s_lshl_b32 s10, s2, 3")
            a(f"s_add_u32 s10, s10, s{sW}")
            a("s_lshl_b32 s10, s10, 9")
            a(f"s_add_u32 s10, s10, {STAMP}")
            a("v_lshlrev_b32 v1, 2, v0")
            a("s_waitcnt lgkmcnt(0)")
            a("v_writelane_b32 v254, s86, 63")
            a(f"buffer_store_dword v254, v1, s[{SWS}:{SWS+3}], s10 offen")
            a(f"buffer_store_dword v253, v1, s[{SWS}:{SWS+3}], s10 offen offset:256")
        if self.rt:
            a("s_cmp_lt_u32 s2, 250")
            a("s_cbranch_scc1 L_end")
            a(f"s_cmp_eq_u32 s{sW}, 4")
            a("s_cbranch_scc0 L_end")
            a("s_waitcnt vmcnt(0)")
            a("s_memrealtime s[86:87]")
            a("s_memtime s[94:95]")
            a("s_sub_u32 s10, s2, 248")
            a("s_lshl_b32 s10, s10, 3")
            a("v_mov_b32 v1, s10")
            a("s_waitcnt lgkmcnt(0)")
            a("s_sub_u32 s94, s94, s96")
            a(f"s_sub_u32 s86, s86, s{sN}")
            a("v_mov_b32 v4, s86")
            a("v_mov_b32 v5, s94")
            a("s_mov_b64 exec, 1")
            a("global_store_dwordx2 v1, v[4:5], s[46:47]")
        a.put("L_end")
        a("s_endpgm")
        a.put("L_codeend")
        a.lines += self.tables()
        return a


HEAD = open("cdna_kernels/" + NAME + ".s.ref").read().split("; Override launch")[0]


def emit(path, **kw):
    g = Gen(**kw)
    a = g.build()
    a.lines, msgs = autofix(a.lines)
    if kw.get("verbose", path.endswith("prompt.s")):
        for m in msgs[:30]:
            print("fixed", m)
    assert not check_hazards(a.lines)
    if path.endswith('prompt.s'):
        for m in check_inflight(a.lines)[:30]:
            print(m)
    src = HEAD + f"""; @launch grid=(256,1,1) block=(512,1,1) lds={LDS_BYTES}
.amdgcn_target "amdgcn-amd-amdhsa--gfx950"
.text
.globl {NAME}_kernel
.p2align 8
.type {NAME}_kernel,@function
{NAME}_kernel:
{a.text()}.section .rodata,"a"
.p2align 6
.amdhsa_kernel {NAME}_kernel
  .amdhsa_next_free_vgpr 256
  .amdhsa_next_free_sgpr 102
  .amdhsa_accum_offset 256
  .amdhsa_group_segment_fixed_size 0
  .amdhsa_kernarg_size 136
  .amdhsa_user_sgpr_count 2
  .amdhsa_user_sgpr_kernarg_segment_ptr 1
  .amdhsa_system_sgpr_workgroup_id_x 1
.end_amdhsa_kernel
"""
    open(path, "w").write(src)
    if path.endswith('prompt.s'):
        print('klen', g.klen, 'lastpk', g.kpk, 'left', g.kleft)
    return len(msgs)


if __name__ == "__main__":
    import os
    os.makedirs("out", exist_ok=True)
    n = emit("cdna_kernels/" + NAME + ".s")
    emit("b6.s", stop="e0")
    emit("t1.s", stop="t1", dump_regs=(80, 32))
    emit("full.s")
    emit("slow.s", force_slow=True)
    emit("stamp.s", stamps=True)
    emit("rt.s", rt=True)
    for arg in sys.argv[1:]:
        emit(f"stamp_{arg}.s", stamps=True, x=arg.split("+"))
        emit(f"full_{arg}.s", x=arg.split("+"))
    open("stn.txt", "w").write(" ".join(STN))
    print("hazards", n)
```

```python
import os
import sys, struct
from asmlib import Asm, v, s, check_hazards, autofix, check_inflight

NAME = "concat_heads__grouped_kv_mqa__ssm_conv_s4__prompt"

BLK = 5248
SLOT = 41984
WL = 81920
WOFF = (0, 58368, 37888, 0, 58368)
AUX = 110592
KGB = 102400
KGS = 4352
KVP = 102400
QP = 90112
KC = 125952
KCS = 8320
WO = 1024
UT = 103424
UTS = 4592
UTP = 2544
KPS = 4224
USCR = 123840
CNT = 163808
QC = CNT + 16
LDS_BYTES = 163840

FLG_KV = 0x580000
FLG_O = 0x31000
FLG_K = 0x32000
OIMG = 0x40000
KIMG = 0x2C0000
WS_SIZE = 0x600000
DBG = 0x700000
STAMP = 0x600000

sW, sT, sG, sD0 = 3, 4, 5, 50
SX, SWQ, SKV, SWS, SOUT, SWO, SU = 52, 56, 60, 64, 68, 72, 76
sN = 80
sST = 88

LOG2E = 1.4426950408889634
STN = ['start']
KBAR = (0, 40, 1000, 1000, 1000)
KSC = 60
WV0 = 3
OPRIO = 0
APRIO = 3
KPRIO = 0
N1 = 9
LPOS = (2, 3)
PSL = 0
TCH = 6
GL = 70
KB = 3
NP = 1
NREP = 8
PSP = 7
NUP = 10
EXR = 12
PROBE = 0x98986420
LT1 = ('a1', 'a2', 'a3', 'a5')
OST = 2
NXU = 8


def f2u(x):
    return struct.unpack("<I", struct.pack("<f", x))[0]


class LG:
    def __init__(self, a, name, maxc):
        self.a, self.name, self.maxc, self.q = a, name, maxc, []

    def issue(self, tag=None):
        self.q.append(tag)

    def wait(self, tag):
        idx = max(i for i, t in enumerate(self.q) if t == tag)
        n = len(self.q) - 1 - idx
        self.a(f"s_waitcnt {self.name}({min(n, self.maxc)})")
        self.q = self.q[idx + 1:]

    def waitstr(self, tag):
        idx = max(i for i, t in enumerate(self.q) if t == tag)
        n = len(self.q) - 1 - idx
        self.q = self.q[idx + 1:]
        return f"{self.name}({min(n, self.maxc)})"

    def all(self):
        self.q = []


class Gen:
    def __init__(self, stop=None, stamps=False, force_slow=False, dump_regs=None, rt=False, x=()):
        self.rt = rt
        self.x = set(x) | ({'not'} if 'touch' not in x and 'latet' not in x else set())
        self.a = Asm()
        self.stop = stop
        self.stamps = stamps
        self.force_slow = force_slow
        self.debug = stop is not None or stamps
        self.dump_regs = dump_regs
        self.ncm = 0
        self.stubs = []
        self.lpos = LPOS
        self.psl = PSL
        self.ksc = KSC
        self.tch = TCH
        self.kb = KB
        self.wd = 0
        self.nrep = NREP
        self.gl, self.psp, self.np = GL, PSP, NP
        self.aprio, self.kprio, self.n1 = APRIO, KPRIO, N1
        for f in self.x:
            if f.startswith("ksc"):
                self.ksc = int(f[3:])
            if f.startswith("ap"):
                self.aprio = int(f[2:])
            if f.startswith("kp"):
                self.kprio = int(f[2:])
            if f.startswith("ps"):
                self.psl = int(f[2:])
            if f.startswith("lp"):
                self.lpos = (int(f[2]), int(f[3]))
            if f.startswith("gl"):
                self.gl = int(f[2:])
            if f.startswith("sp"):
                self.psp = int(f[2:])
            if f.startswith("np"):
                self.np = int(f[2:])
            if f.startswith("rep"):
                self.nrep = int(f[3:])
            if f.startswith("kb"):
                self.kb = int(f[2:])
            if f.startswith("wd"):
                self.wd = int(f[2:])
            if f.startswith("tch"):
                self.tch = int(f[3:])
            if f.startswith("n1"):
                self.n1 = int(f[2:])

    def srd(self, d, base, size):
        a = self.a
        a(f"s_mov_b32 s{d}, s{base}")
        a(f"s_mov_b32 s{d+1}, s{base+1}")
        a(f"s_mov_b32 s{d+2}, {size}")
        a(f"s_mov_b32 s{d+3}, 0x20000")

    def stamp(self, name):
        if self.stamps and (not os.environ.get("MINST") or name in os.environ["MINST"].split(",")):
            if name not in STN:
                STN.append(name)
            self.a("s_memtime s[86:87]")
            self.a("s_memrealtime s[88:89]")
            self.a("s_waitcnt lgkmcnt(0)")
            self.a(f"v_writelane_b32 v254, s86, {STN.index(name)}")
            self.a(f"v_writelane_b32 v253, s88, {STN.index(name)}")

    def stop_at(self, name):
        if self.stop == name:
            self.a("s_branch L_dump")

    def cmul(self, d, x, y, conj=False):
        a = self.a
        self.ncm += 1
        if self.ncm > self.ksc:
            a(f"v_mul_f32 v{d}, v{x}, v{y}")
            a(f"v_mul_f32 v{d+1}, v{x+1}, v{y}")
            if conj:
                return [f"v_fmac_f32 v{d}, v{x+1}, v{y+1}", f"v_fma_f32 v{d+1}, -v{x}, v{y+1}, v{d+1}"]
            return [f"v_fma_f32 v{d}, -v{x+1}, v{y+1}, v{d}", f"v_fmac_f32 v{d+1}, v{x}, v{y+1}"]
        a(f"v_pk_mul_f32 {v(d,2)}, {v(x,2)}, {v(y,2)} op_sel:[0,0] op_sel_hi:[1,0]")
        neg = "neg_hi:[0,1,0]" if conj else "neg_lo:[0,1,0]"
        return [f"v_pk_fma_f32 {v(d,2)}, {v(x,2)}, {v(y,2)}, {v(d,2)} op_sel:[1,1,0] op_sel_hi:[0,1,1] {neg}"]

    def cmuls(self, lst, conj=False):
        tail = [self.cmul(d, x, y, conj) for d, x, y in lst]
        for t in tail:
            for ln in t:
                self.a(ln)

    def get_nonce(self, vt, vz):
        a = self.a
        lp, dn = a.label("Lnon"), a.label("Lnond")
        a("s_mov_b32 s82, 0")
        a.put(lp)
        a(f"v_readfirstlane_b32 s{sN}, {v(vt)}")
        a(f"v_readfirstlane_b32 s{sN+1}, {v(vt+1)}")
        a("s_add_u32 s82, s82, 1")
        a(f"s_bitcmp1_b32 s{sN}, 0")
        a(f"s_cbranch_scc1 {dn}")
        a("s_cmp_gt_u32 s82, 20000")
        a(f"s_cbranch_scc1 {dn}")
        a("s_sleep 4")
        a(f"global_load_dwordx2 {v(vt,2)}, {v(vz)}, s[46:47] sc1")
        a("s_waitcnt vmcnt(0)")
        a(f"s_branch {lp}")
        a.put(dn)

    def wdma(self, p, i):
        return [f"s_add_u32 m0, s85, {WOFF[p]+1024*i}", "s_nop 0",
                f"buffer_load_dwordx4 v{2+i}, s[{SWQ}:{SWQ+3}], s{33+p} offen lds"]

    def xdma(self, p, m):
        return [f"s_add_u32 m0, s51, {16384*p+4096*m}", "s_nop 0",
                f"buffer_load_dwordx4 v{26+m}, s[{SX}:{SX+3}], s{28+p} offen lds"]

    def rot(self, d):
        a = self.a
        a(f"s_and_b32 s{d}, s9, 3")
        a(f"s_add_u32 s{d}, s{d}, s{sG}")
        for _ in range(2):
            a(f"s_cmp_ge_u32 s{d}, 5")
            a("s_cselect_b32 s12, 5, 0")
            a(f"s_sub_u32 s{d}, s{d}, s12")

    def qspin(self, target, vt, mask=None, pre=False, sleep=0):
        a = self.a
        lp, dn = a.label("Lq"), a.label("Lqd")
        a("s_mov_b32 s82, 0")
        if not pre:
            a(f"ds_read_b32 v{vt+1}, v{vt}")
        a.put(lp)
        a("s_waitcnt lgkmcnt(0)")
        a(f"v_readfirstlane_b32 s83, v{vt+1}")
        a("s_add_u32 s82, s82, 1")
        if mask:
            a(f"s_and_b32 s83, s83, {mask}")
        a(f"s_cmp_ge_u32 s83, {target}")
        a(f"s_cbranch_scc1 {dn}")
        if sleep:
            a(f"s_sleep {sleep}")
        a(f"ds_read_b32 v{vt+1}, v{vt}")
        a("s_cmp_lt_u32 s82, 0x40000")
        a(f"s_cbranch_scc1 {lp}")
        a("s_waitcnt lgkmcnt(0)")
        a.put(dn)

    def prologue(self):
        a = self.a
        a("s_cmp_ge_u32 s2, 0x100")
        a("s_cbranch_scc1 L_end")
        a("s_load_dwordx16 s[16:31], s[0:1], 0")
        a("s_load_dwordx16 s[32:47], s[0:1], 64")
        a("s_load_dwordx2 s[48:49], s[0:1], 128")
        if self.rt:
            a("s_memrealtime s[98:99]")
            a("s_memtime s[96:97]")
        if self.stamps:
            a("s_memtime s[86:87]")
            a("s_memrealtime s[88:89]")
        a("s_getpc_b64 s[6:7]")
        a.put("L_pc")
        a("s_lshr_b32 s9, s2, 3")
        a("v_lshlrev_b32 v1, 12, v0")
        a("s_lshl_b32 s8, s9, 7")
        a("v_add_u32 v1, s8, v1")
        a("v_min_u32 v1, L_codeend-L_pc-4, v1")
        a("global_load_dword v255, v1, s[6:7]")
        a("v_lshrrev_b32 v1, 6, v0")
        a("v_and_b32 v0, 63, v0")
        a("s_and_b32 s8, s2, 7")
        a(f"v_readfirstlane_b32 s{sW}, v1")
        a(f"s_and_b32 s{sT}, s9, 3")
        a(f"s_lshl2_add_u32 s{sT}, s8, s{sT}")
        a(f"s_lshr_b32 s{sG}, s9, 2")
        a("v_lshlrev_b32 v8, 4, v0")
        a(f"s_cmp_lt_u32 s{sW}, 4")
        a("s_cbranch_scc0 L_B0")

    def kargwait(self):
        a = self.a
        a("s_waitcnt lgkmcnt(0)")
        if self.stamps:
            a("v_mov_b32 v254, 0")
            a("v_writelane_b32 v254, s86, 0")
            a("v_mov_b32 v253, 0")
            a("v_writelane_b32 v253, s88, 0")
        self.stamp("karg")

    def srds(self):
        self.srd(SWS, 48, 0x10000000 if self.debug else WS_SIZE)
        self.srd(SOUT, 44, 5242880)
        self.srd(SWO, 24, 819200)
        self.srd(SU, 26, 2621440)

    def startA(self):
        a = self.a
        a("s_add_u32 s10, s6, L_tabA-L_pc")
        a("s_addc_u32 s11, s7, 0")
        for k in range(3):
            a(f"global_load_dwordx4 {v(240+4*k,4)}, v8, s[10:11] offset:{1024*k}")
        a("global_load_dwordx4 v[148:151], v8, s[10:11] offset:3072")
        a("v_lshrrev_b32 v2, 4, v0")
        a(f"s_lshl_b32 s13, s{sW}, 2")
        a("v_add_u32 v3, s13, v2")
        a("v_and_b32 v4, 15, v0")
        a("v_xor_b32 v3, v3, v4")
        a("v_lshlrev_b32 v3, 4, v3")
        a("s_movk_i32 s12, 1280")
        a("v_mad_u32_u24 v26, v2, s12, v3")
        for m in range(1, 4):
            a(f"v_add_u32 v{26+m}, {20480*m}, v26")
        a(f"s_mul_i32 s92, s{sT}, 81920")
        a(f"s_mul_i32 s85, s{sW}, 5120")
        a("s_add_u32 s92, s92, s85")
        a(f"s_lshl_b32 s51, s{sW}, 10")
        self.rot(94)
        a(f"s_mul_i32 s84, s{sG}, 160")
        a(f"s_mul_i32 s12, s{sW}, 40960")
        a("s_add_u32 s84, s84, s12")
        a(f"s_add_u32 s91, s85, {WO}")
        a(f"s_add_u32 s85, s85, {WL}")
        a("s_mov_b32 s90, s84")
        self.wvoff(2, True, nat=155, n=WV0)
        self.kargwait()
        self.srd(SX, 16, 2621440)

        def offs(p):
            a(f"s_lshl_b32 s{28+p}, s94, 8")
            a(f"s_add_u32 s{28+p}, s{28+p}, s92")
            a(f"s_mul_i32 s{33+p}, s94, 163840")
            a(f"s_add_u32 s{33+p}, s{33+p}, s84")
            if p < 4:
                a("s_add_u32 s94, s94, 1")
                a("s_cmp_eq_u32 s94, 5")
                a("s_cselect_b32 s94, 0, s94")

        def X(p):
            for m in range(4):
                for ln in self.xdma(p, m):
                    a(ln)

        def W(p):
            for i in range(5):
                for ln in self.wdma(p, i):
                    a(ln)
        offs(0)
        X(0)
        self.srd(SWQ, 18, 819200)
        a(f"s_cmp_lt_u32 s{sG}, 2")
        a("s_cbranch_scc1 L_a_P")
        for i in range(5):
            if i == WV0:
                self.wvoff(2, True, nat=155, n0=WV0)
            for ln in self.wdma(0, i):
                a(ln)
        self.stamp("Xiss")
        for p in range(1, 5):
            offs(p)
        self.qsetup()
        a("s_barrier")
        for k in range(self.n1):
            for ln in (self.xdma(1, k) if k < 4 else self.wdma(1, k - 4)):
                a(ln)
        self.stamp("Wiss")
        a(f"s_setprio {self.aprio}")
        self.qgemm(False)
        a("s_branch L_a_Q")
        for ln in self.stubs:
            a(ln)
        self.stubs = []
        a.put("L_a_P")
        for p in range(1, 5):
            offs(p)
            X(p)
            if p == 1:
                self.wvoff(2, True, nat=155, n0=WV0)
        self.stamp("Xiss")
        if self.kb < 5:
            a(f"s_waitcnt vmcnt({4 * (5 - self.kb)})")
            a("s_barrier")
        W(0)
        if "w1e" in self.x:
            W(1)
        self.qsetup()
        a(f"s_waitcnt vmcnt({10 if 'w1e' in self.x else 5})")
        a("s_barrier")
        self.stamp("B0")
        if "w1e" not in self.x:
            W(1)
        self.qgemm(True)
        a.put("L_a_Q")

    def touchW(self, lo, hi):
        a = self.a
        lab = a.label("Lt")
        out = [f"s_sub_u32 s12, s{sW}, {lo}", f"s_cmp_lt_u32 s12, {hi-lo}", f"s_cbranch_scc0 {lab}",
               f"buffer_load_dword v255, v18, s[{SWQ}:{SWQ+3}], 0 offen"]
        if lo == 6:
            out += ["s_mov_b32 s12, 393216", f"buffer_load_dword v255, v18, s[{SWQ}:{SWQ+3}], s12 offen"]
        return out + [lab + ":"]

    def startB(self):
        a = self.a
        a("s_setprio 3")
        a("v_mov_b64 v[4:5], 0")
        a("v_and_b32 v2, 3, v0")
        a(f"v_mov_b32 v3, {CNT}")
        a("v_lshl_add_u32 v2, v2, 3, v3")
        a("ds_write_b64 v2, v[4:5]")
        a(f"s_mul_i32 s{sD0}, s8, 80")
        a("s_min_u32 s11, s9, 9")
        a(f"s_lshl3_add_u32 s11, s11, s{sD0}")
        a(f"s_lshl2_add_u32 s{sD0}, s9, s{sD0}")
        a(f"s_sub_u32 s{sD0}, s{sD0}, 48")
        a(f"s_cmp_lt_u32 s{sG}, 3")
        a(f"s_cselect_b32 s{sD0}, s11, s{sD0}")
        a(f"s_and_b32 s10, s{sW}, 3")
        a(f"s_cmp_lt_u32 s{sG}, 2")
        a("s_cbranch_scc1 L_b_P")
        a(f"s_add_u32 s12, s{sD0}, s10")
        a("s_lshl_b32 s82, s12, 8")
        a("v_lshl_add_u32 v9, v0, 2, s82")
        a("s_lshl_b32 s12, s12, 1")
        a("v_mov_b32 v17, s12")
        a("v_mov_b32 v16, 0")
        a("s_mul_i32 s12, s10, 1536")
        a("s_add_u32 s12, s12, s9")
        a("s_sub_u32 s12, s12, 8")
        a("s_lshl_b32 s12, s12, 7")
        a("s_movk_i32 s83, 3072")
        a("v_mov_b32 v18, s12")
        a("v_mad_u32_u24 v18, v0, s83, v18")
        self.kargwait()
        self.srd(SWQ, 18, 819200)
        a(f"s_cmp_eq_u32 s{sG}, 2")
        a("s_cbranch_scc1 L_b_G2")
        a("global_load_short_d16_hi v16, v17, s[40:41]")
        for i, p in enumerate((28, 30, 32, 34, 36, 38)):
            a(f"global_load_dword v{160+i}, v9, s[{p}:{p+1}]")
        a(f"s_cmp_lt_u32 s{sW}, {0 if self.x & {'latet', 'not'} else 6}")
        a("s_cselect_b32 s12, 0, 0x80000000")
        a(f"buffer_load_dword v255, v18, s[{SWQ}:{SWQ+3}], s12 offen")
        self.srds()
        self.kgen()
        a("s_branch L_b_6")
        a.put("L_b_G2")
        if "latet" in self.x:
            a("s_waitcnt vmcnt(0)")
        for ln in [] if "not" in self.x else self.touchW(4, 6) + self.touchW(6, 8):
            a(ln)
        self.srds()
        if "notw" not in self.x:
            a("v_lshlrev_b32 v2, 18, v0")
            a("v_mov_b32 v1, 0")
            for w, R in enumerate((SWS, SU, SWO, SOUT)):
                if w == 3 and "tw2" in self.x:
                    continue
                a(f"s_cmp_eq_u32 s10, {w}")
                if w == 0:
                    a("s_mov_b32 s12, 0x3f000")
                a(f"s_cselect_b32 s12, {'s12' if w == 0 else 0}, 0x80000000")
                if w == 0 and self.debug:
                    a("v_min_u32 v2, 0x5c0000, v2")
                a(f"buffer_load_dword v255, v2, s[{R}:{R+3}], s12 offen sc1")
            a("global_load_dword v255, v1, s[46:47] offset:128 sc1")
        self.attn_setup(True, P=True)
        a("v_mov_b32 v1, 0")
        a(f"v_mov_b32 v2, {QC}")
        a("s_setprio 0")
        a("s_barrier")
        a("s_mov_b32 s82, 0")
        a.put("L_g2w")
        a("s_sleep 8")
        a("ds_read_b32 v3, v2")
        a("s_add_u32 s82, s82, 1")
        a("s_waitcnt lgkmcnt(0)")
        a("v_readfirstlane_b32 s83, v3")
        a("s_cmp_gt_u32 s82, 0x4000")
        a("s_cbranch_scc1 L_g2d")
        a("s_cmp_lt_u32 s83, 8")
        a("s_cbranch_scc1 L_g2w")
        a.put("L_g2d")
        a("global_load_dwordx2 v[12:13], v1, s[46:47] sc1")
        a("s_waitcnt vmcnt(0)")
        self.get_nonce(12, 1)
        a("s_branch L_b_5")
        a.put("L_b_P")
        self.rot(13)
        a("s_mul_i32 s13, s13, 5")
        a("s_add_u32 s13, s13, s10")
        self.kargwait()
        a(f"s_cmp_eq_u32 s{sG}, 0")
        a(f"s_cselect_b32 s{SKV}, s20, s22")
        a(f"s_cselect_b32 s{SKV+1}, s21, s23")
        a(f"s_mov_b32 s{SKV+2}, 25600")
        a(f"s_mov_b32 s{SKV+3}, 0x20000")
        a("s_lshl_b32 s12, s10, 10")
        a(f"s_add_u32 m0, s12, {AUX}")
        for i in range(7):
            a("s_lshl_b32 s12, s13, 10")
            if i == 6:
                a(f"s_cmp_eq_u32 s{sW}, 4")
                a("s_cbranch_scc0 L_pro_kv")
            a(f"buffer_load_dwordx4 v8, s[{SKV}:{SKV+3}], s12 offen lds")
            if i < 6:
                a("s_add_u32 m0, m0, 4096")
                a("s_cmp_ge_u32 s13, 21")
                a("s_cselect_b32 s12, -21, 4")
                a("s_add_u32 s13, s13, s12")
        a("s_cmp_eq_u32 s2, 0")
        a("s_cbranch_scc0 L_pro_kv")
        a("s_memrealtime s[84:85]")
        a("v_mov_b32 v10, 0")
        a("s_waitcnt lgkmcnt(0)")
        a("s_or_b32 s84, s84, 1")
        a("v_mov_b32 v12, s84")
        a("v_mov_b32 v13, s85")
        a("s_mov_b64 exec, 1")
        a("global_store_dwordx2 v10, v[12:13], s[46:47] sc1")
        a("s_mov_b64 exec, -1")
        a.put("L_pro_kv")
        self.srds()
        self.attn_setup(True, zero=False, P=True)
        self.kvjob()
        self.bphaseP()

    def wvoff(self, base, perm, t0=20, nat=None, n0=0, n=5):
        a = self.a
        p, q, c, k = t0, t0 + 1, t0 + 2, t0 + 3
        a("s_mov_b32 s82, 0xcccd")
        a("s_movk_i32 s83, 1280")
        for i in range(n0, n):
            a(f"v_add_u32 v{p}, {64*i}, v0")
            a(f"v_mul_u32_u24 v{q}, s82, v{p}")
            a(f"v_lshrrev_b32 v{q}, 19, v{q}")
            a(f"v_mul_u32_u24 v{c}, 10, v{q}")
            a(f"v_sub_u32 v{c}, v{p}, v{c}")
            a(f"v_lshlrev_b32 v{c}, 4, v{c}")
            if nat:
                a(f"v_mad_u32_u24 v{nat+i}, v{q}, s83, v{c}")
            if perm:
                a(f"v_and_b32 v{k}, 1, v{q}")
                a(f"v_bfe_u32 v{p}, v{q}, 1, 2")
                a(f"v_lshl_add_u32 v{k}, v{k}, 2, v{p}")
                a(f"v_and_b32 v{q}, 24, v{q}")
                a(f"v_add_u32 v{q}, v{q}, v{k}")
            a(f"v_mad_u32_u24 v{base+i}, v{q}, s83, v{c}")

    def kgen(self):
        a = self.a
        R0, T, CV, H, D = 32, 64, 72, 80, 112
        FL0, FL1, FH0, FH1 = 176, 192, 208, 224
        Z1, Z8, Z256, WW, B16 = 24, R0 + 2, 22, 20, 30
        TA, KA = 128, (2, 3, 6, 7)
        BIAS = 57344
        self.attn_setup(True, zero=False)
        a(f"s_mul_i32 s11, s10, {KGS}")
        a(f"s_add_u32 m0, s11, {KGB-BIAS}")
        a(f"s_add_u32 s11, s11, {KGB}")
        a("v_and_b32 v45, 15, v0")
        a("v_lshrrev_b32 v46, 4, v0")
        a("v_mul_u32_u24 v27, 0x110, v45")
        a("v_lshl_add_u32 v27, v46, 4, v27")
        a("v_add_u32 v27, s11, v27")
        a("s_add_u32 s11, s11, 16")
        a("v_max_u32 v47, 1, v46")
        a("v_cmp_gt_u32 vcc, 2, v46")
        a("v_add_u32 v47, -1, v47")
        a("v_lshrrev_b32 v47, v47, 16")
        a("v_cndmask_b32 v48, 8, 3, vcc")
        a("v_cmp_eq_u32 vcc, 3, v46")
        a("v_lshlrev_b32 v48, v48, v46")
        a(f"v_mad_u32_u24 v{TA}, v45, v47, v48")
        a(f"v_add_u32 v{TA}, s11, v{TA}")
        a("v_cndmask_b32 v48, 2, 64, vcc")
        a(f"v_lshl_add_u32 v{TA+1}, v48, 1, v{TA}")
        a(f"v_lshl_add_u32 v{TA+2}, v47, 4, v{TA}")
        a(f"v_lshl_add_u32 v{TA+3}, v47, 4, v{TA+1}")
        a(f"v_lshlrev_b32 v{TA+4}, 6, v45")
        a(f"v_lshl_add_u32 v{TA+4}, v46, 3, v{TA+4}")
        a(f"v_add_u32 v{TA+4}, s11, v{TA+4}")
        a("s_sub_u32 s12, s11, 4")
        a(f"v_mov_b32 v{TA+5}, s12")
        a("s_add_u32 s12, s11, 508")
        a(f"v_lshl_add_u32 v{TA+6}, v0, 2, s12")
        a(f"v_lshl_add_u32 v{TA+7}, v0, 3, v{TA+5}")
        a(f"v_mov_b32 v{TA+8}, 0x03020302")
        a("v_cmp_eq_u32 vcc, 0, v0")
        a("v_mov_b32 v53, 0x01000302")
        a(f"s_mul_i32 s11, s10, {KCS}")
        a(f"s_add_u32 s11, s11, {KC}")
        a(f"v_cndmask_b32 v{TA+8}, v{TA+8}, v53, vcc")
        a("v_lshlrev_b32 v48, 5, v0")
        a("s_add_u32 s12, s11, 2016")
        a(f"v_sub_u32 v{KA[0]}, s12, v48")
        a("s_add_u32 s12, s11, 3056")
        a(f"v_sub_u32 v{KA[1]}, s12, v8")
        a("v_lshlrev_b32 v50, 3, v0")
        a("s_add_u32 s12, s11, 3576")
        a(f"v_sub_u32 v{KA[2]}, s12, v50")
        a("v_bfe_u32 v51, v0, 4, 1")
        a("v_mul_u32_u24 v51, 0x1040, v51")
        a("v_lshl_add_u32 v51, v45, 2, v51")
        a(f"v_add_u32 v{KA[3]}, s11, v51")
        l2e_hi = f2u(LOG2E)
        l2e_lo = f2u(LOG2E - struct.unpack("<f", struct.pack("<I", l2e_hi))[0])
        a(f"s_mov_b32 s8, {l2e_hi:#x}")
        a(f"s_mov_b32 s9, {l2e_lo:#x}")
        a("v_mov_b32 v1, 0")
        a("v_mov_b32 v26, 0x3f80")
        a("s_barrier")
        a(f"s_setprio {self.kprio}")
        self.stamp("Bset")
        a("s_waitcnt vmcnt(1)")
        self.stamp("param")
        a(f"s_lshl_b32 s12, s{sD0}, 1")
        a("s_load_dwordx2 s[92:93], s[42:43], s12")
        for ln in [] if "not" in self.x else (self.touchW(4, 6) if "latet" in self.x else []) + self.touchW(6, 8):
            a(ln)
        k0 = len(a.lines)
        a("v_mul_f32 v28, s8, v16")
        a("v_fma_f32 v29, v16, s8, -v28")
        a("v_fmac_f32 v29, s9, v16")
        a("v_exp_f32 v28, v28")
        a(f"v_mul_f32 v29, {f2u(0.6931471805599453):#x}, v29")
        a("v_fma_f32 v28, v28, v29, v28")
        a("v_cvt_pk_bf16_f32 v28, v28, v28")
        a("v_lshlrev_b32 v28, 16, v28")
        r = lambda j: R0 + 2 * j
        h = lambda j: H + 2 * j
        st = dict(cv=0)

        def put(rows):
            w = []
            for j, src in rows:
                if src is None:
                    w.append((j, 26))
                    continue
                c = CV + st["cv"] % 8
                st["cv"] += 1
                a(f"v_cvt_pk_bf16_f32 v{c}, v{src}, v{src+1}")
                w.append((j, c))
            for j, c in w:
                a(f"ds_write_addtid_b32 v{c} offset:{BIAS+272*j}")

        def get(F):
            for sidx in range(4):
                a(f"ds_read_b128 {v(F+4*sidx,4)}, v27 offset:{64*sidx}")

        def mm(first):
            out = []
            for k, (A, B) in enumerate(((FH0, FL0), (FH0, FL1), (FL0, FH1), (FL1, FH1))):
                for sidx in range(4):
                    c = "0" if first and sidx == 0 else v(D + 4 * k, 4)
                    out.append(f"v_mfma_f32_16x16x32_bf16 {v(D+4*k,4)}, {v(A+4*sidx,4)}, {v(B+4*sidx,4)}, {c}")
            return out
        for half in range(2):
            k1 = len(a.lines)
            for i in range(6):
                a(f"v_lshlrev_b32 v{10+i}, 16, v{160+i}" if half == 0 else f"v_and_b32 v{10+i}, 0xffff0000, v{160+i}")
            for i in range(4):
                a(f"v_mul_f32 v{10+i}, v28, v{10+i}")
            a("v_mul_f32 v10, s8, v10")
            a("v_mul_f32 v11, 0.15915494, v11")
            tt = (40, 44, 48)
            for p, t in zip((8, 256), tt):
                a(f"v_mul_f32 v{t}, {f2u(float(p)):#x}, v10")
                a(f"v_mul_f32 v{t+1}, {f2u(float(p)):#x}, v11")
            a(f"v_fract_f32 v{tt[2]+1}, v11")
            a(f"v_fract_f32 v{tt[0]+1}, v{tt[0]+1}")
            a(f"v_fract_f32 v{tt[1]+1}, v{tt[1]+1}")
            a(f"v_exp_f32 v{tt[2]}, v10")
            a(f"v_exp_f32 v{tt[0]}, v{tt[0]}")
            a(f"v_exp_f32 v{tt[1]}, v{tt[1]}")
            for t in tt:
                a(f"v_cos_f32 v{t+2}, v{t+1}")
                a(f"v_sin_f32 v{t+3}, v{t+1}")
            if half:
                body = a.lines[k1:]
                del a.lines[k1:]
                pend = mm(True)
                for n, ln in enumerate(body):
                    if n == 4:
                        a("s_waitcnt lgkmcnt(9)")
                    if n == 18:
                        a("s_waitcnt lgkmcnt(0)")
                    if (4 <= n < 18 and n % 2 == 0 or n >= 18) and pend:
                        a(pend.pop(0))
                    a(ln)
                assert not pend
            self.cmuls([(WW, 14, 12)])
            for Z, t in zip((Z8, Z256, Z1), tt):
                a(f"v_mul_f32 v{Z}, v{t+2}, v{t}")
                a(f"v_mul_f32 v{Z+1}, v{t+3}, v{t}")
            a(f"v_xor_b32 v{WW+1}, 0x80000000, v{WW+1}")
            self.cmuls([(r(2), r(1), r(1))])
            self.cmuls([(r(3), r(2), r(1)), (r(4), r(2), r(2))])
            put([(0, None), (1, r(1)), (2, r(2)), (3, r(3)), (4, r(4))])
            self.cmuls([(r(4 + i), r(4), r(i)) for i in range(1, 5)])
            put([(4 + i, r(4 + i)) for i in range(1, 5)])
            self.cmuls([(r(8 + i), r(8), r(i)) for i in range(1, 5)])
            put([(8 + i, r(8 + i)) for i in range(1, 5)])
            self.cmuls([(r(8 + i), r(8), r(i)) for i in range(5, 8)] + [(B16, r(8), r(8))])
            put([(8 + i, r(8 + i)) for i in range(5, 8)])
            get(FL0)
            for g4 in range(4):
                js = [j for j in range(4 * g4, 4 * g4 + 4) if j]
                self.cmuls([(T + 2 * (j % 4), r(j), B16) for j in js])
                put(([(0, B16)] if g4 == 0 else []) + [(j, T + 2 * (j % 4)) for j in js])
            get(FL1)
            for g4 in range(2):
                for j in range(4 * g4, 4 * g4 + 4):
                    self.cmuls([(h(j), h(j - 1) if j else WW, Z1)], conj=True)
                put([(j, h(j)) for j in range(4 * g4, 4 * g4 + 4)])
            self.cmuls([(h(8), h(1), Z256), (h(9), h(3), Z256), (h(10), h(5), Z256), (h(11), h(7), Z256)], conj=True)
            put([(j, h(j)) for j in range(8, 12)])
            self.cmuls([(h(12), h(9), Z256), (h(13), h(11), Z256)], conj=True)
            self.cmuls([(h(14), h(12), Z256), (h(15), h(13), Z256)], conj=True)
            put([(j, h(j)) for j in range(12, 16)])
            get(FH0)
            for j in range(4):
                self.cmuls([(T + 2 * j, T + 2 * j - 2 if j else h(15), Z256)], conj=True)
            self.kpk = len(a.lines) - k0
            self.stamp(f"kh{half}")
            put([(j, T + 2 * j) for j in range(4)] + [(4, WW)])
            get(FH1)
        self.kleft = 0
        a("global_load_dwordx2 v[12:13], v1, s[46:47] sc1")
        m = mm(False)
        a("s_waitcnt lgkmcnt(9)")
        for ln in m[:8]:
            a(ln)
        a("s_waitcnt lgkmcnt(0)")
        for ln in m[8:]:
            a(ln)
        sel = dict(cc=0x07060706, bb=0x05040504, aa=0x03020302, ba=0x03020504, cb=0x05040706)
        sreg = {}
        for i, (k, x) in enumerate(sel.items()):
            sreg[k] = 8 + i if i < 2 else 13 + i - 2
            a(f"s_mov_b32 s{sreg[k]}, {x:#x}")
        for i in range(8):
            a(f"v_cvt_pk_bf16_f32 v{32+i}, v{D+2*i}, v{D+2*i+1}")
            if i < 4:
                a(f"ds_write_b32 v{TA+i}, v{32+i}")
        a(f"v_cvt_pk_bf16_f32 v49, 0, v{D+8}")
        a(f"ds_write_b64 v{TA+4}, v[36:37] offset:1024")
        a(f"ds_write_b64 v{TA+4}, v[38:39] offset:1056")
        a("s_mov_b64 exec, 16")
        a(f"ds_write_b32 v{TA+5}, v49")
        a("s_mov_b64 exec, -1")
        a(f"ds_read2_b32 v[54:55], v{TA+6} offset0:128 offset1:129")
        a(f"ds_read2_b32 v[56:57], v{TA+6} offset0:64 offset1:65")
        a(f"ds_read2_b32 v[58:59], v{TA+6} offset0:0 offset1:1")
        a(f"ds_read2_b32 v[60:61], v{TA+7} offset0:0 offset1:1")
        a(f"ds_read_b32 v62, v{TA+7} offset:8")
        self.ozero()
        a("s_waitcnt lgkmcnt(0)")

        def perms(dst, pat, d0):
            for i, k in enumerate(pat):
                a(f"v_perm_b32 v{dst+i}, v{d0+1}, v{d0}, s{sreg[k]}")
        perms(224, ["cc", "cc", "bb", "bb", "bb", "ba", "aa", "aa"], 54)
        perms(232, ["cc", "cb", "bb", "bb", "bb", "aa", "aa", "aa"], 54)
        perms(196, ["cc", "bb", "ba", "aa"], 56)
        perms(200, ["cb", "bb", "aa", "aa"], 56)
        perms(204, ["cb", "aa"], 58)
        perms(206, ["ba"], 58)
        a(f"v_perm_b32 v207, v59, v58, v{TA+8}")
        a(f"v_perm_b32 v208, v62, v61, s{sreg['ba']}")
        a(f"v_perm_b32 v209, v61, v60, s{sreg['ba']}")
        a("v_alignbit_b32 v210, v61, v61, 16")
        a("v_alignbit_b32 v211, v60, v60, 16")
        self.klen = len(a.lines) - k0
        self.stamp("kend")
        a("s_waitcnt vmcnt(0)")
        self.get_nonce(12, 1)

    def kvjob(self):
        a = self.a
        a("v_and_b32 v20, 31, v0")
        a("v_lshrrev_b32 v21, 5, v0")
        a("v_and_b32 v22, 0x13, v20")
        a("v_bfe_u32 v23, v20, 2, 1")
        a("v_lshl_or_b32 v22, v23, 3, v22")
        a("v_bfe_u32 v23, v20, 3, 1")
        a("v_lshl_or_b32 v22, v23, 2, v22")
        a(f"s_cmp_eq_u32 s{sG}, 1")
        a("s_cselect_b64 vcc, -1, 0")
        a("v_cndmask_b32 v20, v20, v22, vcc")
        a(f"s_and_b32 s10, s{sW}, 1")
        a(f"s_bfe_u32 s11, s{sW}, 0x10001")
        a("v_and_b32 v22, 15, v20")
        a("v_xor_b32 v22, v22, v21")
        a("v_lshlrev_b32 v22, 4, v22")
        a("v_lshl_or_b32 v22, v20, 8, v22")
        a("s_lshl_b32 s12, s10, 13")
        a("s_lshl_b32 s13, s11, 7")
        a("s_or_b32 s12, s12, s13")
        a("v_xor_b32 v10, s12, v22")
        for k in range(1, 4):
            a(f"v_xor_b32 v{10+k}, {32*k}, v10")
        a("v_bfe_u32 v22, v0, 2, 2")
        a("v_lshl_add_u32 v22, v21, 3, v22")
        a("v_mul_u32_u24 v22, 40, v22")
        a("v_bfe_u32 v23, v0, 4, 1")
        a("v_and_b32 v24, 3, v0")
        a("v_lshl_add_u32 v23, v23, 2, v24")
        a("v_min_u32 v23, 4, v23")
        a("v_lshl_add_u32 v22, v23, 3, v22")
        a("s_mul_i32 s12, s11, 2560")
        a(f"s_add_u32 s12, s12, {AUX}")
        a("v_add_u32 v14, s12, v22")
        a("s_waitcnt vmcnt(0) lgkmcnt(0)")
        a("s_barrier")
        self.stamp("Bk0")
        a(f"s_cmp_eq_u32 s{sG}, 1")
        a("s_cbranch_scc1 L_kv_V")
        ACC = 80
        for isV in (0, 1):
            if isV:
                a.put("L_kv_V")
            lg = LG(a, "lgkmcnt", 15)

            def issue(n, x=True, w=True):
                b, ks = divmod(n, 4)
                if x:
                    if n == 16:
                        for k in range(4):
                            a(f"v_add_u32 v{10+k}, 0x10000, v{10+k}")
                    a(f"ds_read_b128 {v(xf(n),4)}, v{10+ks} offset:{16384*(b%4)}")
                    lg.issue(n)
                if w:
                    a(f"ds_read_b64_tr_b16 {v(wf(n),2)}, v14 offset:{5120*b+640*ks}")
                    a(f"ds_read_b64_tr_b16 {v(wf(n)+2,2)}, v14 offset:{5120*b+640*ks+160}")
                    for _ in range(2):
                        lg.issue(n if x else "w")
            n1 = 4 * self.kb
            xf = lambda n: 16 + 8 * (n % 6) if n < n1 else 160 + 4 * (n - n1)
            wf = lambda n: 20 + 8 * (n % 6) if n < n1 else 96 + 4 * (n - n1)
            late = list(range(n1, 20))
            for n in range(5):
                issue(n)
            for n in range(20):
                if n == n1:
                    a("s_barrier")
                    self.stamp("B0")
                    for m in range(n1, 20):
                        issue(m, w=False)
                lg.wait(n)
                A, B = (xf(n), wf(n)) if isV else (wf(n), xf(n))
                a(f"v_mfma_f32_32x32x16_bf16 {v(ACC,16)}, {v(A,4)}, {v(B,4)}, {'0' if n == 0 else v(ACC,16)}")
                if n + 5 < n1:
                    issue(n + 5)
                elif n < n1:
                    for _ in range(-(-len(late) // (n1 - n))):
                        issue(late.pop(0), x=False)
            if not isV:
                a("s_branch L_kv_d")
        a.put("L_kv_d")
        a("s_lshl_b32 s12, s10, 12")
        a(f"s_add_u32 s12, s12, {KVP}")
        a("v_add_u32 v15, s12, v8")
        a(f"s_cmp_lt_u32 s{sW}, 6")
        a("s_cbranch_scc1 L_p_fin")
        a.nop(10)
        for i in range(4):
            a(f"ds_write_b128 v15, {v(ACC+4*i,4)} offset:{1024*i}")
        a("s_waitcnt lgkmcnt(0)")
        a("s_barrier")
        a("v_mov_b32 v1, 0")
        a("global_load_dwordx2 v[12:13], v1, s[46:47] sc1")
        self.ozero()
        a("s_waitcnt vmcnt(0)")
        self.get_nonce(12, 1)
        a("s_branch L_b_5")

    def qsetup(self):
        a = self.a
        XA, WA = 64, 72
        a("v_and_b32 v20, 31, v0")
        a("v_lshrrev_b32 v21, 5, v0")
        a("v_and_b32 v22, 15, v20")
        a("v_xor_b32 v22, v22, v21")
        a("v_lshlrev_b32 v22, 4, v22")
        a(f"v_lshl_or_b32 v{XA}, v20, 8, v22")
        for k in range(1, 8):
            a(f"v_xor_b32 v{XA+k}, {32*k}, v{XA}")
        a("v_bfe_u32 v22, v0, 2, 2")
        a("v_lshlrev_b32 v22, 1, v22")
        a("v_lshl_add_u32 v22, v21, 3, v22")
        a("v_mul_u32_u24 v22, 0xa0, v22")
        a("v_bfe_u32 v23, v0, 4, 1")
        a("v_and_b32 v24, 3, v0")
        a("v_lshl_add_u32 v23, v23, 2, v24")
        a("v_min_u32 v23, 4, v23")
        a("v_lshl_add_u32 v22, v23, 3, v22")
        a(f"s_mul_i32 s12, s{sW}, 40")
        a(f"s_add_u32 s12, s12, {WL}")
        a(f"v_add_u32 v{WA}, s12, v22")
        a(f"v_add_u32 v{WA+1}, {WOFF[1]}, v{WA}")
        a(f"v_mov_b32 v74, {QC}")
        a("v_mov_b32 v76, 1")
        a("v_mov_b32 v77, 0x100")
        a("v_min_u32 v78, 1, v0")
        a("v_lshl_add_u32 v78, v78, 15, v74")
        a("v_mov_b32 v1, 0")
        self.srds()
        self.setupA()

    def qgemm(self, kv):
        a = self.a
        XA, WA, RG = 64, 72, 168
        lg = LG(a, "lgkmcnt", 15)
        vm = LG(a, "vmcnt", 63)
        for p in range(2):
            for _ in range(5 if kv else (9, self.n1)[p]):
                vm.issue(p)

        def arrive(r):
            a(f"ds_add_u32 v78, v{r}")
            lg.issue("a")

        def peek():
            a("ds_read_b32 v75, v74")
            lg.issue("c")

        def check(field, target, again=False):
            lab = a.label("Lck")
            if not again and "c" in lg.q:
                lg.wait("c")
            t = [f"v_cmp_gt_u32_sdwa vcc, {target}, v75 src0_sel:DWORD src1_sel:BYTE_{0 if field == 0x60000 else 1}"]
            for ln in t:
                a(ln)
            a(f"s_cbranch_vccnz {lab}s")
            a.put(lab)
            self.stubs += [lab + "s:", "ds_read_b32 v75, v74", "s_add_u32 s82, s82, 1", "s_waitcnt lgkmcnt(0)"] + t + [
                f"s_cbranch_vccz {lab}", "s_cmp_lt_u32 s82, 0x40000", f"s_cbranch_scc1 {lab}s", f"s_branch {lab}"]

        def issue(n, hs=(0, 1)):
            c, ks = divmod(n, 8)
            wreg = WA + 1 if WOFF[c] > 40000 else WA
            woff = 0 if WOFF[c] > 40000 else WOFF[c]
            F = RG + 12 * (n % 6)
            for h in hs:
                if c == 4 and h == 0:
                    a(f"v_add_u32 v{XA+ks}, 0x10000, v{XA+ks}")
                a(f"ds_read_b64_tr_b16 {v(F+2*h,2)}, v{wreg} offset:{woff+2560*ks+160*h}")
                a(f"ds_read_b128 {v(F+4+4*h,4)}, v{XA+ks} offset:{16384*(c%4)+8192*h}")
                for _ in range(2):
                    lg.issue(n)
        if not kv:
            a(f"s_waitcnt vmcnt({len(vm.q)})")
        for ln in self.setupA2():
            a(ln)
        a(f"s_mov_b32 s10, {f2u(LOG2E / 20 ** 0.5):#x}")
        a(f"s_mul_i32 s13, s{sW}, 2560")
        a(f"s_add_u32 s13, s13, {QP}")
        a("v_add_u32 v12, s13, v8")
        a("v_lshl_add_u32 v13, v0, 3, s13")
        if "fstr" in self.x:
            a("v_lshrrev_b32 v18, 1, v0")
            a("v_lshlrev_b32 v18, 7, v18")
            a("v_and_b32 v19, 1, v0")
            a("v_lshl_add_u32 v18, v19, 4, v18")
        else:
            a("v_lshlrev_b32 v18, 8, v0")
        a(f"s_and_b32 s13, s2, {self.nrep-1}")
        a("s_lshl_b32 s13, s13, 14")
        a(f"s_cmp_eq_u32 s{sW}, 0")
        a(f"s_cselect_b32 s13, s13, 0x80000000")
        a(f"s_add_u32 s13, s13, {FLG_KV}")
        a("s_getreg_b32 s97, hwreg(HW_REG_XCC_ID, 0, 4)")
        a("s_lshl_b32 s97, s97, 28")
        if kv:
            a("s_barrier")
        vm.wait(0)
        self.stamp("ownld")
        arrive(76)
        self.qspin(4, 74, mask=63)
        a("s_mov_b32 s82, 0")
        lg.all()
        self.stamp("B1")
        for n in range(3):
            issue(n)
        X = lambda p: [] if kv else [(p, self.xdma(p, m)) for m in range(4)]
        W = lambda p: [(p, self.wdma(p, i)) for i in range(5)]
        if not kv:
            for k in range(self.n1, 9):
                for ln in (self.xdma(1, k) if k < 4 else self.wdma(1, k - 4)):
                    a(ln)
                vm.issue(1)
        La, Lp = self.lpos
        sp = {}
        for c in range(5):
            if c < 4:
                sp[16 * c + 2 * La + 1] = ("L", c)
                sp[16 * c + 2 * Lp + 1] = ("p",)
                sp[16 * c + 10] = ("c", 0x60000, 4 * (c + 2), c)
            if c != 4:
                sp[16 * c + 9] = ("F",) if Lp != 4 else ("Fp",)
            if c < 2:
                sp[16 * c + 11] = ("p",)
                sp[16 * c + 15] = ("c", 0x80008, 4 * (c + 1), None)
        sp[68] = ("p",)
        sp[72] = ("c", 0x80008, 16, None)
        PR = (20, 124, 128)[:self.np]
        if "fstr" in self.x:
            poll = lambda r: [f"buffer_load_dwordx4 {v(r,4)}, v18, s[{SWS}:{SWS+3}], s13 offen sc1"]
        else:
            poll = lambda r: [f"buffer_load_dwordx2 {v(r+2*e,2)}, v18, s[{SWS}:{SWS+3}], s13 offen offset:{128*e} sc1" for e in range(2)]
        q = []
        for g in range(80):
            n, h = divmod(g, 2)
            if g == (self.wd if kv else 0):
                q += X(2) + W(2) + X(3)
            if g == 16:
                q += W(3) + X(4)
            if g == 32:
                q = W(4) + q + [(4, [None, None, "global_load_dwordx2 v[16:17], v1, s[46:47] sc1"])]
            for k, r in enumerate(PR):
                if g == self.gl - self.psp * (self.np - k):
                    q += [(5, [None, None, y]) for y in poll(r)]
            F = RG + 12 * (n % 6)
            if h == 0 and n in lg.q:
                lg.wait(n)
            D = v(32 + 16 * h, 16)
            a(f"v_mfma_f32_32x32x16_bf16 {D}, {v(F,4)}, {v(F+4+4*h,4)}, {'0' if n == 0 else D}")
            x = sp.get(g)
            d = q.pop(0) if q and (not x or x[0] == "p") else None
            if x and x[0] == "c":
                check(x[1], x[2])
                if g == 58:
                    check(0x80008, 12, True)
                if "qst" in self.x and x[3] is not None:
                    self.stamp(f"B{2+x[3]}")
            if d and d[1][0]:
                a(d[1][0])
            if n + 3 < 40:
                issue(n + 3, (h,))
            elif d and d[1][0]:
                a(d[1][1])
            if d:
                a(d[1][2])
                vm.issue(d[0])
            if g == self.gl:
                assert not q and g >= 58
                self.get_nonce(16, 1)
                lp, dn, ot, go = a.label("Lpk"), a.label("Lpkd"), a.label("Lpko"), a.label("Lpkg")
                a(f"s_cmp_eq_u32 s{sW}, 0")
                a(f"s_cbranch_scc0 {ot}")
                a("v_mov_b32 v76, 64")
                if "ack" in self.x:
                    self.stamp("p0")
                    a("s_waitcnt vmcnt(0)")
                    self.stamp("p1")
                a("s_mov_b32 s82, 0")
                a.put(lp)
                for r in PR:
                    a(f"s_waitcnt vmcnt({(self.np-1)*len(poll(r))})")
                    a(f"v_cmp_eq_u64 vcc, s[{sN}:{sN+1}], {v(r,2)}")
                    a(f"v_cmp_eq_u64 s[84:85], s[{sN}:{sN+1}], {v(r+2,2)}")
                    a("s_add_u32 s82, s82, 1")
                    a("s_and_b64 vcc, vcc, s[84:85]")
                    a("s_cmp_eq_u64 vcc, -1")
                    a(f"s_cbranch_scc1 {dn}")
                    if self.psl:
                        a(f"s_sleep {self.psl}")
                    for y in poll(r):
                        a(y)
                a("s_cmp_lt_u32 s82, 40000")
                a(f"s_cbranch_scc1 {lp}")
                a.put(dn)
                a("ds_add_u32 v78, v76")
                if "ack" in self.x and self.stamps:
                    if "npoll" not in STN:
                        STN.append("npoll")
                    a("v_readlane_b32 s83, v254, 0")
                    a("s_nop 3")
                    a("s_mul_i32 s82, s82, 100")
                    a("s_add_u32 s83, s83, s82")
                    a(f"v_writelane_b32 v254, s83, {STN.index('npoll')}")
                    a(f"v_writelane_b32 v253, s88, {STN.index('npoll')}")
                for ln in self.kvdma(0, -1)[2:-1]:
                    a(ln)
                a("s_waitcnt lgkmcnt(0)")
                a(f"s_branch {go}")
                a.put(ot)
                self.qspin(64, 74, mask=255, sleep=1)
                a.put(go)
                lg.all()
                self.stamp("kvseen")
                a("s_mov_b32 s82, 0")
                q += [(6, [f"s_add_u32 m0, s51, {4096*i}", "s_nop 0",
                           f"buffer_load_dwordx4 v8, s[{SWS}:{SWS+3}], m0 offen sc1 lds"]) for i in range(10)]
            if x and x[0] == "L":
                assert all(y[0] != x[1] + 1 for y in q)
                vm.wait(x[1] + 1)
                arrive(76)
            if x and x[0][0] == "F":
                arrive(77)
            if x and x[0][-1] == "p":
                peek()
        for d in q:
            for ln in d[1]:
                a(ln)

    def qfinish(self):
        a = self.a
        a(f"s_xor_b32 s97, s97, s{sN+1}")
        a(f"s_mov_b32 s96, s{sN}")
        a("v_mov_b64 v[4:5], -1")
        a("v_mov_b64 v[6:7], -1")
        a("v_mov_b32 v14, s96")
        a("v_mov_b32 v15, s97")
        a("s_nop 0")
        for T, O in ((0, 32), (1, 48)):
            for r in range(12):
                a(f"v_mul_f32 v{O+r}, s10, v{O+r}")
            for q in range(4):
                a(f"v_cvt_pk_bf16_f32 v{112+4*T+q}, v{O+2*q}, v{O+2*q+1}")
            a(f"ds_write_b128 v12, {v(112+4*T,4)} offset:{1024*T}")
            for q in range(2):
                a(f"v_cvt_pk_bf16_f32 v{120+2*T+q}, v{O+8+2*q}, v{O+9+2*q}")
        a("s_nop 1")
        a("v_permlane32_swap_b32 v120, v122")
        a("v_permlane32_swap_b32 v121, v123")
        a("ds_write_b64 v13, v[120:121] offset:2048")
        self.stamp("Qdone")

    def bphaseP(self):
        a = self.a
        a.put("L_p_fin")
        a("v_mov_b32 v1, 0")
        a("global_load_dwordx2 v[12:13], v1, s[46:47] sc1")
        a(f"s_mul_i32 s12, s{sT}, {BLK}")
        a("v_and_b32 v40, 31, v0")
        a("v_lshrrev_b32 v41, 5, v0")
        a("v_bfrev_b32 v44, 1")
        a(f"s_cmp_eq_u32 s{sG}, 1")
        a("s_cbranch_scc1 L_b_PV")
        a("s_lshl_b32 s13, s10, 10")
        a("s_add_u32 s13, s13, s12")
        a("v_lshlrev_b32 v42, 3, v0")
        a("v_cmp_gt_u32 vcc, 32, v0")
        a("s_lshl_b32 s14, s10, 8")
        a("s_add_u32 s14, s14, s12")
        a("v_cndmask_b32 v42, v44, v42, vcc")
        a("s_barrier")
        self.stamp("B1")
        for i in range(4):
            a(f"ds_read_b128 {v(16+4*i,4)}, v15 offset:{1024*i}")
        a("s_waitcnt lgkmcnt(0)")
        for i in range(12):
            a(f"v_add_f32 v{80+i}, v{80+i}, v{16+i}")
        for i in range(6):
            a(f"v_cvt_pk_bf16_f32 v{32+i}, v{80+2*i}, v{80+2*i+1}")
        a(f"buffer_store_dwordx4 v[32:35], v8, s[{SWS}:{SWS+3}], s13 offen sc1")
        a(f"buffer_store_dwordx2 v[36:37], v42, s[{SWS}:{SWS+3}], s14 offen offset:2048 sc1")
        a("s_branch L_p_2")
        a.put("L_b_PV")
        a("s_mul_i32 s13, s10, 1344")
        a("s_add_u32 s13, s13, s12")
        a("v_mul_u32_u24 v42, 0x150, v41")
        a("v_lshl_add_u32 v42, v40, 4, v42")
        a("v_cmp_gt_u32 vcc, 21, v40")
        a("v_mov_b32 v43, 0x3f803f80")
        a("s_nop 0")
        a("v_cndmask_b32 v42, v44, v42, vcc")
        a("v_cmp_eq_u32 vcc, 20, v40")
        a("s_barrier")
        self.stamp("B1")
        for i in range(4):
            a(f"ds_read_b128 {v(16+4*i,4)}, v15 offset:{1024*i}")
        a("s_waitcnt lgkmcnt(0)")
        for i in range(16):
            a(f"v_add_f32 v{80+i}, v{80+i}, v{16+i}")
        for i in range(8):
            a(f"v_cvt_pk_bf16_f32 v{32+i}, v{80+2*i}, v{80+2*i+1}")
        for i in range(8):
            a(f"v_cndmask_b32 v{32+i}, v{32+i}, v43, vcc")
        a(f"buffer_store_dwordx4 v[32:35], v42, s[{SWS}:{SWS+3}], s13 offen offset:2560 sc1")
        a(f"buffer_store_dwordx4 v[36:39], v42, s[{SWS}:{SWS+3}], s13 offen offset:3232 sc1")
        a.put("L_p_2")
        self.stamp("kvst")
        fs = (7, 4, 3) if "fstr" in self.x else (9, 8, 7)
        a(f"s_lshl_b32 s12, s{sT}, {fs[0]}")
        a(f"s_lshl_b32 s13, s{sG}, {fs[1]}")
        a("s_add_u32 s12, s12, s13")
        a(f"s_lshl_b32 s13, s10, {fs[2]}")
        a("s_add_u32 s12, s12, s13")
        a(f"s_add_u32 s12, s12, {FLG_KV}")
        self.ozero()
        a("v_lshlrev_b32 v40, 14, v0")
        a("s_waitcnt vmcnt(0)")
        self.get_nonce(12, 1)
        a(f"s_mov_b64 exec, {hex((1 << self.nrep) - 1) if self.nrep < 32 else 's[82:83]'}" if self.nrep < 32 else "s_mov_b32 exec_hi, 0")
        a(f"buffer_store_dwordx2 v[12:13], v40, s[{SWS}:{SWS+3}], s12 offen sc1")
        a("s_mov_b64 exec, -1")
        self.stamp("kvflag")
        if "ack" in self.x:
            a("s_waitcnt vmcnt(0)")
            self.stamp("kvack")

    def bphase1(self):
        a = self.a
        a.put("L_b_5")
        for r in (2, 3, 6, 7):
            a(f"v_mov_b32 v{r}, 0x30000")
        a.put("L_b_6")
        a(f"s_and_b32 s10, s{sW}, 3")
        a("s_mul_i32 s13, s10, 2560")
        a(f"s_add_u32 s13, s13, {QP}")
        a("v_add_u32 v12, s13, v8")
        a("v_lshl_add_u32 v13, v0, 3, s13")
        self.stamp("B6")

    def kvdma(self, c, i):
        if i < 0:
            lab = self.a.label("Lx")
            return [f"s_cmp_eq_u32 s{sW}, 0", f"s_cbranch_scc0 {lab}",
                    f"s_mov_b32 m0, {SLOT*(c%3)+40960}", f"s_mov_b32 s12, {SLOT*c+40960}",
                    f"buffer_load_dwordx4 v8, s[{SWS}:{SWS+3}], s12 offen sc1 lds", lab + ":"]
        return [f"s_add_u32 m0, s51, {SLOT*(c%3)+8192*i}", f"s_add_u32 s12, s51, {SLOT*c+8192*i}",
                f"buffer_load_dwordx4 v8, s[{SWS}:{SWS+3}], s12 offen sc1 lds"]

    def ozero(self):
        for r in range(16):
            self.a(f"v_mov_b64 {v(80+2*r,2)}, 0")

    def attn_setup(self, isB, zero=True, P=False):
        a = self.a
        O0 = 80
        IDX, AK16, AK4, AV = 144, 145, 148, 151
        UOFF, USW, USR, UTW, UTZ = 155, 156, 157, 158, 159
        a(f"s_lshl_b32 s51, s{sW}, 10")
        kh = BLK if isB else 0
        a(f"v_add_u32 v{AK16}, {kh}, v8" if kh else f"v_mov_b32 v{AK16}, v8")
        a(f"v_lshlrev_b32 v{AK4}, 3, v0")
        a(f"v_add_u32 v{AK4}, {kh+2048}, v{AK4}")
        a("v_and_b32 v60, 31, v0")
        a("v_cmp_lt_u32 vcc, 20, v60")
        a("v_lshrrev_b32 v62, 5, v0")
        a("v_mul_u32_u24 v62, 0x150, v62")
        a("v_lshl_add_u32 v61, v60, 4, v62")
        a(f"v_add_u32 v{AV}, {kh+2560}, v61")
        a("v_mov_b32 v61, 0x30000")
        a(f"v_cndmask_b32 v{AV}, v{AV}, v61, vcc")
        for r in (AK16, AK4, AV):
            a(f"v_add_u32 v{r+1}, {SLOT}, v{r}")
            a(f"v_add_u32 v{r+2}, {2*SLOT}, v{r}")
        a(f"v_mov_b32 v{IDX}, 0xdddddddd")
        if zero:
            self.ozero()
        if isB:
            a(f"s_and_b32 s10, s{sW}, 3")
            a(f"s_lshl_b32 s12, s{sD0}, 1")
            if P:
                a("s_load_dwordx4 s[92:95], s[42:43], s12")
                a("s_and_b32 s13, s10, 1")
                a("s_mul_i32 s11, s13, 655360")
                a("s_add_u32 s11, s11, s12")
                a("s_lshr_b32 s14, s10, 1")
                a("s_lshl3_add_u32 s11, s14, s11")
                a("s_cmp_lt_u32 s2, 80")
                a("s_cselect_b32 s11, s11, 0x80000000")
            else:
                a("s_mul_i32 s11, s10, 655360")
                a("s_add_u32 s11, s11, s12")
            a("s_movk_i32 s12, 1280")
            a("v_mov_b32 v1, s11")
            a(f"v_mad_u32_u24 v{UOFF}, v0, s12, v1")
            a("s_lshl_b32 s11, s10, 9")
            a(f"s_add_u32 s11, s11, {USCR}")
            a(f"v_lshl_add_u32 v{USW}, v0, 3, s11")
            a("v_and_b32 v1, 48, v0")
            a("v_and_b32 v2, 3, v0")
            a("v_lshl_add_u32 v1, v2, 2, v1")
            a("v_bfe_u32 v3, v0, 2, 2")
            a("v_add_u32 v1, v1, v3")
            a(f"v_lshl_add_u32 v{USR}, v1, 3, s11")
            uts = UTP if P else UTS
            if P:
                a(f"s_mul_i32 s11, s14, {4*UTP}")
                a("s_lshl_b32 s13, s13, 10")
                a("s_add_u32 s11, s11, s13")
            else:
                a("s_lshl_b32 s11, s10, 10")
            a(f"s_add_u32 s11, s11, {UT+480}")
            a("v_lshrrev_b32 v1, 2, v0")
            a("v_lshl_add_u32 v1, v1, 3, s11")
            a(f"s_movk_i32 s12, {uts}")
            a(f"v_mad_u32_u24 v{UTW}, v2, s12, v1")
            a(f"s_mul_i32 s11, s10, {uts}")
            a(f"s_add_u32 s11, s11, {UT}")
            a("v_min_u32 v1, 59, v0")
            a(f"v_lshl_add_u32 v{UTZ}, v1, 3, s11")
            a(f"v_add_u32 v249, {4*UTP if P else 0}, v{UTZ}")
            a("v_mov_b32 v4, 0")
            a("v_mov_b32 v5, 0")
            self.setupB(P)

    def attention(self, isB):
        a = self.a
        S = (16, 48)
        O0, O1, QA, QB, Q4, K4, K16 = 80, 96, 112, 116, 120, 122, 124
        V = (128, 136)
        IDX, AK16, AK4, AV = 144, 145, 148, 151
        URAW, UTR = 160, 176
        UOFF, USW, USR, UTW, UTZ = 155, 156, 157, 158, 159
        vq = []
        if not isB:
            vq = ["c0"] * 4
        a("s_waitcnt lgkmcnt(0)" if isB else "s_waitcnt vmcnt(4) lgkmcnt(0)")
        a("s_barrier")
        self.stamp("E0")
        self.stop_at("e0")
        if isB:
            a("ds_read_b64 v[120:121], v13 offset:2048")
            a("ds_read_b128 v[112:115], v12")
            a("ds_read_b128 v[116:119], v12 offset:1024")
        lg = LG(a, "lgkmcnt", 15)

        def loc(m):
            c = m >> 3
            return c % 3, 2 * BLK * ((m >> 1) & 3), m & 1

        def rdK16(m):
            sl, off, aa = loc(m)
            a(f"ds_read_b128 {v(K16,4)}, v{AK16+sl} offset:{off+1024*aa}")
            lg.issue(("K16", m))

        def rdK4(m):
            sl, off, aa = loc(m)
            a(f"ds_read_b64 {v(K4,2)}, v{AK4+sl} offset:{off}")
            lg.issue(("K4", m))

        def rdV(m, f):
            sl, off, aa = loc(m)
            a(f"ds_read_b128 {v(V[m&1]+4*f,4)}, v{AV+sl} offset:{off+672*(2*aa+f)}")
            lg.issue(("V", m, f))

        def pv(O, B, Vr):
            if "nopv" in self.x:
                return
            a(f"v_smfmac_f32_32x32x32_bf16 {v(O,16)}, {v(Vr,4)}, {v(B,8)}, v{IDX}")

        def qk4(m, dst):
            if "no2b" in self.x:
                return
            a(f"v_mfma_f32_32x32x4_2b_bf16 {v(dst,32)}, {v(K4,2)}, {v(Q4,2)}, 0 cbsz:1 abid:{m&1}")

        def qk16(dst, Q):
            a(f"v_mfma_f32_32x32x16_bf16 {v(dst,16)}, {v(K16,4)}, {v(Q,4)}, {'0' if 'no2b' in self.x else v(dst,16)}")
        rdK4(0)
        rdK16(0)
        rdV(0, 0)
        rdV(0, 1)
        lg.wait(("K16", 0))
        qk4(0, S[0])
        a.nop(18)
        qk16(S[0], QA)
        qk16(S[0] + 16, QB)
        rdK16(1)
        lg.wait(("V", 0, 1))
        a.nop(10)
        hk = {}

        def hook(n, pos, lines, tag="x"):
            hk.setdefault((n, pos), []).extend(lines)
            if not lines[-1].endswith(":"):
                hk[(n, pos)].extend([("vm", tag)] * sum(ln.startswith(("buffer_", "global_")) for ln in lines))
        for c, n0 in ((1, 0), (2, 2)):
            hook(n0, "a1", self.kvdma(c, -1))
            for i, (n, pos) in enumerate(((0, "a2"), (0, "a5"), (1, "a1"), (1, "a2"), (1, "a5"))):
                hook(n0 + n, pos, self.kvdma(c, i), f"c{c}")
        for i in range(4):
            hook(7 + i, "a5", self.kvdma(3, i), "c3")
        hook(15, "a1w", self.kvdma(3, -1))
        hook(15, "a1", self.kvdma(3, 4), "c3b")
        WS_ = f"s[{SWS}:{SWS+3}]"
        bars = {1: "c0", 5: "st", 14: "all", 22: "c3b" if isB else "all", 30: None if isB else "all"}
        hook(self.tch, "a5", [f"buffer_load_dword v255, v154, s[{SU if isB else SWO}:{(SU if isB else SWO)+3}], 0 offen"])
        ot = [f for f in self.x if f.startswith("ot")]
        if ot and isB:
            hook(7, "a2", [f"v_mul_u32_u24 v255, {81920 if ot[0] == 'ot1' else 1 << 20}, v0" if False else f"s_mov_b32 s12, {81920 if ot[0] == 'ot1' else 1 << 20}",
                           "v_mul_lo_u32 v222, v0, s12",
                           f"buffer_load_dword v222, v222, s[{SOUT}:{SOUT+3}], 0 offen"])
        if not isB:
            hook(0, "a3", [f"s_lshl_b32 s10, s{sW}, 9", "s_add_u32 s10, s10, s15", "s_add_u32 s11, s10, 40960",
                           f"s_and_b32 s12, s{sW}, 1", "s_lshl_b32 s12, s12, 8", f"s_lshr_b32 s13, s{sW}, 1",
                           "s_lshl3_add_u32 s12, s13, s12", "s_add_u32 s15, s12, s15"])
            hook(2, "a3", [f"buffer_store_dwordx4 v[4:7], v10, {WS_}, s10 offen sc1"])
            hook(3, "a3", [f"buffer_store_dwordx4 v[4:7], v10, {WS_}, s11 offen sc1"])
            hook(4, "a1", [f"buffer_store_dwordx2 v[4:5], v11, {WS_}, s15 offen offset:2048 sc1"], "st")
            hook(6, "a1w", [f"s_lshl_b32 s92, s{sT}, 7", f"s_add_u32 s92, s92, {FLG_O}", f"s_lshl3_add_u32 s12, s{sG}, s92",
                             f"s_cmp_eq_u32 s{sW}, 0", "s_cselect_b32 s12, s12, 0x80000000",
                             f"buffer_store_dwordx2 v[14:15], v252, {WS_}, s12 offen sc1"])
            hook(7, "a2", ["s_add_u32 s98, s6, L_tabA-L_pc+4096", "s_addc_u32 s99, s7, 0", "global_load_dwordx4 v[12:15], v8, s[98:99]", "v_mov_b32 v6, 0"])
            hook(28, "a5", [f"buffer_load_dwordx2 v[2:3], v251, {WS_}, s92 offen sc1"])
            hook(29, "a5", ["s_add_u32 s93, s90, s90", f"s_mul_i32 s13, s{sG}, 160", "s_sub_u32 s93, s93, s13",
                            "s_add_u32 s94, s93, 40960", "s_add_u32 s95, s91, s91"])
            for i, pos in enumerate(LT1):
                hook(31, pos, self.latewo(i))
            sl = [(n, pos) for n in range(15, 20) for pos in ("a2", "a5")] + [(n, "a5") for n in range(23, 28)]
            for k, (n, pos) in enumerate(sl):
                g0, i = 8 + 4 * (k // 5), k % 5
                hook(n, pos, [f"s_add_u32 m0, s91, {5120*g0+1024*i}", "s_nop 0",
                              f"buffer_load_dwordx4 v{155+i}, s[{SWO}:{SWO+3}], s{93+k//5} offen lds"])
        else:
            ex = [f"buffer_store_dwordx4 v[196:199], v250, {WS_}, s90 offen sc1",
                  f"buffer_store_dwordx4 v[200:203], v250, {WS_}, s90 offen offset:2112 sc1",
                  f"buffer_store_dwordx2 v[204:205], v251, {WS_}, s90 offen sc1",
                  f"buffer_store_dwordx2 v[206:207], v251, {WS_}, s90 offen offset:2112 sc1",
                  f"buffer_store_dwordx2 v[208:209], v251, {WS_}, s90 offen offset:512 sc1",
                  f"buffer_store_dwordx2 v[210:211], v251, {WS_}, s90 offen offset:2624 sc1",
                  f"buffer_store_dword v4, v252, {WS_}, s90 offen offset:2048 sc1"]
            for x, (n, pos) in zip(ex, [(0, "a1"), (0, "a3"), (1, "a3"), (2, "a1"), (2, "a3"), (3, "a3"), (4, "a1")]):
                hook(n, pos, [x], "st")
            hook(6, "a1", ["s_lshl_b32 s13, s10, 4", "s_lshr_b64 s[92:93], s[92:93], s13", "s_lshr_b64 s[94:95], s[94:95], s13",
                           "s_and_b32 s92, s92, 0xffff", "s_and_b32 s94, s94, 0xffff", "v_and_b32 v10, 1, v0", "v_lshlrev_b32 v10, 4, v10"])
            hook(6, "a3", ["v_lshlrev_b32 v11, v10, s94", "v_lshlrev_b32 v10, v10, s92", "s_mov_b32 vcc_lo, 0"])
            for q in range(4):
                hook(7 + q // 2, ("a1", "a3")[q % 2], [f"s_mov_b32 vcc_hi, {(3 << 2*q) | (3 << (24+2*q)):#x}",
                                                      f"v_cndmask_b32 v{192+q}, 0, v10, vcc", f"v_cndmask_b32 v{212+q}, 0, v11, vcc"])
            hook(5, "a1", [f"v_mov_b32 v220, s{sN}", f"v_mov_b32 v221, s{sN+1}"])
            hook(6, "a1w", [f"buffer_store_dwordx2 v[220:221], v248, {WS_}, s91 offen sc1"])
            hook(15, "a1", [f"buffer_load_dwordx4 v[216:219], v4, {WS_}, s99 offen sc1"])
            hook(17, "a1", ["s_cmp_lt_u32 s2, 80", "s_cbranch_scc0 L_kin0", "s_waitcnt vmcnt(2)",
                            f"v_cmp_eq_u64 vcc, s[{sN}:{sN+1}], v[216:217]", f"v_cmp_eq_u64 s[84:85], s[{sN}:{sN+1}], v[218:219]",
                            f"s_lshl_b32 s13, s10, 10", "s_and_b64 vcc, vcc, s[84:85]", "s_cbranch_scc0 L_kpoll", "L_kin0:"])
            for b in range(3):
                ls = ["s_cmp_lt_u32 s2, 80", f"s_cbranch_scc0 L_kin{b+1}"]
                for i in range(3 * b, 3 * b + 3):
                    ls += [f"s_add_u32 m0, s13, {KC+4096*i}", f"s_add_u32 s12, s98, {4096*i}",
                           f"buffer_load_dwordx4 v8, {WS_}, s12 offen sc1 lds"]
                hook(17 + 2 * b, "a5", ls + [f"L_kin{b+1}:"])
        dsx = {}
        if isB:
            for i in range(8):
                hook(15 + i, "a2", [f"s_mov_b32 s12, {81920*i}",
                                    f"buffer_load_dwordx2 {v(URAW+2*i,2)}, v{UOFF}, s[{SU}:{SU+3}], s12 offen"])
            hook(25, "a1w", ["s_waitcnt vmcnt(0)"])
            kw = ["ds_write_b128 v2, v[224:227]", "ds_write_b128 v2, v[228:231] offset:16", "ds_write_b128 v2, v[232:235] offset:4160",
                  "ds_write_b128 v2, v[236:239] offset:4176", "ds_write_b128 v3, v[196:199]", "ds_write_b128 v3, v[200:203] offset:4160",
                  "ds_write_b64 v6, v[204:205]", "ds_write_b64 v6, v[206:207] offset:4160", "ds_write_b64 v6, v[208:209] offset:512",
                  "ds_write_b64 v6, v[210:211] offset:4672", "ds_write_b32 v7, v4 offset:4096"]
            for k, x in enumerate(kw):
                dsx[(3 + k, "a2")] = [x]
            dsx[(24, "a1")] = [f"ds_write_b64 v{UTZ}, v[4:5]"]
            dsx[(24, "a3")] = ["ds_write_b64 v249, v[4:5]"]
            for k in range(4):
                for e, pos in ((0, "a1"), (1, "a3")):
                    i = 2 * k + e
                    dsx.setdefault((25 + k, pos), []).extend(
                        [f"ds_write_b64 v{USW}, {v(URAW+2*i,2)}", f"ds_read_b64_tr_b16 {v(UTR+2*i,2)}, v{USR}"])
                    dsx.setdefault((26 + k, "a2" if e == 0 else "a5"), []).append(
                        f"ds_write_b64 v{UTW}, {v(UTR+2*i,2)} offset:{128*i}")
        if not isB:
            wpre = [x for q in range(15) for x in self.woread(q)]
            for n in range(23, 31):
                for pos in ("a1", "a2", "a3", "a5"):
                    if wpre:
                        dsx.setdefault((n, pos), []).append(wpre.pop(0))
        prio = {}
        for st, en in ((0, 1), (2, 5), (6, 14), (15, 22), (23, 30)):
            ln = en - st + 1
            for n in range(st, en + 1):
                prio[n] = 3 - (n - st) * 4 // max(ln, 4) if ln >= 4 else 3 - (n - st)
        prio[31] = 3 if isB else 0

        def run(n, pos):
            for ln in hk.get((n, pos), []):
                if isinstance(ln, tuple):
                    vq.append(ln[1])
                else:
                    a(ln)
            for ln in dsx.get((n, pos), []):
                a(ln)
                lg.issue("x")
        a(f"s_setprio {prio[0]}")
        for n in range(32):
            cur, nxt = S[n & 1], S[(n + 1) & 1]
            Vc, Vp = V[n & 1], V[(n + 1) & 1]
            eop = "v_exp_f32" if "noexp" not in self.x else "v_fract_f32"
            e = lambda lo, hi: [a(f"{eop} v{cur+i}, v{cur+i}") for i in range(lo, hi + 1)]
            e(0, 1)
            if n > 0:
                pv(O1, nxt + 24, Vp + 4)
            run(n, "a1w")
            if n < 31:
                rdV(n + 1, 0)
            run(n, "a1")
            e(2, 5)
            if n < 31:
                qk4(n + 1, nxt)
            run(n, "a2")
            e(6, 13)
            pv(O0, cur, Vc)
            if n < 31:
                rdV(n + 1, 1)
            run(n, "a3")
            e(14, 17)
            pv(O0, cur + 8, Vc + 4)
            if n < 31:
                lg.wait(("K16", n + 1))
            if n % 2 == 0 and n + 2 < 32:
                rdK4(n + 2)
            e(18, 21)
            if n < 31:
                qk16(nxt, QA)
            run(n, "a5")
            e(22, 25)
            if n < 31:
                qk16(nxt + 16, QB)
            last = len(lg.q)
            if n + 2 < 32:
                rdK16(n + 2)
            if n < 31 and prio[n + 1] != prio[n] and n not in bars:
                a(f"s_setprio {prio[n+1]}")
            e(26, 29)
            pv(O1, cur + 16, Vc)
            if n < 31:
                cnt = len(lg.q) - last
                if n == 5:
                    cnt, last = 0, len(lg.q)
                    lg.q.append(("K16", n + 2))
                w = f"lgkmcnt({cnt})"
                lg.q = lg.q[last:]
                if n in bars and (bars[n] == "all" or bars[n] in vq):
                    k = 0 if bars[n] == "all" else vq[::-1].index(bars[n])
                    w = f"vmcnt({k}) " + w
                a(f"s_waitcnt {w}")
                if n in bars:
                    if "bst" in self.x:
                        self.stamp(f"w{n}")
                    a("s_barrier")
                    a(f"s_setprio {prio[n+1]}")
                    if "bst" in self.x:
                        self.stamp(f"b{n}")
            e(30, 31)
        a("s_nop 1")
        pv(O1, S[1] + 24, V[1] + 4)
        self.stamp("attn")

    def lds_sync(self, off, n, vt):
        a = self.a
        lp, dn = a.label("Lsy"), a.label("Lsyd")
        a(f"v_mov_b32 v{vt}, {CNT+off}")
        a(f"v_mov_b32 v{vt+1}, 1")
        a("s_mov_b64 exec, 1")
        a(f"ds_add_u32 v{vt}, v{vt+1}")
        a("s_mov_b64 exec, -1")
        return lp, dn

    def lds_spin(self, lp, dn, n, vt):
        a = self.a
        a("s_mov_b32 s82, 0")
        a.put(lp)
        a(f"ds_read_b32 v{vt+1}, v{vt}")
        a("s_add_u32 s82, s82, 1")
        a("s_waitcnt lgkmcnt(0)")
        a(f"v_readfirstlane_b32 s83, v{vt+1}")
        a("s_cmp_gt_u32 s82, 0x40000")
        a(f"s_cbranch_scc1 {dn}")
        a(f"s_cmp_lt_u32 s83, {n}")
        a(f"s_cbranch_scc1 {lp}")
        a.put(dn)

    def setupB(self, P):
        a = self.a
        kcs, uts = (KPS, UTP) if P else (KCS, UTS)
        a(f"s_mul_i32 s11, s10, {kcs}")
        a(f"s_add_u32 s11, s11, {KC}")
        a("v_and_b32 v10, 15, v0")
        a("v_lshrrev_b32 v11, 4, v0")
        a("v_sub_u32 v12, 0x7ef, v10")
        a("v_lshrrev_b32 v12, 1, v12")
        a("v_lshl_add_u32 v12, v11, 2, v12")
        a("v_lshlrev_b32 v12, 2, v12")
        a("v_and_b32 v13, 1, v0")
        a("v_xor_b32 v13, 1, v13")
        a(f"v_mul_u32_u24 v13, {kcs//2}, v13")
        a(f"s_sub_u32 s12, s11, {960 + (2048 if P else 0)}")
        a("v_add3_u32 v240, v12, v13, s12")
        if P:
            a("v_subrev_u32 v241, 1024, v240")
            a(f"v_add_u32 v242, {4*KPS}, v240")
            a(f"v_add_u32 v243, {4*KPS}, v241")
        else:
            for b in range(1, 4):
                a(f"v_subrev_u32 v{240+b}, {1024*b}, v240")
        a("v_lshlrev_b32 v12, 5, v10")
        a(f"s_mul_i32 s12, s10, {uts}")
        a(f"s_add_u32 s12, s12, {UT}")
        a("v_lshl_add_u32 v13, v11, 4, v12")
        a("v_add_u32 v244, s12, v13")
        a("s_lshr_b32 s12, s10, 1")
        a("s_lshl_b32 s12, s12, 6")
        a("s_add_u32 s12, s12, s11")
        a("v_lshl_add_u32 v13, v11, 3, v12")
        a("v_add_u32 v245, s12, v13")
        a("v_bfe_u32 v12, v0, 2, 2")
        a(f"s_movk_i32 s12, {kcs}")
        a("v_lshrrev_b32 v13, 1, v12")
        a("v_lshlrev_b32 v13, 6, v13")
        a("v_mad_u32_u24 v13, v12, s12, v13")
        a("v_lshl_add_u32 v13, v11, 5, v13")
        a("v_and_b32 v12, 3, v0")
        a("v_lshl_add_u32 v13, v12, 3, v13")
        a("s_lshl_b32 s12, s10, 7")
        a(f"s_add_u32 s12, s12, {KC}")
        a("v_add_u32 v246, s12, v13")
        a("s_mul_i32 s11, s10, 163840")
        a(f"s_lshl_b32 s12, s{sD0}, 1")
        a("s_add_u32 s11, s11, s12")
        a("s_add_u32 s11, s11, 1280")
        a("s_movk_i32 s12, 2560")
        a("v_mov_b32 v247, s11")
        a("v_mad_u32_u24 v247, v0, s12, v247")
        a("v_sub_u32 v250, 1008, v8")
        a("v_lshlrev_b32 v251, 3, v0")
        a("v_sub_u32 v251, 1528, v251")
        a("v_and_b32 v12, 1, v11")
        a("v_mul_u32_u24 v12, 2112, v12")
        a("v_lshl_add_u32 v252, v10, 2, v12")
        a("v_lshlrev_b32 v248, 24, v0")
        a(f"s_add_u32 s11, s{sD0}, s10")
        a(f"s_lshr_b32 s12, s{sD0}, 3")
        a("s_lshl_b32 s12, s12, 7")
        a(f"s_add_u32 s99, s12, {FLG_K}")
        if P:
            a("s_mov_b32 s90, 0x80000000")
            a("s_mov_b32 s91, 0x80000000")
            a(f"s_mul_i32 s98, s{sD0}, {KPS}")
            a("s_lshl_b32 s12, s10, 10")
            a("s_add_u32 s98, s98, s12")
            a(f"s_add_u32 s98, s98, {KIMG}")
        else:
            a(f"s_mul_i32 s90, s11, {KPS}")
            a(f"s_add_u32 s90, s90, {KIMG}")
            a(f"s_and_b32 s12, s{sD0}, 4")
            a("s_lshl1_add_u32 s91, s12, s99")
            a("s_cmp_eq_u32 s10, 0")
            a("s_cselect_b32 s91, s91, 0x80000000")
            a("s_mov_b32 s98, 0")
        a("s_mul_i32 s11, s10, 6144")
        a(f"s_add_u32 s11, s11, {WO+40960}")
        a("v_add_u32 v9, s11, v8")
        a("s_lshr_b32 s11, s2, 3")
        a("s_mul_i32 s11, s11, 81920")
        a("s_and_b32 s12, s2, 7")
        a("s_mul_i32 s12, s12, 160")
        a("s_add_u32 s11, s11, s12")
        a("s_mul_i32 s12, s10, 156")
        a("s_add_u32 s11, s11, s12")
        a("s_cmp_lt_u32 s10, 2")
        a("s_cselect_b32 s11, s11, 0x80000000")
        a("s_movk_i32 s12, 1280")
        a("v_mov_b32 v154, s11")
        a("v_mad_u32_u24 v154, v0, s12, v154")

    def tailB(self):
        a = self.a
        for i in range(3):
            a(f"ds_write_b128 v9, {v(80+4*i,4)} offset:{1024*i}")
        a(f"s_cmp_lt_u32 s{sG}, 3")
        a("s_cbranch_scc1 L_tailP")
        self.conv(False)
        a.put("L_tailP")
        self.conv(True)
        a.put("L_kpoll")
        a("s_mov_b32 s82, 0")
        a.put("L_kpoll1")
        a(f"buffer_load_dwordx4 v[216:219], v4, s[{SWS}:{SWS+3}], s99 offen sc1")
        a("s_add_u32 s82, s82, 1")
        a("s_cmp_gt_u32 s82, 20000")
        a("s_waitcnt vmcnt(0)")
        a("s_cbranch_scc1 L_kin0")
        a(f"v_cmp_eq_u64 vcc, s[{sN}:{sN+1}], v[216:217]")
        a(f"v_cmp_eq_u64 s[84:85], s[{sN}:{sN+1}], v[218:219]")
        a("s_nop 0")
        a("s_and_b64 vcc, vcc, s[84:85]")
        a("s_cbranch_scc0 L_kpoll1")
        a("s_branch L_kin0")

    def conv(self, P):
        a = self.a
        ACC = 144
        lg = LG(a, "lgkmcnt", 15)
        b2 = lambda r: 16 + 64 * (r & 1)

        def reads(r):
            base = b2(r)

            def K(k):
                sidx = 8 * (k & 3 if P else k) + r
                o = 16 * (15 - (sidx & 15))
                ar = 240 + (sidx >> 4) + (2 * (k >> 2) if P else 0)
                A = base + 4 * k
                return [(("K", r, k), f"ds_read2_b32 {v(A,2)}, v{ar} offset0:{o} offset1:{o+1}"),
                        (("K", r, k), f"ds_read2_b32 {v(A+2,2)}, v{ar} offset0:{o+2} offset1:{o+3}")]

            def U(k):
                e = 8 * (k & 3 if P else k) - r
                return [(("U", r, k), f"ds_read_b128 {v(base+32+4*k,4)}, v244 offset:{64*(e+7)+(4*UTP*(k>>2) if P else 0)}")]
            if P:
                out = []
                for c in (0, 4):
                    out += K(c) + U(c) + U(c + 1) + U(c + 2) + U(c + 3) + K(c + 1) + K(c + 2) + K(c + 3)
                return out
            out = K(0)
            for k in range(4, 8):
                out += U(k)
            for sg in range(1, 8):
                out += K(sg) + (U(4 - sg) if sg <= 4 else [])
            return out

        def emit(x):
            a(x[1])
            lg.issue(x[0])
        r0 = reads(0)
        early = [x for x in r0 if x[0][0] == "K"][:9]
        for x in early:
            emit(x)
        for i in range(3):
            emit((None, f"ds_write_b128 v9, {v(96+4*i,4)} offset:{3072+1024*i}"))
        for x in r0:
            if x not in early:
                emit(x)
        a("s_waitcnt lgkmcnt(15)")
        a("s_barrier")
        self.stamp("T1")
        self.stop_at("t1")
        a("s_setprio 1")
        if P:
            a("s_cmp_lt_u32 s2, 80")
            wb = [x for x in self.x if x.startswith("wb")]
            a("s_cbranch_scc0 L_wb" if wb else "s_cbranch_scc0 L_fin")
        self.stamp("cv_s")

        def fin(i):
            t = 16 + 2 * i
            off = 512 * (i & 3) + 4 * KPS * (i >> 2) if P else 512 * i
            return [f"v_cvt_pk_bf16_f32 v{t}, v{ACC+4*i}, v{ACC+4*i+1}",
                    f"v_cvt_pk_bf16_f32 v{t+1}, v{ACC+4*i+2}, v{ACC+4*i+3}", f"ds_write_b64 v245, {v(t,2)} offset:{off}"]

        def mm(i, A, B, first=False):
            return f"v_mfma_f32_16x16x32_bf16 {v(ACC+4*i,4)}, {v(A,4)}, {v(B,4)}, {'0' if first else v(ACC+4*i,4)}"
        outs = range(8) if P else range(4, 8)
        pend = []
        for r in range(8):
            base = b2(r)
            nxt = reads(r + 1) if r < 7 else []
            ms = []
            if P:
                for c in (0, 4):
                    if r == 0:
                        ms += [(c + i, None, c + i, mm(c + i, 192 + 5 * c, base + 32 + 4 * (c + i), True)) for i in range(4)]
                    ms += [(c + i, c + sg, c + i - sg, mm(c + i, base + 4 * (c + sg), base + 32 + 4 * (c + i - sg))) for sg in range(4) for i in range(sg, 4)]
            else:
                if r == 0:
                    ms += [(i, None, i, mm(i, 192, base + 32 + 4 * i, True)) for i in outs]
                ms += [(i, sg, i - sg, mm(i, base + 4 * sg, base + 32 + 4 * (i - sg))) for sg in range(8) for i in range(max(sg, 4), 8)]
            if r == 7:
                ms = [x for x in ms if x[0] != 7] + [x for x in ms if x[0] == 7]
            done = set()
            if "rst" in self.x:
                if r:
                    nm = f"r{r-1}"
                    if nm not in STN:
                        STN.append(nm)
                    a(f"v_writelane_b32 v254, s86, {STN.index(nm)}")
                    a(f"v_writelane_b32 v253, s88, {STN.index(nm)}")
                a("s_memtime s[86:87]")
            for n, (i, kk, uu, ln) in enumerate(ms):
                need = [t for t in (("K", r, kk), ("U", r, uu)) if t in lg.q]
                if need:
                    lg.wait(max(need, key=lambda t: max(q for q, z in enumerate(lg.q) if z == t)))
                a(ln)
                if r == 7:
                    for j in outs:
                        last = max(q for q, z in enumerate(ms) if z[0] == j)
                        if j not in done and n >= last + 4:
                            done.add(j)
                            pend += fin(j)
                    for _ in range(2):
                        if pend:
                            y = pend.pop(0)
                            a(y)
                            if y.startswith("ds_"):
                                lg.issue(None)
                if n >= 1:
                    for _ in range(2 if len(nxt) > len(ms) - n else 1):
                        if nxt:
                            emit(nxt.pop(0))
            assert not nxt
        for j in outs:
            if j not in done:
                pend += fin(j)
        for ln in pend:
            a(ln)
        self.stamp("conv")
        lp, dn = self.lds_sync(8, 4, 2)
        self.lds_spin(lp, dn, 4 if "nohold" in self.x else 68, 2)
        self.stamp("T2")
        spol = " nt" if "snt" in self.x else ""
        if P:
            for i in range(4):
                a(f"ds_read_b64_tr_b16 {v(32+4*i,2)}, v246 offset:{512*i}")
                a(f"ds_read_b64_tr_b16 {v(34+4*i,2)}, v246 offset:{512*i+4*KPS}")
            for i in range(4):
                a(f"s_mov_b32 s12, {655360*i}")
                a(f"s_waitcnt lgkmcnt({6-2*i})")
                a(f"buffer_store_dwordx4 {v(32+4*i,4)}, v247, s[{SOUT}:{SOUT+3}], s12 offen{spol}")
        else:
            for i in outs:
                a(f"ds_read_b64_tr_b16 {v(32+2*i,2)}, v246 offset:{512*i}")
            for i in outs:
                a(f"s_mov_b32 s12, {655360*i}")
                a(f"s_waitcnt lgkmcnt({7-i})")
                a(f"buffer_store_dwordx2 {v(32+2*i,2)}, v247, s[{SOUT}:{SOUT+3}], s12 offen{spol}")
        a("s_branch L_fin")
        if P and wb:
            md = wb[0][2:]
            a.put("L_wb")
            a(f"s_cmp_eq_u32 s{sW}, 4")
            a("s_cbranch_scc0 L_fin")
            a("s_cmp_lt_u32 s2, 88")
            a("s_cbranch_scc0 L_wb2")
            for q, c in enumerate(md):
                if q:
                    a.put("L_wb2")
                if c in "23":
                    a(f"v_mov_b32 v2, {CNT + (8 if c == '2' else 4)}")
                    self.lds_spin(a.label("Lw"), a.label("Lwd"), 64 if c == "2" else 2, 2)
                if c != "0":
                    a("buffer_wbl2 sc1")
                a("s_branch L_fin")

    def setupA(self):
        a = self.a
        a(f"s_lshl_b32 s11, s{sW}, 11")
        a("s_lshr_b32 s12, s2, 3")
        a("s_add_u32 s11, s11, s12")
        a("s_lshl_b32 s11, s11, 7")
        a("v_lshl_add_u32 v154, v0, 12, s11")
        a(f"s_mul_i32 s11, s{sW}, 6144")
        a(f"s_add_u32 s11, s11, {WO+40960}")
        a("v_add_u32 v9, s11, v8")
        a(f"s_mul_i32 s14, s{sT}, 81920")
        a(f"s_add_u32 s14, s14, {OIMG}")
        a(f"s_mul_i32 s15, s{sG}, 2560")
        a("s_add_u32 s15, s15, s14")
        a("v_mov_b32 v144, 0xdddddddd")
        a("v_mov_b32 v145, v8")
        a(f"v_add_u32 v146, {SLOT}, v8")
        a(f"v_add_u32 v147, {2*SLOT}, v8")
        for r in range(16):
            a(f"v_mov_b64 {v(80+2*r,2)}, 0")

    def setupA2(self):
        return ["v_mov_b32 v10, v149", "v_mov_b32 v11, v150", f"v_add_u32 v149, {SLOT}, v148", f"v_add_u32 v150, {2*SLOT}, v148",
                f"v_add_u32 v152, {SLOT}, v151", f"v_add_u32 v153, {2*SLOT}, v151",
                f"s_and_b32 s13, s{sW}, 1", "s_mul_i32 s10, s13, 15360", "s_sub_u32 s10, s10, 10240", "s_mul_i32 s11, s13, 10240",
                "s_add_u32 s11, s11, 5120"] + [f"v_add_u32 v{240+k}, s{10 if k < 6 else 11}, v{240+k}" for k in range(10)] + [
                f"s_lshl_b32 s13, s{sW}, 3", f"s_mul_i32 s10, s{sG}, 160"] + [x for q, c in enumerate((0x0f0c0b0a, 0x0e0d1110, 0x09081312)) for x in (
                    f"s_lshr_b32 s11, {c:#x}, s13", "s_and_b32 s11, s11, 0xff", f"s_mul_i32 s11, s11, 40960", f"s_add_u32 s{93+q}, s11, s10")] + [
                "v_lshlrev_b32 v252, 24, v0"]

    def tables(self):
        out = []
        cols = [[] for _ in range(20)]
        for l in range(64):
            G, r, c = l >> 4, (l >> 2) & 3, l & 3
            for m in range(5):
                P = 4 * m + G
                g2, p = divmod(P, 10)
                for tt in range(2):
                    row = 80 * g2 + (20 * (p >> 1) + 4 * (p & 1) + 8 * tt if p < 8 else 20 * (p - 8 + 2 * tt) + 16)
                    cols[2 * m + tt].append(WO + 51200 + 160 * (row + r) + 8 * c)
            cols[10].append((l & 15) * 160 + 8 * G)
            for i in range(3):
                p = 64 * i + l
                cols[16 + i].append((p // 10) * 2560 + 16 * (p % 10) if p < 160 else 0x80000000)
            pr = ((l & 3) ^ 2)
            cols[19].append(2560 * (pr + (pr & 2)) + 256 * ((PROBE >> (4 * ((l >> 2) & 7))) & 15))
            cols[11].append(8 * (l & 7))
            cols[12].append(2048 + 8 * l)
            cols[13].append((G & 1) * 20480 + 16 * (l & 15) + 256 * (l >> 5))
            cols[14].append(G * 20480 + 16 * (l & 15))
            cols[15].append(2560 + 336 * (l >> 5) + 16 * (l & 31) if (l & 31) <= 20 else 0x30000)
        out.append(".p2align 7")
        out.append(".type L_tabA,@object")
        out.append("L_tabA:")
        for k in range(5):
            for l in range(64):
                out.append(".long " + ", ".join(str(cols[4 * k + e][l]) for e in range(4)))
        return out

    def latewo(self, i):
        return [f"s_add_u32 m0, s95, {1024*i-WO}" if i else f"s_sub_u32 m0, s95, {WO}", "s_nop 0",
                f"buffer_load_dwordx4 v{155+i%5}, s[{SWO}:{SWO+3}], s{93+i//5} offen lds"]

    def wofrag(self, n):
        j = n % 25
        return 160 + 4 * j if j < 20 else 136 + 4 * (j - 20)

    def woread(self, n):
        k, ct = divmod(n, 5)
        F, m = self.wofrag(n), k % 5
        return [f"ds_read_b64_tr_b16 {v(F,2)}, v{240+2*m} offset:{32*ct}",
                f"ds_read_b64_tr_b16 {v(F+2,2)}, v{241+2*m} offset:{32*ct}"]

    def tailA(self):
        a = self.a
        O = (80, 96)
        AD, OF = 240, 16
        a("s_setprio 3")
        pre = [f"s_and_b32 s98, s{sW}, 1", "s_mul_i32 s12, s98, 5120", "s_add_u32 s14, s14, s12", f"s_mul_i32 s90, s{sW}, 20480",
               "s_add_u32 s90, s90, s14", f"s_xor_b32 s99, s{sW}, 1", "s_mul_i32 s91, s99, 20480", "s_add_u32 s91, s91, s14"]
        for i in range(len(LT1), 10):
            x = self.latewo(i)
            a(x[0])
            a(pre.pop(0) if pre else x[1])
            a(x[2])
        for ln in pre:
            a(ln)
        a("v_cmp_eq_u64 s[94:95], s[96:97], v[2:3]")
        a("s_mov_b32 s13, 0")
        a(f"s_mov_b32 s83, {f2u(2.0**48):#x}")
        a("s_barrier")
        self.stamp("T1")
        self.stop_at("t1")
        for i in (2, 5, 0, 1, 3, 4):
            a(f"ds_read_b128 {v(16+4*i,4)}, v9 offset:{1024*i}")
        a("s_waitcnt lgkmcnt(4)")
        for T in range(2):
            a(f"v_add_f32 v{O[T]+8}, v{O[T]+8}, v{24+12*T}")
        a.put("L_lext")
        for T in range(2):
            a(f"v_mov_b32 v{40+2*T}, v{O[T]+8}")
            a(f"v_mov_b32 v{41+2*T}, v{O[T]+8}")
        for T in range(2):
            for i in (9, 10, 11):
                a(f"v_add_f32 v{O[T]+i}, v{O[T]+i}, v{16+12*T+i}")
        a("v_permlane32_swap_b32 v40, v41")
        a("v_permlane32_swap_b32 v42, v43")
        a("s_cmp_eq_u32 s13, 1")
        a("v_rcp_f32 v44, v41")
        a("v_rcp_f32 v45, v43")
        a("v_min_f32 v40, v41, v43")
        a("v_max_f32 v42, v41, v43")
        for T in range(2):
            a(f"s_waitcnt lgkmcnt({2-2*T})")
            for i in range(8):
                a(f"v_add_f32 v{O[T]+i}, v{O[T]+i}, v{16+12*T+i}")
            for i in range(12):
                a(f"v_mul_f32 v{O[T]+i}, v{O[T]+i}, v{44+T}")
            for q in range(4):
                a(f"v_cvt_pk_bf16_f32 v{124+4*T+q}, v{O[T]+2*q}, v{O[T]+2*q+1}")
            for q in range(2):
                a(f"v_cvt_pk_bf16_f32 v{132+2*T+q}, v{O[T]+8+2*q}, v{O[T]+9+2*q}")
        a("s_cbranch_scc1 L_norm")
        a("v_permlane32_swap_b32 v132, v134")
        a("v_permlane32_swap_b32 v133, v135")
        for T in range(2):
            for q in range(6):
                a(f"v_fmac_f32 v6, v{O[T]+2*q}, v{O[T]+2*q+1}")
        a("v_cmp_ge_f32 s[84:85], s83, v42")
        a("v_fmac_f32 v40, 0, v6")
        a(f"v_cmp_le_f32 vcc, {f2u(2.0**-24):#x}, v40")
        a("s_nop 0")
        a("s_and_b64 vcc, vcc, s[84:85]")
        a("s_cmp_eq_u64 vcc, -1")
        a("s_branch L_slow" if self.force_slow else "s_cbranch_scc0 L_slow")
        a.put("L_norm2")
        ACC, TR, NR = 96, 40, 25
        WS_ = f"s[{SWS}:{SWS+3}]"

        def ostore(pol):
            a(f"buffer_store_dwordx4 v[124:127], v10, {WS_}, s10 offen{pol}")
            a(f"buffer_store_dwordx4 v[128:131], v10, {WS_}, s11 offen{pol}")
            a(f"buffer_store_dwordx2 v[132:133], v11, {WS_}, s15 offen offset:2048{pol}")
        a("s_cmp_eq_u64 s[94:95], -1")
        a("s_branch L_far" if "far" in self.x else "s_cbranch_scc0 L_far")
        ostore(" nt" if "int" in self.x else "")
        a.put("L_pod")
        self.stamp("Oiss")
        if "aexit" in self.x:
            a("s_branch L_fin")
        a(f"buffer_load_dwordx4 {v(ACC,4)}, v15, {WS_}, s90 offen sc1")

        def issue(n):
            for ln in self.woread(n):
                a(ln)
        for n in range(15, 25):
            issue(n)
        a("s_mov_b32 s82, 0")
        a("s_waitcnt vmcnt(4)")
        lp, dn = self.lds_sync(0, 4, 4)
        self.stamp("Ostored")
        a.put("L_pr")
        a("s_waitcnt vmcnt(0)")
        a(f"v_max_u32 v6, v{ACC}, v{ACC+2}")
        a("s_add_u32 s82, s82, 1")
        a("v_cmp_eq_u32 vcc, -1, v6")
        a("s_cbranch_vccz L_prd")
        a("s_cmp_gt_u32 s82, 20000")
        a("s_cbranch_scc1 L_prd")
        a(f"buffer_load_dwordx4 {v(ACC,4)}, v15, {WS_}, s90 offen sc1")
        a("s_branch L_pr")
        a.put("L_prd")
        self.stamp("Oseen")

        def oload(k):
            o = 10240 + 1024 * k if k < 5 else 1024 * (k - 5)
            for rt in range(2):
                a(f"s_add_u32 s13, s{90+rt}, {o & ~4095}")
                a(f"buffer_load_dwordx4 {v(OF+8*k+4*rt,4)}, v8, s[{SWS}:{SWS+3}], s13 offen offset:{o & 4095} sc1")
        for k in range(NUP):
            oload(k)
        a(f"v_mov_b32 v2, {CNT+8}")
        a("v_mov_b32 v3, 16")
        if NUP == 10 and "nohold" not in self.x:
            a("s_mov_b64 exec, 1")
            a("ds_add_u32 v2, v3")
            a("s_mov_b64 exec, -1")
        a("s_mul_i32 s84, s98, 10240")
        a("s_sub_u32 s84, s84, 40960")
        a("s_mul_i32 s85, s98, 66560")
        a("s_sub_u32 s85, s85, 56320")
        for k in range(10):
            a(f"v_add_u32 v{AD+k}, s{84 if k < 6 else 85}, v{AD+k}")
        a(f"s_mul_i32 s12, s{sW}, 5120")
        a(f"s_add_u32 s12, s12, {WO+40960}")
        a("v_add_u32 v9, s12, v8")
        a("s_mul_i32 s12, s99, 5120")
        a(f"s_add_u32 s12, s12, {WO+40960}")
        a("v_add_u32 v1, s12, v8")
        a("v_add_u32 v250, s12, v250")
        a(f"s_and_b32 s12, s{sW}, 2")
        a(f"s_lshl2_add_u32 s12, s12, {CNT+4}")
        a("v_mov_b32 v7, s12")
        self.lds_spin(lp, dn, 4, 4)
        self.stamp("T2")
        a(f"s_setprio {OPRIO}")
        a(f"s_lshl_b32 s12, s{sT}, 6")
        a(f"s_lshl4_add_u32 s12, s{sW}, s12")
        a("s_mul_i32 s12, s12, 2560")
        a(f"s_mul_i32 s84, s{sG}, 160")
        a("s_add_u32 s12, s12, s84")
        a("v_mov_b32 v5, 1")
        RS = 0
        if "rest" in self.x:
            assert NUP == 10
            RS = 3
            a("s_waitcnt vmcnt(0)")
            ostore(" sc1")
        a("s_mov_b32 s82, 0")
        nld = [NUP]

        def more():
            for kk in range(nld[0], min(10, nld[0] + OST)):
                oload(kk)
                if kk == 9 and "nohold" not in self.x:
                    a("s_mov_b64 exec, 1")
                    a("ds_add_u32 v2, v3")
                    a("s_mov_b64 exec, -1")
            nld[0] = min(10, nld[0] + OST)

        def chk(k):
            F = OF + 8 * k
            return [f"v_max3_u32 v6, v{F}, v{F+2}, v{F+4}", f"v_max_u32 v6, v6, v{F+6}", "v_cmp_eq_u32 vcc, -1, v6"]

        def mm(n, rt):
            k, ct = divmod(n, 5)
            F = self.wofrag(n)
            D = ACC + 20 * rt + 4 * ct
            a(f"v_mfma_f32_16x16x32_bf16 {v(D,4)}, {v(F,4)}, {v(OF+8*k+4*rt,4)}, {'0' if k == 0 else v(D,4)}")
        more()
        a(f"s_waitcnt vmcnt({2*(nld[0]-1)+RS})")
        for ln in chk(0):
            a(ln)
        KS = 6
        for k in range(10):
            lk = {8: 10, 9: 0}.get(k, 15)
            a(f"s_cbranch_vccnz L_re{k}")
            a.put(f"L_ok{k}")
            if k >= 5:
                a(f"s_waitcnt lgkmcnt({lk})")
            if k == 0:
                self.stamp("op0")
            c = chk(k + 1) if k < 9 else None
            if k < KS:
                for n in range(5 * k, 5 * k + 5):
                    rd = self.woread(n - 1 + NR) if n >= 1 and n - 1 + NR < 50 else []
                    mm(n, 0)
                    for ln in rd[:1]:
                        a(ln)
                    if n % 5 == 0:
                        more()
                    if n % 5 == 3:
                        a(f"s_waitcnt vmcnt({2*(nld[0]-k-2)+RS})")
                        a(c[0])
                    if n % 5 == 4:
                        a(c[2])
                    mm(n, 1)
                    for ln in rd[1:]:
                        a(ln)
                    if n % 5 == 3:
                        a(c[1])
            else:
                for n in range(5 * k, 5 * k + 5):
                    mm(n, 1)
                    if c and n % 5 == 0:
                        a(f"s_waitcnt vmcnt({2*(nld[0]-k-2)+RS})")
                    if c and n % 5 < 3:
                        a(c[n % 5])
        exr = ["ds_read_b32 v6, v7"] + [f"ds_read_b128 {v(TR+4*ct,4)}, v1 offset:{1024*ct}" for ct in range(5)]
        fill = {1 + j: [f"ds_write_b128 v9, {v(ACC+20+4*j,4)} offset:{1024*j}"] for j in range(5)}
        fill[6] = ["s_mov_b64 exec, 1", "ds_add_u32 v7, v5", "s_mov_b64 exec, -1"]
        for j, ln in enumerate(exr):
            fill[EXR + j] = [ln]
        for j, n in enumerate(range(5 * KS, 50)):
            mm(n, 0)
            for ln in fill.get(j, []):
                a(ln)
        self.stamp("op50")
        a("s_mov_b32 s82, 0")
        a.put("L_ex")
        a("s_add_u32 s82, s82, 1")
        a("s_waitcnt lgkmcnt(5)")
        a("v_readfirstlane_b32 s83, v6")
        a("s_cmp_gt_u32 s82, 0x40000")
        a("s_cbranch_scc1 L_exd")
        a("s_cmp_lt_u32 s83, 2")
        a("s_cbranch_scc0 L_exd")
        for ln in exr:
            a(ln)
        a("s_branch L_ex")
        a.put("L_exd")
        for ct in range(5):
            a(f"s_waitcnt lgkmcnt(4)")
            for e in range(4):
                a(f"v_add_f32 v{ACC+4*ct+e}, v{ACC+4*ct+e}, v{TR+4*ct+e}")
            a(f"v_cvt_pk_bf16_f32 v{16+2*ct}, v{ACC+4*ct}, v{ACC+4*ct+1}")
            a(f"v_cvt_pk_bf16_f32 v{17+2*ct}, v{ACC+4*ct+2}, v{ACC+4*ct+3}")
            a(f"ds_write_b64 v250, {v(16+2*ct,2)} offset:{32*ct}")
        for i in range(3):
            a(f"ds_read_b128 {v(28+4*i,4)}, v1 offset:{1024*i}")
        pol = " nt" if "ont" in self.x else " sc1" if "osc1" in self.x else ""
        for i in range(3):
            a(f"s_waitcnt lgkmcnt({2-i})")
            a(f"buffer_store_dwordx4 {v(28+4*i,4)}, v{12+i}, s[{SOUT}:{SOUT+3}], s12 offen{pol}")
        a("s_branch L_fin")
        a.put("L_norm")
        a("v_permlane32_swap_b32 v132, v134")
        a("v_permlane32_swap_b32 v133, v135")
        a("s_branch L_norm2")
        a.put("L_far")
        ostore(" sc1")
        a("s_mov_b32 s82, 0")
        a.put("L_po")
        a(f"v_xor_b32 v3, s{sN+1}, v3")
        a(f"v_xor_b32 v2, s{sN}, v2")
        a("v_lshl_or_b32 v2, v3, 4, v2")
        a("s_add_u32 s82, s82, 1")
        a("v_cmp_ne_u32 vcc, 0, v2")
        a("s_cbranch_vccz L_pod")
        a("s_cmp_gt_u32 s82, 20000")
        a("s_cbranch_scc1 L_pod")
        a(f"buffer_load_dwordx2 v[2:3], v251, {WS_}, s92 offen sc1")
        a("s_waitcnt vmcnt(0)")
        a("s_branch L_po")
        for k in range(10):
            a.put(f"L_re{k}")
            oload(k)
            a("s_add_u32 s82, s82, 1")
            a("s_cmp_gt_u32 s82, 20000")
            a("s_waitcnt vmcnt(0)")
            a(f"s_cbranch_scc1 L_ok{k}")
            for ln in chk(k):
                a(ln)
            a(f"s_cbranch_vccnz L_re{k}")
            a(f"s_branch L_ok{k}")

    def slow(self):
        a = self.a
        S0, O0, O1, QA, QB, Q4, K4, K16, V, IDX, AV = 16, 80, 96, 112, 116, 120, 122, 124, 128, 144, 151
        M0, M1 = 60, 61
        a.put("L_slow")
        a("v_and_b32 v62, 31, v0")
        a("v_lshlrev_b32 v62, 3, v62")
        a(f"v_mov_b32 v{M0}, 0xff800000")
        a(f"v_mov_b32 v{M1}, 0xff800000")
        for ps in range(2):
            if ps == 1:
                for M, t in ((M0, 63), (M1, 64)):
                    a(f"v_mov_b32 v{t}, v{M}")
                a("s_nop 1")
                a(f"v_permlane32_swap_b32 v{M0}, v63")
                a(f"v_permlane32_swap_b32 v{M1}, v64")
                a("s_nop 1")
                a(f"v_max_f32 v{M0}, v{M0}, v63")
                a(f"v_max_f32 v{M1}, v{M1}, v64")
                for r in range(32):
                    a(f"v_mov_b32 v{O0+r}, 0")
            a("s_mov_b32 s8, 0")
            a.put(f"L_sl{ps}")
            a("s_lshr_b32 s9, s8, 1")
            a(f"s_mul_i32 s9, s9, {BLK}")
            a("s_and_b32 s82, s8, 1")
            a("s_lshl_b32 s12, s82, 10")
            a("s_add_u32 s12, s12, s9")
            a(f"buffer_load_dwordx4 {v(K16,4)}, v8, s[{SWS}:{SWS+3}], s12 offen sc1")
            a("s_lshl_b32 s12, s82, 8")
            a("s_add_u32 s12, s12, s9")
            a(f"buffer_load_dwordx2 {v(K4,2)}, v62, s[{SWS}:{SWS+3}], s12 offen offset:2048 sc1")
            if ps == 1:
                a("s_mul_i32 s12, s82, 1344")
                a("s_add_u32 s12, s12, s9")
                a(f"buffer_load_dwordx4 {v(V,4)}, v{AV}, s[{SWS}:{SWS+3}], s12 offen sc1")
                a(f"buffer_load_dwordx4 {v(V+4,4)}, v{AV}, s[{SWS}:{SWS+3}], s12 offen offset:672 sc1")
            a("s_waitcnt vmcnt(0)")
            a(f"v_mfma_f32_32x32x4_2b_bf16 {v(S0,32)}, {v(K4,2)}, {v(Q4,2)}, 0 cbsz:1 abid:0")
            a.nop(18)
            a(f"v_mfma_f32_32x32x16_bf16 {v(S0,16)}, {v(K16,4)}, {v(QA,4)}, {v(S0,16)}")
            a(f"v_mfma_f32_32x32x16_bf16 {v(S0+16,16)}, {v(K16,4)}, {v(QB,4)}, {v(S0+16,16)}")
            a.nop(14)
            if ps == 0:
                for T, M in ((0, M0), (1, M1)):
                    for r in range(0, 16, 2):
                        a(f"v_max3_f32 v{M}, v{S0+16*T+r}, v{S0+16*T+r+1}, v{M}")
            else:
                for T, M in ((0, M0), (1, M1)):
                    for r in range(16):
                        a(f"v_sub_f32 v{S0+16*T+r}, v{S0+16*T+r}, v{M}")
                for r in range(32):
                    a(f"v_exp_f32 v{S0+r}, v{S0+r}")
                a("s_nop 1")
                for T, O in ((0, O0), (1, O1)):
                    for f in range(2):
                        a(f"v_smfmac_f32_32x32x32_bf16 {v(O,16)}, {v(V+4*f,4)}, {v(S0+16*T+8*f,8)}, v{IDX}")
                a.nop(14)
            a("s_add_u32 s8, s8, 1")
            a("s_cmp_lt_u32 s8, 64")
            a(f"s_cbranch_scc1 L_sl{ps}")
        for r in range(16, 40, 2):
            a(f"v_mov_b64 {v(r,2)}, 0")
        a("s_mov_b32 s13, 1")
        a("s_branch L_lext")

    def dump(self):
        a = self.a
        a.put("L_dump")
        a("s_waitcnt vmcnt(0) lgkmcnt(0)")
        a("s_barrier")
        a(f"s_lshl_b32 s10, s{sW}, 10")
        a("v_lshl_add_u32 v250, v0, 4, s10")
        a(f"s_mul_i32 s11, s2, {LDS_BYTES}")
        a(f"s_add_u32 s11, s11, {DBG}")
        a("v_mov_b32 v251, v250")
        for i in range(20):
            a("ds_read_b128 v[252:255], v251")
            a("s_waitcnt lgkmcnt(0)")
            a(f"buffer_store_dwordx4 v[252:255], v250, s[{SWS}:{SWS+3}], s11 offen")
            a("s_waitcnt vmcnt(0)")
            a("v_add_u32 v251, 0x2000, v251")
            a("s_add_u32 s11, s11, 0x2000")
        if self.dump_regs:
            lo, n = self.dump_regs
            a(f"s_lshl_b32 s10, s2, 3")
            a(f"s_add_u32 s10, s10, s{sW}")
            a(f"s_mul_i32 s10, s10, {256*n}")
            a(f"s_add_u32 s10, s10, {DBG + 256*LDS_BYTES}")
            a("v_lshlrev_b32 v250, 2, v0")
            for i in range(n):
                a(f"buffer_store_dword v{lo+i}, v250, s[{SWS}:{SWS+3}], s10 offen")
                a("s_add_u32 s10, s10, 256")
            a("s_waitcnt vmcnt(0)")
        a("s_endpgm")

    def build(self):
        a = self.a
        self.prologue()
        self.startA()
        self.qfinish()
        self.attention(False)
        self.tailA()
        for ln in self.stubs:
            a(ln)
        a.put("L_B0")
        self.startB()
        self.bphase1()
        self.attention(True)
        self.tailB()
        self.slow()
        if self.stop:
            self.dump()
        a.put("L_fin")
        a("s_waitcnt lgkmcnt(0)")
        if self.stamps:
            self.stamp("issued")
            a("s_waitcnt vmcnt(0)")
            self.stamp("end")
            a("s_memrealtime s[86:87]")
            a("s_lshl_b32 s10, s2, 3")
            a(f"s_add_u32 s10, s10, s{sW}")
            a("s_lshl_b32 s10, s10, 9")
            a(f"s_add_u32 s10, s10, {STAMP}")
            a("v_lshlrev_b32 v1, 2, v0")
            a("s_waitcnt lgkmcnt(0)")
            a("v_writelane_b32 v254, s86, 63")
            a(f"buffer_store_dword v254, v1, s[{SWS}:{SWS+3}], s10 offen")
            a(f"buffer_store_dword v253, v1, s[{SWS}:{SWS+3}], s10 offen offset:256")
        if self.rt:
            a("s_cmp_lt_u32 s2, 250")
            a("s_cbranch_scc1 L_end")
            a(f"s_cmp_eq_u32 s{sW}, 4")
            a("s_cbranch_scc0 L_end")
            a("s_waitcnt vmcnt(0)")
            a("s_memrealtime s[86:87]")
            a("s_memtime s[94:95]")
            a("s_sub_u32 s10, s2, 248")
            a("s_lshl_b32 s10, s10, 3")
            a("v_mov_b32 v1, s10")
            a("s_waitcnt lgkmcnt(0)")
            a("s_sub_u32 s94, s94, s96")
            a(f"s_sub_u32 s86, s86, s{sN}")
            a("v_mov_b32 v4, s86")
            a("v_mov_b32 v5, s94")
            a("s_mov_b64 exec, 1")
            a("global_store_dwordx2 v1, v[4:5], s[46:47]")
        a.put("L_end")
        a("s_endpgm")
        a.put("L_codeend")
        a.lines += self.tables()
        return a


HEAD = open("cdna_kernels/" + NAME + ".s.ref").read().split("; Override launch")[0]


def emit(path, **kw):
    g = Gen(**kw)
    a = g.build()
    a.lines, msgs = autofix(a.lines)
    if kw.get("verbose", path.endswith("prompt.s")):
        for m in msgs[:30]:
            print("fixed", m)
    assert not check_hazards(a.lines)
    if path.endswith('prompt.s'):
        for m in check_inflight(a.lines)[:30]:
            print(m)
    src = HEAD + f"""; @launch grid=(256,1,1) block=(512,1,1) lds={LDS_BYTES}
.amdgcn_target "amdgcn-amd-amdhsa--gfx950"
.text
.globl {NAME}_kernel
.p2align 8
.type {NAME}_kernel,@function
{NAME}_kernel:
{a.text()}.section .rodata,"a"
.p2align 6
.amdhsa_kernel {NAME}_kernel
  .amdhsa_next_free_vgpr 256
  .amdhsa_next_free_sgpr 102
  .amdhsa_accum_offset 256
  .amdhsa_group_segment_fixed_size 0
  .amdhsa_kernarg_size 136
  .amdhsa_user_sgpr_count 2
  .amdhsa_user_sgpr_kernarg_segment_ptr 1
  .amdhsa_system_sgpr_workgroup_id_x 1
.end_amdhsa_kernel
"""
    open(path, "w").write(src)
    if path.endswith('prompt.s'):
        print('klen', g.klen, 'lastpk', g.kpk, 'left', g.kleft)
    return len(msgs)


if __name__ == "__main__":
    import os
    os.makedirs("out", exist_ok=True)
    n = emit("cdna_kernels/" + NAME + ".s")
    emit("b6.s", stop="e0")
    emit("t1.s", stop="t1", dump_regs=(80, 32))
    emit("full.s")
    emit("slow.s", force_slow=True)
    emit("stamp.s", stamps=True)
    emit("rt.s", rt=True)
    for arg in sys.argv[1:]:
        emit(f"stamp_{arg}.s", stamps=True, x=arg.split("+"))
        emit(f"full_{arg}.s", x=arg.split("+"))
    open("stn.txt", "w").write(" ".join(STN))
    print("hazards", n)
```

```python
import os
import sys, struct
from asmlib import Asm, v, s, check_hazards, autofix, check_inflight

NAME = "concat_heads__grouped_kv_mqa__ssm_conv_s4__prompt"

BLK = 5248
SLOT = 41984
WL = 81920
WOFF = (0, 58368, 37888, 0, 58368)
AUX = 110592
KGB = 102400
KGS = 4352
KVP = 102400
QP = 90112
KC = 125952
KCS = 8320
WO = 1024
UT = 103424
UTS = 4592
UTP = 2544
KPS = 4224
USCR = 123840
CNT = 163808
QC = CNT + 16
LDS_BYTES = 163840

FLG_KV = 0x580000
FLG_O = 0x30000
FLG_K = 0x32000
OIMG = 0x40000
KIMG = 0x2C0000
WS_SIZE = 0x600000
DBG = 0x700000
STAMP = 0x600000

sW, sT, sG, sD0 = 3, 4, 5, 50
SX, SWQ, SKV, SWS, SOUT, SWO, SU = 52, 56, 60, 64, 68, 72, 76
sN = 80
sST = 88

LOG2E = 1.4426950408889634
STN = ['start']
KBAR = (0, 40, 1000, 1000, 1000)
KSC = 60
WV0 = 3
OPRIO = 0
APRIO = 3
KPRIO = 0
N1 = 9
LPOS = (2, 3)
PSL = 0
TCH = 10
GL = 66
KB = 3
NP = 1
U0 = (196, 200, 204, 208, 216, 220, 232, 236)
NE = 4
NRD = 0
NLA = 0
NLB = 0
LRND = 3
NREP = 8
PSP = 2
NUP = 10
EXR = 12
PROBE = 0x98986420
LT1 = ('a1', 'a2', 'a3', 'a5')
OST = 2
NXU = 8


def f2u(x):
    return struct.unpack("<I", struct.pack("<f", x))[0]


class LG:
    def __init__(self, a, name, maxc):
        self.a, self.name, self.maxc, self.q = a, name, maxc, []

    def issue(self, tag=None):
        self.q.append(tag)

    def wait(self, tag):
        idx = max(i for i, t in enumerate(self.q) if t == tag)
        n = len(self.q) - 1 - idx
        self.a(f"s_waitcnt {self.name}({min(n, self.maxc)})")
        self.q = self.q[idx + 1:]

    def waitstr(self, tag):
        idx = max(i for i, t in enumerate(self.q) if t == tag)
        n = len(self.q) - 1 - idx
        self.q = self.q[idx + 1:]
        return f"{self.name}({min(n, self.maxc)})"

    def all(self):
        self.q = []


class Gen:
    def __init__(self, stop=None, stamps=False, force_slow=False, dump_regs=None, rt=False, x=()):
        self.rt = rt
        self.x = set(x) | {'pm', 'nohold'} | ({'not'} if 'touch' not in x and 'latet' not in x else set())
        self.a = Asm()
        self.stop = stop
        self.stamps = stamps
        self.force_slow = force_slow
        self.debug = stop is not None or stamps
        self.dump_regs = dump_regs
        self.ncm = 0
        self.stubs = []
        self.lpos = LPOS
        self.psl = PSL
        self.ksc = KSC
        self.tch = TCH
        self.kb = KB
        self.wd = 0
        self.ls, self.lsp = 0, 2
        self.cp = 0 if "cp0" in self.x else 1
        self.ne, self.nr = NE, NRD
        self.nla, self.nlb, self.lr = NLA, NLB, LRND
        self.nrep = NREP
        self.gl, self.psp, self.np = GL, PSP, NP
        self.aprio, self.kprio, self.n1 = APRIO, KPRIO, N1
        for f in self.x:
            if f.startswith("ksc"):
                self.ksc = int(f[3:])
            if f.startswith("ap"):
                self.aprio = int(f[2:])
            if f.startswith("kp"):
                self.kprio = int(f[2:])
            if f.startswith("ps"):
                self.psl = int(f[2:])
            if f.startswith("lp"):
                self.lpos = (int(f[2]), int(f[3]))
            if f.startswith("gl"):
                self.gl = int(f[2:])
            if f.startswith("sp"):
                self.psp = int(f[2:])
            if f.startswith("np"):
                self.np = int(f[2:])
            if f.startswith("rep"):
                self.nrep = int(f[3:])
            if f.startswith("kb"):
                self.kb = int(f[2:])
            if f.startswith("nl"):
                self.nla, self.nlb = int(f[2]), int(f[3])
            if f.startswith("lr"):
                self.lr = int(f[2])
            if f.startswith("ne"):
                self.ne = int(f[2:])
            if f.startswith("nr"):
                self.nr = int(f[2:])
            if f.startswith("lq"):
                self.ls, self.lsp = int(f[2]), int(f[3])
            if f.startswith("wd"):
                self.wd = int(f[2:])
            if f.startswith("tch"):
                self.tch = int(f[3:])
            if f.startswith("n1"):
                self.n1 = int(f[2:])

    def srd(self, d, base, size):
        a = self.a
        a(f"s_mov_b32 s{d}, s{base}")
        a(f"s_mov_b32 s{d+1}, s{base+1}")
        a(f"s_mov_b32 s{d+2}, {size}")
        a(f"s_mov_b32 s{d+3}, 0x20000")

    def stamp(self, name):
        if self.stamps and (not os.environ.get("MINST") or name in os.environ["MINST"].split(",")):
            if name not in STN:
                STN.append(name)
            self.a("s_memtime s[86:87]")
            self.a("s_memrealtime s[88:89]")
            self.a("s_waitcnt lgkmcnt(0)")
            self.a(f"v_writelane_b32 v254, s86, {STN.index(name)}")
            self.a(f"v_writelane_b32 v253, s88, {STN.index(name)}")

    def stop_at(self, name):
        if self.stop == name:
            self.a("s_branch L_dump")

    def cmul(self, d, x, y, conj=False):
        a = self.a
        self.ncm += 1
        if self.ncm > self.ksc:
            a(f"v_mul_f32 v{d}, v{x}, v{y}")
            a(f"v_mul_f32 v{d+1}, v{x+1}, v{y}")
            if conj:
                return [f"v_fmac_f32 v{d}, v{x+1}, v{y+1}", f"v_fma_f32 v{d+1}, -v{x}, v{y+1}, v{d+1}"]
            return [f"v_fma_f32 v{d}, -v{x+1}, v{y+1}, v{d}", f"v_fmac_f32 v{d+1}, v{x}, v{y+1}"]
        a(f"v_pk_mul_f32 {v(d,2)}, {v(x,2)}, {v(y,2)} op_sel:[0,0] op_sel_hi:[1,0]")
        neg = "neg_hi:[0,1,0]" if conj else "neg_lo:[0,1,0]"
        return [f"v_pk_fma_f32 {v(d,2)}, {v(x,2)}, {v(y,2)}, {v(d,2)} op_sel:[1,1,0] op_sel_hi:[0,1,1] {neg}"]

    def cmuls(self, lst, conj=False):
        tail = [self.cmul(d, x, y, conj) for d, x, y in lst]
        for t in tail:
            for ln in t:
                self.a(ln)

    def get_nonce(self, vt, vz):
        a = self.a
        lp, dn = a.label("Lnon"), a.label("Lnond")
        a("s_mov_b32 s82, 0")
        a.put(lp)
        a(f"v_readfirstlane_b32 s{sN}, {v(vt)}")
        a(f"v_readfirstlane_b32 s{sN+1}, {v(vt+1)}")
        a("s_add_u32 s82, s82, 1")
        a(f"s_bitcmp1_b32 s{sN}, 0")
        a(f"s_cbranch_scc1 {dn}")
        a("s_cmp_gt_u32 s82, 20000")
        a(f"s_cbranch_scc1 {dn}")
        a("s_sleep 4")
        a(f"global_load_dwordx2 {v(vt,2)}, {v(vz)}, s[46:47] sc1")
        a("s_waitcnt vmcnt(0)")
        a(f"s_branch {lp}")
        a.put(dn)

    def wdma(self, p, i):
        return [f"s_add_u32 m0, s85, {WOFF[p]+1024*i}", "s_nop 0",
                f"buffer_load_dwordx4 v{2+i}, s[{SWQ}:{SWQ+3}], s{33+p} offen lds"]

    def xdma(self, p, m):
        return [f"s_add_u32 m0, s51, {16384*p+4096*m}", "s_nop 0",
                f"buffer_load_dwordx4 v{26+m}, s[{SX}:{SX+3}], s{28+p} offen lds"]

    def rot(self, d):
        a = self.a
        a(f"s_and_b32 s{d}, s9, 3")
        a(f"s_add_u32 s{d}, s{d}, s{sG}")
        for _ in range(2):
            a(f"s_cmp_ge_u32 s{d}, 5")
            a("s_cselect_b32 s12, 5, 0")
            a(f"s_sub_u32 s{d}, s{d}, s12")

    def qspin(self, target, vt, mask=None, pre=False, sleep=0):
        a = self.a
        lp, dn = a.label("Lq"), a.label("Lqd")
        a("s_mov_b32 s82, 0")
        if not pre:
            a(f"ds_read_b32 v{vt+1}, v{vt}")
        a.put(lp)
        a("s_waitcnt lgkmcnt(0)")
        a(f"v_readfirstlane_b32 s83, v{vt+1}")
        a("s_add_u32 s82, s82, 1")
        if mask:
            a(f"s_and_b32 s83, s83, {mask}")
        a(f"s_cmp_ge_u32 s83, {target}")
        a(f"s_cbranch_scc1 {dn}")
        if sleep:
            a(f"s_sleep {sleep}")
        a(f"ds_read_b32 v{vt+1}, v{vt}")
        a("s_cmp_lt_u32 s82, 0x40000")
        a(f"s_cbranch_scc1 {lp}")
        a("s_waitcnt lgkmcnt(0)")
        a.put(dn)

    def prologue(self):
        a = self.a
        a("s_cmp_ge_u32 s2, 0x100")
        a("s_cbranch_scc1 L_end")
        a("s_load_dwordx16 s[16:31], s[0:1], 0")
        a("s_load_dwordx16 s[32:47], s[0:1], 64")
        a("s_load_dwordx2 s[48:49], s[0:1], 128")
        if self.rt:
            a("s_memrealtime s[98:99]")
            a("s_memtime s[96:97]")
        if self.stamps:
            a("s_memtime s[86:87]")
            a("s_memrealtime s[88:89]")
        a("s_getpc_b64 s[6:7]")
        a.put("L_pc")
        a("s_lshr_b32 s9, s2, 3")
        a("v_lshlrev_b32 v1, 12, v0")
        a("s_lshl_b32 s8, s9, 7")
        a("v_add_u32 v1, s8, v1")
        a("v_min_u32 v1, L_tabA-L_pc+7164, v1")
        a("global_load_dword v255, v1, s[6:7]")
        a("v_lshrrev_b32 v1, 6, v0")
        a("v_and_b32 v0, 63, v0")
        a("s_and_b32 s8, s2, 7")
        a(f"v_readfirstlane_b32 s{sW}, v1")
        a(f"s_and_b32 s{sT}, s9, 3")
        a(f"s_lshl2_add_u32 s{sT}, s8, s{sT}")
        a(f"s_lshr_b32 s{sG}, s9, 2")
        a("v_lshlrev_b32 v8, 4, v0")
        a(f"s_cmp_lt_u32 s{sW}, 4")
        a("s_cbranch_scc0 L_B0")

    def kargwait(self):
        a = self.a
        a("s_waitcnt lgkmcnt(0)")
        if self.stamps:
            a("v_mov_b32 v254, 0")
            a("v_writelane_b32 v254, s86, 0")
            a("v_mov_b32 v253, 0")
            a("v_writelane_b32 v253, s88, 0")
        self.stamp("karg")

    def srds(self):
        self.srd(SWS, 48, 0x10000000 if self.debug else WS_SIZE)
        self.srd(SOUT, 44, 5242880)
        self.srd(SWO, 24, 819200)
        self.srd(SU, 26, 2621440)

    def startA(self):
        a = self.a
        a("s_add_u32 s10, s6, L_tabA-L_pc")
        a("s_addc_u32 s11, s7, 0")
        for k in range(3):
            a(f"global_load_dwordx4 {v(240+4*k,4)}, v8, s[10:11] offset:{1024*k}")
        a("global_load_dwordx4 v[148:151], v8, s[10:11] offset:3072")
        a("v_lshrrev_b32 v2, 4, v0")
        a(f"s_lshl_b32 s13, s{sW}, 2")
        a("v_add_u32 v3, s13, v2")
        a("v_and_b32 v4, 15, v0")
        a("v_xor_b32 v3, v3, v4")
        a("v_lshlrev_b32 v3, 4, v3")
        a("s_movk_i32 s12, 1280")
        a("v_mad_u32_u24 v26, v2, s12, v3")
        for m in range(1, 4):
            a(f"v_add_u32 v{26+m}, {20480*m}, v26")
        a(f"s_mul_i32 s92, s{sT}, 81920")
        a(f"s_mul_i32 s85, s{sW}, 5120")
        a("s_add_u32 s92, s92, s85")
        a(f"s_lshl_b32 s51, s{sW}, 10")
        self.rot(94)
        a(f"s_mul_i32 s84, s{sG}, 160")
        a(f"s_mul_i32 s12, s{sW}, 40960")
        a("s_add_u32 s84, s84, s12")
        a(f"s_add_u32 s91, s85, {WO}")
        a(f"s_add_u32 s85, s85, {WL}")
        a("s_mov_b32 s90, s84")
        self.wvoff(2, True, nat=155, n=WV0)
        self.kargwait()
        self.srd(SX, 16, 2621440)

        def offs(p):
            a(f"s_lshl_b32 s{28+p}, s94, 8")
            a(f"s_add_u32 s{28+p}, s{28+p}, s92")
            a(f"s_mul_i32 s{33+p}, s94, 163840")
            a(f"s_add_u32 s{33+p}, s{33+p}, s84")
            if p < 4:
                a("s_add_u32 s94, s94, 1")
                a("s_cmp_eq_u32 s94, 5")
                a("s_cselect_b32 s94, 0, s94")

        def X(p):
            for m in range(4):
                for ln in self.xdma(p, m):
                    a(ln)

        def W(p):
            for i in range(5):
                for ln in self.wdma(p, i):
                    a(ln)
        offs(0)
        X(0)
        self.srd(SWQ, 18, 819200)
        a(f"s_cmp_lt_u32 s{sG}, 2")
        a("s_cbranch_scc1 L_a_P")
        for i in range(5):
            if i == WV0:
                self.wvoff(2, True, nat=155, n0=WV0)
            for ln in self.wdma(0, i):
                a(ln)
        self.stamp("Xiss")
        for p in range(1, 5):
            offs(p)
        self.qsetup()
        a("s_barrier")
        for k in range(self.n1):
            for ln in (self.xdma(1, k) if k < 4 else self.wdma(1, k - 4)):
                a(ln)
        self.stamp("Wiss")
        a(f"s_setprio {self.aprio}")
        self.qgemm(False)
        a("s_branch L_a_Q")
        for ln in self.stubs:
            a(ln)
        self.stubs = []
        a.put("L_a_P")
        for p in range(1, 5):
            offs(p)
            X(p)
            if p == 1:
                self.wvoff(2, True, nat=155, n0=WV0)
        self.stamp("Xiss")
        if self.kb < 5:
            a(f"s_waitcnt vmcnt({4 * (5 - self.kb)})")
            a("s_barrier")
        W(0)
        if "w1e" in self.x:
            W(1)
        self.qsetup()
        a(f"s_waitcnt vmcnt({10 if 'w1e' in self.x else 5})")
        a("s_barrier")
        self.stamp("B0")
        if "w1e" not in self.x:
            W(1)
        self.qgemm(True)
        a.put("L_a_Q")

    def touchW(self, lo, hi):
        a = self.a
        lab = a.label("Lt")
        out = [f"s_sub_u32 s12, s{sW}, {lo}", f"s_cmp_lt_u32 s12, {hi-lo}", f"s_cbranch_scc0 {lab}",
               f"buffer_load_dword v255, v18, s[{SWQ}:{SWQ+3}], 0 offen"]
        if lo == 6:
            out += ["s_mov_b32 s12, 393216", f"buffer_load_dword v255, v18, s[{SWQ}:{SWQ+3}], s12 offen"]
        return out + [lab + ":"]

    def startB(self):
        a = self.a
        a("s_setprio 3")
        a("v_mov_b64 v[4:5], 0")
        a("v_and_b32 v2, 3, v0")
        a(f"v_mov_b32 v3, {CNT}")
        a("v_lshl_add_u32 v2, v2, 3, v3")
        a("ds_write_b64 v2, v[4:5]")
        a(f"s_mul_i32 s{sD0}, s8, 80")
        a("s_min_u32 s11, s9, 9")
        a(f"s_lshl3_add_u32 s11, s11, s{sD0}")
        a(f"s_lshl2_add_u32 s{sD0}, s9, s{sD0}")
        a(f"s_sub_u32 s{sD0}, s{sD0}, 48")
        a(f"s_cmp_lt_u32 s{sG}, 3")
        a(f"s_cselect_b32 s{sD0}, s11, s{sD0}")
        a(f"s_and_b32 s10, s{sW}, 3")
        a(f"s_cmp_lt_u32 s{sG}, 2")
        a("s_cbranch_scc1 L_b_P")
        a(f"s_add_u32 s12, s{sD0}, s10")
        a("s_lshl_b32 s82, s12, 8")
        a("v_lshl_add_u32 v9, v0, 2, s82")
        a("s_lshl_b32 s12, s12, 1")
        a("v_mov_b32 v17, s12")
        a("v_mov_b32 v16, 0")
        a("s_mul_i32 s12, s10, 1536")
        a("s_add_u32 s12, s12, s9")
        a("s_sub_u32 s12, s12, 8")
        a("s_lshl_b32 s12, s12, 7")
        a("s_movk_i32 s83, 3072")
        a("v_mov_b32 v18, s12")
        a("v_mad_u32_u24 v18, v0, s83, v18")
        self.kargwait()
        self.srd(SWQ, 18, 819200)
        a(f"s_cmp_eq_u32 s{sG}, 2")
        a("s_cbranch_scc1 L_b_G2")
        a("global_load_short_d16_hi v16, v17, s[40:41]")
        for i, p in enumerate((28, 30, 32, 34, 36, 38)):
            a(f"global_load_dword v{160+i}, v9, s[{p}:{p+1}]")
        a(f"s_cmp_lt_u32 s{sW}, {0 if self.x & {'latet', 'not'} else 6}")
        a("s_cselect_b32 s12, 0, 0x80000000")
        a(f"buffer_load_dword v255, v18, s[{SWQ}:{SWQ+3}], s12 offen")
        self.srds()
        self.kgen()
        a("s_branch L_b_6")
        a.put("L_b_G2")
        if "latet" in self.x:
            a("s_waitcnt vmcnt(0)")
        for ln in [] if "not" in self.x else self.touchW(4, 6) + self.touchW(6, 8):
            a(ln)
        self.srds()
        if "notw" not in self.x:
            a("v_lshlrev_b32 v2, 18, v0")
            a("v_mov_b32 v1, 0")
            for w, R in enumerate((SWS, SU, SWO, SOUT)):
                if w == 3 and "tw2" in self.x:
                    continue
                a(f"s_cmp_eq_u32 s10, {w}")
                if w == 0:
                    a("s_mov_b32 s12, 0x3f000")
                a(f"s_cselect_b32 s12, {'s12' if w == 0 else 0}, 0x80000000")
                if w == 0 and self.debug:
                    a("v_min_u32 v2, 0x5c0000, v2")
                a(f"buffer_load_dword v255, v2, s[{R}:{R+3}], s12 offen sc1")
            a("global_load_dword v255, v1, s[46:47] offset:128 sc1")
        self.attn_setup(True, P=True)
        a("v_mov_b32 v1, 0")
        a(f"v_mov_b32 v2, {QC}")
        a("s_setprio 0")
        a("s_barrier")
        a("s_mov_b32 s82, 0")
        a.put("L_g2w")
        a("s_sleep 8")
        a("ds_read_b32 v3, v2")
        a("s_add_u32 s82, s82, 1")
        a("s_waitcnt lgkmcnt(0)")
        a("v_readfirstlane_b32 s83, v3")
        a("s_cmp_gt_u32 s82, 0x4000")
        a("s_cbranch_scc1 L_g2d")
        a("s_cmp_lt_u32 s83, 8")
        a("s_cbranch_scc1 L_g2w")
        a.put("L_g2d")
        a("global_load_dwordx2 v[12:13], v1, s[46:47] sc1")
        a("s_waitcnt vmcnt(0)")
        self.get_nonce(12, 1)
        a("s_branch L_b_5")
        a.put("L_b_P")
        self.rot(13)
        a("s_mul_i32 s13, s13, 5")
        a("s_add_u32 s13, s13, s10")
        self.kargwait()
        a(f"s_cmp_eq_u32 s{sG}, 0")
        a(f"s_cselect_b32 s{SKV}, s20, s22")
        a(f"s_cselect_b32 s{SKV+1}, s21, s23")
        a(f"s_mov_b32 s{SKV+2}, 25600")
        a(f"s_mov_b32 s{SKV+3}, 0x20000")
        a("s_lshl_b32 s12, s10, 10")
        a(f"s_add_u32 m0, s12, {AUX}")
        for i in range(7):
            a("s_lshl_b32 s12, s13, 10")
            if i == 6:
                a(f"s_cmp_eq_u32 s{sW}, 4")
                a("s_cbranch_scc0 L_pro_kv")
            a(f"buffer_load_dwordx4 v8, s[{SKV}:{SKV+3}], s12 offen lds")
            if i < 6:
                a("s_add_u32 m0, m0, 4096")
                a("s_cmp_ge_u32 s13, 21")
                a("s_cselect_b32 s12, -21, 4")
                a("s_add_u32 s13, s13, s12")
        a("s_cmp_eq_u32 s2, 0")
        a("s_cbranch_scc0 L_pro_kv")
        a("s_memrealtime s[84:85]")
        a("v_mov_b32 v10, 0")
        a("s_waitcnt lgkmcnt(0)")
        a("s_or_b32 s84, s84, 1")
        a("v_mov_b32 v12, s84")
        a("v_mov_b32 v13, s85")
        a("s_mov_b64 exec, 1")
        a("global_store_dwordx2 v10, v[12:13], s[46:47] sc1")
        a("s_mov_b64 exec, -1")
        a.put("L_pro_kv")
        self.srds()
        self.attn_setup(True, zero=False, P=True)
        self.kvjob()
        self.bphaseP()

    def wvoff(self, base, perm, t0=20, nat=None, n0=0, n=5):
        a = self.a
        p, q, c, k = t0, t0 + 1, t0 + 2, t0 + 3
        a("s_mov_b32 s82, 0xcccd")
        a("s_movk_i32 s83, 1280")
        for i in range(n0, n):
            a(f"v_add_u32 v{p}, {64*i}, v0")
            a(f"v_mul_u32_u24 v{q}, s82, v{p}")
            a(f"v_lshrrev_b32 v{q}, 19, v{q}")
            a(f"v_mul_u32_u24 v{c}, 10, v{q}")
            a(f"v_sub_u32 v{c}, v{p}, v{c}")
            a(f"v_lshlrev_b32 v{c}, 4, v{c}")
            if nat:
                a(f"v_mad_u32_u24 v{nat+i}, v{q}, s83, v{c}")
            if perm:
                a(f"v_and_b32 v{k}, 1, v{q}")
                a(f"v_bfe_u32 v{p}, v{q}, 1, 2")
                a(f"v_lshl_add_u32 v{k}, v{k}, 2, v{p}")
                a(f"v_and_b32 v{q}, 24, v{q}")
                a(f"v_add_u32 v{q}, v{q}, v{k}")
            a(f"v_mad_u32_u24 v{base+i}, v{q}, s83, v{c}")

    def kgen(self):
        a = self.a
        R0, T, CV, H, D = 32, 64, 72, 80, 112
        FL0, FL1, FH0, FH1 = 176, 192, 208, 224
        Z1, Z8, Z256, WW, B16 = 24, R0 + 2, 22, 20, 30
        TA, KA = 128, (2, 3, 6, 7)
        BIAS = 57344
        self.attn_setup(True, zero=False)
        a(f"s_mul_i32 s11, s10, {KGS}")
        a(f"s_add_u32 m0, s11, {KGB-BIAS}")
        a(f"s_add_u32 s11, s11, {KGB}")
        a("v_and_b32 v45, 15, v0")
        a("v_lshrrev_b32 v46, 4, v0")
        a("v_mul_u32_u24 v27, 0x110, v45")
        a("v_lshl_add_u32 v27, v46, 4, v27")
        a("v_add_u32 v27, s11, v27")
        a("s_add_u32 s11, s11, 16")
        a("v_max_u32 v47, 1, v46")
        a("v_cmp_gt_u32 vcc, 2, v46")
        a("v_add_u32 v47, -1, v47")
        a("v_lshrrev_b32 v47, v47, 16")
        a("v_cndmask_b32 v48, 8, 3, vcc")
        a("v_cmp_eq_u32 vcc, 3, v46")
        a("v_lshlrev_b32 v48, v48, v46")
        a(f"v_mad_u32_u24 v{TA}, v45, v47, v48")
        a(f"v_add_u32 v{TA}, s11, v{TA}")
        a("v_cndmask_b32 v48, 2, 64, vcc")
        a(f"v_lshl_add_u32 v{TA+1}, v48, 1, v{TA}")
        a(f"v_lshl_add_u32 v{TA+2}, v47, 4, v{TA}")
        a(f"v_lshl_add_u32 v{TA+3}, v47, 4, v{TA+1}")
        a(f"v_lshlrev_b32 v{TA+4}, 6, v45")
        a(f"v_lshl_add_u32 v{TA+4}, v46, 3, v{TA+4}")
        a(f"v_add_u32 v{TA+4}, s11, v{TA+4}")
        a("s_sub_u32 s12, s11, 4")
        a(f"v_mov_b32 v{TA+5}, s12")
        a("s_add_u32 s12, s11, 508")
        a(f"v_lshl_add_u32 v{TA+6}, v0, 2, s12")
        a(f"v_lshl_add_u32 v{TA+7}, v0, 3, v{TA+5}")
        a(f"v_mov_b32 v{TA+8}, 0x03020302")
        a("v_cmp_eq_u32 vcc, 0, v0")
        a("v_mov_b32 v53, 0x01000302")
        a(f"s_mul_i32 s11, s10, {KCS}")
        a(f"s_add_u32 s11, s11, {KC}")
        a(f"v_cndmask_b32 v{TA+8}, v{TA+8}, v53, vcc")
        a("v_lshlrev_b32 v48, 5, v0")
        a("s_add_u32 s12, s11, 2016")
        a(f"v_sub_u32 v{KA[0]}, s12, v48")
        a("s_add_u32 s12, s11, 3056")
        a(f"v_sub_u32 v{KA[1]}, s12, v8")
        a("v_lshlrev_b32 v50, 3, v0")
        a("s_add_u32 s12, s11, 3576")
        a(f"v_sub_u32 v{KA[2]}, s12, v50")
        a("v_bfe_u32 v51, v0, 4, 1")
        a("v_mul_u32_u24 v51, 0x1040, v51")
        a("v_lshl_add_u32 v51, v45, 2, v51")
        a(f"v_add_u32 v{KA[3]}, s11, v51")
        l2e_hi = f2u(LOG2E)
        l2e_lo = f2u(LOG2E - struct.unpack("<f", struct.pack("<I", l2e_hi))[0])
        a(f"s_mov_b32 s8, {l2e_hi:#x}")
        a(f"s_mov_b32 s9, {l2e_lo:#x}")
        a("v_mov_b32 v1, 0")
        a("v_mov_b32 v26, 0x3f80")
        a("s_barrier")
        a(f"s_setprio {self.kprio}")
        self.stamp("Bset")
        a("s_waitcnt vmcnt(1)")
        self.stamp("param")
        a(f"s_lshl_b32 s12, s{sD0}, 1")
        a("s_load_dwordx2 s[92:93], s[42:43], s12")
        for ln in [] if "not" in self.x else (self.touchW(4, 6) if "latet" in self.x else []) + self.touchW(6, 8):
            a(ln)
        k0 = len(a.lines)
        a("v_mul_f32 v28, s8, v16")
        a("v_fma_f32 v29, v16, s8, -v28")
        a("v_fmac_f32 v29, s9, v16")
        a("v_exp_f32 v28, v28")
        a(f"v_mul_f32 v29, {f2u(0.6931471805599453):#x}, v29")
        a("v_fma_f32 v28, v28, v29, v28")
        a("v_cvt_pk_bf16_f32 v28, v28, v28")
        a("v_lshlrev_b32 v28, 16, v28")
        r = lambda j: R0 + 2 * j
        h = lambda j: H + 2 * j
        st = dict(cv=0)

        def put(rows):
            w = []
            for j, src in rows:
                if src is None:
                    w.append((j, 26))
                    continue
                c = CV + st["cv"] % 8
                st["cv"] += 1
                a(f"v_cvt_pk_bf16_f32 v{c}, v{src}, v{src+1}")
                w.append((j, c))
            for j, c in w:
                a(f"ds_write_addtid_b32 v{c} offset:{BIAS+272*j}")

        def get(F):
            for sidx in range(4):
                a(f"ds_read_b128 {v(F+4*sidx,4)}, v27 offset:{64*sidx}")

        def mm(first):
            out = []
            for k, (A, B) in enumerate(((FH0, FL0), (FH0, FL1), (FL0, FH1), (FL1, FH1))):
                for sidx in range(4):
                    c = "0" if first and sidx == 0 else v(D + 4 * k, 4)
                    out.append(f"v_mfma_f32_16x16x32_bf16 {v(D+4*k,4)}, {v(A+4*sidx,4)}, {v(B+4*sidx,4)}, {c}")
            return out
        for half in range(2):
            k1 = len(a.lines)
            for i in range(6):
                a(f"v_lshlrev_b32 v{10+i}, 16, v{160+i}" if half == 0 else f"v_and_b32 v{10+i}, 0xffff0000, v{160+i}")
            for i in range(4):
                a(f"v_mul_f32 v{10+i}, v28, v{10+i}")
            a("v_mul_f32 v10, s8, v10")
            a("v_mul_f32 v11, 0.15915494, v11")
            tt = (40, 44, 48)
            for p, t in zip((8, 256), tt):
                a(f"v_mul_f32 v{t}, {f2u(float(p)):#x}, v10")
                a(f"v_mul_f32 v{t+1}, {f2u(float(p)):#x}, v11")
            a(f"v_fract_f32 v{tt[2]+1}, v11")
            a(f"v_fract_f32 v{tt[0]+1}, v{tt[0]+1}")
            a(f"v_fract_f32 v{tt[1]+1}, v{tt[1]+1}")
            a(f"v_exp_f32 v{tt[2]}, v10")
            a(f"v_exp_f32 v{tt[0]}, v{tt[0]}")
            a(f"v_exp_f32 v{tt[1]}, v{tt[1]}")
            for t in tt:
                a(f"v_cos_f32 v{t+2}, v{t+1}")
                a(f"v_sin_f32 v{t+3}, v{t+1}")
            if half:
                body = a.lines[k1:]
                del a.lines[k1:]
                pend = mm(True)
                for n, ln in enumerate(body):
                    if n == 4:
                        a("s_waitcnt lgkmcnt(9)")
                    if n == 18:
                        a("s_waitcnt lgkmcnt(0)")
                    if (4 <= n < 18 and n % 2 == 0 or n >= 18) and pend:
                        a(pend.pop(0))
                    a(ln)
                assert not pend
            self.cmuls([(WW, 14, 12)])
            for Z, t in zip((Z8, Z256, Z1), tt):
                a(f"v_mul_f32 v{Z}, v{t+2}, v{t}")
                a(f"v_mul_f32 v{Z+1}, v{t+3}, v{t}")
            a(f"v_xor_b32 v{WW+1}, 0x80000000, v{WW+1}")
            self.cmuls([(r(2), r(1), r(1))])
            self.cmuls([(r(3), r(2), r(1)), (r(4), r(2), r(2))])
            put([(0, None), (1, r(1)), (2, r(2)), (3, r(3)), (4, r(4))])
            self.cmuls([(r(4 + i), r(4), r(i)) for i in range(1, 5)])
            put([(4 + i, r(4 + i)) for i in range(1, 5)])
            self.cmuls([(r(8 + i), r(8), r(i)) for i in range(1, 5)])
            put([(8 + i, r(8 + i)) for i in range(1, 5)])
            self.cmuls([(r(8 + i), r(8), r(i)) for i in range(5, 8)] + [(B16, r(8), r(8))])
            put([(8 + i, r(8 + i)) for i in range(5, 8)])
            get(FL0)
            for g4 in range(4):
                js = [j for j in range(4 * g4, 4 * g4 + 4) if j]
                self.cmuls([(T + 2 * (j % 4), r(j), B16) for j in js])
                put(([(0, B16)] if g4 == 0 else []) + [(j, T + 2 * (j % 4)) for j in js])
            get(FL1)
            for g4 in range(2):
                for j in range(4 * g4, 4 * g4 + 4):
                    self.cmuls([(h(j), h(j - 1) if j else WW, Z1)], conj=True)
                put([(j, h(j)) for j in range(4 * g4, 4 * g4 + 4)])
            self.cmuls([(h(8), h(1), Z256), (h(9), h(3), Z256), (h(10), h(5), Z256), (h(11), h(7), Z256)], conj=True)
            put([(j, h(j)) for j in range(8, 12)])
            self.cmuls([(h(12), h(9), Z256), (h(13), h(11), Z256)], conj=True)
            self.cmuls([(h(14), h(12), Z256), (h(15), h(13), Z256)], conj=True)
            put([(j, h(j)) for j in range(12, 16)])
            get(FH0)
            for j in range(4):
                self.cmuls([(T + 2 * j, T + 2 * j - 2 if j else h(15), Z256)], conj=True)
            self.kpk = len(a.lines) - k0
            self.stamp(f"kh{half}")
            put([(j, T + 2 * j) for j in range(4)] + [(4, WW)])
            get(FH1)
        self.kleft = 0
        a("global_load_dwordx2 v[12:13], v1, s[46:47] sc1")
        m = mm(False)
        a("s_waitcnt lgkmcnt(9)")
        for ln in m[:8]:
            a(ln)
        a("s_waitcnt lgkmcnt(0)")
        for ln in m[8:]:
            a(ln)
        sel = dict(cc=0x07060706, bb=0x05040504, aa=0x03020302, ba=0x03020504, cb=0x05040706)
        sreg = {}
        for i, (k, x) in enumerate(sel.items()):
            sreg[k] = 8 + i if i < 2 else 13 + i - 2
            a(f"s_mov_b32 s{sreg[k]}, {x:#x}")
        for i in range(8):
            a(f"v_cvt_pk_bf16_f32 v{32+i}, v{D+2*i}, v{D+2*i+1}")
            if i < 4:
                a(f"ds_write_b32 v{TA+i}, v{32+i}")
        a(f"v_cvt_pk_bf16_f32 v49, 0, v{D+8}")
        a(f"ds_write_b64 v{TA+4}, v[36:37] offset:1024")
        a(f"ds_write_b64 v{TA+4}, v[38:39] offset:1056")
        a("s_mov_b64 exec, 16")
        a(f"ds_write_b32 v{TA+5}, v49")
        a("s_mov_b64 exec, -1")
        a(f"ds_read2_b32 v[54:55], v{TA+6} offset0:128 offset1:129")
        a(f"ds_read2_b32 v[56:57], v{TA+6} offset0:64 offset1:65")
        a(f"ds_read2_b32 v[58:59], v{TA+6} offset0:0 offset1:1")
        a(f"ds_read2_b32 v[60:61], v{TA+7} offset0:0 offset1:1")
        a(f"ds_read_b32 v62, v{TA+7} offset:8")
        self.ozero()
        a("s_waitcnt lgkmcnt(0)")

        def perms(dst, pat, d0):
            for i, k in enumerate(pat):
                a(f"v_perm_b32 v{dst+i}, v{d0+1}, v{d0}, s{sreg[k]}")
        perms(224, ["cc", "cc", "bb", "bb", "bb", "ba", "aa", "aa"], 54)
        perms(232, ["cc", "cb", "bb", "bb", "bb", "aa", "aa", "aa"], 54)
        perms(196, ["cc", "bb", "ba", "aa"], 56)
        perms(200, ["cb", "bb", "aa", "aa"], 56)
        perms(204, ["cb", "aa"], 58)
        perms(206, ["ba"], 58)
        a(f"v_perm_b32 v207, v59, v58, v{TA+8}")
        a(f"v_perm_b32 v208, v62, v61, s{sreg['ba']}")
        a(f"v_perm_b32 v209, v61, v60, s{sreg['ba']}")
        a("v_alignbit_b32 v210, v61, v61, 16")
        a("v_alignbit_b32 v211, v60, v60, 16")
        self.klen = len(a.lines) - k0
        self.stamp("kend")
        a("s_waitcnt vmcnt(0)")
        self.get_nonce(12, 1)

    def kvjob(self):
        a = self.a
        a("v_and_b32 v20, 31, v0")
        a("v_lshrrev_b32 v21, 5, v0")
        a("v_and_b32 v22, 0x13, v20")
        a("v_bfe_u32 v23, v20, 2, 1")
        a("v_lshl_or_b32 v22, v23, 3, v22")
        a("v_bfe_u32 v23, v20, 3, 1")
        a("v_lshl_or_b32 v22, v23, 2, v22")
        a(f"s_cmp_eq_u32 s{sG}, 1")
        a("s_cselect_b64 vcc, -1, 0")
        a("v_cndmask_b32 v20, v20, v22, vcc")
        a(f"s_and_b32 s10, s{sW}, 1")
        a(f"s_bfe_u32 s11, s{sW}, 0x10001")
        a("v_and_b32 v22, 15, v20")
        a("v_xor_b32 v22, v22, v21")
        a("v_lshlrev_b32 v22, 4, v22")
        a("v_lshl_or_b32 v22, v20, 8, v22")
        a("s_lshl_b32 s12, s10, 13")
        a("s_lshl_b32 s13, s11, 7")
        a("s_or_b32 s12, s12, s13")
        a("v_xor_b32 v10, s12, v22")
        for k in range(1, 4):
            a(f"v_xor_b32 v{10+k}, {32*k}, v10")
        a("v_bfe_u32 v22, v0, 2, 2")
        a("v_lshl_add_u32 v22, v21, 3, v22")
        a("v_mul_u32_u24 v22, 40, v22")
        a("v_bfe_u32 v23, v0, 4, 1")
        a("v_and_b32 v24, 3, v0")
        a("v_lshl_add_u32 v23, v23, 2, v24")
        a("v_cmp_lt_u32 vcc, 4, v23")
        a("v_mov_b32 v24, 0x30000")
        a("v_lshl_add_u32 v22, v23, 3, v22")
        a("s_mul_i32 s12, s11, 2560")
        a(f"s_add_u32 s12, s12, {AUX}")
        a("v_cndmask_b32 v22, v22, v24, vcc")
        a("v_add_u32 v14, s12, v22")
        a("s_waitcnt vmcnt(0) lgkmcnt(0)")
        a("s_barrier")
        self.stamp("Bk0")
        a(f"s_cmp_eq_u32 s{sG}, 1")
        a("s_cbranch_scc1 L_kv_V")
        ACC = 80
        for isV in (0, 1):
            if isV:
                a.put("L_kv_V")
            lg = LG(a, "lgkmcnt", 15)

            def issue(n, x=True, w=True):
                b, ks = divmod(n, 4)
                if x:
                    if n == 16:
                        for k in range(4):
                            a(f"v_add_u32 v{10+k}, 0x10000, v{10+k}")
                    a(f"ds_read_b128 {v(xf(n),4)}, v{10+ks} offset:{16384*(b%4)}")
                    lg.issue(n)
                if w:
                    a(f"ds_read_b64_tr_b16 {v(wf(n),2)}, v14 offset:{5120*b+640*ks}")
                    a(f"ds_read_b64_tr_b16 {v(wf(n)+2,2)}, v14 offset:{5120*b+640*ks+160}")
                    for _ in range(2):
                        lg.issue(n if x else "w")
            n1 = 4 * self.kb
            xf = lambda n: 16 + 8 * (n % 6) if n < n1 else 160 + 4 * (n - n1)
            wf = lambda n: 20 + 8 * (n % 6) if n < n1 else 96 + 4 * (n - n1)
            late = list(range(n1, 20))
            for n in range(5):
                issue(n)
            for n in range(20):
                if n == n1:
                    a("s_barrier")
                    self.stamp("B0")
                    for m in range(n1, 20):
                        issue(m, w=False)
                lg.wait(n)
                A, B = (xf(n), wf(n)) if isV else (wf(n), xf(n))
                a(f"v_mfma_f32_32x32x16_bf16 {v(ACC,16)}, {v(A,4)}, {v(B,4)}, {'0' if n == 0 else v(ACC,16)}")
                if n + 5 < n1:
                    issue(n + 5)
                elif n < n1:
                    for _ in range(-(-len(late) // (n1 - n))):
                        issue(late.pop(0), x=False)
            if not isV:
                a("s_branch L_kv_d")
        a.put("L_kv_d")
        a("s_lshl_b32 s12, s10, 12")
        a(f"s_add_u32 s12, s12, {KVP}")
        a("v_add_u32 v15, s12, v8")
        a(f"s_cmp_lt_u32 s{sW}, 6")
        a("s_cbranch_scc1 L_p_fin")
        a.nop(10)
        for i in range(4):
            a(f"ds_write_b128 v15, {v(ACC+4*i,4)} offset:{1024*i}")
        a("s_waitcnt lgkmcnt(0)")
        a("s_barrier")
        a("v_mov_b32 v1, 0")
        a("global_load_dwordx2 v[12:13], v1, s[46:47] sc1")
        self.ozero()
        a("s_waitcnt vmcnt(0)")
        self.get_nonce(12, 1)
        a("s_branch L_b_5")

    def qsetup(self):
        a = self.a
        XA, WA = 64, 72
        a("v_and_b32 v20, 31, v0")
        a("v_lshrrev_b32 v21, 5, v0")
        a("v_and_b32 v22, 15, v20")
        a("v_xor_b32 v22, v22, v21")
        a("v_lshlrev_b32 v22, 4, v22")
        a(f"v_lshl_or_b32 v{XA}, v20, 8, v22")
        for k in range(1, 8):
            a(f"v_xor_b32 v{XA+k}, {32*k}, v{XA}")
        a("v_bfe_u32 v22, v0, 2, 2")
        a("v_lshlrev_b32 v22, 1, v22")
        a("v_lshl_add_u32 v22, v21, 3, v22")
        a("v_mul_u32_u24 v22, 0xa0, v22")
        a("v_bfe_u32 v23, v0, 4, 1")
        a("v_and_b32 v24, 3, v0")
        a("v_lshl_add_u32 v23, v23, 2, v24")
        if "noqz" in self.x:
            a("v_min_u32 v23, 4, v23")
        else:
            a("v_cmp_lt_u32 vcc, 4, v23")
            a("v_mov_b32 v24, 0x30000")
        a("v_lshl_add_u32 v22, v23, 3, v22")
        a(f"s_mul_i32 s12, s{sW}, 40")
        a(f"s_add_u32 s12, s12, {WL}")
        if "noqz" not in self.x:
            a("v_cndmask_b32 v22, v22, v24, vcc")
        a(f"v_add_u32 v{WA}, s12, v22")
        a(f"v_add_u32 v{WA+1}, {WOFF[1]}, v{WA}")
        a(f"v_mov_b32 v74, {QC}")
        a("v_mov_b32 v76, 1")
        a("v_mov_b32 v77, 0x100")
        a("v_min_u32 v78, 1, v0")
        a("v_lshl_add_u32 v78, v78, 15, v74")
        a("v_mov_b32 v1, 0")
        self.srds()
        self.setupA()

    def qgemm(self, kv):
        a = self.a
        XA, WA, RG = 64, 72, 168
        lg = LG(a, "lgkmcnt", 15)
        vm = LG(a, "vmcnt", 63)
        for p in range(2):
            for _ in range(5 if kv else (9, self.n1)[p]):
                vm.issue(p)

        def arrive(r):
            a(f"ds_add_u32 v78, v{r}")
            lg.issue("a")

        def peek():
            a("ds_read_b32 v75, v74")
            lg.issue("c")

        def check(field, target, again=False):
            lab = a.label("Lck")
            if not again and "c" in lg.q:
                lg.wait("c")
            t = [f"v_cmp_gt_u32_sdwa vcc, {target}, v75 src0_sel:DWORD src1_sel:BYTE_{0 if field == 0x60000 else 1}"]
            for ln in t:
                a(ln)
            a(f"s_cbranch_vccnz {lab}s")
            a.put(lab)
            self.stubs += [lab + "s:", "ds_read_b32 v75, v74", "s_add_u32 s82, s82, 1", "s_waitcnt lgkmcnt(0)"] + t + [
                f"s_cbranch_vccz {lab}", "s_cmp_lt_u32 s82, 0x40000", f"s_cbranch_scc1 {lab}s", f"s_branch {lab}"]

        def issue(n, hs=(0, 1)):
            c, ks = divmod(n, 8)
            wreg = WA + 1 if WOFF[c] > 40000 else WA
            woff = 0 if WOFF[c] > 40000 else WOFF[c]
            F = RG + 12 * (n % 6)
            for h in hs:
                if c == 4 and h == 0:
                    a(f"v_add_u32 v{XA+ks}, 0x10000, v{XA+ks}")
                a(f"ds_read_b64_tr_b16 {v(F+2*h,2)}, v{wreg} offset:{woff+2560*ks+160*h}")
                a(f"ds_read_b128 {v(F+4+4*h,4)}, v{XA+ks} offset:{16384*(c%4)+8192*h}")
                for _ in range(2):
                    lg.issue(n)
        if not kv:
            a(f"s_waitcnt vmcnt({len(vm.q)})")
        for ln in self.setupA2():
            a(ln)
        a(f"s_mov_b32 s10, {f2u(LOG2E / 20 ** 0.5):#x}")
        a(f"s_mul_i32 s13, s{sW}, 2560")
        a(f"s_add_u32 s13, s13, {QP}")
        a("v_add_u32 v12, s13, v8")
        a("v_lshl_add_u32 v13, v0, 3, s13")
        if "fstr" in self.x:
            a("v_lshrrev_b32 v18, 1, v0")
            a("v_lshlrev_b32 v18, 7, v18")
            a("v_and_b32 v19, 1, v0")
            a("v_lshl_add_u32 v18, v19, 4, v18")
        else:
            a("v_lshlrev_b32 v18, 8, v0")
        a(f"s_and_b32 s13, s2, {self.nrep-1}")
        a("s_lshl_b32 s13, s13, 14")
        a(f"s_cmp_eq_u32 s{sW}, 0")
        a(f"s_cselect_b32 s13, s13, 0x80000000")
        a(f"s_add_u32 s13, s13, {FLG_KV}")
        a("s_getreg_b32 s97, hwreg(HW_REG_XCC_ID, 0, 4)")
        a("s_lshl_b32 s97, s97, 28")
        if kv:
            a("s_barrier")
        vm.wait(0)
        self.stamp("ownld")
        arrive(76)
        self.qspin(4, 74, mask=63)
        a("s_mov_b32 s82, 0")
        lg.all()
        self.stamp("B1")
        for n in range(3):
            issue(n)
        X = lambda p: [] if kv else [(p, self.xdma(p, m)) for m in range(4)]
        W = lambda p: [(p, self.wdma(p, i)) for i in range(5)]
        if not kv:
            for k in range(self.n1, 9):
                for ln in (self.xdma(1, k) if k < 4 else self.wdma(1, k - 4)):
                    a(ln)
                vm.issue(1)
        La, Lp = self.lpos
        sp = {}
        for c in range(5):
            if c < 4:
                sp[16 * c + 2 * La + 1] = ("L", c)
                sp[16 * c + 2 * Lp + 1] = ("p",)
                sp[16 * c + 10] = ("c", 0x60000, 4 * (c + 2), c)
            if c != 4:
                sp[16 * c + 9] = ("F",) if Lp != 4 else ("Fp",)
            if c < 2:
                sp[16 * c + 11] = ("p",)
                sp[16 * c + 15] = ("c", 0x80008, 4 * (c + 1), None)
        sp[68] = ("p",)
        sp[72] = ("c", 0x80008, 16, None)
        PR = (20, 124, 128)[:self.np]
        if "fstr" in self.x:
            poll = lambda r: [f"buffer_load_dwordx4 {v(r,4)}, v18, s[{SWS}:{SWS+3}], s13 offen sc1"]
        else:
            poll = lambda r: [f"buffer_load_dwordx2 {v(r+2*e,2)}, v18, s[{SWS}:{SWS+3}], s13 offen offset:{128*e} sc1" for e in range(2)]
        q = []
        for g in range(80):
            n, h = divmod(g, 2)
            if g == (self.wd if kv else 0):
                q += X(2) + W(2) + X(3)
            if g == 16:
                q += W(3) + X(4)
            if g == 32:
                q = W(4) + q + [(4, [None, None, "global_load_dwordx2 v[16:17], v1, s[46:47] sc1"])]
            for k, r in enumerate(PR):
                if g == self.gl - self.psp * (self.np - k):
                    q += [(5, [None, None, y]) for y in poll(r)]
            F = RG + 12 * (n % 6)
            if h == 0 and n in lg.q:
                lg.wait(n)
            D = v(32 + 16 * h, 16)
            a(f"v_mfma_f32_32x32x16_bf16 {D}, {v(F,4)}, {v(F+4+4*h,4)}, {'0' if n == 0 else D}")
            x = sp.get(g)
            d = q.pop(0) if q and (not x or x[0] == "p") else None
            if x and x[0] == "c":
                check(x[1], x[2])
                if g == 58:
                    check(0x80008, 12, True)
                if "qst" in self.x and x[3] is not None:
                    self.stamp(f"B{2+x[3]}")
            if d and d[1][0]:
                a(d[1][0])
            if n + 3 < 40:
                issue(n + 3, (h,))
            elif d and d[1][0]:
                a(d[1][1])
            if d:
                a(d[1][2])
                vm.issue(d[0])
            if g == self.gl:
                assert not q and g >= 58
                self.get_nonce(16, 1)
                lp, dn, ot, go = a.label("Lpk"), a.label("Lpkd"), a.label("Lpko"), a.label("Lpkg")
                a(f"s_cmp_eq_u32 s{sW}, 0")
                a(f"s_cbranch_scc0 {ot}")
                a("v_mov_b32 v76, 64")
                if "ack" in self.x:
                    self.stamp("p0")
                    a("s_waitcnt vmcnt(0)")
                    self.stamp("p1")
                a("s_mov_b32 s82, 0")
                a.put(lp)
                for r in PR:
                    a(f"s_waitcnt vmcnt({(self.np-1)*len(poll(r))})")
                    a(f"v_cmp_eq_u64 vcc, s[{sN}:{sN+1}], {v(r,2)}")
                    a(f"v_cmp_eq_u64 s[84:85], s[{sN}:{sN+1}], {v(r+2,2)}")
                    a("s_add_u32 s82, s82, 1")
                    a("s_and_b64 vcc, vcc, s[84:85]")
                    a("s_cmp_eq_u64 vcc, -1")
                    a(f"s_cbranch_scc1 {dn}")
                    if self.psl:
                        a(f"s_sleep {self.psl}")
                    if "pm" in self.x:
                        a("s_not_b64 exec, vcc")
                    for y in poll(r):
                        a(y)
                    if "pm" in self.x:
                        a("s_mov_b64 exec, -1")
                a("s_cmp_lt_u32 s82, 40000")
                a(f"s_cbranch_scc1 {lp}")
                a.put(dn)
                a("ds_add_u32 v78, v76")
                if "ack" in self.x and self.stamps:
                    if "npoll" not in STN:
                        STN.append("npoll")
                    a("v_readlane_b32 s83, v254, 0")
                    a("s_nop 3")
                    a("s_mul_i32 s82, s82, 100")
                    a("s_add_u32 s83, s83, s82")
                    a(f"v_writelane_b32 v254, s83, {STN.index('npoll')}")
                    a(f"v_writelane_b32 v253, s88, {STN.index('npoll')}")
                for ln in self.kvdma(0, -1)[2:-1]:
                    a(ln)
                a("s_waitcnt lgkmcnt(0)")
                a(f"s_branch {go}")
                a.put(ot)
                self.qspin(64, 74, mask=255, sleep=1)
                a.put(go)
                lg.all()
                self.stamp("kvseen")
                a("s_mov_b32 s82, 0")
                q += [(6, [f"s_add_u32 m0, s51, {4096*i}", "s_nop 0",
                           f"buffer_load_dwordx4 v8, s[{SWS}:{SWS+3}], m0 offen sc1 lds"]) for i in range(10)]
            if x and x[0] == "L":
                assert all(y[0] != x[1] + 1 for y in q)
                vm.wait(x[1] + 1)
                arrive(76)
            if x and x[0][0] == "F":
                arrive(77)
            if x and x[0][-1] == "p":
                peek()
        for d in q:
            for ln in d[1]:
                a(ln)

    def qfinish(self):
        a = self.a
        a(f"s_xor_b32 s97, s97, s{sN+1}")
        a(f"s_mov_b32 s96, s{sN}")
        a("v_mov_b64 v[4:5], -1")
        a("v_mov_b64 v[6:7], -1")
        a("v_mov_b32 v14, s96")
        a("v_mov_b32 v15, s97")
        a("s_nop 0")
        for T, O in ((0, 32), (1, 48)):
            for r in range(12):
                a(f"v_mul_f32 v{O+r}, s10, v{O+r}")
            for q in range(4):
                a(f"v_cvt_pk_bf16_f32 v{112+4*T+q}, v{O+2*q}, v{O+2*q+1}")
            a(f"ds_write_b128 v12, {v(112+4*T,4)} offset:{1024*T}")
            for q in range(2):
                a(f"v_cvt_pk_bf16_f32 v{120+2*T+q}, v{O+8+2*q}, v{O+9+2*q}")
        a("s_nop 1")
        a("v_permlane32_swap_b32 v120, v122")
        a("v_permlane32_swap_b32 v121, v123")
        a("ds_write_b64 v13, v[120:121] offset:2048")
        self.stamp("Qdone")

    def bphaseP(self):
        a = self.a
        a.put("L_p_fin")
        a("v_mov_b32 v1, 0")
        a("global_load_dwordx2 v[12:13], v1, s[46:47] sc1")
        a(f"s_mul_i32 s12, s{sT}, {BLK}")
        a("v_and_b32 v40, 31, v0")
        a("v_lshrrev_b32 v41, 5, v0")
        a("v_bfrev_b32 v44, 1")
        a(f"s_cmp_eq_u32 s{sG}, 1")
        a("s_cbranch_scc1 L_b_PV")
        a("s_lshl_b32 s13, s10, 10")
        a("s_add_u32 s13, s13, s12")
        a("v_lshlrev_b32 v42, 3, v0")
        a("v_cmp_gt_u32 vcc, 32, v0")
        a("s_lshl_b32 s14, s10, 8")
        a("s_add_u32 s14, s14, s12")
        a("v_cndmask_b32 v42, v44, v42, vcc")
        a("s_barrier")
        self.stamp("B1")
        for i in range(4):
            a(f"ds_read_b128 {v(16+4*i,4)}, v15 offset:{1024*i}")
        a("s_waitcnt lgkmcnt(0)")
        for i in range(12):
            a(f"v_add_f32 v{80+i}, v{80+i}, v{16+i}")
        for i in range(6):
            a(f"v_cvt_pk_bf16_f32 v{32+i}, v{80+2*i}, v{80+2*i+1}")
        a(f"buffer_store_dwordx4 v[32:35], v8, s[{SWS}:{SWS+3}], s13 offen sc1")
        a(f"buffer_store_dwordx2 v[36:37], v42, s[{SWS}:{SWS+3}], s14 offen offset:2048 sc1")
        a("s_branch L_p_2")
        a.put("L_b_PV")
        a("s_mul_i32 s13, s10, 1344")
        a("s_add_u32 s13, s13, s12")
        a("v_mul_u32_u24 v42, 0x150, v41")
        a("v_lshl_add_u32 v42, v40, 4, v42")
        a("v_cmp_gt_u32 vcc, 21, v40")
        a("v_mov_b32 v43, 0x3f803f80")
        a("s_nop 0")
        a("v_cndmask_b32 v42, v44, v42, vcc")
        a("v_cmp_eq_u32 vcc, 20, v40")
        a("s_barrier")
        self.stamp("B1")
        for i in range(4):
            a(f"ds_read_b128 {v(16+4*i,4)}, v15 offset:{1024*i}")
        a("s_waitcnt lgkmcnt(0)")
        for i in range(16):
            a(f"v_add_f32 v{80+i}, v{80+i}, v{16+i}")
        for i in range(8):
            a(f"v_cvt_pk_bf16_f32 v{32+i}, v{80+2*i}, v{80+2*i+1}")
        for i in range(8):
            a(f"v_cndmask_b32 v{32+i}, v{32+i}, v43, vcc")
        a(f"buffer_store_dwordx4 v[32:35], v42, s[{SWS}:{SWS+3}], s13 offen offset:2560 sc1")
        a(f"buffer_store_dwordx4 v[36:39], v42, s[{SWS}:{SWS+3}], s13 offen offset:3232 sc1")
        a.put("L_p_2")
        self.stamp("kvst")
        fs = (7, 4, 3) if "fstr" in self.x else (9, 8, 7)
        a(f"s_lshl_b32 s12, s{sT}, {fs[0]}")
        a(f"s_lshl_b32 s13, s{sG}, {fs[1]}")
        a("s_add_u32 s12, s12, s13")
        a(f"s_lshl_b32 s13, s10, {fs[2]}")
        a("s_add_u32 s12, s12, s13")
        a(f"s_add_u32 s12, s12, {FLG_KV}")
        self.ozero()
        a("v_lshlrev_b32 v40, 14, v0")
        a("s_waitcnt vmcnt(0)")
        self.get_nonce(12, 1)
        a(f"s_mov_b64 exec, {hex((1 << self.nrep) - 1) if self.nrep < 32 else 's[82:83]'}" if self.nrep < 32 else "s_mov_b32 exec_hi, 0")
        a(f"buffer_store_dwordx2 v[12:13], v40, s[{SWS}:{SWS+3}], s12 offen sc1")
        a("s_mov_b64 exec, -1")
        self.stamp("kvflag")
        if "ack" in self.x:
            a("s_waitcnt vmcnt(0)")
            self.stamp("kvack")

    def bphase1(self):
        a = self.a
        a.put("L_b_5")
        for r in (2, 3, 6, 7):
            a(f"v_mov_b32 v{r}, 0x30000")
        a.put("L_b_6")
        a(f"s_and_b32 s10, s{sW}, 3")
        a("s_mul_i32 s13, s10, 2560")
        a(f"s_add_u32 s13, s13, {QP}")
        a("v_add_u32 v12, s13, v8")
        a("v_lshl_add_u32 v13, v0, 3, s13")
        self.stamp("B6")

    def kvdma(self, c, i):
        if i < 0:
            lab = self.a.label("Lx")
            return [f"s_cmp_eq_u32 s{sW}, 0", f"s_cbranch_scc0 {lab}",
                    f"s_mov_b32 m0, {SLOT*(c%3)+40960}", f"s_mov_b32 s12, {SLOT*c+40960}",
                    f"buffer_load_dwordx4 v8, s[{SWS}:{SWS+3}], s12 offen sc1 lds", lab + ":"]
        return [f"s_add_u32 m0, s51, {SLOT*(c%3)+8192*i}", f"s_add_u32 s12, s51, {SLOT*c+8192*i}",
                f"buffer_load_dwordx4 v8, s[{SWS}:{SWS+3}], s12 offen sc1 lds"]

    def ozero(self):
        for r in range(16):
            self.a(f"v_mov_b64 {v(80+2*r,2)}, 0")

    def attn_setup(self, isB, zero=True, P=False):
        a = self.a
        O0 = 80
        IDX, AK16, AK4, AV = 144, 145, 148, 151
        UOFF, USW, USR, UTW, UTZ = 155, 156, 157, 158, 159
        a(f"s_lshl_b32 s51, s{sW}, 10")
        kh = BLK if isB else 0
        a(f"v_add_u32 v{AK16}, {kh}, v8" if kh else f"v_mov_b32 v{AK16}, v8")
        a(f"v_lshlrev_b32 v{AK4}, 3, v0")
        a(f"v_add_u32 v{AK4}, {kh+2048}, v{AK4}")
        a("v_and_b32 v60, 31, v0")
        a("v_cmp_lt_u32 vcc, 20, v60")
        a("v_lshrrev_b32 v62, 5, v0")
        a("v_mul_u32_u24 v62, 0x150, v62")
        a("v_lshl_add_u32 v61, v60, 4, v62")
        a(f"v_add_u32 v{AV}, {kh+2560}, v61")
        a("v_mov_b32 v61, 0x30000")
        a(f"v_cndmask_b32 v{AV}, v{AV}, v61, vcc")
        for r in (AK16, AK4, AV):
            a(f"v_add_u32 v{r+1}, {SLOT}, v{r}")
            a(f"v_add_u32 v{r+2}, {2*SLOT}, v{r}")
        a(f"v_mov_b32 v{IDX}, 0xdddddddd")
        if zero:
            self.ozero()
        if isB:
            a(f"s_and_b32 s10, s{sW}, 3")
            a(f"s_lshl_b32 s12, s{sD0}, 1")
            if P:
                a("s_load_dwordx4 s[92:95], s[42:43], s12")
                a("s_and_b32 s13, s10, 1")
                a("s_mul_i32 s11, s13, 655360")
                a("s_add_u32 s11, s11, s12")
                a("s_lshr_b32 s14, s10, 1")
                a("s_lshl3_add_u32 s11, s14, s11")
                a("s_cmp_lt_u32 s2, 80")
                a("s_cselect_b32 s11, s11, 0x80000000")
            else:
                a("s_mul_i32 s11, s10, 655360")
                a("s_add_u32 s11, s11, s12")
            a("s_movk_i32 s12, 1280")
            a("v_mov_b32 v1, s11")
            a(f"v_mad_u32_u24 v{UOFF}, v0, s12, v1")
            a("s_lshl_b32 s11, s10, 9")
            a(f"s_add_u32 s11, s11, {USCR}")
            a(f"v_lshl_add_u32 v{USW}, v0, 3, s11")
            a("v_and_b32 v1, 48, v0")
            a("v_and_b32 v2, 3, v0")
            a("v_lshl_add_u32 v1, v2, 2, v1")
            a("v_bfe_u32 v3, v0, 2, 2")
            a("v_add_u32 v1, v1, v3")
            a(f"v_lshl_add_u32 v{USR}, v1, 3, s11")
            uts = UTP if P else UTS
            if P:
                a(f"s_mul_i32 s11, s14, {4*UTP}")
                a("s_lshl_b32 s13, s13, 10")
                a("s_add_u32 s11, s11, s13")
            else:
                a("s_lshl_b32 s11, s10, 10")
            a(f"s_add_u32 s11, s11, {UT+480}")
            a("v_lshrrev_b32 v1, 2, v0")
            a("v_lshl_add_u32 v1, v1, 3, s11")
            a(f"s_movk_i32 s12, {uts}")
            a(f"v_mad_u32_u24 v{UTW}, v2, s12, v1")
            a(f"s_mul_i32 s11, s10, {uts}")
            a(f"s_add_u32 s11, s11, {UT}")
            a("v_min_u32 v1, 59, v0")
            a(f"v_lshl_add_u32 v{UTZ}, v1, 3, s11")
            a(f"v_add_u32 v249, {4*UTP if P else 0}, v{UTZ}")
            a("v_mov_b32 v4, 0")
            a("v_mov_b32 v5, 0")
            self.setupB(P)

    def attention(self, isB):
        a = self.a
        S = (16, 48)
        O0, O1, QA, QB, Q4, K4, K16 = 80, 96, 112, 116, 120, 122, 124
        V = (128, 136)
        IDX, AK16, AK4, AV = 144, 145, 148, 151
        URAW, UTR = 160, 176
        UOFF, USW, USR, UTW, UTZ = 155, 156, 157, 158, 159
        vq = []
        if not isB:
            vq = ["c0"] * 4
        a("s_waitcnt lgkmcnt(0)" if isB else "s_waitcnt vmcnt(4) lgkmcnt(0)")
        a("s_barrier")
        self.stamp("E0")
        self.stop_at("e0")
        if isB:
            a("ds_read_b64 v[120:121], v13 offset:2048")
            a("ds_read_b128 v[112:115], v12")
            a("ds_read_b128 v[116:119], v12 offset:1024")
        lg = LG(a, "lgkmcnt", 15)

        def loc(m):
            c = m >> 3
            return c % 3, 2 * BLK * ((m >> 1) & 3), m & 1

        def rdK16(m):
            sl, off, aa = loc(m)
            a(f"ds_read_b128 {v(K16,4)}, v{AK16+sl} offset:{off+1024*aa}")
            lg.issue(("K16", m))

        def rdK4(m):
            sl, off, aa = loc(m)
            a(f"ds_read_b64 {v(K4,2)}, v{AK4+sl} offset:{off}")
            lg.issue(("K4", m))

        def rdV(m, f):
            sl, off, aa = loc(m)
            a(f"ds_read_b128 {v(V[m&1]+4*f,4)}, v{AV+sl} offset:{off+672*(2*aa+f)}")
            lg.issue(("V", m, f))

        def pv(O, B, Vr):
            if "nopv" in self.x:
                return
            a(f"v_smfmac_f32_32x32x32_bf16 {v(O,16)}, {v(Vr,4)}, {v(B,8)}, v{IDX}")

        def qk4(m, dst, part=None):
            if "no2b" in self.x:
                return
            if "x8t" in self.x:
                for T in ((0, 1) if part is None else (part,)):
                    a(f"v_mfma_f32_32x32x8_bf16 {v(dst+16*T,16)}, {v(K4,2)}, {v(Q4,2)}, 0")
                return
            if part == 1:
                return
            a(f"v_mfma_f32_32x32x4_2b_bf16 {v(dst,32)}, {v(K4,2)}, {v(Q4,2)}, 0 cbsz:1 abid:{m&1}")

        def qk16(dst, Q):
            a(f"v_mfma_f32_32x32x16_bf16 {v(dst,16)}, {v(K16,4)}, {v(Q,4)}, {'0' if 'no2b' in self.x else v(dst,16)}")
        rdK4(0)
        rdK16(0)
        rdV(0, 0)
        rdV(0, 1)
        lg.wait(("K16", 0))
        if "x8t" in self.x:
            a("s_mov_b32 exec_lo, 0")
            a("v_mov_b64 v[120:121], 0")
            a("s_mov_b32 exec_lo, -1")
            a.nop(2)
        qk4(0, S[0])
        a.nop(18)
        qk16(S[0], QA)
        qk16(S[0] + 16, QB)
        rdK16(1)
        lg.wait(("V", 0, 1))
        a.nop(10)
        hk = {}

        def hook(n, pos, lines, tag="x"):
            hk.setdefault((n, pos), []).extend(lines)
            if not lines[-1].endswith(":"):
                hk[(n, pos)].extend([("vm", tag)] * sum(ln.startswith(("buffer_", "global_")) for ln in lines))
        for c, n0 in ((1, 0), (2, 2)):
            hook(n0, "a1", self.kvdma(c, -1))
            for i, (n, pos) in enumerate(((0, "a2"), (0, "a5"), (1, "a1"), (1, "a2"), (1, "a5"))):
                hook(n0 + n, pos, self.kvdma(c, i), f"c{c}")
        for i in range(4):
            hook(6 + i, "a5", self.kvdma(3, i), "c3")
        hook(15, "a1w", self.kvdma(3, -1))
        hook(15, "a1", self.kvdma(3, 4), "c3b")
        WS_ = f"s[{SWS}:{SWS+3}]"
        fp = 9 + ("fpa" in self.x)
        assert self.tch >= 9
        bars = {1: "c0", 5: "c2", 14: "c3", 22: None if isB else "all", 30: None if isB else "all"}
        hook(self.tch, "a5", [f"buffer_load_dword v255, v154, s[{SU if isB else SWO}:{(SU if isB else SWO)+3}], 0 offen"])
        ot = [f for f in self.x if f.startswith("ot")]
        if ot and isB:
            hook(7, "a2", [f"v_mul_u32_u24 v255, {81920 if ot[0] == 'ot1' else 1 << 20}, v0" if False else f"s_mov_b32 s12, {81920 if ot[0] == 'ot1' else 1 << 20}",
                           "v_mul_lo_u32 v222, v0, s12",
                           f"buffer_load_dword v222, v222, s[{SOUT}:{SOUT+3}], 0 offen"])
        if not isB:
            hook(0, "a3", [f"s_lshl_b32 s10, s{sW}, 9", "s_add_u32 s10, s10, s15", "s_add_u32 s11, s10, 40960",
                           f"s_and_b32 s12, s{sW}, 1", "s_lshl_b32 s12, s12, 8", f"s_lshr_b32 s13, s{sW}, 1",
                           "s_lshl3_add_u32 s12, s13, s12", "s_add_u32 s15, s12, s15"])
            ps = ((4, "a1"), (4, "a3"), (5, "a1"))
            hook(*ps[0], [f"buffer_store_dwordx4 v[4:7], v10, {WS_}, s10 offen sc1"])
            hook(*ps[1], [f"buffer_store_dwordx4 v[4:7], v10, {WS_}, s11 offen sc1"])
            hook(*ps[2], [f"buffer_store_dwordx2 v[4:5], v11, {WS_}, s15 offen offset:2048 sc1"], "st")
            hook(fp - 1, "a3", [f"s_lshl_b32 s92, s{sT}, 8", f"s_add_u32 s92, s92, {FLG_O}", f"s_lshl2_add_u32 s13, s{sG}, s{sW}",
                                "s_lshl3_add_u32 s13, s13, s92"])
            hook(fp, "a1", [f"s_waitcnt vmcnt({fp-6})", f"buffer_store_dwordx2 v[14:15], v252, {WS_}, s13 offen sc1"])
            hook(20, "a2", ["s_add_u32 s98, s6, L_tabA-L_pc+4096", "s_addc_u32 s99, s7, 0", "global_load_dwordx4 v[12:15], v8, s[98:99]", "v_mov_b32 v6, 0"])
            hook(28, "a5", [f"buffer_load_dwordx2 v[2:3], v251, {WS_}, s92 offen sc1"])
            hook(29, "a5", ["s_add_u32 s93, s90, s90", f"s_mul_i32 s13, s{sG}, 160", "s_sub_u32 s93, s93, s13",
                            "s_add_u32 s94, s93, 40960", "s_add_u32 s95, s91, s91"])
            for i, pos in enumerate(LT1[:self.nla]):
                hook(31, pos, self.latewo(i))
            sl = [(n, pos) for n in range(15, 20) for pos in ("a2", "a5")] + [(n, "a5") for n in range(23, 28)]
            for k, (n, pos) in enumerate(sl):
                g0, i = 8 + 4 * (k // 5), k % 5
                hook(n, pos, [f"s_add_u32 m0, s91, {5120*g0+1024*i}", "s_nop 0",
                              f"buffer_load_dwordx4 v{155+i}, s[{SWO}:{SWO+3}], s{93+k//5} offen lds"])
        else:
            ex = [f"buffer_store_dwordx4 v[196:199], v250, {WS_}, s90 offen sc1",
                  f"buffer_store_dwordx4 v[200:203], v250, {WS_}, s90 offen offset:2112 sc1",
                  f"buffer_store_dwordx2 v[204:205], v251, {WS_}, s90 offen sc1",
                  f"buffer_store_dwordx2 v[206:207], v251, {WS_}, s90 offen offset:2112 sc1",
                  f"buffer_store_dwordx2 v[208:209], v251, {WS_}, s90 offen offset:512 sc1",
                  f"buffer_store_dwordx2 v[210:211], v251, {WS_}, s90 offen offset:2624 sc1",
                  f"buffer_store_dword v4, v252, {WS_}, s90 offen offset:2048 sc1"]
            for x, (n, pos) in zip(ex, [(4, "a1"), (4, "a3"), (4, "a5"), (5, "a1"), (5, "a2"), (5, "a3"), (5, "a5")]):
                hook(n, pos, [x], "st")
            hook(6, "a1", ["s_lshl_b32 s13, s10, 4", "s_lshr_b64 s[92:93], s[92:93], s13", "s_lshr_b64 s[94:95], s[94:95], s13",
                           "s_and_b32 s92, s92, 0xffff", "s_and_b32 s94, s94, 0xffff", "v_and_b32 v10, 1, v0", "v_lshlrev_b32 v10, 4, v10"])
            hook(6, "a3", ["v_lshlrev_b32 v11, v10, s94", "v_lshlrev_b32 v10, v10, s92", "s_mov_b32 vcc_lo, 0"])
            for q in range(4):
                hook(7 + q // 2, ("a1", "a3")[q % 2], [f"s_mov_b32 vcc_hi, {(3 << 2*q) | (3 << (24+2*q)):#x}",
                                                      f"v_cndmask_b32 v{192+q}, 0, v10, vcc", f"v_cndmask_b32 v{212+q}, 0, v11, vcc"])
            hook(23, "a2", ["s_add_u32 s96, s6, L_tabA-L_pc+5120", "s_addc_u32 s97, s7, 0", "global_load_dwordx4 v[224:227], v8, s[96:97]",
                           "global_load_dword v228, v8, s[96:97] offset:1024"])
            hook(29, "a5", ["s_mul_i32 s93, s10, 81920", f"s_mul_i32 s13, s{sG}, 160", "s_add_u32 s93, s93, s13",
                            "s_add_u32 s94, s93, 40960", "s_mul_i32 s95, s10, 10240", f"s_add_u32 s95, s95, {2*WO}"])
            hook(30, "a5", ["s_lshl_b32 s13, s10, 3", f"v_mov_b32 v2, {CNT+20}", "v_lshlrev_b32 v3, s13, 1"])
            for i, pos in enumerate(LT1[:self.nlb]):
                hook(31, pos, self.latewo(self.nla + i, 224))
            hook(5, "a1", [f"v_mov_b32 v220, s{sN}", f"v_mov_b32 v221, s{sN+1}"])
            hook(fp, "a1w", [f"s_waitcnt vmcnt({fp-6})", f"buffer_store_dwordx2 v[220:221], v248, {WS_}, s91 offen sc1"])
            hook(14, "a1", ["v_and_b32 v222, 48, v8"])
            hook(15, "a1", [f"buffer_load_dwordx4 v[216:219], v222, {WS_}, s99 offen sc1"])
            hook(17, "a1", ["s_cmp_lt_u32 s2, 80", "s_waitcnt vmcnt(2)", "s_cbranch_scc0 L_kin0",
                            f"v_cmp_eq_u64 vcc, s[{sN}:{sN+1}], v[216:217]", f"v_cmp_eq_u64 s[84:85], s[{sN}:{sN+1}], v[218:219]",
                            f"s_lshl_b32 s13, s10, 10", "s_and_b64 vcc, vcc, s[84:85]", "s_cmp_eq_u64 vcc, -1", "s_cbranch_scc0 L_kpoll", "L_kin0:"])
            for b in range(3):
                ls = ["s_cmp_lt_u32 s2, 80", f"s_cbranch_scc0 L_kin{b+1}"]
                for i in range(3 * b, 3 * b + 3):
                    ls += [f"s_add_u32 m0, s13, {KC+4096*i}", f"s_add_u32 s12, s98, {4096*i}",
                           f"buffer_load_dwordx4 v8, {WS_}, s12 offen sc1 lds"]
                hook(17 + 2 * b, "a5", ls + [f"L_kin{b+1}:"])
        dsx = {}
        if isB:
            for i in range(8):
                hook(15 + i, "a2", [f"s_mov_b32 s12, {81920*i}",
                                    f"buffer_load_dwordx2 {v(URAW+2*i,2)}, v{UOFF}, s[{SU}:{SU+3}], s12 offen"])
            hook(25, "a1w", ["s_waitcnt vmcnt(0)"])
            kw = ["ds_write_b128 v2, v[224:227]", "ds_write_b128 v2, v[228:231] offset:16", "ds_write_b128 v2, v[232:235] offset:4160",
                  "ds_write_b128 v2, v[236:239] offset:4176", "ds_write_b128 v3, v[196:199]", "ds_write_b128 v3, v[200:203] offset:4160",
                  "ds_write_b64 v6, v[204:205]", "ds_write_b64 v6, v[206:207] offset:4160", "ds_write_b64 v6, v[208:209] offset:512",
                  "ds_write_b64 v6, v[210:211] offset:4672", "ds_write_b32 v7, v4 offset:4096"]
            for k, x in enumerate(kw):
                dsx[(3 + k, "a2")] = [x]
            hook(28, "a5", [f"s_cmp_lt_u32 s{sG}, 3", f"s_cselect_b32 s13, {4*UTP-2048}, 0", "v_add_u32 v230, s13, v244"])
            r0 = self.round0()
            for j, pos in enumerate(("a1", "a2", "a3", "a5")):
                dsx[(31, pos)] = [x[1] for x in r0[6 * j:6 * j + 6]]
            dsx[(24, "a1")] = [f"ds_write_b64 v{UTZ}, v[4:5]"]
            dsx[(24, "a3")] = ["ds_write_b64 v249, v[4:5]"]
            for k in range(4):
                for e, pos in ((0, "a1"), (1, "a3")):
                    i = 2 * k + e
                    dsx.setdefault((25 + k, pos), []).extend(
                        [f"ds_write_b64 v{USW}, {v(URAW+2*i,2)}", f"ds_read_b64_tr_b16 {v(UTR+2*i,2)}, v{USR}"])
                    dsx.setdefault((26 + k, "a2" if e == 0 else "a5"), []).append(
                        f"ds_write_b64 v{UTW}, {v(UTR+2*i,2)} offset:{128*i}")
        if not isB:
            wpre = [x for q in range(15) for x in self.woread(q)]
            for n in range(23, 31):
                for pos in ("a1", "a2", "a3", "a5"):
                    if wpre:
                        dsx.setdefault((n, pos), []).append(wpre.pop(0))
        prio = {}
        for st, en in ((0, 1), (2, 5), (6, 14), (15, 22), (23, 30)):
            ln = en - st + 1
            for n in range(st, en + 1):
                prio[n] = 3 - (n - st) * 4 // max(ln, 4) if ln >= 4 else 3 - (n - st)
        prio[31] = 3 if isB else 0

        def run(n, pos):
            for ln in hk.get((n, pos), []):
                if isinstance(ln, tuple):
                    vq.append(ln[1])
                else:
                    a(ln)
            for ln in dsx.get((n, pos), []):
                a(ln)
                lg.issue("x")
        a(f"s_setprio {prio[0]}")
        for n in range(32):
            cur, nxt = S[n & 1], S[(n + 1) & 1]
            Vc, Vp = V[n & 1], V[(n + 1) & 1]
            eop = "v_exp_f32" if "noexp" not in self.x else "v_fract_f32"
            e = lambda lo, hi: [a(f"{eop} v{cur+i}, v{cur+i}") for i in range(lo, hi + 1)]
            e(0, 1)
            if n > 0:
                pv(O1, nxt + 24, Vp + 4)
            run(n, "a1w")
            if n < 31:
                rdV(n + 1, 0)
            run(n, "a1")
            e(2, 5)
            if n < 31:
                qk4(n + 1, nxt, 0)
            run(n, "a2")
            e(6, 9)
            if n < 31:
                qk4(n + 1, nxt, 1)
            e(10, 13)
            pv(O0, cur, Vc)
            if n < 31:
                rdV(n + 1, 1)
            run(n, "a3")
            e(14, 17)
            pv(O0, cur + 8, Vc + 4)
            if n < 31:
                lg.wait(("K16", n + 1))
            if n % 2 == 0 and n + 2 < 32:
                rdK4(n + 2)
            e(18, 21)
            if n < 31:
                qk16(nxt, QA)
            run(n, "a5")
            e(22, 25)
            if n < 31:
                qk16(nxt + 16, QB)
            last = len(lg.q)
            if n + 2 < 32:
                rdK16(n + 2)
            if n < 31 and prio[n + 1] != prio[n] and n not in bars:
                a(f"s_setprio {prio[n+1]}")
            e(26, 29)
            pv(O1, cur + 16, Vc)
            if n < 31:
                cnt = len(lg.q) - last
                if n == 5:
                    cnt, last = 0, len(lg.q)
                    lg.q.append(("K16", n + 2))
                w = f"lgkmcnt({cnt})"
                lg.q = lg.q[last:]
                if n in bars and (bars[n] == "all" or bars[n] in vq):
                    k = 0 if bars[n] == "all" else vq[::-1].index(bars[n])
                    w = f"vmcnt({k}) " + w
                a(f"s_waitcnt {w}")
                if n in bars:
                    if "bst" in self.x:
                        self.stamp(f"w{n}")
                    a("s_barrier")
                    a(f"s_setprio {prio[n+1]}")
                    if "bst" in self.x:
                        self.stamp(f"b{n}")
            e(30, 31)
        a("s_nop 1")
        pv(O1, S[1] + 24, V[1] + 4)
        self.stamp("attn")

    def lds_sync(self, off, n, vt):
        a = self.a
        lp, dn = a.label("Lsy"), a.label("Lsyd")
        a(f"v_mov_b32 v{vt}, {CNT+off}")
        a(f"v_mov_b32 v{vt+1}, 1")
        a("s_mov_b64 exec, 1")
        a(f"ds_add_u32 v{vt}, v{vt+1}")
        a("s_mov_b64 exec, -1")
        return lp, dn

    def lds_spin(self, lp, dn, n, vt):
        a = self.a
        a("s_mov_b32 s82, 0")
        a.put(lp)
        a(f"ds_read_b32 v{vt+1}, v{vt}")
        a("s_add_u32 s82, s82, 1")
        a("s_waitcnt lgkmcnt(0)")
        a(f"v_readfirstlane_b32 s83, v{vt+1}")
        a("s_cmp_gt_u32 s82, 0x40000")
        a(f"s_cbranch_scc1 {dn}")
        a(f"s_cmp_lt_u32 s83, {n}")
        a(f"s_cbranch_scc1 {lp}")
        a.put(dn)

    def setupB(self, P):
        a = self.a
        kcs, uts = (KPS, UTP) if P else (KCS, UTS)
        a(f"s_mul_i32 s11, s10, {kcs}")
        a(f"s_add_u32 s11, s11, {KC}")
        a("v_and_b32 v10, 15, v0")
        a("v_lshrrev_b32 v11, 4, v0")
        a("v_sub_u32 v12, 0x7ef, v10")
        a("v_lshrrev_b32 v12, 1, v12")
        a("v_lshl_add_u32 v12, v11, 2, v12")
        a("v_lshlrev_b32 v12, 2, v12")
        a("v_and_b32 v13, 1, v0")
        a("v_xor_b32 v13, 1, v13")
        a(f"v_mul_u32_u24 v13, {kcs//2}, v13")
        a(f"s_sub_u32 s12, s11, {960 + (2048 if P else 0)}")
        a("v_add3_u32 v240, v12, v13, s12")
        if P:
            a("v_subrev_u32 v241, 1024, v240")
            a(f"v_add_u32 v242, {4*KPS}, v240")
            a(f"v_add_u32 v243, {4*KPS}, v241")
        else:
            for b in range(1, 4):
                a(f"v_subrev_u32 v{240+b}, {1024*b}, v240")
        a("v_lshlrev_b32 v12, 5, v10")
        a(f"s_mul_i32 s12, s10, {uts}")
        a(f"s_add_u32 s12, s12, {UT}")
        a("v_lshl_add_u32 v13, v11, 4, v12")
        a("v_add_u32 v244, s12, v13")
        a("s_lshr_b32 s12, s10, 1")
        a("s_lshl_b32 s12, s12, 6")
        a("s_add_u32 s12, s12, s11")
        a("v_lshl_add_u32 v13, v11, 3, v12")
        a("v_add_u32 v245, s12, v13")
        a("v_bfe_u32 v12, v0, 2, 2")
        a(f"s_movk_i32 s12, {kcs}")
        a("v_lshrrev_b32 v13, 1, v12")
        a("v_lshlrev_b32 v13, 6, v13")
        a("v_mad_u32_u24 v13, v12, s12, v13")
        a("v_lshl_add_u32 v13, v11, 5, v13")
        a("v_and_b32 v12, 3, v0")
        a("v_lshl_add_u32 v13, v12, 3, v13")
        a("s_lshl_b32 s12, s10, 7")
        a(f"s_add_u32 s12, s12, {KC}")
        a("v_add_u32 v246, s12, v13")
        a("s_mul_i32 s11, s10, 163840")
        a(f"s_lshl_b32 s12, s{sD0}, 1")
        a("s_add_u32 s11, s11, s12")
        a("s_add_u32 s11, s11, 1280")
        a("s_movk_i32 s12, 2560")
        a("v_mov_b32 v247, s11")
        a("v_mad_u32_u24 v247, v0, s12, v247")
        a("v_sub_u32 v250, 1008, v8")
        a("v_lshlrev_b32 v251, 3, v0")
        a("v_sub_u32 v251, 1528, v251")
        a("v_and_b32 v12, 1, v11")
        a("v_mul_u32_u24 v12, 2112, v12")
        a("v_lshl_add_u32 v252, v10, 2, v12")
        a("v_lshlrev_b32 v248, 24, v0")
        a(f"s_add_u32 s11, s{sD0}, s10")
        a(f"s_lshr_b32 s12, s{sD0}, 3")
        a("s_lshl_b32 s12, s12, 7")
        a(f"s_add_u32 s99, s12, {FLG_K}")
        if P:
            a("s_mov_b32 s90, 0x80000000")
            a("s_mov_b32 s91, 0x80000000")
            a(f"s_mul_i32 s98, s{sD0}, {KPS}")
            a("s_lshl_b32 s12, s10, 10")
            a("s_add_u32 s98, s98, s12")
            a(f"s_add_u32 s98, s98, {KIMG}")
        else:
            a(f"s_mul_i32 s90, s11, {KPS}")
            a(f"s_add_u32 s90, s90, {KIMG}")
            a("s_and_b32 s12, s11, 7")
            a("s_lshl3_add_u32 s91, s12, s99")
            a("s_mov_b32 s98, 0")
        a("s_mul_i32 s11, s10, 6144")
        a(f"s_add_u32 s11, s11, {WO+40960}")
        a("v_add_u32 v9, s11, v8")
        a("s_lshr_b32 s11, s2, 3")
        a("s_mul_i32 s11, s11, 81920")
        a("s_and_b32 s12, s2, 7")
        a("s_mul_i32 s12, s12, 160")
        a("s_add_u32 s11, s11, s12")
        a("s_mul_i32 s12, s10, 156")
        a("s_add_u32 s11, s11, s12")
        a("s_cmp_lt_u32 s10, 2")
        a("s_cselect_b32 s11, s11, 0x80000000")
        a("s_movk_i32 s12, 1280")
        a("v_mov_b32 v154, s11")
        a("v_mad_u32_u24 v154, v0, s12, v154")

    def tailB(self):
        a = self.a
        for i in range(3):
            a(f"ds_write_b128 v9, {v(80+4*i,4)} offset:{1024*i}")
        a.nop(9)
        for i in range(3):
            a(f"ds_write_b128 v9, {v(96+4*i,4)} offset:{3072+1024*i}")
        a("s_mov_b64 exec, 1")
        a("ds_add_u32 v2, v3")
        a("s_mov_b64 exec, -1")
        a(f"s_cmp_lt_u32 s{sG}, 3")
        a("s_cbranch_scc1 L_tailP")
        self.conv(False)
        a.put("L_tailP")
        self.conv(True)
        a.put("L_kpoll")
        a("s_mov_b32 s82, 0")
        a.put("L_kpoll1")
        a(f"buffer_load_dwordx4 v[216:219], v222, s[{SWS}:{SWS+3}], s99 offen sc1")
        a("s_add_u32 s82, s82, 1")
        a("s_cmp_gt_u32 s82, 20000")
        a("s_waitcnt vmcnt(0)")
        a("s_cbranch_scc1 L_kin0")
        a(f"v_cmp_eq_u64 vcc, s[{sN}:{sN+1}], v[216:217]")
        a(f"v_cmp_eq_u64 s[84:85], s[{sN}:{sN+1}], v[218:219]")
        a("s_nop 0")
        a("s_and_b64 vcc, vcc, s[84:85]")
        a("s_cmp_eq_u64 vcc, -1")
        a("s_cbranch_scc0 L_kpoll1")
        a("s_branch L_kin0")

    def round0(self):
        out = []
        for k in (4, 5, 6, 7, 0, 1, 2, 3):
            out.append((("U", 0, k), f"ds_read_b128 {v(U0[k],4)}, v{230 if k >= 4 else 244} offset:{64*(8*k+7)}"))
        for k in range(8):
            o = 16 * (15 - 8 * (k & 1))
            for e in range(2):
                out.append((("K", 0, k), f"ds_read2_b32 {v(16+4*k+2*e,2)}, v{240+(k>>1)} offset0:{o+2*e} offset1:{o+2*e+1}"))
        return out

    def conv(self, P):
        a = self.a
        ACC = 144
        lg = LG(a, "lgkmcnt", 15)
        b2 = lambda r: 16 + 64 * (r & 1)

        def reads(r):
            base = b2(r)

            def K(k):
                sidx = 8 * (k & 3 if P else k) + r
                o = 16 * (15 - (sidx & 15))
                ar = 240 + (sidx >> 4) + (2 * (k >> 2) if P else 0)
                A = base + 4 * k
                return [(("K", r, k), f"ds_read2_b32 {v(A,2)}, v{ar} offset0:{o} offset1:{o+1}"),
                        (("K", r, k), f"ds_read2_b32 {v(A+2,2)}, v{ar} offset0:{o+2} offset1:{o+3}")]

            def U(k):
                e = 8 * (k & 3 if P else k) - r
                return [(("U", r, k), f"ds_read_b128 {v(base+32+4*k,4)}, v244 offset:{64*(e+7)+(4*UTP*(k>>2) if P else 0)}")]
            if P:
                out = []
                for c in (0, 4):
                    out += K(c) + U(c) + U(c + 1) + U(c + 2) + U(c + 3) + K(c + 1) + K(c + 2) + K(c + 3)
                return out
            out = K(0)
            for k in range(4, 8):
                out += U(k)
            for sg in range(1, 8):
                out += K(sg) + (U(4 - sg) if sg <= 4 else [])
            return out

        def emit(x):
            a(x[1])
            lg.issue(x[0])
        lg.q = [x[0] for x in self.round0()] + [None] * 7
        lw = [self.latewo(i, 224) for i in range(self.nla + self.nlb, 10)]
        lw0 = list(lw)
        self.stamp("T1")
        a(f"s_setprio {self.cp}")
        if P:
            a("s_cmp_lt_u32 s2, 80")
            a("s_cbranch_scc0 L_idle")
        self.stamp("cv_s")

        def fin(i):
            t = 16 + 2 * i
            off = 512 * (i & 3) + 4 * KPS * (i >> 2) if P else 512 * i
            return [f"v_cvt_pk_bf16_f32 v{t}, v{ACC+4*i}, v{ACC+4*i+1}",
                    f"v_cvt_pk_bf16_f32 v{t+1}, v{ACC+4*i+2}, v{ACC+4*i+3}", f"ds_write_b64 v245, {v(t,2)} offset:{off}"]

        def mm(i, A, B, first=False):
            return f"v_mfma_f32_16x16x32_bf16 {v(ACC+4*i,4)}, {v(A,4)}, {v(B,4)}, {'0' if first else v(ACC+4*i,4)}"
        outs = range(8) if P else range(4, 8)
        pend = []
        for r in range(8):
            base = b2(r)
            uf = lambda k: U0[k] if r == 0 else base + 32 + 4 * k
            nxt = reads(r + 1) if r < 7 else []
            ms = []
            if P:
                for c in (0, 4):
                    if r == 0:
                        ms += [(c + i, None, c + i, mm(c + i, 192 + 5 * c, uf(c + i), True)) for i in range(4)]
                    ms += [(c + i, c + sg, c + i - sg, mm(c + i, base + 4 * (c + sg), uf(c + i - sg))) for sg in range(4) for i in range(sg, 4)]
            else:
                if r == 0:
                    ms += [(i, None, i, mm(i, 192, uf(i), True)) for i in outs]
                ms += [(i, sg, i - sg, mm(i, base + 4 * sg, uf(i - sg))) for sg in range(8) for i in range(max(sg, 4), 8)]
            if r == 7:
                ms = [x for x in ms if x[0] != 7] + [x for x in ms if x[0] == 7]
            done = set()
            if r == 1 and self.cp != 1:
                a("s_setprio 1")
            if r == self.lr:
                assert not lw
                a("s_waitcnt vmcnt(0)")
                self.lds_sync(0, 8, 2)
                lg.issue(None)
            if "rst" in self.x:
                if r:
                    nm = f"r{r-1}"
                    if nm not in STN:
                        STN.append(nm)
                    a(f"v_writelane_b32 v254, s86, {STN.index(nm)}")
                    a(f"v_writelane_b32 v253, s88, {STN.index(nm)}")
                a("s_memtime s[86:87]")
            for n, (i, kk, uu, ln) in enumerate(ms):
                need = [t for t in (("K", r, kk), ("U", r, uu)) if t in lg.q]
                if need:
                    lg.wait(max(need, key=lambda t: max(q for q, z in enumerate(lg.q) if z == t)))
                y = lw.pop(0) if lw and r >= self.ls and n % self.lsp == self.lsp - 1 else None
                if y:
                    a(y[0])
                a(ln)
                if y:
                    a(y[2])
                if r == 7:
                    for j in outs:
                        last = max(q for q, z in enumerate(ms) if z[0] == j)
                        if j not in done and n >= last + 4:
                            done.add(j)
                            pend += fin(j)
                    for _ in range(2):
                        if pend:
                            y = pend.pop(0)
                            a(y)
                            if y.startswith("ds_"):
                                lg.issue(None)
                if n >= 1:
                    for _ in range(2 if len(nxt) > len(ms) - n else 1):
                        if nxt:
                            emit(nxt.pop(0))
            assert not nxt
        for j in outs:
            if j not in done:
                pend += fin(j)
        for ln in pend:
            a(ln)
        self.stamp("conv")
        lp, dn = self.lds_sync(8, 4, 2)
        self.lds_spin(lp, dn, 4 if "nohold" in self.x else 68, 2)
        self.stamp("T2")
        spol = " nt" if "snt" in self.x else ""
        if P:
            for i in range(4):
                a(f"ds_read_b64_tr_b16 {v(32+4*i,2)}, v246 offset:{512*i}")
                a(f"ds_read_b64_tr_b16 {v(34+4*i,2)}, v246 offset:{512*i+4*KPS}")
            for i in range(4):
                a(f"s_mov_b32 s12, {655360*i}")
                a(f"s_waitcnt lgkmcnt({6-2*i})")
                a(f"buffer_store_dwordx4 {v(32+4*i,4)}, v247, s[{SOUT}:{SOUT+3}], s12 offen{spol}")
        else:
            for i in outs:
                a(f"ds_read_b64_tr_b16 {v(32+2*i,2)}, v246 offset:{512*i}")
            for i in outs:
                a(f"s_mov_b32 s12, {655360*i}")
                a(f"s_waitcnt lgkmcnt({7-i})")
                a(f"buffer_store_dwordx2 {v(32+2*i,2)}, v247, s[{SOUT}:{SOUT+3}], s12 offen{spol}")
        a("s_branch L_fin")
        if P:
            a.put("L_idle")
            for y in lw0:
                for ln in y:
                    a(ln)
            a("s_waitcnt vmcnt(0)")
            self.lds_sync(0, 8, 2)
            a("s_branch L_fin")

    def setupA(self):
        a = self.a
        a(f"s_lshl_b32 s11, s{sW}, 11")
        a("s_lshr_b32 s12, s2, 3")
        a("s_add_u32 s11, s11, s12")
        a("s_lshl_b32 s11, s11, 7")
        a("v_lshl_add_u32 v154, v0, 12, s11")
        a(f"s_mul_i32 s11, s{sW}, 6144")
        a(f"s_add_u32 s11, s11, {WO+40960}")
        a("v_add_u32 v9, s11, v8")
        a(f"s_mul_i32 s14, s{sT}, 81920")
        a(f"s_add_u32 s14, s14, {OIMG}")
        a(f"s_mul_i32 s15, s{sG}, 2560")
        a("s_add_u32 s15, s15, s14")
        a("v_mov_b32 v144, 0xdddddddd")
        a("v_mov_b32 v145, v8")
        a(f"v_add_u32 v146, {SLOT}, v8")
        a(f"v_add_u32 v147, {2*SLOT}, v8")
        for r in range(16):
            a(f"v_mov_b64 {v(80+2*r,2)}, 0")

    def setupA2(self):
        return ["v_mov_b32 v10, v149", "v_mov_b32 v11, v150", f"v_add_u32 v149, {SLOT}, v148", f"v_add_u32 v150, {2*SLOT}, v148",
                f"v_add_u32 v152, {SLOT}, v151", f"v_add_u32 v153, {2*SLOT}, v151",
                f"s_and_b32 s13, s{sW}, 1", "s_mul_i32 s10, s13, 15360", "s_sub_u32 s10, s10, 10240", "s_mul_i32 s11, s13, 10240",
                "s_add_u32 s11, s11, 5120"] + [f"v_add_u32 v{240+k}, s{10 if k < 6 else 11}, v{240+k}" for k in range(10)] + [
                f"s_lshl_b32 s13, s{sW}, 3", f"s_mul_i32 s10, s{sG}, 160"] + [x for q, c in enumerate((0x0f0c0b0a, 0x0e0d1110, 0x09081312)) for x in (
                    f"s_lshr_b32 s11, {c:#x}, s13", "s_and_b32 s11, s11, 0xff", f"s_mul_i32 s11, s11, 40960", f"s_add_u32 s{93+q}, s11, s10")] + [
                "v_lshlrev_b32 v252, 24, v0"]

    def tables(self):
        out = []
        cols = [[] for _ in range(28)]
        for l in range(64):
            G, r, c = l >> 4, (l >> 2) & 3, l & 3
            for m in range(5):
                P = 4 * m + G
                g2, p = divmod(P, 10)
                for tt in range(2):
                    row = 80 * g2 + (20 * (p >> 1) + 4 * (p & 1) + 8 * tt if p < 8 else 20 * (p - 8 + 2 * tt) + 16)
                    cols[2 * m + tt].append(WO + 51200 + 160 * (row + r) + 8 * c)
            cols[10].append((l & 15) * 160 + 8 * G)
            for i in range(3):
                p = 64 * i + l
                cols[16 + i].append((p // 10) * 2560 + 16 * (p % 10) if p < 160 else 0x80000000)
            for i in range(8):
                p = 64 * i + l
                cols[20 + i].append((p // 10) * 1280 + 16 * (p % 10) if i < 5 else 0)
            pr = ((l & 3) ^ 2)
            cols[19].append(2560 * (pr + (pr & 2)) + 256 * ((PROBE >> (4 * ((l >> 2) & 7))) & 15))
            cols[11].append(8 * (l & 31))
            cols[12].append(2048 + 8 * l)
            cols[13].append((G & 1) * 20480 + 16 * (l & 15) + 256 * (l >> 5))
            cols[14].append(G * 20480 + 16 * (l & 15))
            cols[15].append(2560 + 336 * (l >> 5) + 16 * (l & 31) if (l & 31) <= 20 else 0x30000)
        out.append(".p2align 7")
        out.append(".type L_tabA,@object")
        out.append("L_tabA:")
        for k in range(7):
            for l in range(64):
                out.append(".long " + ", ".join(str(cols[4 * k + e][l]) for e in range(4)))
        return out

    def latewo(self, i, vb=155):
        return [f"s_add_u32 m0, s95, {1024*i-WO}" if i else f"s_sub_u32 m0, s95, {WO}", "s_nop 0",
                f"buffer_load_dwordx4 v{vb+i%5}, s[{SWO}:{SWO+3}], s{93+i//5} offen lds"]

    def wofrag(self, n):
        j = n % 25
        return 160 + 4 * j if j < 20 else 136 + 4 * (j - 20)

    def woread(self, n):
        k, ct = divmod(n, 5)
        F, m = self.wofrag(n), k % 5
        return [f"ds_read_b64_tr_b16 {v(F,2)}, v{240+2*m} offset:{32*ct}",
                f"ds_read_b64_tr_b16 {v(F+2,2)}, v{241+2*m} offset:{32*ct}"]

    def tailA(self):
        a = self.a
        O = (80, 96)
        AD, OF = 240, 16
        a("s_setprio 3")
        pre = [f"s_and_b32 s98, s{sW}, 1", "s_mul_i32 s12, s98, 5120", "s_add_u32 s14, s14, s12", f"s_mul_i32 s90, s{sW}, 20480",
               "s_add_u32 s90, s90, s14", f"s_xor_b32 s99, s{sW}, 1", "s_mul_i32 s91, s99, 20480", "s_add_u32 s91, s91, s14"]
        for ln in pre:
            a(ln)
        a("v_cmp_eq_u64 s[94:95], s[96:97], v[2:3]")
        a("s_mov_b32 s13, 0")
        a(f"s_mov_b32 s83, {f2u(2.0**48):#x}")
        a(f"s_add_u32 s12, s{sW}, {CNT+20}")
        a("v_mov_b32 v4, s12")
        a("s_mov_b32 s82, 0")
        a.put("L_t1")
        a("ds_read_u8 v5, v4")
        a("s_add_u32 s82, s82, 1")
        a("s_waitcnt lgkmcnt(0)")
        a("v_cmp_ne_u32 vcc, 0, v5")
        a("s_cmp_gt_u32 s82, 0x20000")
        a("s_cbranch_vccnz L_t1d")
        a("s_cbranch_scc0 L_t1")
        a.put("L_t1d")
        for i in (2, 5, 0, 1, 3, 4):
            a(f"ds_read_b128 {v(16+4*i,4)}, v9 offset:{1024*i}")
        self.stamp("T1")
        a("s_waitcnt lgkmcnt(4)")
        for T in range(2):
            a(f"v_add_f32 v{O[T]+8}, v{O[T]+8}, v{24+12*T}")
        a.put("L_lext")
        for T in range(2):
            a(f"v_mov_b32 v{40+2*T}, v{O[T]+8}")
            a(f"v_mov_b32 v{41+2*T}, v{O[T]+8}")
        for T in range(2):
            for i in (9, 10, 11):
                a(f"v_add_f32 v{O[T]+i}, v{O[T]+i}, v{16+12*T+i}")
        a("v_permlane32_swap_b32 v40, v41")
        a("v_permlane32_swap_b32 v42, v43")
        a("s_cmp_eq_u32 s13, 1")
        a("v_rcp_f32 v44, v41")
        a("v_rcp_f32 v45, v43")
        a("v_min_f32 v40, v41, v43")
        a("v_max_f32 v42, v41, v43")
        for T in range(2):
            a(f"s_waitcnt lgkmcnt({2-2*T})")
            for i in range(8):
                a(f"v_add_f32 v{O[T]+i}, v{O[T]+i}, v{16+12*T+i}")
            for i in range(12):
                a(f"v_mul_f32 v{O[T]+i}, v{O[T]+i}, v{44+T}")
            for q in range(4):
                a(f"v_cvt_pk_bf16_f32 v{124+4*T+q}, v{O[T]+2*q}, v{O[T]+2*q+1}")
            for q in range(2):
                a(f"v_cvt_pk_bf16_f32 v{132+2*T+q}, v{O[T]+8+2*q}, v{O[T]+9+2*q}")
        a("s_cbranch_scc1 L_norm")
        a("v_permlane32_swap_b32 v132, v134")
        a("v_permlane32_swap_b32 v133, v135")
        for T in range(2):
            for q in range(6):
                a(f"v_fmac_f32 v6, v{O[T]+2*q}, v{O[T]+2*q+1}")
        a("v_cmp_ge_f32 s[84:85], s83, v42")
        a("v_fmac_f32 v40, 0, v6")
        a(f"v_cmp_le_f32 vcc, {f2u(2.0**-24):#x}, v40")
        a("s_nop 0")
        a("s_and_b64 vcc, vcc, s[84:85]")
        a("s_cmp_eq_u64 vcc, -1")
        a("s_branch L_slow" if self.force_slow else "s_cbranch_scc0 L_slow")
        a.put("L_norm2")
        ACC, TR, NR = 96, 40, 25
        WS_ = f"s[{SWS}:{SWS+3}]"

        def ostore(pol):
            a(f"buffer_store_dwordx4 v[124:127], v10, {WS_}, s10 offen{pol}")
            a(f"buffer_store_dwordx4 v[128:131], v10, {WS_}, s11 offen{pol}")
            a(f"buffer_store_dwordx2 v[132:133], v11, {WS_}, s15 offen offset:2048{pol}")
        a("s_cmp_eq_u64 s[94:95], -1")
        a("s_branch L_far" if "far" in self.x else "s_cbranch_scc0 L_far")
        ostore(" nt" if "int" in self.x else "")
        a.put("L_pod")
        self.stamp("Oiss")
        if "aexit" in self.x:
            a("s_branch L_fin")
        a(f"buffer_load_dwordx4 {v(ACC,4)}, v15, {WS_}, s90 offen sc1")

        def issue(n):
            for ln in self.woread(n):
                a(ln)
        for n in range(15, 25):
            issue(n)
        a("s_mov_b32 s82, 0")
        a("s_waitcnt vmcnt(4)")
        lp, dn = self.lds_sync(0, 4, 4)
        self.stamp("Ostored")
        a.put("L_pr")
        a("s_waitcnt vmcnt(0)")
        a(f"v_max_u32 v6, v{ACC}, v{ACC+2}")
        a("s_add_u32 s82, s82, 1")
        a("v_cmp_eq_u32 vcc, -1, v6")
        a("s_cbranch_vccz L_prd")
        a("s_cmp_gt_u32 s82, 20000")
        a("s_cbranch_scc1 L_prd")
        for f in self.x:
            if f.startswith("osl"):
                a(f"s_sleep {f[3:]}")
        a(f"buffer_load_dwordx4 {v(ACC,4)}, v15, {WS_}, s90 offen sc1")
        a("s_branch L_pr")
        a.put("L_prd")
        self.stamp("Oseen")

        def oload(k):
            o = 10240 + 1024 * k if k < 5 else 1024 * (k - 5)
            for rt in range(2):
                a(f"s_add_u32 s13, s{90+rt}, {o & ~4095}")
                a(f"buffer_load_dwordx4 {v(OF+8*k+4*rt,4)}, v8, s[{SWS}:{SWS+3}], s13 offen offset:{o & 4095} sc1")
        for k in range(NUP):
            oload(k)
        a(f"v_mov_b32 v2, {CNT+8}")
        a("v_mov_b32 v3, 16")
        if NUP == 10 and "nohold" not in self.x:
            a("s_mov_b64 exec, 1")
            a("ds_add_u32 v2, v3")
            a("s_mov_b64 exec, -1")
        a("s_mul_i32 s84, s98, 10240")
        a("s_sub_u32 s84, s84, 40960")
        a("s_mul_i32 s85, s98, 66560")
        a("s_sub_u32 s85, s85, 56320")
        for k in range(10):
            a(f"v_add_u32 v{AD+k}, s{84 if k < 6 else 85}, v{AD+k}")
        a(f"s_mul_i32 s12, s{sW}, 5120")
        a(f"s_add_u32 s12, s12, {WO+40960}")
        a("v_add_u32 v9, s12, v8")
        a("s_mul_i32 s12, s99, 5120")
        a(f"s_add_u32 s12, s12, {WO+40960}")
        a("v_add_u32 v1, s12, v8")
        a("v_add_u32 v250, s12, v250")
        a(f"s_and_b32 s12, s{sW}, 2")
        a(f"s_lshl2_add_u32 s12, s12, {CNT+4}")
        a("v_mov_b32 v7, s12")
        self.lds_spin(lp, dn, 8, 4)
        self.stamp("T2")
        a(f"s_setprio {OPRIO}")
        a(f"s_lshl_b32 s12, s{sT}, 6")
        a(f"s_lshl4_add_u32 s12, s{sW}, s12")
        a("s_mul_i32 s12, s12, 2560")
        a(f"s_mul_i32 s84, s{sG}, 160")
        a("s_add_u32 s12, s12, s84")
        a("v_mov_b32 v5, 1")
        RS = 0
        if "rest" in self.x:
            assert NUP == 10
            RS = 3
            a("s_waitcnt vmcnt(0)")
            ostore(" sc1")
        a("s_mov_b32 s82, 0")
        nld = [NUP]

        def more():
            for kk in range(nld[0], min(10, nld[0] + OST)):
                oload(kk)
                if kk == 9 and "nohold" not in self.x:
                    a("s_mov_b64 exec, 1")
                    a("ds_add_u32 v2, v3")
                    a("s_mov_b64 exec, -1")
            nld[0] = min(10, nld[0] + OST)

        def chk(k):
            F = OF + 8 * k
            return [f"v_max3_u32 v6, v{F}, v{F+2}, v{F+4}", f"v_max_u32 v6, v6, v{F+6}", "v_cmp_eq_u32 vcc, -1, v6"]

        def mm(n, rt):
            k, ct = divmod(n, 5)
            F = self.wofrag(n)
            D = ACC + 20 * rt + 4 * ct
            a(f"v_mfma_f32_16x16x32_bf16 {v(D,4)}, {v(F,4)}, {v(OF+8*k+4*rt,4)}, {'0' if k == 0 else v(D,4)}")
        more()
        a(f"s_waitcnt vmcnt({2*(nld[0]-1)+RS})")
        for ln in chk(0):
            a(ln)
        KS = 6
        for k in range(10):
            lk = {8: 10, 9: 0}.get(k, 15)
            a(f"s_cbranch_vccnz L_re{k}")
            a.put(f"L_ok{k}")
            if k >= 5:
                a(f"s_waitcnt lgkmcnt({lk})")
            if k == 0:
                self.stamp("op0")
            c = chk(k + 1) if k < 9 else None
            if k < KS:
                for n in range(5 * k, 5 * k + 5):
                    rd = self.woread(n - 1 + NR) if n >= 1 and n - 1 + NR < 50 else []
                    mm(n, 0)
                    for ln in rd[:1]:
                        a(ln)
                    if n % 5 == 0:
                        more()
                    if n % 5 == 3:
                        a(f"s_waitcnt vmcnt({2*(nld[0]-k-2)+RS})")
                        a(c[0])
                    if n % 5 == 4:
                        a(c[2])
                    mm(n, 1)
                    for ln in rd[1:]:
                        a(ln)
                    if n % 5 == 3:
                        a(c[1])
            else:
                for n in range(5 * k, 5 * k + 5):
                    mm(n, 1)
                    if c and n % 5 == 0:
                        a(f"s_waitcnt vmcnt({2*(nld[0]-k-2)+RS})")
                    if c and n % 5 < 3:
                        a(c[n % 5])
        exr = ["ds_read_b32 v6, v7"] + [f"ds_read_b128 {v(TR+4*ct,4)}, v1 offset:{1024*ct}" for ct in range(5)]
        fill = {1 + j: [f"ds_write_b128 v9, {v(ACC+20+4*j,4)} offset:{1024*j}"] for j in range(5)}
        fill[6] = ["s_mov_b64 exec, 1", "ds_add_u32 v7, v5", "s_mov_b64 exec, -1"]
        for j, ln in enumerate(exr):
            fill[EXR + j] = [ln]
        for j, n in enumerate(range(5 * KS, 50)):
            mm(n, 0)
            for ln in fill.get(j, []):
                a(ln)
        self.stamp("op50")
        a("s_mov_b32 s82, 0")
        a.put("L_ex")
        a("s_add_u32 s82, s82, 1")
        a("s_waitcnt lgkmcnt(5)")
        a("v_readfirstlane_b32 s83, v6")
        a("s_cmp_gt_u32 s82, 0x40000")
        a("s_cbranch_scc1 L_exd")
        a("s_cmp_lt_u32 s83, 2")
        a("s_cbranch_scc0 L_exd")
        for ln in exr:
            a(ln)
        a("s_branch L_ex")
        a.put("L_exd")
        for ct in range(5):
            a(f"s_waitcnt lgkmcnt(4)")
            for e in range(4):
                a(f"v_add_f32 v{ACC+4*ct+e}, v{ACC+4*ct+e}, v{TR+4*ct+e}")
            a(f"v_cvt_pk_bf16_f32 v{16+2*ct}, v{ACC+4*ct}, v{ACC+4*ct+1}")
            a(f"v_cvt_pk_bf16_f32 v{17+2*ct}, v{ACC+4*ct+2}, v{ACC+4*ct+3}")
            a(f"ds_write_b64 v250, {v(16+2*ct,2)} offset:{32*ct}")
        for i in range(3):
            a(f"ds_read_b128 {v(28+4*i,4)}, v1 offset:{1024*i}")
        pol = " nt" if "ont" in self.x else " sc1" if "osc1" in self.x else ""
        for i in range(3):
            a(f"s_waitcnt lgkmcnt({2-i})")
            a(f"buffer_store_dwordx4 {v(28+4*i,4)}, v{12+i}, s[{SOUT}:{SOUT+3}], s12 offen{pol}")
        a("s_branch L_fin")
        a.put("L_norm")
        a("v_permlane32_swap_b32 v132, v134")
        a("v_permlane32_swap_b32 v133, v135")
        a("s_branch L_norm2")
        a.put("L_far")
        ostore(" sc1")
        a("s_mov_b32 s82, 0")
        a.put("L_po")
        a(f"v_xor_b32 v3, s{sN+1}, v3")
        a(f"v_xor_b32 v2, s{sN}, v2")
        a("v_lshl_or_b32 v2, v3, 4, v2")
        a("s_add_u32 s82, s82, 1")
        a("v_cmp_ne_u32 vcc, 0, v2")
        a("s_cbranch_vccz L_pod")
        a("s_cmp_gt_u32 s82, 20000")
        a("s_cbranch_scc1 L_pod")
        a(f"buffer_load_dwordx2 v[2:3], v251, {WS_}, s92 offen sc1")
        a("s_waitcnt vmcnt(0)")
        a("s_branch L_po")
        for k in range(10):
            a.put(f"L_re{k}")
            oload(k)
            a("s_add_u32 s82, s82, 1")
            a("s_cmp_gt_u32 s82, 20000")
            a("s_waitcnt vmcnt(0)")
            a(f"s_cbranch_scc1 L_ok{k}")
            for ln in chk(k):
                a(ln)
            a(f"s_cbranch_vccnz L_re{k}")
            a(f"s_branch L_ok{k}")

    def slow(self):
        a = self.a
        S0, O0, O1, QA, QB, Q4, K4, K16, V, IDX, AV = 16, 80, 96, 112, 116, 120, 122, 124, 128, 144, 151
        M0, M1 = 60, 61
        a.put("L_slow")
        a("v_and_b32 v62, 31, v0")
        a("v_lshlrev_b32 v62, 3, v62")
        a(f"v_mov_b32 v{M0}, 0xff800000")
        a(f"v_mov_b32 v{M1}, 0xff800000")
        for ps in range(2):
            if ps == 1:
                for M, t in ((M0, 63), (M1, 64)):
                    a(f"v_mov_b32 v{t}, v{M}")
                a("s_nop 1")
                a(f"v_permlane32_swap_b32 v{M0}, v63")
                a(f"v_permlane32_swap_b32 v{M1}, v64")
                a("s_nop 1")
                a(f"v_max_f32 v{M0}, v{M0}, v63")
                a(f"v_max_f32 v{M1}, v{M1}, v64")
                for r in range(32):
                    a(f"v_mov_b32 v{O0+r}, 0")
            a("s_mov_b32 s8, 0")
            a.put(f"L_sl{ps}")
            a("s_lshr_b32 s9, s8, 1")
            a(f"s_mul_i32 s9, s9, {BLK}")
            a("s_and_b32 s82, s8, 1")
            a("s_lshl_b32 s12, s82, 10")
            a("s_add_u32 s12, s12, s9")
            a(f"buffer_load_dwordx4 {v(K16,4)}, v8, s[{SWS}:{SWS+3}], s12 offen sc1")
            a("s_lshl_b32 s12, s82, 8")
            a("s_add_u32 s12, s12, s9")
            a(f"buffer_load_dwordx2 {v(K4,2)}, v62, s[{SWS}:{SWS+3}], s12 offen offset:2048 sc1")
            if ps == 1:
                a("s_mul_i32 s12, s82, 1344")
                a("s_add_u32 s12, s12, s9")
                a(f"buffer_load_dwordx4 {v(V,4)}, v{AV}, s[{SWS}:{SWS+3}], s12 offen sc1")
                a(f"buffer_load_dwordx4 {v(V+4,4)}, v{AV}, s[{SWS}:{SWS+3}], s12 offen offset:672 sc1")
            a("s_waitcnt vmcnt(0)")
            a(f"v_mfma_f32_32x32x4_2b_bf16 {v(S0,32)}, {v(K4,2)}, {v(Q4,2)}, 0 cbsz:1 abid:0")
            a.nop(18)
            a(f"v_mfma_f32_32x32x16_bf16 {v(S0,16)}, {v(K16,4)}, {v(QA,4)}, {v(S0,16)}")
            a(f"v_mfma_f32_32x32x16_bf16 {v(S0+16,16)}, {v(K16,4)}, {v(QB,4)}, {v(S0+16,16)}")
            a.nop(14)
            if ps == 0:
                for T, M in ((0, M0), (1, M1)):
                    for r in range(0, 16, 2):
                        a(f"v_max3_f32 v{M}, v{S0+16*T+r}, v{S0+16*T+r+1}, v{M}")
            else:
                for T, M in ((0, M0), (1, M1)):
                    for r in range(16):
                        a(f"v_sub_f32 v{S0+16*T+r}, v{S0+16*T+r}, v{M}")
                for r in range(32):
                    a(f"v_exp_f32 v{S0+r}, v{S0+r}")
                a("s_nop 1")
                for T, O in ((0, O0), (1, O1)):
                    for f in range(2):
                        a(f"v_smfmac_f32_32x32x32_bf16 {v(O,16)}, {v(V+4*f,4)}, {v(S0+16*T+8*f,8)}, v{IDX}")
                a.nop(14)
            a("s_add_u32 s8, s8, 1")
            a("s_cmp_lt_u32 s8, 64")
            a(f"s_cbranch_scc1 L_sl{ps}")
        for r in range(16, 40, 2):
            a(f"v_mov_b64 {v(r,2)}, 0")
        a("s_mov_b32 s13, 1")
        a("s_branch L_lext")

    def dump(self):
        a = self.a
        a.put("L_dump")
        a("s_waitcnt vmcnt(0) lgkmcnt(0)")
        a("s_barrier")
        a(f"s_lshl_b32 s10, s{sW}, 10")
        a("v_lshl_add_u32 v250, v0, 4, s10")
        a(f"s_mul_i32 s11, s2, {LDS_BYTES}")
        a(f"s_add_u32 s11, s11, {DBG}")
        a("v_mov_b32 v251, v250")
        for i in range(20):
            a("ds_read_b128 v[252:255], v251")
            a("s_waitcnt lgkmcnt(0)")
            a(f"buffer_store_dwordx4 v[252:255], v250, s[{SWS}:{SWS+3}], s11 offen")
            a("s_waitcnt vmcnt(0)")
            a("v_add_u32 v251, 0x2000, v251")
            a("s_add_u32 s11, s11, 0x2000")
        if self.dump_regs:
            lo, n = self.dump_regs
            a(f"s_lshl_b32 s10, s2, 3")
            a(f"s_add_u32 s10, s10, s{sW}")
            a(f"s_mul_i32 s10, s10, {256*n}")
            a(f"s_add_u32 s10, s10, {DBG + 256*LDS_BYTES}")
            a("v_lshlrev_b32 v250, 2, v0")
            for i in range(n):
                a(f"buffer_store_dword v{lo+i}, v250, s[{SWS}:{SWS+3}], s10 offen")
                a("s_add_u32 s10, s10, 256")
            a("s_waitcnt vmcnt(0)")
        a("s_endpgm")

    def build(self):
        a = self.a
        self.prologue()
        self.startA()
        self.qfinish()
        self.attention(False)
        self.tailA()
        for ln in self.stubs:
            a(ln)
        for f in self.x:
            if f.startswith("pad"):
                for _ in range(16 * int(f[3:])):
                    a("s_endpgm")
        a.put("L_B0")
        self.startB()
        self.bphase1()
        self.attention(True)
        self.tailB()
        self.slow()
        if self.stop:
            self.dump()
        a.put("L_fin")
        a("s_waitcnt lgkmcnt(0)")
        if self.stamps:
            self.stamp("issued")
            a("s_waitcnt vmcnt(0)")
            self.stamp("end")
            a("s_memrealtime s[86:87]")
            a("s_lshl_b32 s10, s2, 3")
            a(f"s_add_u32 s10, s10, s{sW}")
            a("s_lshl_b32 s10, s10, 9")
            a(f"s_add_u32 s10, s10, {STAMP}")
            a("v_lshlrev_b32 v1, 2, v0")
            a("s_waitcnt lgkmcnt(0)")
            a("v_writelane_b32 v254, s86, 63")
            a(f"buffer_store_dword v254, v1, s[{SWS}:{SWS+3}], s10 offen")
            a(f"buffer_store_dword v253, v1, s[{SWS}:{SWS+3}], s10 offen offset:256")
        if self.rt:
            a("s_cmp_lt_u32 s2, 250")
            a("s_cbranch_scc1 L_end")
            a(f"s_cmp_eq_u32 s{sW}, 4")
            a("s_cbranch_scc0 L_end")
            a("s_waitcnt vmcnt(0)")
            a("s_memrealtime s[86:87]")
            a("s_memtime s[94:95]")
            a("s_sub_u32 s10, s2, 248")
            a("s_lshl_b32 s10, s10, 3")
            a("v_mov_b32 v1, s10")
            a("s_waitcnt lgkmcnt(0)")
            a("s_sub_u32 s94, s94, s96")
            a(f"s_sub_u32 s86, s86, s{sN}")
            a("v_mov_b32 v4, s86")
            a("v_mov_b32 v5, s94")
            a("s_mov_b64 exec, 1")
            a("global_store_dwordx2 v1, v[4:5], s[46:47]")
        a.put("L_end")
        a("s_endpgm")
        a.put("L_codeend")
        a.lines += self.tables()
        return a


HEAD = open("cdna_kernels/" + NAME + ".s.ref").read().split("; Override launch")[0]


def emit(path, **kw):
    g = Gen(**kw)
    a = g.build()
    a.lines, msgs = autofix(a.lines)
    if kw.get("verbose", path.endswith("prompt.s")):
        for m in msgs[:30]:
            print("fixed", m)
    assert not check_hazards(a.lines)
    if path.endswith('prompt.s'):
        for m in check_inflight(a.lines)[:30]:
            print(m)
    src = HEAD + f"""; @launch grid=(256,1,1) block=(512,1,1) lds={LDS_BYTES}
.amdgcn_target "amdgcn-amd-amdhsa--gfx950"
.text
.globl {NAME}_kernel
.p2align 8
.type {NAME}_kernel,@function
{NAME}_kernel:
{a.text()}.section .rodata,"a"
.p2align 6
.amdhsa_kernel {NAME}_kernel
  .amdhsa_next_free_vgpr 256
  .amdhsa_next_free_sgpr 102
  .amdhsa_accum_offset 256
  .amdhsa_group_segment_fixed_size 0
  .amdhsa_kernarg_size 136
  .amdhsa_user_sgpr_count 2
  .amdhsa_user_sgpr_kernarg_segment_ptr 1
  .amdhsa_system_sgpr_workgroup_id_x 1
.end_amdhsa_kernel
"""
    open(path, "w").write(src)
    if path.endswith('prompt.s'):
        print('klen', g.klen, 'lastpk', g.kpk, 'left', g.kleft)
    return len(msgs)


if __name__ == "__main__":
    import os
    os.makedirs("out", exist_ok=True)
    n = emit("cdna_kernels/" + NAME + ".s")
    emit("b6.s", stop="e0")
    emit("t1.s", stop="t1", dump_regs=(80, 32))
    emit("full.s")
    emit("slow.s", force_slow=True)
    emit("stamp.s", stamps=True)
    emit("rt.s", rt=True)
    for arg in sys.argv[1:]:
        emit(f"stamp_{arg}.s", stamps=True, x=arg.split("+"))
        emit(f"full_{arg}.s", x=arg.split("+"))
    open("stn.txt", "w").write(" ".join(STN))
    print("hazards", n)
```

```python
import os
import sys, struct
from asmlib import Asm, v, s, check_hazards, autofix, check_inflight

NAME = "concat_heads__grouped_kv_mqa__ssm_conv_s4__prompt"

BLK = 5248
SLOT = 41984
WL = 81920
WOFF = (0, 58368, 37888, 0, 58368)
AUX = 110592
KGB = 102400
KGS = 4352
KVP = 102400
QP = 90112
KC = 125952
KCS = 8320
WO = 1024
UT = 103424
UTS = 4592
UTP = 2544
KPS = 4224
USCR = 123840
CNT = 163808
QC = CNT + 16
LDS_BYTES = 163840

FLG_KV = 0x580000
FLG_O = 0x30000
FLG_K = 0x32000
OIMG = 0x40000
KIMG = 0x2C0000
WS_SIZE = 0x600000
DBG = 0x700000
STAMP = 0x600000

sW, sT, sG, sD0 = 3, 4, 5, 50
SX, SWQ, SKV, SWS, SOUT, SWO, SU = 52, 56, 60, 64, 68, 72, 76
sN = 80
sST = 88

LOG2E = 1.4426950408889634
STN = ['start']
KBAR = (0, 40, 1000, 1000, 1000)
KSC = 60
WV0 = 3
OPRIO = 0
APRIO = 3
KPRIO = 0
N1 = 9
LPOS = (2, 3)
PSL = 0
TCH = 10
GL = 66
KB = 3
NP = 1
U0 = (196, 200, 204, 208, 216, 220, 232, 236)
NE = 4
NRD = 0
NLA = 0
NLB = 0
LRND = 3
NREP = 8
PSP = 2
NUP = 10
EXR = 12
PROBE = 0x98986420
LT1 = ('a1', 'a2', 'a3', 'a5')
OST = 2
NXU = 8


def f2u(x):
    return struct.unpack("<I", struct.pack("<f", x))[0]


class LG:
    def __init__(self, a, name, maxc):
        self.a, self.name, self.maxc, self.q = a, name, maxc, []

    def issue(self, tag=None):
        self.q.append(tag)

    def wait(self, tag):
        idx = max(i for i, t in enumerate(self.q) if t == tag)
        n = len(self.q) - 1 - idx
        self.a(f"s_waitcnt {self.name}({min(n, self.maxc)})")
        self.q = self.q[idx + 1:]

    def waitstr(self, tag):
        idx = max(i for i, t in enumerate(self.q) if t == tag)
        n = len(self.q) - 1 - idx
        self.q = self.q[idx + 1:]
        return f"{self.name}({min(n, self.maxc)})"

    def all(self):
        self.q = []


class Gen:
    def __init__(self, stop=None, stamps=False, force_slow=False, dump_regs=None, rt=False, x=()):
        self.rt = rt
        self.x = set(x) | {'pm', 'nohold', 'ina', 'inb', 'tm', 'inp'} | ({'not'} if 'touch' not in x and 'latet' not in x else set())
        self.a = Asm()
        self.stop = stop
        self.stamps = stamps
        self.force_slow = force_slow
        self.debug = stop is not None or stamps
        self.dump_regs = dump_regs
        self.ncm = 0
        self.stubs = []
        self.lpos = LPOS
        self.psl = PSL
        self.ksc = KSC
        self.tch = TCH
        self.kb = KB
        self.wd = 0
        self.ls, self.lsp = 0, 2
        self.cp = 0 if "cp0" in self.x else 1
        self.ne, self.nr = NE, NRD
        self.nla, self.nlb, self.lr = NLA, NLB, LRND
        self.nrep = NREP
        self.gl, self.psp, self.np = GL, PSP, NP
        self.aprio, self.kprio, self.n1 = APRIO, KPRIO, N1
        for f in self.x:
            if f.startswith("ksc"):
                self.ksc = int(f[3:])
            if f.startswith("ap"):
                self.aprio = int(f[2:])
            if f.startswith("kp"):
                self.kprio = int(f[2:])
            if f.startswith("ps"):
                self.psl = int(f[2:])
            if f.startswith("lp"):
                self.lpos = (int(f[2]), int(f[3]))
            if f.startswith("gl"):
                self.gl = int(f[2:])
            if f.startswith("sp"):
                self.psp = int(f[2:])
            if f.startswith("np"):
                self.np = int(f[2:])
            if f.startswith("rep"):
                self.nrep = int(f[3:])
            if f.startswith("kb"):
                self.kb = int(f[2:])
            if f.startswith("nl"):
                self.nla, self.nlb = int(f[2]), int(f[3])
            if f.startswith("lr"):
                self.lr = int(f[2])
            if f.startswith("ne"):
                self.ne = int(f[2:])
            if f.startswith("nr"):
                self.nr = int(f[2:])
            if f.startswith("lq"):
                self.ls, self.lsp = int(f[2]), int(f[3])
            if f.startswith("wd"):
                self.wd = int(f[2:])
            if f.startswith("tch"):
                self.tch = int(f[3:])
            if f.startswith("n1"):
                self.n1 = int(f[2:])

    def srd(self, d, base, size):
        a = self.a
        a(f"s_mov_b32 s{d}, s{base}")
        a(f"s_mov_b32 s{d+1}, s{base+1}")
        a(f"s_mov_b32 s{d+2}, {size}")
        a(f"s_mov_b32 s{d+3}, 0x20000")

    def stamp(self, name):
        if self.stamps and (not os.environ.get("MINST") or name in os.environ["MINST"].split(",")):
            if name not in STN:
                STN.append(name)
            self.a("s_memtime s[86:87]")
            self.a("s_memrealtime s[88:89]")
            self.a("s_waitcnt lgkmcnt(0)")
            self.a(f"v_writelane_b32 v254, s86, {STN.index(name)}")
            self.a(f"v_writelane_b32 v253, s88, {STN.index(name)}")

    def stop_at(self, name):
        if self.stop == name:
            self.a("s_branch L_dump")

    def cmul(self, d, x, y, conj=False):
        a = self.a
        self.ncm += 1
        if self.ncm > self.ksc:
            a(f"v_mul_f32 v{d}, v{x}, v{y}")
            a(f"v_mul_f32 v{d+1}, v{x+1}, v{y}")
            if conj:
                return [f"v_fmac_f32 v{d}, v{x+1}, v{y+1}", f"v_fma_f32 v{d+1}, -v{x}, v{y+1}, v{d+1}"]
            return [f"v_fma_f32 v{d}, -v{x+1}, v{y+1}, v{d}", f"v_fmac_f32 v{d+1}, v{x}, v{y+1}"]
        a(f"v_pk_mul_f32 {v(d,2)}, {v(x,2)}, {v(y,2)} op_sel:[0,0] op_sel_hi:[1,0]")
        neg = "neg_hi:[0,1,0]" if conj else "neg_lo:[0,1,0]"
        return [f"v_pk_fma_f32 {v(d,2)}, {v(x,2)}, {v(y,2)}, {v(d,2)} op_sel:[1,1,0] op_sel_hi:[0,1,1] {neg}"]

    def cmuls(self, lst, conj=False):
        tail = [self.cmul(d, x, y, conj) for d, x, y in lst]
        for t in tail:
            for ln in t:
                self.a(ln)

    def get_nonce(self, vt, vz):
        a = self.a
        lp, dn = a.label("Lnon"), a.label("Lnond")
        a("s_mov_b32 s82, 0")
        a.put(lp)
        a(f"v_readfirstlane_b32 s{sN}, {v(vt)}")
        a(f"v_readfirstlane_b32 s{sN+1}, {v(vt+1)}")
        a("s_add_u32 s82, s82, 1")
        a(f"s_bitcmp1_b32 s{sN}, 0")
        a(f"s_cbranch_scc1 {dn}")
        a("s_cmp_gt_u32 s82, 20000")
        a(f"s_cbranch_scc1 {dn}")
        a("s_sleep 4")
        a(f"global_load_dwordx2 {v(vt,2)}, {v(vz)}, s[46:47] sc1")
        a("s_waitcnt vmcnt(0)")
        a(f"s_branch {lp}")
        a.put(dn)

    def wdma(self, p, i):
        return [f"s_add_u32 m0, s85, {WOFF[p]+1024*i}", "s_nop 0",
                f"buffer_load_dwordx4 v{2+i}, s[{SWQ}:{SWQ+3}], s{33+p} offen lds"]

    def xdma(self, p, m):
        return [f"s_add_u32 m0, s51, {16384*p+4096*m}", "s_nop 0",
                f"buffer_load_dwordx4 v{26+m}, s[{SX}:{SX+3}], s{28+p} offen lds"]

    def rot(self, d):
        a = self.a
        a(f"s_and_b32 s{d}, s9, 3")
        a(f"s_add_u32 s{d}, s{d}, s{sG}")
        for _ in range(2):
            a(f"s_cmp_ge_u32 s{d}, 5")
            a("s_cselect_b32 s12, 5, 0")
            a(f"s_sub_u32 s{d}, s{d}, s12")

    def qspin(self, target, vt, mask=None, pre=False, sleep=0):
        a = self.a
        lp, dn = a.label("Lq"), a.label("Lqd")
        a("s_mov_b32 s82, 0")
        if not pre:
            a(f"ds_read_b32 v{vt+1}, v{vt}")
        a.put(lp)
        a("s_waitcnt lgkmcnt(0)")
        a(f"v_readfirstlane_b32 s83, v{vt+1}")
        a("s_add_u32 s82, s82, 1")
        if mask:
            a(f"s_and_b32 s83, s83, {mask}")
        a(f"s_cmp_ge_u32 s83, {target}")
        a(f"s_cbranch_scc1 {dn}")
        if sleep:
            a(f"s_sleep {sleep}")
        a(f"ds_read_b32 v{vt+1}, v{vt}")
        a("s_cmp_lt_u32 s82, 0x40000")
        a(f"s_cbranch_scc1 {lp}")
        a("s_waitcnt lgkmcnt(0)")
        a.put(dn)

    def prologue(self):
        a = self.a
        a("s_cmp_ge_u32 s2, 0x100")
        a("s_cbranch_scc1 L_end")
        a("s_load_dwordx16 s[16:31], s[0:1], 0")
        a("s_load_dwordx16 s[32:47], s[0:1], 64")
        a("s_load_dwordx2 s[48:49], s[0:1], 128")
        if self.rt:
            a("s_memrealtime s[98:99]")
            a("s_memtime s[96:97]")
        if self.stamps:
            a("s_memtime s[86:87]")
            a("s_memrealtime s[88:89]")
        a("s_getpc_b64 s[6:7]")
        a.put("L_pc")
        a("s_lshr_b32 s9, s2, 3")
        a("v_lshlrev_b32 v1, 12, v0")
        a("s_lshl_b32 s8, s9, 7")
        a("v_add_u32 v1, s8, v1")
        if "tm" in self.x:
            a("v_cmp_gt_u32 vcc, L_tabA-L_pc+7164, v1")
            a("v_min_u32 v1, L_tabA-L_pc+7164, v1")
            a("s_cbranch_vccz L_nt")
            a("global_load_dword v255, v1, s[6:7]")
            a.put("L_nt")
        else:
            a("v_min_u32 v1, L_tabA-L_pc+7164, v1")
            a("global_load_dword v255, v1, s[6:7]")
        a("v_lshrrev_b32 v1, 6, v0")
        a("v_and_b32 v0, 63, v0")
        a("s_and_b32 s8, s2, 7")
        a(f"v_readfirstlane_b32 s{sW}, v1")
        a(f"s_and_b32 s{sT}, s9, 3")
        a(f"s_lshl2_add_u32 s{sT}, s8, s{sT}")
        a(f"s_lshr_b32 s{sG}, s9, 2")
        a("v_lshlrev_b32 v8, 4, v0")
        a(f"s_cmp_lt_u32 s{sW}, 4")
        a("s_cbranch_scc0 L_B0")

    def kargwait(self):
        a = self.a
        a("s_waitcnt lgkmcnt(0)")
        if self.stamps:
            a("v_mov_b32 v254, 0")
            a("v_writelane_b32 v254, s86, 0")
            a("v_mov_b32 v253, 0")
            a("v_writelane_b32 v253, s88, 0")
        self.stamp("karg")

    def srds(self):
        self.srd(SWS, 48, 0x10000000 if self.debug else WS_SIZE)
        self.srd(SOUT, 44, 5242880)
        self.srd(SWO, 24, 819200)
        self.srd(SU, 26, 2621440)

    def startA(self):
        a = self.a
        a("s_add_u32 s10, s6, L_tabA-L_pc")
        a("s_addc_u32 s11, s7, 0")
        for k in range(3):
            a(f"global_load_dwordx4 {v(240+4*k,4)}, v8, s[10:11] offset:{1024*k}")
        a("global_load_dwordx4 v[148:151], v8, s[10:11] offset:3072")
        a("v_lshrrev_b32 v2, 4, v0")
        a(f"s_lshl_b32 s13, s{sW}, 2")
        a("v_add_u32 v3, s13, v2")
        a("v_and_b32 v4, 15, v0")
        a("v_xor_b32 v3, v3, v4")
        a("v_lshlrev_b32 v3, 4, v3")
        a("s_movk_i32 s12, 1280")
        a("v_mad_u32_u24 v26, v2, s12, v3")
        for m in range(1, 4):
            a(f"v_add_u32 v{26+m}, {20480*m}, v26")
        a(f"s_mul_i32 s92, s{sT}, 81920")
        a(f"s_mul_i32 s85, s{sW}, 5120")
        a("s_add_u32 s92, s92, s85")
        a(f"s_lshl_b32 s51, s{sW}, 10")
        self.rot(94)
        a(f"s_mul_i32 s84, s{sG}, 160")
        a(f"s_mul_i32 s12, s{sW}, 40960")
        a("s_add_u32 s84, s84, s12")
        a(f"s_add_u32 s91, s85, {WO}")
        a(f"s_add_u32 s85, s85, {WL}")
        a("s_mov_b32 s90, s84")
        self.wvoff(2, True, nat=155, n=WV0)
        self.kargwait()
        self.srd(SX, 16, 2621440)

        def offs(p):
            a(f"s_lshl_b32 s{28+p}, s94, 8")
            a(f"s_add_u32 s{28+p}, s{28+p}, s92")
            a(f"s_mul_i32 s{33+p}, s94, 163840")
            a(f"s_add_u32 s{33+p}, s{33+p}, s84")
            if p < 4:
                a("s_add_u32 s94, s94, 1")
                a("s_cmp_eq_u32 s94, 5")
                a("s_cselect_b32 s94, 0, s94")

        def X(p):
            for m in range(4):
                for ln in self.xdma(p, m):
                    a(ln)

        def W(p):
            for i in range(5):
                for ln in self.wdma(p, i):
                    a(ln)
        offs(0)
        X(0)
        self.srd(SWQ, 18, 819200)
        a(f"s_cmp_lt_u32 s{sG}, 2")
        a("s_cbranch_scc1 L_a_P")
        mark_a = len(a.lines)
        for i in range(5):
            if i == WV0:
                self.wvoff(2, True, nat=155, n0=WV0)
            for ln in self.wdma(0, i):
                a(ln)
        self.stamp("Xiss")
        for p in range(1, 5):
            offs(p)
        self.qsetup()
        a("s_barrier")
        for k in range(self.n1):
            for ln in (self.xdma(1, k) if k < 4 else self.wdma(1, k - 4)):
                a(ln)
        self.stamp("Wiss")
        a(f"s_setprio {self.aprio}")
        self.qgemm(False)
        a("s_branch L_a_Q")
        for ln in self.stubs:
            a(ln)
        self.stubs = []
        k0 = len(a.lines)
        a.put("L_a_P")
        for p in range(1, 5):
            offs(p)
            X(p)
            if p == 1:
                self.wvoff(2, True, nat=155, n0=WV0)
        self.stamp("Xiss")
        if "ina" in self.x:
            a("s_branch L_a_P2")
            a.put("L_a_C")
            blk = a.lines[k0 + 1:]
            del a.lines[k0:]
            a.lines[mark_a - 1] = a.lines[mark_a - 1].replace("s_cbranch_scc1 L_a_P", "s_cbranch_scc0 L_a_C")
            a.lines[mark_a:mark_a] = blk
            a.put("L_a_P2")
        if self.kb < 5:
            a(f"s_waitcnt vmcnt({4 * (5 - self.kb)})")
            a("s_barrier")
        W(0)
        if "w1e" in self.x:
            W(1)
        self.qsetup()
        a(f"s_waitcnt vmcnt({10 if 'w1e' in self.x else 5})")
        a("s_barrier")
        self.stamp("B0")
        if "w1e" not in self.x:
            W(1)
        self.qgemm(True)
        a.put("L_a_Q")

    def touchW(self, lo, hi):
        a = self.a
        lab = a.label("Lt")
        out = [f"s_sub_u32 s12, s{sW}, {lo}", f"s_cmp_lt_u32 s12, {hi-lo}", f"s_cbranch_scc0 {lab}",
               f"buffer_load_dword v255, v18, s[{SWQ}:{SWQ+3}], 0 offen"]
        if lo == 6:
            out += ["s_mov_b32 s12, 393216", f"buffer_load_dword v255, v18, s[{SWQ}:{SWQ+3}], s12 offen"]
        return out + [lab + ":"]

    def startB(self):
        a = self.a
        a("s_setprio 3")
        a("v_mov_b64 v[4:5], 0")
        a("v_and_b32 v2, 3, v0")
        a(f"v_mov_b32 v3, {CNT}")
        a("v_lshl_add_u32 v2, v2, 3, v3")
        a("ds_write_b64 v2, v[4:5]")
        a(f"s_mul_i32 s{sD0}, s8, 80")
        a("s_min_u32 s11, s9, 9")
        a(f"s_lshl3_add_u32 s11, s11, s{sD0}")
        a(f"s_lshl2_add_u32 s{sD0}, s9, s{sD0}")
        a(f"s_sub_u32 s{sD0}, s{sD0}, 48")
        a(f"s_cmp_lt_u32 s{sG}, 3")
        a(f"s_cselect_b32 s{sD0}, s11, s{sD0}")
        a(f"s_and_b32 s10, s{sW}, 3")
        a(f"s_cmp_lt_u32 s{sG}, 2")
        a("s_cbranch_scc1 L_b_P")
        mark_b = len(a.lines)
        a(f"s_add_u32 s12, s{sD0}, s10")
        a("s_lshl_b32 s82, s12, 8")
        a("v_lshl_add_u32 v9, v0, 2, s82")
        a("s_lshl_b32 s12, s12, 1")
        a("v_mov_b32 v17, s12")
        a("v_mov_b32 v16, 0")
        a("s_mul_i32 s12, s10, 1536")
        a("s_add_u32 s12, s12, s9")
        a("s_sub_u32 s12, s12, 8")
        a("s_lshl_b32 s12, s12, 7")
        a("s_movk_i32 s83, 3072")
        a("v_mov_b32 v18, s12")
        a("v_mad_u32_u24 v18, v0, s83, v18")
        self.kargwait()
        self.srd(SWQ, 18, 819200)
        a(f"s_cmp_eq_u32 s{sG}, 2")
        a("s_cbranch_scc1 L_b_G2")
        a("global_load_short_d16_hi v16, v17, s[40:41]")
        for i, p in enumerate((28, 30, 32, 34, 36, 38)):
            a(f"global_load_dword v{160+i}, v9, s[{p}:{p+1}]")
        a(f"s_cmp_lt_u32 s{sW}, {0 if self.x & {'latet', 'not'} else 6}")
        a("s_cselect_b32 s12, 0, 0x80000000")
        a(f"buffer_load_dword v255, v18, s[{SWQ}:{SWQ+3}], s12 offen")
        if self.x & {"inp", "inq"}:
            a("s_branch L_kg")
            a.put("L_kg")
        self.srds()
        self.kgen()
        a("s_branch L_b_6")
        a.put("L_b_G2")
        if "latet" in self.x:
            a("s_waitcnt vmcnt(0)")
        for ln in [] if "not" in self.x else self.touchW(4, 6) + self.touchW(6, 8):
            a(ln)
        self.srds()
        if "notw" not in self.x:
            a("v_lshlrev_b32 v2, 18, v0")
            a("v_mov_b32 v1, 0")
            for w, R in enumerate((SWS, SU, SWO, SOUT)):
                if w == 3 and "tw2" in self.x:
                    continue
                a(f"s_cmp_eq_u32 s10, {w}")
                if w == 0:
                    a("s_mov_b32 s12, 0x3f000")
                a(f"s_cselect_b32 s12, {'s12' if w == 0 else 0}, 0x80000000")
                if w == 0 and self.debug:
                    a("v_min_u32 v2, 0x5c0000, v2")
                a(f"buffer_load_dword v255, v2, s[{R}:{R+3}], s12 offen sc1")
            a("global_load_dword v255, v1, s[46:47] offset:128 sc1")
        self.attn_setup(True, P=True)
        a("v_mov_b32 v1, 0")
        a(f"v_mov_b32 v2, {QC}")
        a("s_setprio 0")
        a("s_barrier")
        a("s_mov_b32 s82, 0")
        a.put("L_g2w")
        a("s_sleep 8")
        a("ds_read_b32 v3, v2")
        a("s_add_u32 s82, s82, 1")
        a("s_waitcnt lgkmcnt(0)")
        a("v_readfirstlane_b32 s83, v3")
        a("s_cmp_gt_u32 s82, 0x4000")
        a("s_cbranch_scc1 L_g2d")
        a("s_cmp_lt_u32 s83, 8")
        a("s_cbranch_scc1 L_g2w")
        a.put("L_g2d")
        a("global_load_dwordx2 v[12:13], v1, s[46:47] sc1")
        a("s_waitcnt vmcnt(0)")
        self.get_nonce(12, 1)
        a("s_branch L_b_5")
        k0 = len(a.lines)
        a.put("L_b_P")
        self.rot(13)
        a("s_mul_i32 s13, s13, 5")
        a("s_add_u32 s13, s13, s10")
        self.kargwait()
        a(f"s_cmp_eq_u32 s{sG}, 0")
        a(f"s_cselect_b32 s{SKV}, s20, s22")
        a(f"s_cselect_b32 s{SKV+1}, s21, s23")
        a(f"s_mov_b32 s{SKV+2}, 25600")
        a(f"s_mov_b32 s{SKV+3}, 0x20000")
        a("s_lshl_b32 s12, s10, 10")
        a(f"s_add_u32 m0, s12, {AUX}")
        for i in range(7):
            a("s_lshl_b32 s12, s13, 10")
            if i == 6:
                a(f"s_cmp_eq_u32 s{sW}, 4")
                a("s_cbranch_scc0 L_pro_kv")
            a(f"buffer_load_dwordx4 v8, s[{SKV}:{SKV+3}], s12 offen lds")
            if i < 6:
                a("s_add_u32 m0, m0, 4096")
                a("s_cmp_ge_u32 s13, 21")
                a("s_cselect_b32 s12, -21, 4")
                a("s_add_u32 s13, s13, s12")
        a("s_cmp_eq_u32 s2, 0")
        a("s_cbranch_scc0 L_pro_kv")
        a("s_memrealtime s[84:85]")
        a("v_mov_b32 v10, 0")
        a("s_waitcnt lgkmcnt(0)")
        a("s_or_b32 s84, s84, 1")
        a("v_mov_b32 v12, s84")
        a("v_mov_b32 v13, s85")
        a("s_mov_b64 exec, 1")
        a("global_store_dwordx2 v10, v[12:13], s[46:47] sc1")
        a("s_mov_b64 exec, -1")
        if "inb" in self.x:
            a("s_branch L_pro_kv")
            a.put("L_b_C")
            blk = a.lines[k0 + 1:]
            del a.lines[k0:]
            a.lines[mark_b - 1] = a.lines[mark_b - 1].replace("s_cbranch_scc1 L_b_P", "s_cbranch_scc0 L_b_C")
            a.lines[mark_b:mark_b] = blk
        a.put("L_pro_kv")
        self.srds()
        self.attn_setup(True, zero=False, P=True)
        self.kvjob()
        self.bphaseP()

    def wvoff(self, base, perm, t0=20, nat=None, n0=0, n=5):
        a = self.a
        p, q, c, k = t0, t0 + 1, t0 + 2, t0 + 3
        a("s_mov_b32 s82, 0xcccd")
        a("s_movk_i32 s83, 1280")
        for i in range(n0, n):
            a(f"v_add_u32 v{p}, {64*i}, v0")
            a(f"v_mul_u32_u24 v{q}, s82, v{p}")
            a(f"v_lshrrev_b32 v{q}, 19, v{q}")
            a(f"v_mul_u32_u24 v{c}, 10, v{q}")
            a(f"v_sub_u32 v{c}, v{p}, v{c}")
            a(f"v_lshlrev_b32 v{c}, 4, v{c}")
            if nat:
                a(f"v_mad_u32_u24 v{nat+i}, v{q}, s83, v{c}")
            if perm:
                a(f"v_and_b32 v{k}, 1, v{q}")
                a(f"v_bfe_u32 v{p}, v{q}, 1, 2")
                a(f"v_lshl_add_u32 v{k}, v{k}, 2, v{p}")
                a(f"v_and_b32 v{q}, 24, v{q}")
                a(f"v_add_u32 v{q}, v{q}, v{k}")
            a(f"v_mad_u32_u24 v{base+i}, v{q}, s83, v{c}")

    def kgen(self):
        a = self.a
        R0, T, CV, H, D = 32, 64, 72, 80, 112
        FL0, FL1, FH0, FH1 = 176, 192, 208, 224
        Z1, Z8, Z256, WW, B16 = 24, R0 + 2, 22, 20, 30
        TA, KA = 128, (2, 3, 6, 7)
        BIAS = 57344
        self.attn_setup(True, zero=False)
        a(f"s_mul_i32 s11, s10, {KGS}")
        a(f"s_add_u32 m0, s11, {KGB-BIAS}")
        a(f"s_add_u32 s11, s11, {KGB}")
        a("v_and_b32 v45, 15, v0")
        a("v_lshrrev_b32 v46, 4, v0")
        a("v_mul_u32_u24 v27, 0x110, v45")
        a("v_lshl_add_u32 v27, v46, 4, v27")
        a("v_add_u32 v27, s11, v27")
        a("s_add_u32 s11, s11, 16")
        a("v_max_u32 v47, 1, v46")
        a("v_cmp_gt_u32 vcc, 2, v46")
        a("v_add_u32 v47, -1, v47")
        a("v_lshrrev_b32 v47, v47, 16")
        a("v_cndmask_b32 v48, 8, 3, vcc")
        a("v_cmp_eq_u32 vcc, 3, v46")
        a("v_lshlrev_b32 v48, v48, v46")
        a(f"v_mad_u32_u24 v{TA}, v45, v47, v48")
        a(f"v_add_u32 v{TA}, s11, v{TA}")
        a("v_cndmask_b32 v48, 2, 64, vcc")
        a(f"v_lshl_add_u32 v{TA+1}, v48, 1, v{TA}")
        a(f"v_lshl_add_u32 v{TA+2}, v47, 4, v{TA}")
        a(f"v_lshl_add_u32 v{TA+3}, v47, 4, v{TA+1}")
        a(f"v_lshlrev_b32 v{TA+4}, 6, v45")
        a(f"v_lshl_add_u32 v{TA+4}, v46, 3, v{TA+4}")
        a(f"v_add_u32 v{TA+4}, s11, v{TA+4}")
        a("s_sub_u32 s12, s11, 4")
        a(f"v_mov_b32 v{TA+5}, s12")
        a("s_add_u32 s12, s11, 508")
        a(f"v_lshl_add_u32 v{TA+6}, v0, 2, s12")
        a(f"v_lshl_add_u32 v{TA+7}, v0, 3, v{TA+5}")
        a(f"v_mov_b32 v{TA+8}, 0x03020302")
        a("v_cmp_eq_u32 vcc, 0, v0")
        a("v_mov_b32 v53, 0x01000302")
        a(f"s_mul_i32 s11, s10, {KCS}")
        a(f"s_add_u32 s11, s11, {KC}")
        a(f"v_cndmask_b32 v{TA+8}, v{TA+8}, v53, vcc")
        a("v_lshlrev_b32 v48, 5, v0")
        a("s_add_u32 s12, s11, 2016")
        a(f"v_sub_u32 v{KA[0]}, s12, v48")
        a("s_add_u32 s12, s11, 3056")
        a(f"v_sub_u32 v{KA[1]}, s12, v8")
        a("v_lshlrev_b32 v50, 3, v0")
        a("s_add_u32 s12, s11, 3576")
        a(f"v_sub_u32 v{KA[2]}, s12, v50")
        a("v_bfe_u32 v51, v0, 4, 1")
        a("v_mul_u32_u24 v51, 0x1040, v51")
        a("v_lshl_add_u32 v51, v45, 2, v51")
        a(f"v_add_u32 v{KA[3]}, s11, v51")
        l2e_hi = f2u(LOG2E)
        l2e_lo = f2u(LOG2E - struct.unpack("<f", struct.pack("<I", l2e_hi))[0])
        a(f"s_mov_b32 s8, {l2e_hi:#x}")
        a(f"s_mov_b32 s9, {l2e_lo:#x}")
        a("v_mov_b32 v1, 0")
        a("v_mov_b32 v26, 0x3f80")
        a("s_barrier")
        a(f"s_setprio {self.kprio}")
        self.stamp("Bset")
        a("s_waitcnt vmcnt(1)")
        self.stamp("param")
        a(f"s_lshl_b32 s12, s{sD0}, 1")
        a("s_load_dwordx2 s[92:93], s[42:43], s12")
        for ln in [] if "not" in self.x else (self.touchW(4, 6) if "latet" in self.x else []) + self.touchW(6, 8):
            a(ln)
        k0 = len(a.lines)
        a("v_mul_f32 v28, s8, v16")
        a("v_fma_f32 v29, v16, s8, -v28")
        a("v_fmac_f32 v29, s9, v16")
        a("v_exp_f32 v28, v28")
        a(f"v_mul_f32 v29, {f2u(0.6931471805599453):#x}, v29")
        a("v_fma_f32 v28, v28, v29, v28")
        a("v_cvt_pk_bf16_f32 v28, v28, v28")
        a("v_lshlrev_b32 v28, 16, v28")
        r = lambda j: R0 + 2 * j
        h = lambda j: H + 2 * j
        st = dict(cv=0)

        def put(rows):
            w = []
            for j, src in rows:
                if src is None:
                    w.append((j, 26))
                    continue
                c = CV + st["cv"] % 8
                st["cv"] += 1
                a(f"v_cvt_pk_bf16_f32 v{c}, v{src}, v{src+1}")
                w.append((j, c))
            for j, c in w:
                a(f"ds_write_addtid_b32 v{c} offset:{BIAS+272*j}")

        def get(F):
            for sidx in range(4):
                a(f"ds_read_b128 {v(F+4*sidx,4)}, v27 offset:{64*sidx}")

        def mm(first):
            out = []
            for k, (A, B) in enumerate(((FH0, FL0), (FH0, FL1), (FL0, FH1), (FL1, FH1))):
                for sidx in range(4):
                    c = "0" if first and sidx == 0 else v(D + 4 * k, 4)
                    out.append(f"v_mfma_f32_16x16x32_bf16 {v(D+4*k,4)}, {v(A+4*sidx,4)}, {v(B+4*sidx,4)}, {c}")
            return out
        for half in range(2):
            k1 = len(a.lines)
            for i in range(6):
                a(f"v_lshlrev_b32 v{10+i}, 16, v{160+i}" if half == 0 else f"v_and_b32 v{10+i}, 0xffff0000, v{160+i}")
            for i in range(4):
                a(f"v_mul_f32 v{10+i}, v28, v{10+i}")
            a("v_mul_f32 v10, s8, v10")
            a("v_mul_f32 v11, 0.15915494, v11")
            tt = (40, 44, 48)
            for p, t in zip((8, 256), tt):
                a(f"v_mul_f32 v{t}, {f2u(float(p)):#x}, v10")
                a(f"v_mul_f32 v{t+1}, {f2u(float(p)):#x}, v11")
            a(f"v_fract_f32 v{tt[2]+1}, v11")
            a(f"v_fract_f32 v{tt[0]+1}, v{tt[0]+1}")
            a(f"v_fract_f32 v{tt[1]+1}, v{tt[1]+1}")
            a(f"v_exp_f32 v{tt[2]}, v10")
            a(f"v_exp_f32 v{tt[0]}, v{tt[0]}")
            a(f"v_exp_f32 v{tt[1]}, v{tt[1]}")
            for t in tt:
                a(f"v_cos_f32 v{t+2}, v{t+1}")
                a(f"v_sin_f32 v{t+3}, v{t+1}")
            if half:
                body = a.lines[k1:]
                del a.lines[k1:]
                pend = mm(True)
                for n, ln in enumerate(body):
                    if n == 4:
                        a("s_waitcnt lgkmcnt(9)")
                    if n == 18:
                        a("s_waitcnt lgkmcnt(0)")
                    if (4 <= n < 18 and n % 2 == 0 or n >= 18) and pend:
                        a(pend.pop(0))
                    a(ln)
                assert not pend
            self.cmuls([(WW, 14, 12)])
            for Z, t in zip((Z8, Z256, Z1), tt):
                a(f"v_mul_f32 v{Z}, v{t+2}, v{t}")
                a(f"v_mul_f32 v{Z+1}, v{t+3}, v{t}")
            a(f"v_xor_b32 v{WW+1}, 0x80000000, v{WW+1}")
            self.cmuls([(r(2), r(1), r(1))])
            self.cmuls([(r(3), r(2), r(1)), (r(4), r(2), r(2))])
            put([(0, None), (1, r(1)), (2, r(2)), (3, r(3)), (4, r(4))])
            self.cmuls([(r(4 + i), r(4), r(i)) for i in range(1, 5)])
            put([(4 + i, r(4 + i)) for i in range(1, 5)])
            self.cmuls([(r(8 + i), r(8), r(i)) for i in range(1, 5)])
            put([(8 + i, r(8 + i)) for i in range(1, 5)])
            self.cmuls([(r(8 + i), r(8), r(i)) for i in range(5, 8)] + [(B16, r(8), r(8))])
            put([(8 + i, r(8 + i)) for i in range(5, 8)])
            get(FL0)
            for g4 in range(4):
                js = [j for j in range(4 * g4, 4 * g4 + 4) if j]
                self.cmuls([(T + 2 * (j % 4), r(j), B16) for j in js])
                put(([(0, B16)] if g4 == 0 else []) + [(j, T + 2 * (j % 4)) for j in js])
            get(FL1)
            for g4 in range(2):
                for j in range(4 * g4, 4 * g4 + 4):
                    self.cmuls([(h(j), h(j - 1) if j else WW, Z1)], conj=True)
                put([(j, h(j)) for j in range(4 * g4, 4 * g4 + 4)])
            self.cmuls([(h(8), h(1), Z256), (h(9), h(3), Z256), (h(10), h(5), Z256), (h(11), h(7), Z256)], conj=True)
            put([(j, h(j)) for j in range(8, 12)])
            self.cmuls([(h(12), h(9), Z256), (h(13), h(11), Z256)], conj=True)
            self.cmuls([(h(14), h(12), Z256), (h(15), h(13), Z256)], conj=True)
            put([(j, h(j)) for j in range(12, 16)])
            get(FH0)
            for j in range(4):
                self.cmuls([(T + 2 * j, T + 2 * j - 2 if j else h(15), Z256)], conj=True)
            self.kpk = len(a.lines) - k0
            self.stamp(f"kh{half}")
            put([(j, T + 2 * j) for j in range(4)] + [(4, WW)])
            get(FH1)
        self.kleft = 0
        a("global_load_dwordx2 v[12:13], v1, s[46:47] sc1")
        m = mm(False)
        a("s_waitcnt lgkmcnt(9)")
        for ln in m[:8]:
            a(ln)
        a("s_waitcnt lgkmcnt(0)")
        for ln in m[8:]:
            a(ln)
        sel = dict(cc=0x07060706, bb=0x05040504, aa=0x03020302, ba=0x03020504, cb=0x05040706)
        sreg = {}
        for i, (k, x) in enumerate(sel.items()):
            sreg[k] = 8 + i if i < 2 else 13 + i - 2
            a(f"s_mov_b32 s{sreg[k]}, {x:#x}")
        for i in range(8):
            a(f"v_cvt_pk_bf16_f32 v{32+i}, v{D+2*i}, v{D+2*i+1}")
            if i < 4:
                a(f"ds_write_b32 v{TA+i}, v{32+i}")
        a(f"v_cvt_pk_bf16_f32 v49, 0, v{D+8}")
        a(f"ds_write_b64 v{TA+4}, v[36:37] offset:1024")
        a(f"ds_write_b64 v{TA+4}, v[38:39] offset:1056")
        a("s_mov_b64 exec, 16")
        a(f"ds_write_b32 v{TA+5}, v49")
        a("s_mov_b64 exec, -1")
        a(f"ds_read2_b32 v[54:55], v{TA+6} offset0:128 offset1:129")
        a(f"ds_read2_b32 v[56:57], v{TA+6} offset0:64 offset1:65")
        a(f"ds_read2_b32 v[58:59], v{TA+6} offset0:0 offset1:1")
        a(f"ds_read2_b32 v[60:61], v{TA+7} offset0:0 offset1:1")
        a(f"ds_read_b32 v62, v{TA+7} offset:8")
        self.ozero()
        a("s_waitcnt lgkmcnt(0)")

        def perms(dst, pat, d0):
            for i, k in enumerate(pat):
                a(f"v_perm_b32 v{dst+i}, v{d0+1}, v{d0}, s{sreg[k]}")
        perms(224, ["cc", "cc", "bb", "bb", "bb", "ba", "aa", "aa"], 54)
        perms(232, ["cc", "cb", "bb", "bb", "bb", "aa", "aa", "aa"], 54)
        perms(196, ["cc", "bb", "ba", "aa"], 56)
        perms(200, ["cb", "bb", "aa", "aa"], 56)
        perms(204, ["cb", "aa"], 58)
        perms(206, ["ba"], 58)
        a(f"v_perm_b32 v207, v59, v58, v{TA+8}")
        a(f"v_perm_b32 v208, v62, v61, s{sreg['ba']}")
        a(f"v_perm_b32 v209, v61, v60, s{sreg['ba']}")
        a("v_alignbit_b32 v210, v61, v61, 16")
        a("v_alignbit_b32 v211, v60, v60, 16")
        self.klen = len(a.lines) - k0
        self.stamp("kend")
        a("s_waitcnt vmcnt(0)")
        self.get_nonce(12, 1)

    def kvjob(self):
        a = self.a
        a("v_and_b32 v20, 31, v0")
        a("v_lshrrev_b32 v21, 5, v0")
        a("v_and_b32 v22, 0x13, v20")
        a("v_bfe_u32 v23, v20, 2, 1")
        a("v_lshl_or_b32 v22, v23, 3, v22")
        a("v_bfe_u32 v23, v20, 3, 1")
        a("v_lshl_or_b32 v22, v23, 2, v22")
        a(f"s_cmp_eq_u32 s{sG}, 1")
        a("s_cselect_b64 vcc, -1, 0")
        a("v_cndmask_b32 v20, v20, v22, vcc")
        a(f"s_and_b32 s10, s{sW}, 1")
        a(f"s_bfe_u32 s11, s{sW}, 0x10001")
        a("v_and_b32 v22, 15, v20")
        a("v_xor_b32 v22, v22, v21")
        a("v_lshlrev_b32 v22, 4, v22")
        a("v_lshl_or_b32 v22, v20, 8, v22")
        a("s_lshl_b32 s12, s10, 13")
        a("s_lshl_b32 s13, s11, 7")
        a("s_or_b32 s12, s12, s13")
        a("v_xor_b32 v10, s12, v22")
        for k in range(1, 4):
            a(f"v_xor_b32 v{10+k}, {32*k}, v10")
        a("v_bfe_u32 v22, v0, 2, 2")
        a("v_lshl_add_u32 v22, v21, 3, v22")
        a("v_mul_u32_u24 v22, 40, v22")
        a("v_bfe_u32 v23, v0, 4, 1")
        a("v_and_b32 v24, 3, v0")
        a("v_lshl_add_u32 v23, v23, 2, v24")
        a("v_cmp_lt_u32 vcc, 4, v23")
        a("v_mov_b32 v24, 0x30000")
        a("v_lshl_add_u32 v22, v23, 3, v22")
        a("s_mul_i32 s12, s11, 2560")
        a(f"s_add_u32 s12, s12, {AUX}")
        a("v_cndmask_b32 v22, v22, v24, vcc")
        a("v_add_u32 v14, s12, v22")
        a("s_waitcnt vmcnt(0) lgkmcnt(0)")
        a("s_barrier")
        self.stamp("Bk0")
        a(f"s_cmp_eq_u32 s{sG}, 1")
        a("s_cbranch_scc1 L_kv_V")
        ACC = 80
        for isV in (0, 1):
            if isV:
                a.put("L_kv_V")
            lg = LG(a, "lgkmcnt", 15)

            def issue(n, x=True, w=True):
                b, ks = divmod(n, 4)
                if x:
                    if n == 16:
                        for k in range(4):
                            a(f"v_add_u32 v{10+k}, 0x10000, v{10+k}")
                    a(f"ds_read_b128 {v(xf(n),4)}, v{10+ks} offset:{16384*(b%4)}")
                    lg.issue(n)
                if w:
                    a(f"ds_read_b64_tr_b16 {v(wf(n),2)}, v14 offset:{5120*b+640*ks}")
                    a(f"ds_read_b64_tr_b16 {v(wf(n)+2,2)}, v14 offset:{5120*b+640*ks+160}")
                    for _ in range(2):
                        lg.issue(n if x else "w")
            n1 = 4 * self.kb
            xf = lambda n: 16 + 8 * (n % 6) if n < n1 else 160 + 4 * (n - n1)
            wf = lambda n: 20 + 8 * (n % 6) if n < n1 else 96 + 4 * (n - n1)
            late = list(range(n1, 20))
            for n in range(5):
                issue(n)
            for n in range(20):
                if n == n1:
                    a("s_barrier")
                    self.stamp("B0")
                    for m in range(n1, 20):
                        issue(m, w=False)
                lg.wait(n)
                A, B = (xf(n), wf(n)) if isV else (wf(n), xf(n))
                a(f"v_mfma_f32_32x32x16_bf16 {v(ACC,16)}, {v(A,4)}, {v(B,4)}, {'0' if n == 0 else v(ACC,16)}")
                if n + 5 < n1:
                    issue(n + 5)
                elif n < n1:
                    for _ in range(-(-len(late) // (n1 - n))):
                        issue(late.pop(0), x=False)
            if not isV:
                a("s_branch L_kv_d")
        a.put("L_kv_d")
        a("s_lshl_b32 s12, s10, 12")
        a(f"s_add_u32 s12, s12, {KVP}")
        a("v_add_u32 v15, s12, v8")
        a(f"s_cmp_lt_u32 s{sW}, 6")
        a("s_cbranch_scc1 L_p_fin")
        a.nop(10)
        for i in range(4):
            a(f"ds_write_b128 v15, {v(ACC+4*i,4)} offset:{1024*i}")
        a("s_waitcnt lgkmcnt(0)")
        a("s_barrier")
        a("v_mov_b32 v1, 0")
        a("global_load_dwordx2 v[12:13], v1, s[46:47] sc1")
        self.ozero()
        a("s_waitcnt vmcnt(0)")
        self.get_nonce(12, 1)
        a("s_branch L_b_5")

    def qsetup(self):
        a = self.a
        XA, WA = 64, 72
        a("v_and_b32 v20, 31, v0")
        a("v_lshrrev_b32 v21, 5, v0")
        a("v_and_b32 v22, 15, v20")
        a("v_xor_b32 v22, v22, v21")
        a("v_lshlrev_b32 v22, 4, v22")
        a(f"v_lshl_or_b32 v{XA}, v20, 8, v22")
        for k in range(1, 8):
            a(f"v_xor_b32 v{XA+k}, {32*k}, v{XA}")
        a("v_bfe_u32 v22, v0, 2, 2")
        a("v_lshlrev_b32 v22, 1, v22")
        a("v_lshl_add_u32 v22, v21, 3, v22")
        a("v_mul_u32_u24 v22, 0xa0, v22")
        a("v_bfe_u32 v23, v0, 4, 1")
        a("v_and_b32 v24, 3, v0")
        a("v_lshl_add_u32 v23, v23, 2, v24")
        if "noqz" in self.x:
            a("v_min_u32 v23, 4, v23")
        else:
            a("v_cmp_lt_u32 vcc, 4, v23")
            a("v_mov_b32 v24, 0x30000")
        a("v_lshl_add_u32 v22, v23, 3, v22")
        a(f"s_mul_i32 s12, s{sW}, 40")
        a(f"s_add_u32 s12, s12, {WL}")
        if "noqz" not in self.x:
            a("v_cndmask_b32 v22, v22, v24, vcc")
        a(f"v_add_u32 v{WA}, s12, v22")
        a(f"v_add_u32 v{WA+1}, {WOFF[1]}, v{WA}")
        a(f"v_mov_b32 v74, {QC}")
        a("v_mov_b32 v76, 1")
        a("v_mov_b32 v77, 0x100")
        a("v_min_u32 v78, 1, v0")
        a("v_lshl_add_u32 v78, v78, 15, v74")
        a("v_mov_b32 v1, 0")
        self.srds()
        self.setupA()

    def qgemm(self, kv):
        a = self.a
        XA, WA, RG = 64, 72, 168
        lg = LG(a, "lgkmcnt", 15)
        vm = LG(a, "vmcnt", 63)
        for p in range(2):
            for _ in range(5 if kv else (9, self.n1)[p]):
                vm.issue(p)

        def arrive(r):
            a(f"ds_add_u32 v78, v{r}")
            lg.issue("a")

        def peek():
            a("ds_read_b32 v75, v74")
            lg.issue("c")

        def check(field, target, again=False):
            lab = a.label("Lck")
            if not again and "c" in lg.q:
                lg.wait("c")
            t = [f"v_cmp_gt_u32_sdwa vcc, {target}, v75 src0_sel:DWORD src1_sel:BYTE_{0 if field == 0x60000 else 1}"]
            for ln in t:
                a(ln)
            a(f"s_cbranch_vccnz {lab}s")
            a.put(lab)
            self.stubs += [lab + "s:", "ds_read_b32 v75, v74", "s_add_u32 s82, s82, 1", "s_waitcnt lgkmcnt(0)"] + t + [
                f"s_cbranch_vccz {lab}", "s_cmp_lt_u32 s82, 0x40000", f"s_cbranch_scc1 {lab}s", f"s_branch {lab}"]

        def issue(n, hs=(0, 1)):
            c, ks = divmod(n, 8)
            wreg = WA + 1 if WOFF[c] > 40000 else WA
            woff = 0 if WOFF[c] > 40000 else WOFF[c]
            F = RG + 12 * (n % 6)
            for h in hs:
                if c == 4 and h == 0:
                    a(f"v_add_u32 v{XA+ks}, 0x10000, v{XA+ks}")
                a(f"ds_read_b64_tr_b16 {v(F+2*h,2)}, v{wreg} offset:{woff+2560*ks+160*h}")
                a(f"ds_read_b128 {v(F+4+4*h,4)}, v{XA+ks} offset:{16384*(c%4)+8192*h}")
                for _ in range(2):
                    lg.issue(n)
        if not kv:
            a(f"s_waitcnt vmcnt({len(vm.q)})")
        for ln in self.setupA2():
            a(ln)
        a(f"s_mov_b32 s10, {f2u(LOG2E / 20 ** 0.5):#x}")
        a(f"s_mul_i32 s13, s{sW}, 2560")
        a(f"s_add_u32 s13, s13, {QP}")
        a("v_add_u32 v12, s13, v8")
        a("v_lshl_add_u32 v13, v0, 3, s13")
        if "fstr" in self.x:
            a("v_lshrrev_b32 v18, 1, v0")
            a("v_lshlrev_b32 v18, 7, v18")
            a("v_and_b32 v19, 1, v0")
            a("v_lshl_add_u32 v18, v19, 4, v18")
        else:
            a("v_lshlrev_b32 v18, 8, v0")
        a(f"s_and_b32 s13, s2, {self.nrep-1}")
        a("s_lshl_b32 s13, s13, 14")
        a(f"s_cmp_eq_u32 s{sW}, 0")
        a(f"s_cselect_b32 s13, s13, 0x80000000")
        a(f"s_add_u32 s13, s13, {FLG_KV}")
        a("s_getreg_b32 s97, hwreg(HW_REG_XCC_ID, 0, 4)")
        a("s_lshl_b32 s97, s97, 28")
        if kv:
            a("s_barrier")
        vm.wait(0)
        self.stamp("ownld")
        arrive(76)
        self.qspin(4, 74, mask=63)
        a("s_mov_b32 s82, 0")
        lg.all()
        self.stamp("B1")
        for n in range(3):
            issue(n)
        X = lambda p: [] if kv else [(p, self.xdma(p, m)) for m in range(4)]
        W = lambda p: [(p, self.wdma(p, i)) for i in range(5)]
        if not kv:
            for k in range(self.n1, 9):
                for ln in (self.xdma(1, k) if k < 4 else self.wdma(1, k - 4)):
                    a(ln)
                vm.issue(1)
        La, Lp = self.lpos
        sp = {}
        for c in range(5):
            if c < 4:
                sp[16 * c + 2 * La + 1] = ("L", c)
                sp[16 * c + 2 * Lp + 1] = ("p",)
                sp[16 * c + 10] = ("c", 0x60000, 4 * (c + 2), c)
            if c != 4:
                sp[16 * c + 9] = ("F",) if Lp != 4 else ("Fp",)
            if c < 2:
                sp[16 * c + 11] = ("p",)
                sp[16 * c + 15] = ("c", 0x80008, 4 * (c + 1), None)
        sp[68] = ("p",)
        sp[72] = ("c", 0x80008, 16, None)
        PR = (20, 124, 128)[:self.np]
        if "fstr" in self.x:
            poll = lambda r: [f"buffer_load_dwordx4 {v(r,4)}, v18, s[{SWS}:{SWS+3}], s13 offen sc1"]
        else:
            poll = lambda r: [f"buffer_load_dwordx2 {v(r+2*e,2)}, v18, s[{SWS}:{SWS+3}], s13 offen offset:{128*e} sc1" for e in range(2)]
        q = []
        for g in range(80):
            n, h = divmod(g, 2)
            if g == (self.wd if kv else 0):
                q += X(2) + W(2) + X(3)
            if g == 16:
                q += W(3) + X(4)
            if g == 32:
                q = W(4) + q + [(4, [None, None, "global_load_dwordx2 v[16:17], v1, s[46:47] sc1"])]
            for k, r in enumerate(PR):
                if g == self.gl - self.psp * (self.np - k):
                    q += [(5, [None, None, y]) for y in poll(r)]
            F = RG + 12 * (n % 6)
            if h == 0 and n in lg.q:
                lg.wait(n)
            D = v(32 + 16 * h, 16)
            a(f"v_mfma_f32_32x32x16_bf16 {D}, {v(F,4)}, {v(F+4+4*h,4)}, {'0' if n == 0 else D}")
            x = sp.get(g)
            d = q.pop(0) if q and (not x or x[0] == "p") else None
            if x and x[0] == "c":
                check(x[1], x[2])
                if g == 58:
                    check(0x80008, 12, True)
                if "qst" in self.x and x[3] is not None:
                    self.stamp(f"B{2+x[3]}")
            if d and d[1][0]:
                a(d[1][0])
            if n + 3 < 40:
                issue(n + 3, (h,))
            elif d and d[1][0]:
                a(d[1][1])
            if d:
                a(d[1][2])
                vm.issue(d[0])
            if g == self.gl:
                assert not q and g >= 58
                self.get_nonce(16, 1)
                lp, dn, ot, go = a.label("Lpk"), a.label("Lpkd"), a.label("Lpko"), a.label("Lpkg")
                a(f"s_cmp_eq_u32 s{sW}, 0")
                a(f"s_cbranch_scc0 {ot}")
                a("v_mov_b32 v76, 64")
                if "ack" in self.x:
                    self.stamp("p0")
                    a("s_waitcnt vmcnt(0)")
                    self.stamp("p1")
                a("s_mov_b32 s82, 0")
                a.put(lp)
                for r in PR:
                    a(f"s_waitcnt vmcnt({(self.np-1)*len(poll(r))})")
                    a(f"v_cmp_eq_u64 vcc, s[{sN}:{sN+1}], {v(r,2)}")
                    a(f"v_cmp_eq_u64 s[84:85], s[{sN}:{sN+1}], {v(r+2,2)}")
                    a("s_add_u32 s82, s82, 1")
                    a("s_and_b64 vcc, vcc, s[84:85]")
                    a("s_cmp_eq_u64 vcc, -1")
                    a(f"s_cbranch_scc1 {dn}")
                    if self.psl:
                        a(f"s_sleep {self.psl}")
                    if "pm" in self.x:
                        a("s_not_b64 exec, vcc")
                    for y in poll(r):
                        a(y)
                    if "pm" in self.x:
                        a("s_mov_b64 exec, -1")
                a("s_cmp_lt_u32 s82, 40000")
                a(f"s_cbranch_scc1 {lp}")
                a.put(dn)
                a("ds_add_u32 v78, v76")
                if "ack" in self.x and self.stamps:
                    if "npoll" not in STN:
                        STN.append("npoll")
                    a("v_readlane_b32 s83, v254, 0")
                    a("s_nop 3")
                    a("s_mul_i32 s82, s82, 100")
                    a("s_add_u32 s83, s83, s82")
                    a(f"v_writelane_b32 v254, s83, {STN.index('npoll')}")
                    a(f"v_writelane_b32 v253, s88, {STN.index('npoll')}")
                for ln in self.kvdma(0, -1)[2:-1]:
                    a(ln)
                a("s_waitcnt lgkmcnt(0)")
                a(f"s_branch {go}")
                a.put(ot)
                self.qspin(64, 74, mask=255, sleep=1)
                a.put(go)
                lg.all()
                self.stamp("kvseen")
                a("s_mov_b32 s82, 0")
                q += [(6, [f"s_add_u32 m0, s51, {4096*i}", "s_nop 0",
                           f"buffer_load_dwordx4 v8, s[{SWS}:{SWS+3}], m0 offen sc1 lds"]) for i in range(10)]
            if x and x[0] == "L":
                assert all(y[0] != x[1] + 1 for y in q)
                vm.wait(x[1] + 1)
                arrive(76)
            if x and x[0][0] == "F":
                arrive(77)
            if x and x[0][-1] == "p":
                peek()
        for d in q:
            for ln in d[1]:
                a(ln)

    def qfinish(self):
        a = self.a
        a(f"s_xor_b32 s97, s97, s{sN+1}")
        a(f"s_mov_b32 s96, s{sN}")
        a("v_mov_b64 v[4:5], -1")
        a("v_mov_b64 v[6:7], -1")
        a("v_mov_b32 v14, s96")
        a("v_mov_b32 v15, s97")
        a("s_nop 0")
        for T, O in ((0, 32), (1, 48)):
            for r in range(12):
                a(f"v_mul_f32 v{O+r}, s10, v{O+r}")
            for q in range(4):
                a(f"v_cvt_pk_bf16_f32 v{112+4*T+q}, v{O+2*q}, v{O+2*q+1}")
            a(f"ds_write_b128 v12, {v(112+4*T,4)} offset:{1024*T}")
            for q in range(2):
                a(f"v_cvt_pk_bf16_f32 v{120+2*T+q}, v{O+8+2*q}, v{O+9+2*q}")
        a("s_nop 1")
        a("v_permlane32_swap_b32 v120, v122")
        a("v_permlane32_swap_b32 v121, v123")
        a("ds_write_b64 v13, v[120:121] offset:2048")
        self.stamp("Qdone")

    def bphaseP(self):
        a = self.a
        a.put("L_p_fin")
        a("v_mov_b32 v1, 0")
        a("global_load_dwordx2 v[12:13], v1, s[46:47] sc1")
        a(f"s_mul_i32 s12, s{sT}, {BLK}")
        a("v_and_b32 v40, 31, v0")
        a("v_lshrrev_b32 v41, 5, v0")
        a("v_bfrev_b32 v44, 1")
        a(f"s_cmp_eq_u32 s{sG}, 1")
        a("s_cbranch_scc1 L_b_PV")
        a("s_lshl_b32 s13, s10, 10")
        a("s_add_u32 s13, s13, s12")
        a("v_lshlrev_b32 v42, 3, v0")
        a("v_cmp_gt_u32 vcc, 32, v0")
        a("s_lshl_b32 s14, s10, 8")
        a("s_add_u32 s14, s14, s12")
        a("v_cndmask_b32 v42, v44, v42, vcc")
        a("s_barrier")
        self.stamp("B1")
        for i in range(4):
            a(f"ds_read_b128 {v(16+4*i,4)}, v15 offset:{1024*i}")
        a("s_waitcnt lgkmcnt(0)")
        for i in range(12):
            a(f"v_add_f32 v{80+i}, v{80+i}, v{16+i}")
        for i in range(6):
            a(f"v_cvt_pk_bf16_f32 v{32+i}, v{80+2*i}, v{80+2*i+1}")
        a(f"buffer_store_dwordx4 v[32:35], v8, s[{SWS}:{SWS+3}], s13 offen sc1")
        a(f"buffer_store_dwordx2 v[36:37], v42, s[{SWS}:{SWS+3}], s14 offen offset:2048 sc1")
        a("s_branch L_p_2")
        a.put("L_b_PV")
        a("s_mul_i32 s13, s10, 1344")
        a("s_add_u32 s13, s13, s12")
        a("v_mul_u32_u24 v42, 0x150, v41")
        a("v_lshl_add_u32 v42, v40, 4, v42")
        a("v_cmp_gt_u32 vcc, 21, v40")
        a("v_mov_b32 v43, 0x3f803f80")
        a("s_nop 0")
        a("v_cndmask_b32 v42, v44, v42, vcc")
        a("v_cmp_eq_u32 vcc, 20, v40")
        a("s_barrier")
        self.stamp("B1")
        for i in range(4):
            a(f"ds_read_b128 {v(16+4*i,4)}, v15 offset:{1024*i}")
        a("s_waitcnt lgkmcnt(0)")
        for i in range(16):
            a(f"v_add_f32 v{80+i}, v{80+i}, v{16+i}")
        for i in range(8):
            a(f"v_cvt_pk_bf16_f32 v{32+i}, v{80+2*i}, v{80+2*i+1}")
        for i in range(8):
            a(f"v_cndmask_b32 v{32+i}, v{32+i}, v43, vcc")
        a(f"buffer_store_dwordx4 v[32:35], v42, s[{SWS}:{SWS+3}], s13 offen offset:2560 sc1")
        a(f"buffer_store_dwordx4 v[36:39], v42, s[{SWS}:{SWS+3}], s13 offen offset:3232 sc1")
        a.put("L_p_2")
        self.stamp("kvst")
        fs = (7, 4, 3) if "fstr" in self.x else (9, 8, 7)
        a(f"s_lshl_b32 s12, s{sT}, {fs[0]}")
        a(f"s_lshl_b32 s13, s{sG}, {fs[1]}")
        a("s_add_u32 s12, s12, s13")
        a(f"s_lshl_b32 s13, s10, {fs[2]}")
        a("s_add_u32 s12, s12, s13")
        a(f"s_add_u32 s12, s12, {FLG_KV}")
        self.ozero()
        a("v_lshlrev_b32 v40, 14, v0")
        a("s_waitcnt vmcnt(0)")
        self.get_nonce(12, 1)
        a(f"s_mov_b64 exec, {hex((1 << self.nrep) - 1) if self.nrep < 32 else 's[82:83]'}" if self.nrep < 32 else "s_mov_b32 exec_hi, 0")
        a(f"buffer_store_dwordx2 v[12:13], v40, s[{SWS}:{SWS+3}], s12 offen sc1")
        a("s_mov_b64 exec, -1")
        self.stamp("kvflag")
        if "ack" in self.x:
            a("s_waitcnt vmcnt(0)")
            self.stamp("kvack")

    def bphase1(self):
        a = self.a
        a.put("L_b_5")
        for r in (2, 3, 6, 7):
            a(f"v_mov_b32 v{r}, 0x30000")
        a.put("L_b_6")
        a(f"s_and_b32 s10, s{sW}, 3")
        a("s_mul_i32 s13, s10, 2560")
        a(f"s_add_u32 s13, s13, {QP}")
        a("v_add_u32 v12, s13, v8")
        a("v_lshl_add_u32 v13, v0, 3, s13")
        self.stamp("B6")

    def kvdma(self, c, i):
        if i < 0:
            lab = self.a.label("Lx")
            return [f"s_cmp_eq_u32 s{sW}, 0", f"s_cbranch_scc0 {lab}",
                    f"s_mov_b32 m0, {SLOT*(c%3)+40960}", f"s_mov_b32 s12, {SLOT*c+40960}",
                    f"buffer_load_dwordx4 v8, s[{SWS}:{SWS+3}], s12 offen sc1 lds", lab + ":"]
        return [f"s_add_u32 m0, s51, {SLOT*(c%3)+8192*i}", f"s_add_u32 s12, s51, {SLOT*c+8192*i}",
                f"buffer_load_dwordx4 v8, s[{SWS}:{SWS+3}], s12 offen sc1 lds"]

    def ozero(self):
        for r in range(16):
            self.a(f"v_mov_b64 {v(80+2*r,2)}, 0")

    def attn_setup(self, isB, zero=True, P=False):
        a = self.a
        O0 = 80
        IDX, AK16, AK4, AV = 144, 145, 148, 151
        UOFF, USW, USR, UTW, UTZ = 155, 156, 157, 158, 159
        a(f"s_lshl_b32 s51, s{sW}, 10")
        kh = BLK if isB else 0
        a(f"v_add_u32 v{AK16}, {kh}, v8" if kh else f"v_mov_b32 v{AK16}, v8")
        a(f"v_lshlrev_b32 v{AK4}, 3, v0")
        a(f"v_add_u32 v{AK4}, {kh+2048}, v{AK4}")
        a("v_and_b32 v60, 31, v0")
        a("v_cmp_lt_u32 vcc, 20, v60")
        a("v_lshrrev_b32 v62, 5, v0")
        a("v_mul_u32_u24 v62, 0x150, v62")
        a("v_lshl_add_u32 v61, v60, 4, v62")
        a(f"v_add_u32 v{AV}, {kh+2560}, v61")
        a("v_mov_b32 v61, 0x30000")
        a(f"v_cndmask_b32 v{AV}, v{AV}, v61, vcc")
        for r in (AK16, AK4, AV):
            a(f"v_add_u32 v{r+1}, {SLOT}, v{r}")
            a(f"v_add_u32 v{r+2}, {2*SLOT}, v{r}")
        a(f"v_mov_b32 v{IDX}, 0xdddddddd")
        if zero:
            self.ozero()
        if isB:
            a(f"s_and_b32 s10, s{sW}, 3")
            a(f"s_lshl_b32 s12, s{sD0}, 1")
            if P:
                a("s_load_dwordx4 s[92:95], s[42:43], s12")
                a("s_and_b32 s13, s10, 1")
                a("s_mul_i32 s11, s13, 655360")
                a("s_add_u32 s11, s11, s12")
                a("s_lshr_b32 s14, s10, 1")
                a("s_lshl3_add_u32 s11, s14, s11")
                a("s_cmp_lt_u32 s2, 80")
                a("s_cselect_b32 s11, s11, 0x80000000")
            else:
                a("s_mul_i32 s11, s10, 655360")
                a("s_add_u32 s11, s11, s12")
            a("s_movk_i32 s12, 1280")
            a("v_mov_b32 v1, s11")
            a(f"v_mad_u32_u24 v{UOFF}, v0, s12, v1")
            a("s_lshl_b32 s11, s10, 9")
            a(f"s_add_u32 s11, s11, {USCR}")
            a(f"v_lshl_add_u32 v{USW}, v0, 3, s11")
            a("v_and_b32 v1, 48, v0")
            a("v_and_b32 v2, 3, v0")
            a("v_lshl_add_u32 v1, v2, 2, v1")
            a("v_bfe_u32 v3, v0, 2, 2")
            a("v_add_u32 v1, v1, v3")
            a(f"v_lshl_add_u32 v{USR}, v1, 3, s11")
            uts = UTP if P else UTS
            if P:
                a(f"s_mul_i32 s11, s14, {4*UTP}")
                a("s_lshl_b32 s13, s13, 10")
                a("s_add_u32 s11, s11, s13")
            else:
                a("s_lshl_b32 s11, s10, 10")
            a(f"s_add_u32 s11, s11, {UT+480}")
            a("v_lshrrev_b32 v1, 2, v0")
            a("v_lshl_add_u32 v1, v1, 3, s11")
            a(f"s_movk_i32 s12, {uts}")
            a(f"v_mad_u32_u24 v{UTW}, v2, s12, v1")
            a(f"s_mul_i32 s11, s10, {uts}")
            a(f"s_add_u32 s11, s11, {UT}")
            a("v_min_u32 v1, 59, v0")
            a(f"v_lshl_add_u32 v{UTZ}, v1, 3, s11")
            a(f"v_add_u32 v249, {4*UTP if P else 0}, v{UTZ}")
            a("v_mov_b32 v4, 0")
            a("v_mov_b32 v5, 0")
            self.setupB(P)

    def attention(self, isB):
        a = self.a
        S = (16, 48)
        O0, O1, QA, QB, Q4, K4, K16 = 80, 96, 112, 116, 120, 122, 124
        V = (128, 136)
        IDX, AK16, AK4, AV = 144, 145, 148, 151
        URAW, UTR = 160, 176
        UOFF, USW, USR, UTW, UTZ = 155, 156, 157, 158, 159
        vq = []
        if not isB:
            vq = ["c0"] * 4
        a("s_waitcnt lgkmcnt(0)" if isB else "s_waitcnt vmcnt(4) lgkmcnt(0)")
        a("s_barrier")
        self.stamp("E0")
        self.stop_at("e0")
        if isB:
            a("ds_read_b64 v[120:121], v13 offset:2048")
            a("ds_read_b128 v[112:115], v12")
            a("ds_read_b128 v[116:119], v12 offset:1024")
        lg = LG(a, "lgkmcnt", 15)

        def loc(m):
            c = m >> 3
            return c % 3, 2 * BLK * ((m >> 1) & 3), m & 1

        def rdK16(m):
            sl, off, aa = loc(m)
            a(f"ds_read_b128 {v(K16,4)}, v{AK16+sl} offset:{off+1024*aa}")
            lg.issue(("K16", m))

        def rdK4(m):
            sl, off, aa = loc(m)
            a(f"ds_read_b64 {v(K4,2)}, v{AK4+sl} offset:{off}")
            lg.issue(("K4", m))

        def rdV(m, f):
            sl, off, aa = loc(m)
            a(f"ds_read_b128 {v(V[m&1]+4*f,4)}, v{AV+sl} offset:{off+672*(2*aa+f)}")
            lg.issue(("V", m, f))

        def pv(O, B, Vr):
            if "nopv" in self.x:
                return
            a(f"v_smfmac_f32_32x32x32_bf16 {v(O,16)}, {v(Vr,4)}, {v(B,8)}, v{IDX}")

        def qk4(m, dst, part=None):
            if "no2b" in self.x:
                return
            if "x8t" in self.x:
                for T in ((0, 1) if part is None else (part,)):
                    a(f"v_mfma_f32_32x32x8_bf16 {v(dst+16*T,16)}, {v(K4,2)}, {v(Q4,2)}, 0")
                return
            if part == 1:
                return
            a(f"v_mfma_f32_32x32x4_2b_bf16 {v(dst,32)}, {v(K4,2)}, {v(Q4,2)}, 0 cbsz:1 abid:{m&1}")

        def qk16(dst, Q):
            a(f"v_mfma_f32_32x32x16_bf16 {v(dst,16)}, {v(K16,4)}, {v(Q,4)}, {'0' if 'no2b' in self.x else v(dst,16)}")
        rdK4(0)
        rdK16(0)
        rdV(0, 0)
        rdV(0, 1)
        lg.wait(("K16", 0))
        if "x8t" in self.x:
            a("s_mov_b32 exec_lo, 0")
            a("v_mov_b64 v[120:121], 0")
            a("s_mov_b32 exec_lo, -1")
            a.nop(2)
        qk4(0, S[0])
        a.nop(18)
        qk16(S[0], QA)
        qk16(S[0] + 16, QB)
        rdK16(1)
        lg.wait(("V", 0, 1))
        a.nop(10)
        hk = {}

        def hook(n, pos, lines, tag="x"):
            hk.setdefault((n, pos), []).extend(lines)
            if not lines[-1].endswith(":"):
                hk[(n, pos)].extend([("vm", tag)] * sum(ln.startswith(("buffer_", "global_")) for ln in lines))
        for c, n0 in ((1, 0), (2, 2)):
            hook(n0, "a1", self.kvdma(c, -1))
            for i, (n, pos) in enumerate(((0, "a2"), (0, "a5"), (1, "a1"), (1, "a2"), (1, "a5"))):
                hook(n0 + n, pos, self.kvdma(c, i), f"c{c}")
        for i in range(4):
            hook(6 + i, "a5", self.kvdma(3, i), "c3")
        hook(15, "a1w", self.kvdma(3, -1))
        hook(15, "a1", self.kvdma(3, 4), "c3b")
        WS_ = f"s[{SWS}:{SWS+3}]"
        fp = 9 + ("fpa" in self.x)
        assert self.tch >= 9
        bars = {1: "c0", 5: "c2", 14: "c3", 22: None if isB else "all", 30: None if isB else "all"}
        hook(self.tch, "a5", [f"buffer_load_dword v255, v154, s[{SU if isB else SWO}:{(SU if isB else SWO)+3}], 0 offen"])
        ot = [f for f in self.x if f.startswith("ot")]
        if ot and isB:
            hook(7, "a2", [f"v_mul_u32_u24 v255, {81920 if ot[0] == 'ot1' else 1 << 20}, v0" if False else f"s_mov_b32 s12, {81920 if ot[0] == 'ot1' else 1 << 20}",
                           "v_mul_lo_u32 v222, v0, s12",
                           f"buffer_load_dword v222, v222, s[{SOUT}:{SOUT+3}], 0 offen"])
        if not isB:
            hook(0, "a3", [f"s_lshl_b32 s10, s{sW}, 9", "s_add_u32 s10, s10, s15", "s_add_u32 s11, s10, 40960",
                           f"s_and_b32 s12, s{sW}, 1", "s_lshl_b32 s12, s12, 8", f"s_lshr_b32 s13, s{sW}, 1",
                           "s_lshl3_add_u32 s12, s13, s12", "s_add_u32 s15, s12, s15"])
            ps = ((4, "a1"), (4, "a3"), (5, "a1"))
            hook(*ps[0], [f"buffer_store_dwordx4 v[4:7], v10, {WS_}, s10 offen sc1"])
            hook(*ps[1], [f"buffer_store_dwordx4 v[4:7], v10, {WS_}, s11 offen sc1"])
            hook(*ps[2], [f"buffer_store_dwordx2 v[4:5], v11, {WS_}, s15 offen offset:2048 sc1"], "st")
            hook(fp - 1, "a3", [f"s_lshl_b32 s92, s{sT}, 8", f"s_add_u32 s92, s92, {FLG_O}", f"s_lshl2_add_u32 s13, s{sG}, s{sW}",
                                "s_lshl3_add_u32 s13, s13, s92"])
            hook(fp, "a1", [f"s_waitcnt vmcnt({fp-6})", f"buffer_store_dwordx2 v[14:15], v252, {WS_}, s13 offen sc1"])
            hook(20, "a2", ["s_add_u32 s98, s6, L_tabA-L_pc+4096", "s_addc_u32 s99, s7, 0", "global_load_dwordx4 v[12:15], v8, s[98:99]", "v_mov_b32 v6, 0"])
            hook(28, "a5", [f"buffer_load_dwordx2 v[2:3], v251, {WS_}, s92 offen sc1"])
            hook(29, "a5", ["s_add_u32 s93, s90, s90", f"s_mul_i32 s13, s{sG}, 160", "s_sub_u32 s93, s93, s13",
                            "s_add_u32 s94, s93, 40960", "s_add_u32 s95, s91, s91"])
            for i, pos in enumerate(LT1[:self.nla]):
                hook(31, pos, self.latewo(i))
            sl = [(n, pos) for n in range(15, 20) for pos in ("a2", "a5")] + [(n, "a5") for n in range(23, 28)]
            for k, (n, pos) in enumerate(sl):
                g0, i = 8 + 4 * (k // 5), k % 5
                hook(n, pos, [f"s_add_u32 m0, s91, {5120*g0+1024*i}", "s_nop 0",
                              f"buffer_load_dwordx4 v{155+i}, s[{SWO}:{SWO+3}], s{93+k//5} offen lds"])
        else:
            ex = [f"buffer_store_dwordx4 v[196:199], v250, {WS_}, s90 offen sc1",
                  f"buffer_store_dwordx4 v[200:203], v250, {WS_}, s90 offen offset:2112 sc1",
                  f"buffer_store_dwordx2 v[204:205], v251, {WS_}, s90 offen sc1",
                  f"buffer_store_dwordx2 v[206:207], v251, {WS_}, s90 offen offset:2112 sc1",
                  f"buffer_store_dwordx2 v[208:209], v251, {WS_}, s90 offen offset:512 sc1",
                  f"buffer_store_dwordx2 v[210:211], v251, {WS_}, s90 offen offset:2624 sc1",
                  f"buffer_store_dword v4, v252, {WS_}, s90 offen offset:2048 sc1"]
            for x, (n, pos) in zip(ex, [(4, "a1"), (4, "a3"), (4, "a5"), (5, "a1"), (5, "a2"), (5, "a3"), (5, "a5")]):
                hook(n, pos, [x], "st")
            hook(6, "a1", ["s_lshl_b32 s13, s10, 4", "s_lshr_b64 s[92:93], s[92:93], s13", "s_lshr_b64 s[94:95], s[94:95], s13",
                           "s_and_b32 s92, s92, 0xffff", "s_and_b32 s94, s94, 0xffff", "v_and_b32 v10, 1, v0", "v_lshlrev_b32 v10, 4, v10"])
            hook(6, "a3", ["v_lshlrev_b32 v11, v10, s94", "v_lshlrev_b32 v10, v10, s92", "s_mov_b32 vcc_lo, 0"])
            for q in range(4):
                hook(7 + q // 2, ("a1", "a3")[q % 2], [f"s_mov_b32 vcc_hi, {(3 << 2*q) | (3 << (24+2*q)):#x}",
                                                      f"v_cndmask_b32 v{192+q}, 0, v10, vcc", f"v_cndmask_b32 v{212+q}, 0, v11, vcc"])
            hook(23, "a2", ["s_add_u32 s96, s6, L_tabA-L_pc+5120", "s_addc_u32 s97, s7, 0", "global_load_dwordx4 v[224:227], v8, s[96:97]",
                           "global_load_dword v228, v8, s[96:97] offset:1024"])
            hook(29, "a5", ["s_mul_i32 s93, s10, 81920", f"s_mul_i32 s13, s{sG}, 160", "s_add_u32 s93, s93, s13",
                            "s_add_u32 s94, s93, 40960", "s_mul_i32 s95, s10, 10240", f"s_add_u32 s95, s95, {2*WO}"])
            hook(30, "a5", ["s_lshl_b32 s13, s10, 3", f"v_mov_b32 v2, {CNT+20}", "v_lshlrev_b32 v3, s13, 1"])
            for i, pos in enumerate(LT1[:self.nlb]):
                hook(31, pos, self.latewo(self.nla + i, 224))
            hook(5, "a1", [f"v_mov_b32 v220, s{sN}", f"v_mov_b32 v221, s{sN+1}"])
            hook(fp, "a1w", [f"s_waitcnt vmcnt({fp-6})", f"buffer_store_dwordx2 v[220:221], v248, {WS_}, s91 offen sc1"])
            hook(14, "a1", ["v_and_b32 v222, 48, v8"])
            hook(15, "a1", [f"buffer_load_dwordx4 v[216:219], v222, {WS_}, s99 offen sc1"])
            hook(17, "a1", ["s_cmp_lt_u32 s2, 80", "s_waitcnt vmcnt(2)", "s_cbranch_scc0 L_kin0",
                            f"v_cmp_eq_u64 vcc, s[{sN}:{sN+1}], v[216:217]", f"v_cmp_eq_u64 s[84:85], s[{sN}:{sN+1}], v[218:219]",
                            f"s_lshl_b32 s13, s10, 10", "s_and_b64 vcc, vcc, s[84:85]", "s_cmp_eq_u64 vcc, -1", "s_cbranch_scc0 L_kpoll", "L_kin0:"])
            for b in range(3):
                ls = ["s_cmp_lt_u32 s2, 80", f"s_cbranch_scc0 L_kin{b+1}"]
                for i in range(3 * b, 3 * b + 3):
                    ls += [f"s_add_u32 m0, s13, {KC+4096*i}", f"s_add_u32 s12, s98, {4096*i}",
                           f"buffer_load_dwordx4 v8, {WS_}, s12 offen sc1 lds"]
                hook(17 + 2 * b, "a5", ls + [f"L_kin{b+1}:"])
        dsx = {}
        if isB:
            for i in range(8):
                hook(15 + i, "a2", [f"s_mov_b32 s12, {81920*i}",
                                    f"buffer_load_dwordx2 {v(URAW+2*i,2)}, v{UOFF}, s[{SU}:{SU+3}], s12 offen"])
            hook(25, "a1w", ["s_waitcnt vmcnt(0)"])
            kw = ["ds_write_b128 v2, v[224:227]", "ds_write_b128 v2, v[228:231] offset:16", "ds_write_b128 v2, v[232:235] offset:4160",
                  "ds_write_b128 v2, v[236:239] offset:4176", "ds_write_b128 v3, v[196:199]", "ds_write_b128 v3, v[200:203] offset:4160",
                  "ds_write_b64 v6, v[204:205]", "ds_write_b64 v6, v[206:207] offset:4160", "ds_write_b64 v6, v[208:209] offset:512",
                  "ds_write_b64 v6, v[210:211] offset:4672", "ds_write_b32 v7, v4 offset:4096"]
            for k, x in enumerate(kw):
                dsx[(3 + k, "a2")] = [x]
            hook(28, "a5", [f"s_cmp_lt_u32 s{sG}, 3", f"s_cselect_b32 s13, {4*UTP-2048}, 0", "v_add_u32 v230, s13, v244"])
            r0 = self.round0()
            for j, pos in enumerate(("a1", "a2", "a3", "a5")):
                dsx[(31, pos)] = [x[1] for x in r0[6 * j:6 * j + 6]]
            dsx[(24, "a1")] = [f"ds_write_b64 v{UTZ}, v[4:5]"]
            dsx[(24, "a3")] = ["ds_write_b64 v249, v[4:5]"]
            for k in range(4):
                for e, pos in ((0, "a1"), (1, "a3")):
                    i = 2 * k + e
                    dsx.setdefault((25 + k, pos), []).extend(
                        [f"ds_write_b64 v{USW}, {v(URAW+2*i,2)}", f"ds_read_b64_tr_b16 {v(UTR+2*i,2)}, v{USR}"])
                    dsx.setdefault((26 + k, "a2" if e == 0 else "a5"), []).append(
                        f"ds_write_b64 v{UTW}, {v(UTR+2*i,2)} offset:{128*i}")
        if not isB:
            wpre = [x for q in range(15) for x in self.woread(q)]
            for n in range(23, 31):
                for pos in ("a1", "a2", "a3", "a5"):
                    if wpre:
                        dsx.setdefault((n, pos), []).append(wpre.pop(0))
        prio = {}
        for st, en in ((0, 1), (2, 5), (6, 14), (15, 22), (23, 30)):
            ln = en - st + 1
            for n in range(st, en + 1):
                prio[n] = 3 - (n - st) * 4 // max(ln, 4) if ln >= 4 else 3 - (n - st)
        prio[31] = 3 if isB else 0

        def run(n, pos):
            for ln in hk.get((n, pos), []):
                if isinstance(ln, tuple):
                    vq.append(ln[1])
                else:
                    a(ln)
            for ln in dsx.get((n, pos), []):
                a(ln)
                lg.issue("x")
        a(f"s_setprio {prio[0]}")
        for n in range(32):
            cur, nxt = S[n & 1], S[(n + 1) & 1]
            Vc, Vp = V[n & 1], V[(n + 1) & 1]
            eop = "v_exp_f32" if "noexp" not in self.x else "v_fract_f32"
            e = lambda lo, hi: [a(f"{eop} v{cur+i}, v{cur+i}") for i in range(lo, hi + 1)]
            e(0, 1)
            if n > 0:
                pv(O1, nxt + 24, Vp + 4)
            run(n, "a1w")
            if n < 31:
                rdV(n + 1, 0)
            run(n, "a1")
            e(2, 5)
            if n < 31:
                qk4(n + 1, nxt, 0)
            run(n, "a2")
            e(6, 9)
            if n < 31:
                qk4(n + 1, nxt, 1)
            e(10, 13)
            pv(O0, cur, Vc)
            if n < 31:
                rdV(n + 1, 1)
            run(n, "a3")
            e(14, 17)
            pv(O0, cur + 8, Vc + 4)
            if n < 31:
                lg.wait(("K16", n + 1))
            if n % 2 == 0 and n + 2 < 32:
                rdK4(n + 2)
            e(18, 21)
            if n < 31:
                qk16(nxt, QA)
            run(n, "a5")
            e(22, 25)
            if n < 31:
                qk16(nxt + 16, QB)
            last = len(lg.q)
            if n + 2 < 32:
                rdK16(n + 2)
            if n < 31 and prio[n + 1] != prio[n] and n not in bars:
                a(f"s_setprio {prio[n+1]}")
            e(26, 29)
            pv(O1, cur + 16, Vc)
            if n < 31:
                cnt = len(lg.q) - last
                if n == 5:
                    cnt, last = 0, len(lg.q)
                    lg.q.append(("K16", n + 2))
                w = f"lgkmcnt({cnt})"
                lg.q = lg.q[last:]
                if n in bars and (bars[n] == "all" or bars[n] in vq):
                    k = 0 if bars[n] == "all" else vq[::-1].index(bars[n])
                    w = f"vmcnt({k}) " + w
                a(f"s_waitcnt {w}")
                if n in bars:
                    if "bst" in self.x:
                        self.stamp(f"w{n}")
                    a("s_barrier")
                    a(f"s_setprio {prio[n+1]}")
                    if "bst" in self.x:
                        self.stamp(f"b{n}")
            e(30, 31)
        a("s_nop 1")
        pv(O1, S[1] + 24, V[1] + 4)
        self.stamp("attn")

    def lds_sync(self, off, n, vt):
        a = self.a
        lp, dn = a.label("Lsy"), a.label("Lsyd")
        a(f"v_mov_b32 v{vt}, {CNT+off}")
        a(f"v_mov_b32 v{vt+1}, 1")
        a("s_mov_b64 exec, 1")
        a(f"ds_add_u32 v{vt}, v{vt+1}")
        a("s_mov_b64 exec, -1")
        return lp, dn

    def lds_spin(self, lp, dn, n, vt):
        a = self.a
        a("s_mov_b32 s82, 0")
        a.put(lp)
        a(f"ds_read_b32 v{vt+1}, v{vt}")
        a("s_add_u32 s82, s82, 1")
        a("s_waitcnt lgkmcnt(0)")
        a(f"v_readfirstlane_b32 s83, v{vt+1}")
        a("s_cmp_gt_u32 s82, 0x40000")
        a(f"s_cbranch_scc1 {dn}")
        a(f"s_cmp_lt_u32 s83, {n}")
        a(f"s_cbranch_scc1 {lp}")
        a.put(dn)

    def setupB(self, P):
        a = self.a
        kcs, uts = (KPS, UTP) if P else (KCS, UTS)
        a(f"s_mul_i32 s11, s10, {kcs}")
        a(f"s_add_u32 s11, s11, {KC}")
        a("v_and_b32 v10, 15, v0")
        a("v_lshrrev_b32 v11, 4, v0")
        a("v_sub_u32 v12, 0x7ef, v10")
        a("v_lshrrev_b32 v12, 1, v12")
        a("v_lshl_add_u32 v12, v11, 2, v12")
        a("v_lshlrev_b32 v12, 2, v12")
        a("v_and_b32 v13, 1, v0")
        a("v_xor_b32 v13, 1, v13")
        a(f"v_mul_u32_u24 v13, {kcs//2}, v13")
        a(f"s_sub_u32 s12, s11, {960 + (2048 if P else 0)}")
        a("v_add3_u32 v240, v12, v13, s12")
        if P:
            a("v_subrev_u32 v241, 1024, v240")
            a(f"v_add_u32 v242, {4*KPS}, v240")
            a(f"v_add_u32 v243, {4*KPS}, v241")
        else:
            for b in range(1, 4):
                a(f"v_subrev_u32 v{240+b}, {1024*b}, v240")
        a("v_lshlrev_b32 v12, 5, v10")
        a(f"s_mul_i32 s12, s10, {uts}")
        a(f"s_add_u32 s12, s12, {UT}")
        a("v_lshl_add_u32 v13, v11, 4, v12")
        a("v_add_u32 v244, s12, v13")
        a("s_lshr_b32 s12, s10, 1")
        a("s_lshl_b32 s12, s12, 6")
        a("s_add_u32 s12, s12, s11")
        a("v_lshl_add_u32 v13, v11, 3, v12")
        a("v_add_u32 v245, s12, v13")
        a("v_bfe_u32 v12, v0, 2, 2")
        a(f"s_movk_i32 s12, {kcs}")
        a("v_lshrrev_b32 v13, 1, v12")
        a("v_lshlrev_b32 v13, 6, v13")
        a("v_mad_u32_u24 v13, v12, s12, v13")
        a("v_lshl_add_u32 v13, v11, 5, v13")
        a("v_and_b32 v12, 3, v0")
        a("v_lshl_add_u32 v13, v12, 3, v13")
        a("s_lshl_b32 s12, s10, 7")
        a(f"s_add_u32 s12, s12, {KC}")
        a("v_add_u32 v246, s12, v13")
        a("s_mul_i32 s11, s10, 163840")
        a(f"s_lshl_b32 s12, s{sD0}, 1")
        a("s_add_u32 s11, s11, s12")
        a("s_add_u32 s11, s11, 1280")
        a("s_movk_i32 s12, 2560")
        a("v_mov_b32 v247, s11")
        a("v_mad_u32_u24 v247, v0, s12, v247")
        a("v_sub_u32 v250, 1008, v8")
        a("v_lshlrev_b32 v251, 3, v0")
        a("v_sub_u32 v251, 1528, v251")
        a("v_and_b32 v12, 1, v11")
        a("v_mul_u32_u24 v12, 2112, v12")
        a("v_lshl_add_u32 v252, v10, 2, v12")
        a("v_lshlrev_b32 v248, 24, v0")
        a(f"s_add_u32 s11, s{sD0}, s10")
        a(f"s_lshr_b32 s12, s{sD0}, 3")
        a("s_lshl_b32 s12, s12, 7")
        a(f"s_add_u32 s99, s12, {FLG_K}")
        if P:
            a("s_mov_b32 s90, 0x80000000")
            a("s_mov_b32 s91, 0x80000000")
            a(f"s_mul_i32 s98, s{sD0}, {KPS}")
            a("s_lshl_b32 s12, s10, 10")
            a("s_add_u32 s98, s98, s12")
            a(f"s_add_u32 s98, s98, {KIMG}")
        else:
            a(f"s_mul_i32 s90, s11, {KPS}")
            a(f"s_add_u32 s90, s90, {KIMG}")
            a("s_and_b32 s12, s11, 7")
            a("s_lshl3_add_u32 s91, s12, s99")
            a("s_mov_b32 s98, 0")
        a("s_mul_i32 s11, s10, 6144")
        a(f"s_add_u32 s11, s11, {WO+40960}")
        a("v_add_u32 v9, s11, v8")
        a("s_lshr_b32 s11, s2, 3")
        a("s_mul_i32 s11, s11, 81920")
        a("s_and_b32 s12, s2, 7")
        a("s_mul_i32 s12, s12, 160")
        a("s_add_u32 s11, s11, s12")
        a("s_mul_i32 s12, s10, 156")
        a("s_add_u32 s11, s11, s12")
        a("s_cmp_lt_u32 s10, 2")
        a("s_cselect_b32 s11, s11, 0x80000000")
        a("s_movk_i32 s12, 1280")
        a("v_mov_b32 v154, s11")
        a("v_mad_u32_u24 v154, v0, s12, v154")

    def tailB(self):
        a = self.a
        for i in range(3):
            a(f"ds_write_b128 v9, {v(80+4*i,4)} offset:{1024*i}")
        a.nop(9)
        for i in range(3):
            a(f"ds_write_b128 v9, {v(96+4*i,4)} offset:{3072+1024*i}")
        a("s_mov_b64 exec, 1")
        a("ds_add_u32 v2, v3")
        a("s_mov_b64 exec, -1")
        a(f"s_cmp_lt_u32 s{sG}, 3")
        a("s_cbranch_scc1 L_tailP")
        self.conv(False)
        a.put("L_tailP")
        self.conv(True)
        a.put("L_kpoll")
        a("s_mov_b32 s82, 0")
        a.put("L_kpoll1")
        a(f"buffer_load_dwordx4 v[216:219], v222, s[{SWS}:{SWS+3}], s99 offen sc1")
        a("s_add_u32 s82, s82, 1")
        a("s_cmp_gt_u32 s82, 20000")
        a("s_waitcnt vmcnt(0)")
        a("s_cbranch_scc1 L_kin0")
        a(f"v_cmp_eq_u64 vcc, s[{sN}:{sN+1}], v[216:217]")
        a(f"v_cmp_eq_u64 s[84:85], s[{sN}:{sN+1}], v[218:219]")
        a("s_nop 0")
        a("s_and_b64 vcc, vcc, s[84:85]")
        a("s_cmp_eq_u64 vcc, -1")
        a("s_cbranch_scc0 L_kpoll1")
        a("s_branch L_kin0")

    def round0(self):
        out = []
        for k in (4, 5, 6, 7, 0, 1, 2, 3):
            out.append((("U", 0, k), f"ds_read_b128 {v(U0[k],4)}, v{230 if k >= 4 else 244} offset:{64*(8*k+7)}"))
        for k in range(8):
            o = 16 * (15 - 8 * (k & 1))
            for e in range(2):
                out.append((("K", 0, k), f"ds_read2_b32 {v(16+4*k+2*e,2)}, v{240+(k>>1)} offset0:{o+2*e} offset1:{o+2*e+1}"))
        return out

    def conv(self, P):
        a = self.a
        ACC = 144
        lg = LG(a, "lgkmcnt", 15)
        b2 = lambda r: 16 + 64 * (r & 1)

        def reads(r):
            base = b2(r)

            def K(k):
                sidx = 8 * (k & 3 if P else k) + r
                o = 16 * (15 - (sidx & 15))
                ar = 240 + (sidx >> 4) + (2 * (k >> 2) if P else 0)
                A = base + 4 * k
                return [(("K", r, k), f"ds_read2_b32 {v(A,2)}, v{ar} offset0:{o} offset1:{o+1}"),
                        (("K", r, k), f"ds_read2_b32 {v(A+2,2)}, v{ar} offset0:{o+2} offset1:{o+3}")]

            def U(k):
                e = 8 * (k & 3 if P else k) - r
                return [(("U", r, k), f"ds_read_b128 {v(base+32+4*k,4)}, v244 offset:{64*(e+7)+(4*UTP*(k>>2) if P else 0)}")]
            if P:
                out = []
                for c in (0, 4):
                    out += K(c) + U(c) + U(c + 1) + U(c + 2) + U(c + 3) + K(c + 1) + K(c + 2) + K(c + 3)
                return out
            out = K(0)
            for k in range(4, 8):
                out += U(k)
            for sg in range(1, 8):
                out += K(sg) + (U(4 - sg) if sg <= 4 else [])
            return out

        def emit(x):
            a(x[1])
            lg.issue(x[0])
        lg.q = [x[0] for x in self.round0()] + [None] * 7
        lw = [self.latewo(i, 224) for i in range(self.nla + self.nlb, 10)]
        lw0 = list(lw)
        self.stamp("T1")
        a(f"s_setprio {self.cp}")
        if P:
            a("s_cmp_lt_u32 s2, 80")
            a("s_cbranch_scc0 L_idle")
        self.stamp("cv_s")

        def fin(i):
            t = 16 + 2 * i
            off = 512 * (i & 3) + 4 * KPS * (i >> 2) if P else 512 * i
            return [f"v_cvt_pk_bf16_f32 v{t}, v{ACC+4*i}, v{ACC+4*i+1}",
                    f"v_cvt_pk_bf16_f32 v{t+1}, v{ACC+4*i+2}, v{ACC+4*i+3}", f"ds_write_b64 v245, {v(t,2)} offset:{off}"]

        def mm(i, A, B, first=False):
            return f"v_mfma_f32_16x16x32_bf16 {v(ACC+4*i,4)}, {v(A,4)}, {v(B,4)}, {'0' if first else v(ACC+4*i,4)}"
        outs = range(8) if P else range(4, 8)
        pend = []
        for r in range(8):
            base = b2(r)
            uf = lambda k: U0[k] if r == 0 else base + 32 + 4 * k
            nxt = reads(r + 1) if r < 7 else []
            ms = []
            if P:
                for c in (0, 4):
                    if r == 0:
                        ms += [(c + i, None, c + i, mm(c + i, 192 + 5 * c, uf(c + i), True)) for i in range(4)]
                    ms += [(c + i, c + sg, c + i - sg, mm(c + i, base + 4 * (c + sg), uf(c + i - sg))) for sg in range(4) for i in range(sg, 4)]
            else:
                if r == 0:
                    ms += [(i, None, i, mm(i, 192, uf(i), True)) for i in outs]
                ms += [(i, sg, i - sg, mm(i, base + 4 * sg, uf(i - sg))) for sg in range(8) for i in range(max(sg, 4), 8)]
            if r == 7:
                ms = [x for x in ms if x[0] != 7] + [x for x in ms if x[0] == 7]
            done = set()
            if r == 1 and self.cp != 1:
                a("s_setprio 1")
            if r == self.lr:
                assert not lw
                a("s_waitcnt vmcnt(0)")
                self.lds_sync(0, 8, 2)
                lg.issue(None)
            if "rst" in self.x:
                if r:
                    nm = f"r{r-1}"
                    if nm not in STN:
                        STN.append(nm)
                    a(f"v_writelane_b32 v254, s86, {STN.index(nm)}")
                    a(f"v_writelane_b32 v253, s88, {STN.index(nm)}")
                a("s_memtime s[86:87]")
            for n, (i, kk, uu, ln) in enumerate(ms):
                need = [t for t in (("K", r, kk), ("U", r, uu)) if t in lg.q]
                if need:
                    lg.wait(max(need, key=lambda t: max(q for q, z in enumerate(lg.q) if z == t)))
                y = lw.pop(0) if lw and r >= self.ls and n % self.lsp == self.lsp - 1 else None
                if y:
                    a(y[0])
                a(ln)
                if y:
                    a(y[2])
                if r == 7:
                    for j in outs:
                        last = max(q for q, z in enumerate(ms) if z[0] == j)
                        if j not in done and n >= last + 4:
                            done.add(j)
                            pend += fin(j)
                    for _ in range(2):
                        if pend:
                            y = pend.pop(0)
                            a(y)
                            if y.startswith("ds_"):
                                lg.issue(None)
                if n >= 1:
                    for _ in range(2 if len(nxt) > len(ms) - n else 1):
                        if nxt:
                            emit(nxt.pop(0))
            assert not nxt
        for j in outs:
            if j not in done:
                pend += fin(j)
        for ln in pend:
            a(ln)
        self.stamp("conv")
        lp, dn = self.lds_sync(8, 4, 2)
        self.lds_spin(lp, dn, 4 if "nohold" in self.x else 68, 2)
        self.stamp("T2")
        spol = " nt" if "snt" in self.x else ""
        if P:
            for i in range(4):
                a(f"ds_read_b64_tr_b16 {v(32+4*i,2)}, v246 offset:{512*i}")
                a(f"ds_read_b64_tr_b16 {v(34+4*i,2)}, v246 offset:{512*i+4*KPS}")
            for i in range(4):
                a(f"s_mov_b32 s12, {655360*i}")
                a(f"s_waitcnt lgkmcnt({6-2*i})")
                a(f"buffer_store_dwordx4 {v(32+4*i,4)}, v247, s[{SOUT}:{SOUT+3}], s12 offen{spol}")
        else:
            for i in outs:
                a(f"ds_read_b64_tr_b16 {v(32+2*i,2)}, v246 offset:{512*i}")
            for i in outs:
                a(f"s_mov_b32 s12, {655360*i}")
                a(f"s_waitcnt lgkmcnt({7-i})")
                a(f"buffer_store_dwordx2 {v(32+2*i,2)}, v247, s[{SOUT}:{SOUT+3}], s12 offen{spol}")
        a("s_branch L_fin")
        if P:
            a.put("L_idle")
            for y in lw0:
                for ln in y:
                    a(ln)
            a("s_waitcnt vmcnt(0)")
            self.lds_sync(0, 8, 2)
            a("s_branch L_fin")

    def setupA(self):
        a = self.a
        a(f"s_lshl_b32 s11, s{sW}, 11")
        a("s_lshr_b32 s12, s2, 3")
        a("s_add_u32 s11, s11, s12")
        a("s_lshl_b32 s11, s11, 7")
        a("v_lshl_add_u32 v154, v0, 12, s11")
        a(f"s_mul_i32 s11, s{sW}, 6144")
        a(f"s_add_u32 s11, s11, {WO+40960}")
        a("v_add_u32 v9, s11, v8")
        a(f"s_mul_i32 s14, s{sT}, 81920")
        a(f"s_add_u32 s14, s14, {OIMG}")
        a(f"s_mul_i32 s15, s{sG}, 2560")
        a("s_add_u32 s15, s15, s14")
        a("v_mov_b32 v144, 0xdddddddd")
        a("v_mov_b32 v145, v8")
        a(f"v_add_u32 v146, {SLOT}, v8")
        a(f"v_add_u32 v147, {2*SLOT}, v8")
        for r in range(16):
            a(f"v_mov_b64 {v(80+2*r,2)}, 0")

    def setupA2(self):
        return ["v_mov_b32 v10, v149", "v_mov_b32 v11, v150", f"v_add_u32 v149, {SLOT}, v148", f"v_add_u32 v150, {2*SLOT}, v148",
                f"v_add_u32 v152, {SLOT}, v151", f"v_add_u32 v153, {2*SLOT}, v151",
                f"s_and_b32 s13, s{sW}, 1", "s_mul_i32 s10, s13, 15360", "s_sub_u32 s10, s10, 10240", "s_mul_i32 s11, s13, 10240",
                "s_add_u32 s11, s11, 5120"] + [f"v_add_u32 v{240+k}, s{10 if k < 6 else 11}, v{240+k}" for k in range(10)] + [
                f"s_lshl_b32 s13, s{sW}, 3", f"s_mul_i32 s10, s{sG}, 160"] + [x for q, c in enumerate((0x0f0c0b0a, 0x0e0d1110, 0x09081312)) for x in (
                    f"s_lshr_b32 s11, {c:#x}, s13", "s_and_b32 s11, s11, 0xff", f"s_mul_i32 s11, s11, 40960", f"s_add_u32 s{93+q}, s11, s10")] + [
                "v_lshlrev_b32 v252, 24, v0"]

    def tables(self):
        out = []
        cols = [[] for _ in range(28)]
        for l in range(64):
            G, r, c = l >> 4, (l >> 2) & 3, l & 3
            for m in range(5):
                P = 4 * m + G
                g2, p = divmod(P, 10)
                for tt in range(2):
                    row = 80 * g2 + (20 * (p >> 1) + 4 * (p & 1) + 8 * tt if p < 8 else 20 * (p - 8 + 2 * tt) + 16)
                    cols[2 * m + tt].append(WO + 51200 + 160 * (row + r) + 8 * c)
            cols[10].append((l & 15) * 160 + 8 * G)
            for i in range(3):
                p = 64 * i + l
                cols[16 + i].append((p // 10) * 2560 + 16 * (p % 10) if p < 160 else 0x80000000)
            for i in range(8):
                p = 64 * i + l
                cols[20 + i].append((p // 10) * 1280 + 16 * (p % 10) if i < 5 else 0)
            pr = ((l & 3) ^ 2)
            cols[19].append(2560 * (pr + (pr & 2)) + 256 * ((PROBE >> (4 * ((l >> 2) & 7))) & 15))
            cols[11].append(8 * (l & 31))
            cols[12].append(2048 + 8 * l)
            cols[13].append((G & 1) * 20480 + 16 * (l & 15) + 256 * (l >> 5))
            cols[14].append(G * 20480 + 16 * (l & 15))
            cols[15].append(2560 + 336 * (l >> 5) + 16 * (l & 31) if (l & 31) <= 20 else 0x30000)
        out.append(".p2align 7")
        out.append(".type L_tabA,@object")
        out.append("L_tabA:")
        for k in range(7):
            for l in range(64):
                out.append(".long " + ", ".join(str(cols[4 * k + e][l]) for e in range(4)))
        return out

    def latewo(self, i, vb=155):
        return [f"s_add_u32 m0, s95, {1024*i-WO}" if i else f"s_sub_u32 m0, s95, {WO}", "s_nop 0",
                f"buffer_load_dwordx4 v{vb+i%5}, s[{SWO}:{SWO+3}], s{93+i//5} offen lds"]

    def wofrag(self, n):
        j = n % 25
        return 160 + 4 * j if j < 20 else 136 + 4 * (j - 20)

    def woread(self, n):
        k, ct = divmod(n, 5)
        F, m = self.wofrag(n), k % 5
        return [f"ds_read_b64_tr_b16 {v(F,2)}, v{240+2*m} offset:{32*ct}",
                f"ds_read_b64_tr_b16 {v(F+2,2)}, v{241+2*m} offset:{32*ct}"]

    def tailA(self):
        a = self.a
        O = (80, 96)
        AD, OF = 240, 16
        a("s_setprio 3")
        pre = [f"s_and_b32 s98, s{sW}, 1", "s_mul_i32 s12, s98, 5120", "s_add_u32 s14, s14, s12", f"s_mul_i32 s90, s{sW}, 20480",
               "s_add_u32 s90, s90, s14", f"s_xor_b32 s99, s{sW}, 1", "s_mul_i32 s91, s99, 20480", "s_add_u32 s91, s91, s14"]
        for ln in pre:
            a(ln)
        a("v_cmp_eq_u64 s[94:95], s[96:97], v[2:3]")
        a("s_mov_b32 s13, 0")
        a(f"s_mov_b32 s83, {f2u(2.0**48):#x}")
        a(f"s_add_u32 s12, s{sW}, {CNT+20}")
        a("v_mov_b32 v4, s12")
        a("s_mov_b32 s82, 0")
        a.put("L_t1")
        a("ds_read_u8 v5, v4")
        a("s_add_u32 s82, s82, 1")
        a("s_waitcnt lgkmcnt(0)")
        a("v_cmp_ne_u32 vcc, 0, v5")
        a("s_cmp_gt_u32 s82, 0x20000")
        a("s_cbranch_vccnz L_t1d")
        a("s_cbranch_scc0 L_t1")
        a.put("L_t1d")
        for i in (2, 5, 0, 1, 3, 4):
            a(f"ds_read_b128 {v(16+4*i,4)}, v9 offset:{1024*i}")
        self.stamp("T1")
        a("s_waitcnt lgkmcnt(4)")
        for T in range(2):
            a(f"v_add_f32 v{O[T]+8}, v{O[T]+8}, v{24+12*T}")
        a.put("L_lext")
        for T in range(2):
            a(f"v_mov_b32 v{40+2*T}, v{O[T]+8}")
            a(f"v_mov_b32 v{41+2*T}, v{O[T]+8}")
        for T in range(2):
            for i in (9, 10, 11):
                a(f"v_add_f32 v{O[T]+i}, v{O[T]+i}, v{16+12*T+i}")
        a("v_permlane32_swap_b32 v40, v41")
        a("v_permlane32_swap_b32 v42, v43")
        a("s_cmp_eq_u32 s13, 1")
        a("v_rcp_f32 v44, v41")
        a("v_rcp_f32 v45, v43")
        a("v_min_f32 v40, v41, v43")
        a("v_max_f32 v42, v41, v43")
        for T in range(2):
            a(f"s_waitcnt lgkmcnt({2-2*T})")
            for i in range(8):
                a(f"v_add_f32 v{O[T]+i}, v{O[T]+i}, v{16+12*T+i}")
            for i in range(12):
                a(f"v_mul_f32 v{O[T]+i}, v{O[T]+i}, v{44+T}")
            for q in range(4):
                a(f"v_cvt_pk_bf16_f32 v{124+4*T+q}, v{O[T]+2*q}, v{O[T]+2*q+1}")
            for q in range(2):
                a(f"v_cvt_pk_bf16_f32 v{132+2*T+q}, v{O[T]+8+2*q}, v{O[T]+9+2*q}")
        a("s_cbranch_scc1 L_norm")
        a("v_permlane32_swap_b32 v132, v134")
        a("v_permlane32_swap_b32 v133, v135")
        for T in range(2):
            for q in range(6):
                a(f"v_fmac_f32 v6, v{O[T]+2*q}, v{O[T]+2*q+1}")
        a("v_cmp_ge_f32 s[84:85], s83, v42")
        a("v_fmac_f32 v40, 0, v6")
        a(f"v_cmp_le_f32 vcc, {f2u(2.0**-24):#x}, v40")
        a("s_nop 0")
        a("s_and_b64 vcc, vcc, s[84:85]")
        a("s_cmp_eq_u64 vcc, -1")
        a("s_branch L_slow" if self.force_slow else "s_cbranch_scc0 L_slow")
        a.put("L_norm2")
        ACC, TR, NR = 96, 40, 25
        WS_ = f"s[{SWS}:{SWS+3}]"

        def ostore(pol):
            a(f"buffer_store_dwordx4 v[124:127], v10, {WS_}, s10 offen{pol}")
            a(f"buffer_store_dwordx4 v[128:131], v10, {WS_}, s11 offen{pol}")
            a(f"buffer_store_dwordx2 v[132:133], v11, {WS_}, s15 offen offset:2048{pol}")
        a("s_cmp_eq_u64 s[94:95], -1")
        a("s_branch L_far" if "far" in self.x else "s_cbranch_scc0 L_far")
        ostore(" nt" if "int" in self.x else "")
        a.put("L_pod")
        self.stamp("Oiss")
        if "aexit" in self.x:
            a("s_branch L_fin")
        a(f"buffer_load_dwordx4 {v(ACC,4)}, v15, {WS_}, s90 offen sc1")

        def issue(n):
            for ln in self.woread(n):
                a(ln)
        for n in range(15, 25):
            issue(n)
        a("s_mov_b32 s82, 0")
        a("s_waitcnt vmcnt(4)")
        lp, dn = self.lds_sync(0, 4, 4)
        self.stamp("Ostored")
        a.put("L_pr")
        a("s_waitcnt vmcnt(0)")
        a(f"v_max_u32 v6, v{ACC}, v{ACC+2}")
        a("s_add_u32 s82, s82, 1")
        a("v_cmp_eq_u32 vcc, -1, v6")
        a("s_cbranch_vccz L_prd")
        a("s_cmp_gt_u32 s82, 20000")
        a("s_cbranch_scc1 L_prd")
        for f in self.x:
            if f.startswith("osl"):
                a(f"s_sleep {f[3:]}")
        a(f"buffer_load_dwordx4 {v(ACC,4)}, v15, {WS_}, s90 offen sc1")
        a("s_branch L_pr")
        a.put("L_prd")
        self.stamp("Oseen")

        def oload(k):
            o = 10240 + 1024 * k if k < 5 else 1024 * (k - 5)
            for rt in range(2):
                a(f"s_add_u32 s13, s{90+rt}, {o & ~4095}")
                a(f"buffer_load_dwordx4 {v(OF+8*k+4*rt,4)}, v8, s[{SWS}:{SWS+3}], s13 offen offset:{o & 4095} sc1")
        for k in range(NUP):
            oload(k)
        a(f"v_mov_b32 v2, {CNT+8}")
        a("v_mov_b32 v3, 16")
        if NUP == 10 and "nohold" not in self.x:
            a("s_mov_b64 exec, 1")
            a("ds_add_u32 v2, v3")
            a("s_mov_b64 exec, -1")
        a("s_mul_i32 s84, s98, 10240")
        a("s_sub_u32 s84, s84, 40960")
        a("s_mul_i32 s85, s98, 66560")
        a("s_sub_u32 s85, s85, 56320")
        for k in range(10):
            a(f"v_add_u32 v{AD+k}, s{84 if k < 6 else 85}, v{AD+k}")
        a(f"s_mul_i32 s12, s{sW}, 5120")
        a(f"s_add_u32 s12, s12, {WO+40960}")
        a("v_add_u32 v9, s12, v8")
        a("s_mul_i32 s12, s99, 5120")
        a(f"s_add_u32 s12, s12, {WO+40960}")
        a("v_add_u32 v1, s12, v8")
        a("v_add_u32 v250, s12, v250")
        a(f"s_and_b32 s12, s{sW}, 2")
        a(f"s_lshl2_add_u32 s12, s12, {CNT+4}")
        a("v_mov_b32 v7, s12")
        self.lds_spin(lp, dn, 8, 4)
        self.stamp("T2")
        a(f"s_setprio {OPRIO}")
        a(f"s_lshl_b32 s12, s{sT}, 6")
        a(f"s_lshl4_add_u32 s12, s{sW}, s12")
        a("s_mul_i32 s12, s12, 2560")
        a(f"s_mul_i32 s84, s{sG}, 160")
        a("s_add_u32 s12, s12, s84")
        a("v_mov_b32 v5, 1")
        RS = 0
        if "rest" in self.x:
            assert NUP == 10
            RS = 3
            a("s_waitcnt vmcnt(0)")
            ostore(" sc1")
        a("s_mov_b32 s82, 0")
        nld = [NUP]

        def more():
            for kk in range(nld[0], min(10, nld[0] + OST)):
                oload(kk)
                if kk == 9 and "nohold" not in self.x:
                    a("s_mov_b64 exec, 1")
                    a("ds_add_u32 v2, v3")
                    a("s_mov_b64 exec, -1")
            nld[0] = min(10, nld[0] + OST)

        def chk(k):
            F = OF + 8 * k
            return [f"v_max3_u32 v6, v{F}, v{F+2}, v{F+4}", f"v_max_u32 v6, v6, v{F+6}", "v_cmp_eq_u32 vcc, -1, v6"]

        def mm(n, rt):
            k, ct = divmod(n, 5)
            F = self.wofrag(n)
            D = ACC + 20 * rt + 4 * ct
            a(f"v_mfma_f32_16x16x32_bf16 {v(D,4)}, {v(F,4)}, {v(OF+8*k+4*rt,4)}, {'0' if k == 0 else v(D,4)}")
        more()
        a(f"s_waitcnt vmcnt({2*(nld[0]-1)+RS})")
        for ln in chk(0):
            a(ln)
        KS = 6
        for k in range(10):
            lk = {8: 10, 9: 0}.get(k, 15)
            a(f"s_cbranch_vccnz L_re{k}")
            a.put(f"L_ok{k}")
            if k >= 5:
                a(f"s_waitcnt lgkmcnt({lk})")
            if k == 0:
                self.stamp("op0")
            c = chk(k + 1) if k < 9 else None
            if k < KS:
                for n in range(5 * k, 5 * k + 5):
                    rd = self.woread(n - 1 + NR) if n >= 1 and n - 1 + NR < 50 else []
                    mm(n, 0)
                    for ln in rd[:1]:
                        a(ln)
                    if n % 5 == 0:
                        more()
                    if n % 5 == 3:
                        a(f"s_waitcnt vmcnt({2*(nld[0]-k-2)+RS})")
                        a(c[0])
                    if n % 5 == 4:
                        a(c[2])
                    mm(n, 1)
                    for ln in rd[1:]:
                        a(ln)
                    if n % 5 == 3:
                        a(c[1])
            else:
                for n in range(5 * k, 5 * k + 5):
                    mm(n, 1)
                    if c and n % 5 == 0:
                        a(f"s_waitcnt vmcnt({2*(nld[0]-k-2)+RS})")
                    if c and n % 5 < 3:
                        a(c[n % 5])
        exr = ["ds_read_b32 v6, v7"] + [f"ds_read_b128 {v(TR+4*ct,4)}, v1 offset:{1024*ct}" for ct in range(5)]
        fill = {1 + j: [f"ds_write_b128 v9, {v(ACC+20+4*j,4)} offset:{1024*j}"] for j in range(5)}
        fill[6] = ["s_mov_b64 exec, 1", "ds_add_u32 v7, v5", "s_mov_b64 exec, -1"]
        for j, ln in enumerate(exr):
            fill[EXR + j] = [ln]
        for j, n in enumerate(range(5 * KS, 50)):
            mm(n, 0)
            for ln in fill.get(j, []):
                a(ln)
        self.stamp("op50")
        a("s_mov_b32 s82, 0")
        a.put("L_ex")
        a("s_add_u32 s82, s82, 1")
        a("s_waitcnt lgkmcnt(5)")
        a("v_readfirstlane_b32 s83, v6")
        a("s_cmp_gt_u32 s82, 0x40000")
        a("s_cbranch_scc1 L_exd")
        a("s_cmp_lt_u32 s83, 2")
        a("s_cbranch_scc0 L_exd")
        for ln in exr:
            a(ln)
        a("s_branch L_ex")
        a.put("L_exd")
        for ct in range(5):
            a(f"s_waitcnt lgkmcnt(4)")
            for e in range(4):
                a(f"v_add_f32 v{ACC+4*ct+e}, v{ACC+4*ct+e}, v{TR+4*ct+e}")
            a(f"v_cvt_pk_bf16_f32 v{16+2*ct}, v{ACC+4*ct}, v{ACC+4*ct+1}")
            a(f"v_cvt_pk_bf16_f32 v{17+2*ct}, v{ACC+4*ct+2}, v{ACC+4*ct+3}")
            a(f"ds_write_b64 v250, {v(16+2*ct,2)} offset:{32*ct}")
        for i in range(3):
            a(f"ds_read_b128 {v(28+4*i,4)}, v1 offset:{1024*i}")
        pol = " nt" if "ont" in self.x else " sc1" if "osc1" in self.x else ""
        for i in range(3):
            a(f"s_waitcnt lgkmcnt({2-i})")
            a(f"buffer_store_dwordx4 {v(28+4*i,4)}, v{12+i}, s[{SOUT}:{SOUT+3}], s12 offen{pol}")
        a("s_branch L_fin")
        a.put("L_norm")
        a("v_permlane32_swap_b32 v132, v134")
        a("v_permlane32_swap_b32 v133, v135")
        a("s_branch L_norm2")
        a.put("L_far")
        ostore(" sc1")
        a("s_mov_b32 s82, 0")
        a.put("L_po")
        a(f"v_xor_b32 v3, s{sN+1}, v3")
        a(f"v_xor_b32 v2, s{sN}, v2")
        a("v_lshl_or_b32 v2, v3, 4, v2")
        a("s_add_u32 s82, s82, 1")
        a("v_cmp_ne_u32 vcc, 0, v2")
        a("s_cbranch_vccz L_pod")
        a("s_cmp_gt_u32 s82, 20000")
        a("s_cbranch_scc1 L_pod")
        a(f"buffer_load_dwordx2 v[2:3], v251, {WS_}, s92 offen sc1")
        a("s_waitcnt vmcnt(0)")
        a("s_branch L_po")
        for k in range(10):
            a.put(f"L_re{k}")
            oload(k)
            a("s_add_u32 s82, s82, 1")
            a("s_cmp_gt_u32 s82, 20000")
            a("s_waitcnt vmcnt(0)")
            a(f"s_cbranch_scc1 L_ok{k}")
            for ln in chk(k):
                a(ln)
            a(f"s_cbranch_vccnz L_re{k}")
            a(f"s_branch L_ok{k}")

    def slow(self):
        a = self.a
        S0, O0, O1, QA, QB, Q4, K4, K16, V, IDX, AV = 16, 80, 96, 112, 116, 120, 122, 124, 128, 144, 151
        M0, M1 = 60, 61
        a.put("L_slow")
        a("v_and_b32 v62, 31, v0")
        a("v_lshlrev_b32 v62, 3, v62")
        a(f"v_mov_b32 v{M0}, 0xff800000")
        a(f"v_mov_b32 v{M1}, 0xff800000")
        for ps in range(2):
            if ps == 1:
                for M, t in ((M0, 63), (M1, 64)):
                    a(f"v_mov_b32 v{t}, v{M}")
                a("s_nop 1")
                a(f"v_permlane32_swap_b32 v{M0}, v63")
                a(f"v_permlane32_swap_b32 v{M1}, v64")
                a("s_nop 1")
                a(f"v_max_f32 v{M0}, v{M0}, v63")
                a(f"v_max_f32 v{M1}, v{M1}, v64")
                for r in range(32):
                    a(f"v_mov_b32 v{O0+r}, 0")
            a("s_mov_b32 s8, 0")
            a.put(f"L_sl{ps}")
            a("s_lshr_b32 s9, s8, 1")
            a(f"s_mul_i32 s9, s9, {BLK}")
            a("s_and_b32 s82, s8, 1")
            a("s_lshl_b32 s12, s82, 10")
            a("s_add_u32 s12, s12, s9")
            a(f"buffer_load_dwordx4 {v(K16,4)}, v8, s[{SWS}:{SWS+3}], s12 offen sc1")
            a("s_lshl_b32 s12, s82, 8")
            a("s_add_u32 s12, s12, s9")
            a(f"buffer_load_dwordx2 {v(K4,2)}, v62, s[{SWS}:{SWS+3}], s12 offen offset:2048 sc1")
            if ps == 1:
                a("s_mul_i32 s12, s82, 1344")
                a("s_add_u32 s12, s12, s9")
                a(f"buffer_load_dwordx4 {v(V,4)}, v{AV}, s[{SWS}:{SWS+3}], s12 offen sc1")
                a(f"buffer_load_dwordx4 {v(V+4,4)}, v{AV}, s[{SWS}:{SWS+3}], s12 offen offset:672 sc1")
            a("s_waitcnt vmcnt(0)")
            a(f"v_mfma_f32_32x32x4_2b_bf16 {v(S0,32)}, {v(K4,2)}, {v(Q4,2)}, 0 cbsz:1 abid:0")
            a.nop(18)
            a(f"v_mfma_f32_32x32x16_bf16 {v(S0,16)}, {v(K16,4)}, {v(QA,4)}, {v(S0,16)}")
            a(f"v_mfma_f32_32x32x16_bf16 {v(S0+16,16)}, {v(K16,4)}, {v(QB,4)}, {v(S0+16,16)}")
            a.nop(14)
            if ps == 0:
                for T, M in ((0, M0), (1, M1)):
                    for r in range(0, 16, 2):
                        a(f"v_max3_f32 v{M}, v{S0+16*T+r}, v{S0+16*T+r+1}, v{M}")
            else:
                for T, M in ((0, M0), (1, M1)):
                    for r in range(16):
                        a(f"v_sub_f32 v{S0+16*T+r}, v{S0+16*T+r}, v{M}")
                for r in range(32):
                    a(f"v_exp_f32 v{S0+r}, v{S0+r}")
                a("s_nop 1")
                for T, O in ((0, O0), (1, O1)):
                    for f in range(2):
                        a(f"v_smfmac_f32_32x32x32_bf16 {v(O,16)}, {v(V+4*f,4)}, {v(S0+16*T+8*f,8)}, v{IDX}")
                a.nop(14)
            a("s_add_u32 s8, s8, 1")
            a("s_cmp_lt_u32 s8, 64")
            a(f"s_cbranch_scc1 L_sl{ps}")
        for r in range(16, 40, 2):
            a(f"v_mov_b64 {v(r,2)}, 0")
        a("s_mov_b32 s13, 1")
        a("s_branch L_lext")

    def dump(self):
        a = self.a
        a.put("L_dump")
        a("s_waitcnt vmcnt(0) lgkmcnt(0)")
        a("s_barrier")
        a(f"s_lshl_b32 s10, s{sW}, 10")
        a("v_lshl_add_u32 v250, v0, 4, s10")
        a(f"s_mul_i32 s11, s2, {LDS_BYTES}")
        a(f"s_add_u32 s11, s11, {DBG}")
        a("v_mov_b32 v251, v250")
        for i in range(20):
            a("ds_read_b128 v[252:255], v251")
            a("s_waitcnt lgkmcnt(0)")
            a(f"buffer_store_dwordx4 v[252:255], v250, s[{SWS}:{SWS+3}], s11 offen")
            a("s_waitcnt vmcnt(0)")
            a("v_add_u32 v251, 0x2000, v251")
            a("s_add_u32 s11, s11, 0x2000")
        if self.dump_regs:
            lo, n = self.dump_regs
            a(f"s_lshl_b32 s10, s2, 3")
            a(f"s_add_u32 s10, s10, s{sW}")
            a(f"s_mul_i32 s10, s10, {256*n}")
            a(f"s_add_u32 s10, s10, {DBG + 256*LDS_BYTES}")
            a("v_lshlrev_b32 v250, 2, v0")
            for i in range(n):
                a(f"buffer_store_dword v{lo+i}, v250, s[{SWS}:{SWS+3}], s10 offen")
                a("s_add_u32 s10, s10, 256")
            a("s_waitcnt vmcnt(0)")
        a("s_endpgm")

    def build(self):
        a = self.a
        self.prologue()
        self.startA()
        self.qfinish()
        self.attention(False)
        self.tailA()
        for ln in self.stubs:
            a(ln)
        for f in self.x:
            if f.startswith("pad"):
                for _ in range(16 * int(f[3:])):
                    a("s_endpgm")
        a.put("L_B0")
        self.startB()
        self.bphase1()
        self.attention(True)
        self.tailB()
        self.slow()
        if self.stop:
            self.dump()
        a.put("L_fin")
        a("s_waitcnt lgkmcnt(0)")
        if self.stamps:
            self.stamp("issued")
            a("s_waitcnt vmcnt(0)")
            self.stamp("end")
            a("s_memrealtime s[86:87]")
            a("s_lshl_b32 s10, s2, 3")
            a(f"s_add_u32 s10, s10, s{sW}")
            a("s_lshl_b32 s10, s10, 9")
            a(f"s_add_u32 s10, s10, {STAMP}")
            a("v_lshlrev_b32 v1, 2, v0")
            a("s_waitcnt lgkmcnt(0)")
            a("v_writelane_b32 v254, s86, 63")
            a(f"buffer_store_dword v254, v1, s[{SWS}:{SWS+3}], s10 offen")
            a(f"buffer_store_dword v253, v1, s[{SWS}:{SWS+3}], s10 offen offset:256")
        if self.rt:
            a("s_cmp_lt_u32 s2, 250")
            a("s_cbranch_scc1 L_end")
            a(f"s_cmp_eq_u32 s{sW}, 4")
            a("s_cbranch_scc0 L_end")
            a("s_waitcnt vmcnt(0)")
            a("s_memrealtime s[86:87]")
            a("s_memtime s[94:95]")
            a("s_sub_u32 s10, s2, 248")
            a("s_lshl_b32 s10, s10, 3")
            a("v_mov_b32 v1, s10")
            a("s_waitcnt lgkmcnt(0)")
            a("s_sub_u32 s94, s94, s96")
            a(f"s_sub_u32 s86, s86, s{sN}")
            a("v_mov_b32 v4, s86")
            a("v_mov_b32 v5, s94")
            a("s_mov_b64 exec, 1")
            a("global_store_dwordx2 v1, v[4:5], s[46:47]")
        a.put("L_end")
        a("s_endpgm")
        if self.x & {"inp", "inq"}:
            ix = lambda t: [i for i, ln in enumerate(a.lines) if ln.strip() == t][0]
            i0, i1 = ix("L_B0:"), ix("L_kg:")
            blk = a.lines[i0:i1]
            del a.lines[i0:i1]
            if "inp" in self.x:
                j = ix("s_cbranch_scc0 L_B0")
                a.lines[j:j + 1] = ["    s_cbranch_scc1 L_A0"] + blk[1:] + ["L_A0:"]
            else:
                j = ix("L_a_C:")
                a.lines[j:j] = blk
        a.put("L_codeend")
        a.lines += self.tables()
        return a


HEAD = open("cdna_kernels/" + NAME + ".s.ref").read().split("; Override launch")[0]


def emit(path, **kw):
    g = Gen(**kw)
    a = g.build()
    a.lines, msgs = autofix(a.lines)
    if kw.get("verbose", path.endswith("prompt.s")):
        for m in msgs[:30]:
            print("fixed", m)
    assert not check_hazards(a.lines)
    if path.endswith('prompt.s'):
        for m in check_inflight(a.lines)[:30]:
            print(m)
    src = HEAD + f"""; @launch grid=(256,1,1) block=(512,1,1) lds={LDS_BYTES}
.amdgcn_target "amdgcn-amd-amdhsa--gfx950"
.text
.globl {NAME}_kernel
.p2align 8
.type {NAME}_kernel,@function
{NAME}_kernel:
{a.text()}.section .rodata,"a"
.p2align 6
.amdhsa_kernel {NAME}_kernel
  .amdhsa_next_free_vgpr 256
  .amdhsa_next_free_sgpr 102
  .amdhsa_accum_offset 256
  .amdhsa_group_segment_fixed_size 0
  .amdhsa_kernarg_size 136
  .amdhsa_user_sgpr_count 2
  .amdhsa_user_sgpr_kernarg_segment_ptr 1
  .amdhsa_system_sgpr_workgroup_id_x 1
.end_amdhsa_kernel
"""
    open(path, "w").write(src)
    if path.endswith('prompt.s'):
        print('klen', g.klen, 'lastpk', g.kpk, 'left', g.kleft)
    return len(msgs)


if __name__ == "__main__":
    import os
    os.makedirs("out", exist_ok=True)
    n = emit("cdna_kernels/" + NAME + ".s")
    emit("b6.s", stop="e0")
    emit("t1.s", stop="t1", dump_regs=(80, 32))
    emit("full.s")
    emit("slow.s", force_slow=True)
    emit("stamp.s", stamps=True)
    emit("rt.s", rt=True)
    for arg in sys.argv[1:]:
        emit(f"stamp_{arg}.s", stamps=True, x=arg.split("+"))
        emit(f"full_{arg}.s", x=arg.split("+"))
    open("stn.txt", "w").write(" ".join(STN))
    print("hazards", n)
```
